```python
import torch

def _softmax(x, axis=-1):
    return torch.softmax(x, dim=axis)
def _gelu(x):
    return torch.nn.functional.gelu(x, approximate="tanh")
def _silu(x):
    return torch.nn.functional.silu(x)
def _sigmoid(x):
    return torch.sigmoid(x)
def _layernorm(x, axis=-1, eps=1e-5):
    m = x.mean(dim=axis, keepdim=True)
    v = x.var(dim=axis, keepdim=True, unbiased=False)
    return (x - m) / torch.sqrt(v + eps)
def _scatter_add(tgt, idx, src, axis=0):
    return tgt.clone().index_add_(axis, idx, src)
def _segment_sum(src, seg, n):
    out = torch.zeros((n,) + src.shape[1:], dtype=src.dtype)
    return out.index_add_(0, seg, src)
def _pad(x, pw):
    flat = tuple(v for pair in reversed(pw) for v in pair)
    return torch.nn.functional.pad(x, flat)

kernel_name = 'recurrent_scan__spectral_fnet__dense_activation_gelu__prompt'

def setup_inputs():

    _w = (lambda a: (lambda t: t.to(torch.bfloat16) if t.is_floating_point() else t)(torch.as_tensor(a)))
    def _A_setup():
        B, S, D = 1, 2048, 1024
        ns = torch.arange(S)[:, None] * torch.arange(S)[None, :]
        nd = torch.arange(D)[:, None] * torch.arange(D)[None, :]
        Ws_re = torch.cos(-2.0 * torch.pi * ns / S).to(float)
        Ws_im = torch.sin(-2.0 * torch.pi * ns / S).to(float)
        Wd_re = torch.cos(-2.0 * torch.pi * nd / D).to(float)
        Wd_im = torch.sin(-2.0 * torch.pi * nd / D).to(float)
        return {
            "x": _w((lambda *s: torch.randn(*s, dtype=torch.bfloat16) * 0.05)(B, S, D)),
            "dft_seq_re": _w(Ws_re),
            "dft_seq_im": _w(Ws_im),
            "dft_hid_re": _w(Wd_re),
            "dft_hid_im": _w(Wd_im),
        }
    _A_in = _A_setup()

    def _B_setup():
        B, S, D, F = 1, 2048, 1024, 3584
        return {
            "x": _w((lambda *s: torch.randn(*s, dtype=torch.bfloat16) * 0.05)(B, S, D)),
            "w1": _w((lambda *s: torch.randn(*s, dtype=torch.bfloat16) * 0.2)(D, F) * (D ** -0.5)),
            "b1": _w((lambda *s: torch.randn(*s, dtype=torch.bfloat16) * 3.2)(F) * 0.01),
            "w2": _w((lambda *s: torch.randn(*s, dtype=torch.bfloat16) * 0.05)(F, D) * (F ** -0.5)),
            "b2": _w((lambda *s: torch.randn(*s, dtype=torch.bfloat16) * 0.1)(D) * 0.01),
        }
    _B_in = _B_setup()

    return {
        "A_x": _A_in["x"],
        "A_dft_seq_re": _A_in["dft_seq_re"],
        "A_dft_seq_im": _A_in["dft_seq_im"],
        "A_dft_hid_re": _A_in["dft_hid_re"],
        "A_dft_hid_im": _A_in["dft_hid_im"],
        "B_x": _B_in["x"],
        "B_w1": _B_in["w1"],
        "B_b1": _B_in["b1"],
        "B_w2": _B_in["w2"],
        "B_b2": _B_in["b2"],
    }

def reference(A_x, A_dft_seq_re, A_dft_seq_im, A_dft_hid_re, A_dft_hid_im, B_x, B_w1, B_b1, B_w2, B_b2):
    def _A_ref(x, dft_seq_re, dft_seq_im, dft_hid_re, dft_hid_im):
        a = torch.einsum("bsd,ed->bse", x, dft_hid_re)
        b = torch.einsum("bsd,ed->bse", x, dft_hid_im)
        y = torch.einsum("ts,bse->bte", dft_seq_re, a) - torch.einsum("ts,bse->bte", dft_seq_im, b)
        return y

    def _B_ref(x, w1, b1, w2, b2):
        h = torch.einsum("bsd,df->bsf", x, w1) + b1
        h = _gelu(h)
        return torch.einsum("bsf,fd->bsd", h, w2) + b2

    x = A_x
    xn = _layernorm(x, axis=-1)
    s = _A_ref(xn, A_dft_seq_re, A_dft_seq_im, A_dft_hid_re, A_dft_hid_im)
    g = _silu(_B_ref(xn, B_w1, B_b1, B_w2, B_b2))
    return x + s * g
```

```python
import sys, math

KN = "recurrent_scan__spectral_fnet__dense_activation_gelu__prompt"

MB = 1 << 20
WS_XN = 0
WS_AT = 4 * MB
WS_H = 12 * MB
WS_P0 = 32 * MB
WS_P1 = 36 * MB
WS_P2 = 40 * MB
WS_P3 = 48 * MB

OPT = dict(design1='B', design2='B', S1=2, S2=3, X=8)


class E:
    def __init__(s):
        s.L = []

    def __call__(s, x):
        s.L.append("    " + x)

    def lab(s, x):
        s.L.append(x + ":")

    def c(s, x):
        s.L.append("    ; " + x)

    def ext(s, lst):
        for x in lst:
            s(x)


def srd(e, d, lo, hi, nbytes, add=0):
    if add:
        e(f"s_add_u32 s{d}, s{lo}, {add}")
        e(f"s_addc_u32 s{d+1}, s{hi}, 0")
    else:
        e(f"s_mov_b32 s{d}, s{lo}")
        e(f"s_mov_b32 s{d+1}, s{hi}")
    e(f"s_mov_b32 s{d+2}, {nbytes}")
    e(f"s_mov_b32 s{d+3}, 0x20000")


def kdesc(e, name, vgpr, accoff, sgpr=102):
    e.L.append('.section .rodata,"a"')
    e.L.append(".p2align 6")
    e.L.append(f".amdhsa_kernel {name}")
    e.L.append(f"  .amdhsa_next_free_vgpr {vgpr}")
    e.L.append(f"  .amdhsa_next_free_sgpr {sgpr}")
    e.L.append(f"  .amdhsa_accum_offset {accoff}")
    e.L.append("  .amdhsa_group_segment_fixed_size 0")
    e.L.append("  .amdhsa_kernarg_size 104")
    e.L.append("  .amdhsa_user_sgpr_count 2")
    e.L.append("  .amdhsa_user_sgpr_kernarg_segment_ptr 1")
    e.L.append("  .amdhsa_system_sgpr_workgroup_id_x 1")
    e.L.append(".end_amdhsa_kernel")
    e.L.append(".text")


def khead(e, name):
    e.L.append(f".globl {name}")
    e.L.append(".p2align 8")
    e.L.append(f".type {name},@function")
    e.lab(name)


def gen_ln(e):
    name = "ln_kernel"
    khead(e, name)
    e("s_cmp_ge_u32 s2, 512")
    e("s_cbranch_scc1 ln_done")
    e("s_load_dwordx2 s[4:5], s[0:1], 0")
    e("s_load_dwordx2 s[6:7], s[0:1], 96")
    e("v_lshrrev_b32 v1, 6, v0")
    e("v_and_b32 v2, 63, v0")
    e("s_lshl_b32 s3, s2, 2")
    e("v_add_u32 v1, s3, v1")
    e("v_lshlrev_b32 v1, 11, v1")
    e("v_lshl_add_u32 v1, v2, 4, v1")
    e("s_waitcnt lgkmcnt(0)")
    srd(e, 8, 4, 5, 4 * MB)
    srd(e, 12, 6, 7, 4 * MB, WS_XN)
    e("buffer_load_dwordx4 v[4:7], v1, s[8:11], 0 offen")
    e("buffer_load_dwordx4 v[8:11], v1, s[8:11], 0 offen offset:1024")
    e("s_waitcnt vmcnt(0)")
    for i in range(8):
        e(f"v_lshlrev_b32 v{16+2*i}, 16, v{4+i}")
        e(f"v_and_b32 v{17+2*i}, 0xffff0000, v{4+i}")

    def tree(dst, src):
        for i in range(8):
            e(f"v_add_f32 v{40+i}, v{src+2*i}, v{src+2*i+1}")
        for i in range(4):
            e(f"v_add_f32 v{40+i}, v{40+i}, v{44+i}")
        e("v_add_f32 v40, v40, v42")
        e("v_add_f32 v41, v41, v43")
        e(f"v_add_f32 v{dst}, v40, v41")

    def wred(v, sdst):
        for sh in (1, 2, 4, 8):
            e("s_nop 1")
            e(f"v_add_f32_dpp v{v}, v{v}, v{v} row_ror:{sh} row_mask:0xf bank_mask:0xf")
        e("s_nop 1")
        e(f"v_readlane_b32 s20, v{v}, 0")
        e(f"v_readlane_b32 s21, v{v}, 16")
        e(f"v_readlane_b32 s22, v{v}, 32")
        e(f"v_readlane_b32 s23, v{v}, 48")
        e("s_nop 1")
        e(f"v_mov_b32 v{v}, s20")
        e(f"v_add_f32 v{v}, s21, v{v}")
        e(f"v_mov_b32 v48, s22")
        e(f"v_add_f32 v48, s23, v48")
        e(f"v_add_f32 v{v}, v{v}, v48")

    tree(3, 16)
    wred(3, 24)
    e("v_mul_f32 v3, 0x3a800000, v3")
    for i in range(16):
        e(f"v_sub_f32 v{52+i}, v{16+i}, v3")
    for i in range(16):
        e(f"v_mul_f32 v{52+i}, v{52+i}, v{52+i}")
    tree(12, 52)
    wred(12, 25)
    e("v_mul_f32 v12, 0x3a800000, v12")
    e("v_cvt_pk_bf16_f32 v13, v3, v12")
    e("v_lshlrev_b32 v3, 16, v13")
    e("v_and_b32 v12, 0xffff0000, v13")
    e("v_add_f32 v12, 0x3727c5ac, v12")
    e("v_cvt_pk_bf16_f32 v13, v12, v12")
    e("v_lshlrev_b32 v12, 16, v13")
    e("v_sqrt_f32 v12, v12")
    e("s_nop 0")
    e("v_cvt_pk_bf16_f32 v13, v12, v12")
    e("v_lshlrev_b32 v12, 16, v13")
    e("v_rcp_f32 v14, v12")
    for i in range(8):
        e(f"v_sub_f32 v{16+2*i}, v{16+2*i}, v3")
        e(f"v_sub_f32 v{17+2*i}, v{17+2*i}, v3")
        e(f"v_cvt_pk_bf16_f32 v{4+i}, v{16+2*i}, v{17+2*i}")
        e(f"v_lshlrev_b32 v{16+2*i}, 16, v{4+i}")
        e(f"v_and_b32 v{17+2*i}, 0xffff0000, v{4+i}")
    for i in range(16):
        e(f"v_mul_f32 v{52+i}, v{16+i}, v14")
        e(f"v_fma_f32 v{16+i}, -v{52+i}, v12, v{16+i}")
        e(f"v_fma_f32 v{52+i}, v{16+i}, v14, v{52+i}")
    for i in range(8):
        e(f"v_cvt_pk_bf16_f32 v{4+i}, v{52+2*i}, v{53+2*i}")
    e("buffer_store_dwordx4 v[4:7], v1, s[12:15], 0 offen")
    e("buffer_store_dwordx4 v[8:11], v1, s[12:15], 0 offen offset:1024")
    e.lab("ln_done")
    e("s_endpgm")
    kdesc(e, name, 72, 72, 32)


def gen_fin(e):
    name = "fin_kernel"
    khead(e, name)
    e("s_cmp_ge_u32 s2, 1024")
    e("s_cbranch_scc1 fin_done")
    e("s_load_dwordx2 s[4:5], s[0:1], 0")
    e("s_load_dwordx4 s[24:27], s[0:1], 72")
    e("s_load_dwordx2 s[6:7], s[0:1], 96")
    e("s_lshl_b32 s3, s2, 8")
    e("v_add_u32 v1, s3, v0")
    e("v_lshlrev_b32 v2, 4, v1")
    e("v_lshlrev_b32 v3, 5, v1")
    e("v_and_b32 v4, 0x7ff, v2")
    e("s_mov_b32 s28, 0xbfb8aa3b")
    e("s_waitcnt lgkmcnt(0)")
    srd(e, 8, 4, 5, 4 * MB)
    srd(e, 12, 6, 7, 8 * MB, WS_P0)
    srd(e, 16, 6, 7, 16 * MB, WS_P2)
    srd(e, 20, 24, 25, 2048)
    srd(e, 32, 26, 27, 4 * MB)
    e(f"s_mov_b32 s29, {4*MB}")
    e(f"s_mov_b32 s30, {8*MB}")
    e("buffer_load_dwordx4 v[8:11], v2, s[12:15], 0 offen")
    e("buffer_load_dwordx4 v[12:15], v2, s[12:15], s29 offen")
    e("buffer_load_dwordx4 v[16:19], v3, s[16:19], 0 offen")
    e("buffer_load_dwordx4 v[20:23], v3, s[16:19], 0 offen offset:16")
    e("buffer_load_dwordx4 v[24:27], v3, s[16:19], s30 offen")
    e("buffer_load_dwordx4 v[28:31], v3, s[16:19], s30 offen offset:16")
    e("buffer_load_dwordx4 v[32:35], v4, s[20:23], 0 offen")
    e("buffer_load_dwordx4 v[36:39], v2, s[8:11], 0 offen")
    e("s_waitcnt vmcnt(6)")
    for i in range(4):
        e(f"v_lshlrev_b32 v{40+2*i}, 16, v{8+i}")
        e(f"v_and_b32 v{41+2*i}, 0xffff0000, v{8+i}")
        e(f"v_lshlrev_b32 v{48+2*i}, 16, v{12+i}")
        e(f"v_and_b32 v{49+2*i}, 0xffff0000, v{12+i}")
    for i in range(8):
        e(f"v_add_f32 v{40+i}, v{40+i}, v{48+i}")
    for i in range(4):
        e(f"v_cvt_pk_bf16_f32 v{8+i}, v{40+2*i}, v{41+2*i}")
        e(f"v_lshlrev_b32 v{40+2*i}, 16, v{8+i}")
        e(f"v_and_b32 v{41+2*i}, 0xffff0000, v{8+i}")
    e("s_waitcnt vmcnt(1)")
    for i in range(8):
        e(f"v_add_f32 v{16+i}, v{16+i}, v{24+i}")
    for i in range(4):
        e(f"v_cvt_pk_bf16_f32 v{8+i}, v{16+2*i}, v{17+2*i}")
        e(f"v_lshlrev_b32 v{16+2*i}, 16, v{8+i}")
        e(f"v_and_b32 v{17+2*i}, 0xffff0000, v{8+i}")
        e(f"v_lshlrev_b32 v{24+2*i}, 16, v{32+i}")
        e(f"v_and_b32 v{25+2*i}, 0xffff0000, v{32+i}")
    for i in range(8):
        e(f"v_add_f32 v{16+i}, v{16+i}, v{24+i}")
    for i in range(4):
        e(f"v_cvt_pk_bf16_f32 v{8+i}, v{16+2*i}, v{17+2*i}")
        e(f"v_lshlrev_b32 v{16+2*i}, 16, v{8+i}")
        e(f"v_and_b32 v{17+2*i}, 0xffff0000, v{8+i}")
    for i in range(8):
        e(f"v_mul_f32 v{24+i}, s28, v{16+i}")
    for i in range(8):
        e(f"v_exp_f32 v{24+i}, v{24+i}")
    for i in range(8):
        e(f"v_add_f32 v{24+i}, 1.0, v{24+i}")
    for i in range(8):
        e(f"v_rcp_f32 v{24+i}, v{24+i}")
    for i in range(8):
        e(f"v_mul_f32 v{16+i}, v{16+i}, v{24+i}")
    for i in range(4):
        e(f"v_cvt_pk_bf16_f32 v{8+i}, v{16+2*i}, v{17+2*i}")
        e(f"v_lshlrev_b32 v{16+2*i}, 16, v{8+i}")
        e(f"v_and_b32 v{17+2*i}, 0xffff0000, v{8+i}")
    for i in range(8):
        e(f"v_mul_f32 v{16+i}, v{16+i}, v{40+i}")
    e("s_waitcnt vmcnt(0)")
    for i in range(4):
        e(f"v_cvt_pk_bf16_f32 v{8+i}, v{16+2*i}, v{17+2*i}")
        e(f"v_lshlrev_b32 v{16+2*i}, 16, v{8+i}")
        e(f"v_and_b32 v{17+2*i}, 0xffff0000, v{8+i}")
        e(f"v_lshlrev_b32 v{24+2*i}, 16, v{36+i}")
        e(f"v_and_b32 v{25+2*i}, 0xffff0000, v{36+i}")
    for i in range(8):
        e(f"v_add_f32 v{16+i}, v{16+i}, v{24+i}")
    for i in range(4):
        e(f"v_cvt_pk_bf16_f32 v{8+i}, v{16+2*i}, v{17+2*i}")
    e("buffer_store_dwordx4 v[8:11], v2, s[32:35], 0 offen")
    e.lab("fin_done")
    e("s_endpgm")
    kdesc(e, name, 56, 56, 40)


S_WAVE = 3
S_ROW0 = 40
S_COL0 = 41
S_KR = 42
S_KC = 43
S_KN = 44
S_CNT = 45
S_WR = 46
S_RD = 47
S_DL = 48
S_T0 = 49
S_T1 = 50
S_T2 = 51
S_M0 = 52
S_NS = 60
S_LEFT = 61
S_SRD_R = 8
S_SRD_O = 12
S_SRD_B = 16
S_SRD_C = 64
S_NREC = 88
RT = 32768


class Region:
    def __init__(s, typ, g0, ng, lds_off, gstride):
        s.typ, s.g0, s.ng, s.lds_off, s.gstride = typ, g0, ng, lds_off, gstride
        if typ == 'T':
            s.ninstr = ng * 2
        elif typ == 'Nadd':
            W = ng * 32
            s.RS = W if ng % 2 else W + 32
            s.BL = 8 * s.RS // 16 + 8
            s.ninstr = -(-8 * s.BL // 64)
        elif typ == 'Nxor':
            assert ng in (4, 8)
            s.RS = ng * 32
            s.ninstr = ng * 2
        s.DW = -(-s.ninstr // 4)
        s.bytes = s.DW * 4 * 1024


def magic(d, n):
    for sh in range(8, 24):
        m = -(-(1 << sh) // d)
        if m < (1 << 24) and all((x * m) >> sh == x // d for x in range(n)):
            return m, sh
    raise Exception


class Gemm:
    def __init__(s, e, pre, design, S, MT, NT, WM, WN, regions, rstride, outer, orient, nsteps_sgpr=False, nsteps=None):
        s.e, s.pre, s.design, s.S = e, pre, design, S
        s.MT, s.NT, s.WM, s.WN = MT, NT, WM, WN
        s.regions, s.rstride, s.outer, s.orient = regions, rstride, outer, orient
        s.CS = sum(r.bytes for r in regions)
        s.SS = RT + s.CS
        s.nsteps = nsteps
        s.D = 8 + sum(r.DW for r in regions)
        nacc = MT * NT * 4
        s.nacc = nacc
        v = 0
        s.vR = [0]
        v = 1
        s.vC = {}
        for ri, r in enumerate(regions):
            if r.typ == 'T':
                s.vC[ri] = [v]; v += 1
            elif r.typ == 'Nadd':
                s.vC[ri] = [v]; v += 1
            else:
                n = min(NT, r.ng)
                s.vC[ri] = list(range(v, v + n)); v += n
        s.naddr = v
        v = (v + 3) // 4 * 4
        if outer == 'C':
            s.fR = [[v + (st * MT + m) * 4 for m in range(MT)] for st in range(2)]
            v += 2 * MT * 4
            s.fC = [[v + n * 4 for n in range(NT)]] * 2
            v += NT * 4
        else:
            s.fR = [[v + m * 4 for m in range(MT)]] * 2
            v += MT * 4
            s.fC = [[v + (st * NT + n) * 4 for n in range(NT)] for st in range(2)]
            v += 2 * NT * 4
        s.vfrag0 = (s.naddr + 3) // 4 * 4
        s.vend = v
        if design == 'A':
            s.vL = v
            v += s.D
        else:
            s.vL = 8
        s.vtop = v

    def region_of(s, n):
        if s.WN > 1:
            return 0, n
        for ri, r in enumerate(s.regions):
            if r.g0 <= n < r.g0 + r.ng:
                return ri, n - r.g0
        raise Exception

    def rd_R(s, kk, m):
        d = s.fR[kk][m]
        return [(f"ds_read_b128 v[{d}:{d+3}], v{s.vR[0]} offset:{m*2048+kk*512}", d)]

    def rd_C(s, kk, n):
        d = s.fC[kk][n]
        ri, j = s.region_of(n)
        r = s.regions[ri]
        if r.typ == 'T':
            return [(f"ds_read_b128 v[{d}:{d+3}], v{s.vC[ri][0]} offset:{j*2048+kk*512}", d)]
        if r.typ == 'Nadd':
            o = kk * (32 * r.RS + 512) + j * 32
            return [(f"ds_read_b64_tr_b16 v[{d}:{d+1}], v{s.vC[ri][0]} offset:{o}", d),
                    (f"ds_read_b64_tr_b16 v[{d+2}:{d+3}], v{s.vC[ri][0]} offset:{o+4*r.RS}", d + 2)]
        o = kk * 32 * r.RS
        return [(f"ds_read_b64_tr_b16 v[{d}:{d+1}], v{s.vC[ri][j]} offset:{o}", d),
                (f"ds_read_b64_tr_b16 v[{d+2}:{d+3}], v{s.vC[ri][j]} offset:{o+4*r.RS}", d + 2)]

    def acc(s, m, n):
        return (m * s.NT + n) * 4

    def mfma(s, kk, m, n):
        a = s.acc(m, n)
        r, c = s.fR[kk][m], s.fC[kk][n]
        if s.orient[n] == 'RA':
            x, y = r, c
        else:
            x, y = c, r
        return (f"v_mfma_f32_16x16x32_bf16 a[{a}:{a+3}], v[{x}:{x+3}], v[{y}:{y+3}], a[{a}:{a+3}]", [r, c, c + 2])

    def loader_setup(s, vlane, vt, cset):
        e = s.e
        L = s.vL
        def tparts(stride):
            e(f"v_lshrrev_b32 v{vt}, 2, v{vlane}")
            e(f"v_and_b32 v{vt}, 7, v{vt}")
            e(f"s_mov_b32 s{S_T1}, {stride}")
            e(f"v_mul_lo_u32 v{vt}, v{vt}, s{S_T1}")
            e(f"v_lshrrev_b32 v{vt+1}, 5, v{vlane}")
            e(f"v_lshl_add_u32 v{vt}, v{vt+1}, 6, v{vt}")
            e(f"v_lshrrev_b32 v{vt+1}, 3, v{vlane}")
            e(f"v_and_b32 v{vt+1}, 2, v{vt+1}")
            e(f"v_and_b32 v{vt+2}, 3, v{vlane}")
            e(f"v_xor_b32 v{vt+1}, v{vt+1}, v{vt+2}")
            e(f"v_lshlrev_b32 v{vt+1}, 4, v{vt+1}")
            e(f"v_xor_b32 v{vt+2}, 48, v{vt+1}")
            e(f"v_add_u32 v{vt+1}, v{vt+1}, v{vt}")
            e(f"v_add_u32 v{vt+2}, v{vt+2}, v{vt}")
        tparts(s.rstride)
        e(f"s_lshl_b32 s{S_T0}, s{S_WAVE}, 6")
        e(f"s_add_u32 s{S_T0}, s{S_T0}, s{S_ROW0}")
        e(f"s_mul_i32 s{S_T0}, s{S_T0}, {s.rstride}")
        for j in range(8):
            e(f"s_add_u32 s{S_T1}, s{S_T0}, {j*8*s.rstride - (j&3)*1024}")
            e(f"v_add_u32 v{L+j}, s{S_T1}, v{vt+1+(j&1)}")
        e(f"s_lshl_b32 s{S_M0}, s{S_WAVE}, 13")
        e(f"s_add_u32 s{S_M0+1}, s{S_M0}, 4096")
        s.dma = []
        for j in range(8):
            s.dma.append((L + j, S_SRD_R, S_KR, S_M0 + (j >> 2) if (j & 3) == 0 else None, (j & 3) * 1024))
        vo = L + 8
        mo = S_M0 + 2
        so = S_SRD_C
        s.srds = [S_SRD_R]
        for ri, r in enumerate(s.regions):
            ng4 = -(-r.DW // 4)
            e(f"s_mul_i32 s{mo}, s{S_WAVE}, {r.DW*1024}")
            e(f"s_add_u32 s{mo}, s{mo}, {RT + r.lds_off}")
            for g in range(1, ng4):
                e(f"s_add_u32 s{mo+g}, s{mo}, {4096*g}")
            if r.typ == 'T':
                assert r.DW % 2 == 0
                tparts(r.gstride)
                for j in range(r.DW):
                    cset(ri, j, so)
                    if (j & 3):
                        e(f"s_sub_u32 s{S_T0}, s{S_T0}, {(j&3)*1024}")
                    e(f"v_add_u32 v{vo+j}, s{S_T0}, v{vt+1+(j&1)}")
                    s.dma.append((vo + j, so, S_KC, mo + (j >> 2) if (j & 3) == 0 else None, (j & 3) * 1024))
                    s.srds.append(so)
                    so += 4
            elif r.typ == 'Nadd':
                cset(ri, None, so)
                s.srds.append(so)
                m1, sh1 = magic(r.BL, 4 * r.DW * 64)
                rc = r.RS // 16
                m2, sh2 = magic(rc, r.BL)
                e(f"s_mul_i32 s{S_T1}, s{S_WAVE}, {r.DW*64}")
                for j in range(r.DW):
                    e(f"v_add_u32 v{vt}, s{S_T1}, v{vlane}")
                    if j:
                        e(f"v_add_u32 v{vt}, {64*j}, v{vt}")
                    e(f"v_mul_u32_u24 v{vt+1}, {m1}, v{vt}")
                    e(f"v_lshrrev_b32 v{vt+1}, {sh1}, v{vt+1}")
                    e(f"v_mul_u32_u24 v{vt+2}, {r.BL}, v{vt+1}")
                    e(f"v_sub_u32 v{vt}, v{vt}, v{vt+2}")
                    e(f"v_mul_u32_u24 v{vt+2}, {m2}, v{vt}")
                    e(f"v_lshrrev_b32 v{vt+2}, {sh2}, v{vt+2}")
                    e(f"v_mul_u32_u24 v{vt+3}, {rc}, v{vt+2}")
                    e(f"v_sub_u32 v{vt+3}, v{vt}, v{vt+3}")
                    e(f"v_lshl_add_u32 v{vt+1}, v{vt+1}, 3, v{vt+2}")
                    e(f"v_mul_u32_u24 v{vt+4}, {r.gstride}, v{vt+1}")
                    e(f"v_lshl_add_u32 v{vt+4}, v{vt+3}, 4, v{vt+4}")
                    e(f"v_add_u32 v{vt+4}, s{S_T0}, v{vt+4}")
                    if j & 3:
                        e(f"v_subrev_u32 v{vt+4}, {(j&3)*1024}, v{vt+4}")
                    e(f"v_cmp_gt_u32 vcc, 8, v{vt+2}")
                    e(f"v_mov_b32 v{vt+5}, 0x7ff00000")
                    e("s_nop 0")
                    e(f"v_cndmask_b32 v{vt+4}, v{vt+5}, v{vt+4}, vcc")
                    e(f"v_cmp_gt_u32 vcc, {r.ng*2}, v{vt+3}")
                    e("s_nop 1")
                    e(f"v_cndmask_b32 v{vt+4}, v{vt+5}, v{vt+4}, vcc")
                    e(f"v_cmp_gt_u32 vcc, 64, v{vt+1}")
                    e("s_nop 1")
                    e(f"v_cndmask_b32 v{vo+j}, v{vt+5}, v{vt+4}, vcc")
                    s.dma.append((vo + j, so, S_KN, mo + (j >> 2) if (j & 3) == 0 else None, (j & 3) * 1024))
                so += 4
            else:
                cset(ri, None, so)
                s.srds.append(so)
                if r.ng == 8:
                    assert r.DW == 4
                    e(f"v_lshrrev_b32 v{vt}, 4, v{vlane}")
                    e(f"v_mul_u32_u24 v{vt+1}, {r.gstride}, v{vt}")
                    e(f"v_lshlrev_b32 v{vt}, 5, v{vt}")
                    e(f"v_and_b32 v{vt+2}, 15, v{vlane}")
                    e(f"v_lshlrev_b32 v{vt+2}, 4, v{vt+2}")
                    e(f"v_xor_b32 v{vt+2}, v{vt+2}, v{vt}")
                    e(f"v_xor_b32 v{vt+3}, 128, v{vt+2}")
                    e(f"v_add_u32 v{vt+2}, v{vt+2}, v{vt+1}")
                    e(f"v_add_u32 v{vt+3}, v{vt+3}, v{vt+1}")
                    e(f"s_mul_i32 s{S_T1}, s{S_WAVE}, {16*r.gstride}")
                    e(f"s_add_u32 s{S_T0}, s{S_T0}, s{S_T1}")
                    for j in range(4):
                        e(f"s_add_u32 s{S_T1}, s{S_T0}, {j*4*r.gstride - (j&3)*1024}")
                        e(f"v_add_u32 v{vo+j}, s{S_T1}, v{vt+2+((j>>1)&1)}")
                        s.dma.append((vo + j, so, S_KN, mo if j == 0 else None, j * 1024))
                else:
                    assert r.DW == 2
                    e(f"v_lshrrev_b32 v{vt}, 3, v{vlane}")
                    e(f"v_mul_u32_u24 v{vt+1}, {r.gstride}, v{vt}")
                    e(f"v_lshrrev_b32 v{vt}, 4, v{vlane}")
                    e(f"v_and_b32 v{vt}, 1, v{vt}")
                    e(f"v_lshlrev_b32 v{vt}, 5, v{vt}")
                    e(f"v_and_b32 v{vt+2}, 7, v{vlane}")
                    e(f"v_lshlrev_b32 v{vt+2}, 4, v{vt+2}")
                    e(f"v_xor_b32 v{vt+2}, v{vt+2}, v{vt}")
                    e(f"v_xor_b32 v{vt+3}, 64, v{vt+2}")
                    e(f"v_add_u32 v{vt+2}, v{vt+2}, v{vt+1}")
                    e(f"v_add_u32 v{vt+3}, v{vt+3}, v{vt+1}")
                    e(f"s_mul_i32 s{S_T1}, s{S_WAVE}, {16*r.gstride}")
                    e(f"s_add_u32 s{S_T0}, s{S_T0}, s{S_T1}")
                    for j in range(2):
                        e(f"s_add_u32 s{S_T1}, s{S_T0}, {j*8*r.gstride - j*1024}")
                        e(f"v_add_u32 v{vo+j}, s{S_T1}, v{vt+2+j}")
                        s.dma.append((vo + j, so, S_KN, mo if j == 0 else None, j * 1024))
                so += 4
            vo += r.DW
            mo += ng4
        assert len(s.dma) == s.D
        assert mo <= S_NS and so <= S_NREC

    def dma_groups(s):
        out = []
        for (v, sr, so, m0, io) in s.dma:
            g = []
            if m0 is not None:
                g.append(f"s_add_u32 m0, s{S_WR}, s{m0}")
                g.append("s_nop 0")
            g.append(f"buffer_load_dwordx4 v{v}, s[{sr}:{sr+3}], s{so} offen offset:{io} lds" if io else
                     f"buffer_load_dwordx4 v{v}, s[{sr}:{sr+3}], s{so} offen lds")
            out.append(g)
        return out

    def dma_book(s):
        g = [f"s_add_u32 s{S_KR}, s{S_KR}, 128"]
        if any(r.typ == 'T' for r in s.regions):
            g.append(f"s_add_u32 s{S_KC}, s{S_KC}, 128")
        for r in s.regions:
            if r.typ != 'T':
                g.append(f"s_add_u32 s{S_KN}, s{S_KN}, {64*r.gstride}")
        g.append(f"s_add_u32 s{S_WR}, s{S_WR}, {s.SS}")
        g.append(f"s_cmp_ge_u32 s{S_WR}, {s.SS*s.S}")
        g.append(f"s_cselect_b32 s{S_WR}, 0, s{S_WR}")
        g.append(f"s_sub_u32 s{S_LEFT}, s{S_LEFT}, 1")
        g.append(f"s_cmp_lt_i32 s{S_LEFT}, 1")
        for sr in s.srds:
            g.append(f"s_cselect_b32 s{sr+2}, 0, s{sr+2}")
        return g

    def loader_init(s):
        e = s.e
        e(f"s_mov_b32 s{S_WR}, 0")
        e(f"s_mov_b32 s{S_LEFT}, s{S_NS}")

    def loader_loop(s):
        e, p = s.e, s.pre
        s.loader_init()
        for st in range(s.S):
            for g in s.dma_groups():
                e.ext(g)
            e.ext(s.dma_book())
        e(f"s_waitcnt vmcnt({(s.S-1)*s.D})")
        e("s_barrier")
        e(f"s_mov_b32 s{S_CNT}, s{S_NS}")
        e.lab(f"{p}_lloop")
        e(f"s_waitcnt vmcnt({(s.S-2)*s.D})")
        e("s_barrier")
        for g in s.dma_groups():
            e.ext(g)
        e.ext(s.dma_book())
        e(f"s_sub_u32 s{S_CNT}, s{S_CNT}, 1")
        e(f"s_cmp_lg_u32 s{S_CNT}, 0")
        e(f"s_cbranch_scc1 {p}_lloop")
        e("s_endpgm")

    def compute_setup(s, vlane, vt):
        e = s.e
        if s.WN == 1:
            e(f"s_mul_i32 s{S_T0}, s{S_WAVE}, {s.MT*16*128}")
            e(f"s_mov_b32 s{S_T1}, 0")
        else:
            e(f"s_lshr_b32 s{S_T0}, s{S_WAVE}, 1")
            e(f"s_mul_i32 s{S_T0}, s{S_T0}, {s.MT*16*128}")
            e(f"s_and_b32 s{S_T1}, s{S_WAVE}, 1")
        e(f"v_and_b32 v{vt}, 15, v{vlane}")
        e(f"v_lshrrev_b32 v{vt+1}, 4, v{vlane}")
        e(f"v_lshrrev_b32 v{vt+2}, 3, v{vt}")
        e(f"v_lshrrev_b32 v{vt+3}, 2, v{vt}")
        e(f"v_and_b32 v{vt+3}, 1, v{vt+3}")
        e(f"v_xor_b32 v{vt+3}, v{vt+3}, v{vt+2}")
        e(f"v_lshl_add_u32 v{vt+3}, v{vt+3}, 1, v{vt+2}")
        e(f"v_xor_b32 v{vt+3}, v{vt+3}, v{vt+1}")
        e(f"v_lshlrev_b32 v{vt+3}, 4, v{vt+3}")
        e(f"v_lshl_add_u32 v{vt+3}, v{vt+2}, 10, v{vt+3}")
        e(f"v_and_b32 v{vt+2}, 7, v{vt}")
        e(f"v_lshl_add_u32 v{vt+2}, v{vt+2}, 6, v{vt+3}")
        e(f"v_lshrrev_b32 v{vt+4}, 2, v{vlane}")
        e(f"v_and_b32 v{vt+4}, 3, v{vt+4}")
        e(f"v_and_b32 v{vt+5}, 3, v{vlane}")
        tmp = {}
        for ri, r in enumerate(s.regions):
            base = RT + r.lds_off
            if r.typ == 'T':
                e(f"s_mul_i32 s{S_T2}, s{S_T1}, {s.NT*16*128}")
                e(f"s_add_u32 s{S_T2}, s{S_T2}, {base}")
                e(f"v_add_u32 v{vt+6+2*ri}, s{S_T2}, v{vt+2}")
                tmp[ri] = [vt + 6 + 2 * ri]
            elif r.typ == 'Nadd':
                assert s.WN == 1
                d = vt + 6 + 2 * ri
                e(f"v_lshl_add_u32 v{d}, v{vt+1}, 3, v{vt+4}")
                e(f"v_mul_u32_u24 v{d}, {r.RS}, v{d}")
                e(f"v_lshl_add_u32 v{d}, v{vt+1}, 7, v{d}")
                e(f"v_lshl_add_u32 v{d}, v{vt+5}, 3, v{d}")
                e(f"v_add_u32 v{d}, {base}, v{d}")
                tmp[ri] = [d]
            else:
                d = vt + 6 + 2 * ri
                e(f"v_lshl_add_u32 v{d}, v{vt+1}, 3, v{vt+4}")
                e(f"v_mul_u32_u24 v{d}, {r.RS}, v{d}")
                e(f"v_lshl_add_u32 v{d}, v{vt+5}, 3, v{d}")
                e(f"v_add_u32 v{d}, {base}, v{d}")
                e(f"v_and_b32 v{d+1}, 1, v{vt+1}")
                if r.ng == 8:
                    e(f"v_lshl_add_u32 v{d+1}, v{d+1}, 2, v{vt+4}")
                    e(f"s_mul_i32 s{S_T2}, s{S_T1}, {s.NT}")
                    e(f"v_xor_b32 v{d+1}, s{S_T2}, v{d+1}")
                else:
                    e(f"v_lshrrev_b32 v{vt+10}, 1, v{vt+4}")
                    e(f"v_lshl_add_u32 v{d+1}, v{d+1}, 1, v{vt+10}")
                e(f"v_lshl_add_u32 v{d}, v{d+1}, 5, v{d}")
                tmp[ri] = [d]
        for ri, r in enumerate(s.regions):
            if r.typ == 'Nxor':
                for j, vv in enumerate(s.vC[ri]):
                    e(f"v_xor_b32 v{vv}, {32*j}, v{tmp[ri][0]}")
            else:
                for vv, t in zip(s.vC[ri], tmp[ri]):
                    e(f"v_mov_b32 v{vv}, v{t}")
        e(f"v_add_u32 v{s.vR[0]}, s{S_T0}, v{vt+2}")
        for a in range(s.nacc):
            e(f"v_accvgpr_write_b32 a{a}, 0")

    def adv_addr(s):
        g = [f"s_add_u32 s{S_RD}, s{S_RD}, {s.SS}",
             f"s_cmp_ge_u32 s{S_RD}, {s.SS*s.S}",
             f"s_cselect_b32 s{S_RD}, 0, s{S_RD}",
             f"s_cselect_b32 s{S_DL}, {-(s.S-1)*s.SS & 0xffffffff}, s{S_NREC}"]
        v = [f"v_add_u32 v{a}, s{S_DL}, v{a}" for a in range(s.naddr)]
        return g, v

    def compute_loop(s, X):
        e, p = s.e, s.pre
        MT, NT = s.MT, s.NT
        if s.outer == 'C':
            NO, NI = NT, MT
            order = [(m, n) for n in range(NT) for m in range(MT)]
        else:
            NO, NI = MT, NT
            order = [(m, n) for m in range(MT) for n in range(NT)]
        NM = MT * NT

        def rd_outer(kk, o):
            return s.rd_C(kk, o) if s.outer == 'C' else s.rd_R(kk, o)

        def rd_inner(kk, i):
            return s.rd_R(kk, i) if s.outer == 'C' else s.rd_C(kk, i)

        seq = [(1, t) for t in range(X, NM)] + [(0, t) for t in range(NM)] + [(1, t) for t in range(X)]
        P1 = NM - X
        fill = []
        for i in range(NI):
            fill.append([-1, 0 + i * 0.01, rd_inner(0, i), 'lds'])
        for o in range(NO):
            last = (o + 1) * NI - 1
            earliest = last - X if last >= X else -1
            fill.append([earliest, 0.5 + o, rd_outer(0, o), 'lds'])
        for i in range(NI):
            fill.append([P1 - 1 + 0, 100 + i * 0.01, rd_inner(1, i), 'lds'])
        for o in range(NO):
            fill.append([P1 + (o + 1) * NI - 1, 100.5 + o, rd_outer(1, o), 'lds'])
        dg = []
        if s.design == 'A':
            dg = s.dma_groups()
            tot = len(seq) - 2
            for k, g in enumerate(dg):
                fill.append([int(k * tot / len(dg)) + 1, 50 + k, [(x, None) for x in g], 'dma'])
        body = []
        pend = sorted(fill, key=lambda f: f[1])
        mid_index = None
        n_dma_part1 = 0

        def emit_gap(gi, maxl):
            nonlocal pend, n_dma_part1
            nl = 0
            nd = 0
            rest = []
            for f in pend:
                if f[0] <= gi and ((f[3] == 'lds' and nl < maxl) or (f[3] == 'dma' and nd < 1)):
                    for (x, d) in f[2]:
                        body.append(('lds', x, d) if f[3] == 'lds' else ('x', x, None))
                    if f[3] == 'lds':
                        nl += len(f[2])
                    else:
                        nd += 1
                        if gi < P1 - 1:
                            n_dma_part1 += 1
                else:
                    rest.append(f)
            pend = rest

        sg, vg = s.adv_addr()
        for x in vg:
            body.append(('x', x, None))
        emit_gap(-1, 3)
        for gi, (kk, t) in enumerate(seq):
            m, n = order[t]
            x, srcs = s.mfma(kk, m, n)
            body.append(('mfma', x, srcs))
            if gi == P1 - 1:
                body.append(('lab', f"{p}_mid", None))
            if gi == 2:
                for x in sg:
                    body.append(('x', x, None))
            emit_gap(gi, 2 if gi < len(seq) - 1 else 99)
            if gi == len(seq) - 3 and s.design == 'A':
                assert not any(f[3] == 'dma' for f in pend)
                for x in s.dma_book():
                    body.append(('x', x, None))
        assert not pend, pend
        body.append(('w0', "s_waitcnt lgkmcnt(0)" + (f" vmcnt({(s.S-2)*s.D})" if s.design == 'A' else ""), None))
        body.append(('x', "s_barrier", None))
        issued = 0
        done = 0
        lastw = {}
        outb = None
        for ps in range(2):
            outb = []
            for (k, x, d) in body:
                if k == 'lds':
                    issued += 1
                    lastw[d] = issued
                    outb.append((k, x))
                elif k == 'w0':
                    done = issued
                    outb.append((k, x))
                elif k == 'mfma':
                    need = max([lastw.get(r, 0) for r in d])
                    if need > done:
                        outb.append(('x', f"s_waitcnt lgkmcnt({min(issued-need, 15)})"))
                        done = need
                    outb.append((k, x))
                else:
                    outb.append((k, x))
        e(f"s_mov_b32 s{S_RD}, 0")
        e(f"s_mov_b32 s{S_NREC}, {s.SS}")
        if s.design == 'A':
            s.loader_init()
            for st in range(s.S - 1):
                for g in dg:
                    e.ext(g)
                e.ext(s.dma_book())
            for g in dg[:n_dma_part1]:
                e.ext(g)
            e(f"s_waitcnt vmcnt({(s.S-2)*s.D + n_dma_part1})")
        e("s_barrier")
        for i in range(NI):
            for (x, d) in rd_inner(0, i):
                e(x)
        for o in range(NO):
            for (x, d) in rd_outer(0, o):
                e(x)
        e.ext(sg)
        e(f"s_mov_b32 s{S_CNT}, s{S_NS}")
        e("s_waitcnt lgkmcnt(0)")
        e(f"s_branch {p}_mid")
        e.L.append(".p2align 6")
        e.lab(f"{p}_top")
        for (k, x) in outb:
            if k == 'lab':
                e.lab(x)
            else:
                e(x)
        e(f"s_sub_u32 s{S_CNT}, s{S_CNT}, 1")
        e(f"s_cmp_lg_u32 s{S_CNT}, 0")
        e(f"s_cbranch_scc1 {p}_top")
        for (kk, t) in seq[:P1]:
            m, n = order[t]
            e(s.mfma(kk, m, n)[0])
        e("s_nop 7")
        e("s_nop 7")


def lane_wave(e, design):
    e("v_lshrrev_b32 v1, 6, v0")
    e("s_nop 0")
    e(f"v_readfirstlane_b32 s{S_T2}, v1")
    e("v_and_b32 v1, 63, v0")
    e("s_nop 2")
    e(f"s_and_b32 s{S_WAVE}, s{S_T2}, 3")


def gen_g1(e):
    name = "g1_kernel"
    design, S, X = OPT['design1'], OPT['S1'], OPT['X']
    khead(e, name)
    e("s_cmp_ge_u32 s2, 256")
    e("s_cbranch_scc1 g1_done")
    e("s_load_dwordx4 s[20:23], s[0:1], 24")
    e("s_load_dwordx4 s[24:27], s[0:1], 48")
    e("s_load_dwordx2 s[28:29], s[0:1], 96")
    lane_wave(e, design)
    e(f"s_and_b32 s{S_ROW0}, s2, 7")
    e(f"s_lshl_b32 s{S_ROW0}, s{S_ROW0}, 8")
    e(f"s_lshr_b32 s{S_COL0}, s2, 3")
    e(f"s_mov_b32 s{S_NS}, 16")
    e(f"s_mov_b32 s{S_KR}, 0")
    e(f"s_mov_b32 s{S_KC}, 0")
    e(f"s_mov_b32 s{S_KN}, 0")
    e("s_waitcnt lgkmcnt(0)")
    srd(e, S_SRD_R, 28, 29, 4 * MB, WS_XN)
    e(f"s_cmp_lt_u32 s{S_COL0}, 11")
    e("s_cbranch_scc1 g1d_start")
    e(f"s_cmp_eq_u32 s{S_COL0}, 11")
    e("s_cbranch_scc1 g1m_start")
    e("s_branch g1f_start")

    variants = {
        'g1d': [Region('T', 0, 11, 0, 2048)],
        'g1m': [Region('T', 0, 7, 0, 2048), Region('Nadd', 7, 4, 16384, 7168)],
        'g1f': [Region('Nadd', 0, 11, 0, 7168)],
    }
    vt_max = 0
    ss_max = 0
    for pre, regs in variants.items():
        orient = []
        for r in regs:
            orient += ['RA' if r.typ == 'T' else 'CA'] * r.ng
        G = Gemm(e, pre, design, S, 4, 11, 4, 1, regs, 2048, 'C', orient)
        e.lab(f"{pre}_start")

        def cset(ri, j, so, G=G, pre=pre):
            r = G.regions[ri]
            if r.typ == 'T':
                e(f"s_mul_i32 s{S_T0}, s{S_COL0}, 22")
                e(f"s_mul_i32 s{S_T1}, s{S_WAVE}, {r.DW}")
                e(f"s_add_u32 s{S_T1}, s{S_T1}, {j}")
                e(f"s_add_u32 s{S_T0}, s{S_T0}, s{S_T1}")
                e(f"s_cmp_lt_u32 s{S_T0}, 128")
                e(f"s_cselect_b32 s{so}, s20, s22")
                e(f"s_cselect_b32 s{so+1}, s21, s23")
                e(f"s_and_b32 s{S_T0}, s{S_T0}, 127")
                e(f"s_lshl_b32 s{S_T0}, s{S_T0}, 14")
                e(f"s_cmp_lt_u32 s{S_T1}, {r.ninstr}")
                e(f"s_cselect_b32 s{so+2}, {2*MB}, 0")
                e(f"s_mov_b32 s{so+3}, 0x20000")
                e(f"s_cselect_b32 s{S_T0}, s{S_T0}, 4096")
            else:
                srd(e, so, 24, 25, 1024 * 7168)
                e(f"s_mul_i32 s{S_T0}, s{S_COL0}, 352")
                e(f"s_sub_u32 s{S_T0}, s{S_T0}, {(128 - r.g0) * 32}")

        if design == 'B':
            e(f"s_cmp_ge_u32 s{S_T2}, 4")
            e(f"s_cbranch_scc0 {pre}_comp")
            G.loader_setup(1, 2, cset)
            G.loader_loop()
            e.lab(f"{pre}_comp")
        else:
            G.loader_setup(1, G.vfrag0, cset)
        e(f"v_mov_b32 v{G.vfrag0+16}, v1")
        G.compute_setup(G.vfrag0 + 16, G.vfrag0)
        G.compute_loop(X)
        g1_epilogue(e, G, pre)
        e("s_endpgm")
        vt_max = max(vt_max, G.vtop)
        ss_max = max(ss_max, G.SS)
    e.lab("g1_done")
    e("s_endpgm")
    acc0 = (vt_max + 3) // 4 * 4
    kdesc(e, name, acc0 + 176, acc0)
    return ss_max * S


def g1_epilogue(e, G, pre):
    e("v_mbcnt_lo_u32_b32 v1, -1, 0")
    e("v_mbcnt_hi_u32_b32 v1, -1, v1")
    e("v_and_b32 v2, 15, v1")
    e("v_lshrrev_b32 v3, 4, v1")
    e("v_and_b32 v4, 1, v3")
    e("v_lshlrev_b32 v4, 4, v4")
    e("v_lshrrev_b32 v5, 1, v3")
    e("v_lshl_add_u32 v4, v5, 3, v4")
    e(f"s_lshl_b32 s{S_T0}, s{S_WAVE}, 6")
    e(f"s_add_u32 s{S_T0}, s{S_T0}, s{S_ROW0}")
    T = 16
    for r in G.regions:
        if r.typ == 'T':
            srd(e, S_SRD_O, 28, 29, 8 * MB, WS_AT)
            e(f"s_mul_i32 s{S_T1}, s{S_COL0}, 176")
            e(f"v_add_u32 v6, s{S_T1}, v2")
            e("v_lshlrev_b32 v6, 12, v6")
            e(f"v_add_u32 v7, s{S_T0}, v4")
            e("v_lshl_add_u32 v6, v7, 1, v6")
            e(f"s_mul_i32 s{S_T1}, s{S_COL0}, 11")
            for j in range(r.ng):
                n = r.g0 + j
                e(f"s_add_u32 s{S_T2}, s{S_T1}, {n}")
                e(f"s_cmp_lt_u32 s{S_T2}, 64")
                e(f"s_cselect_b32 s{S_DL}, 0, 0x80008000")
                e(f"s_mov_b32 s{S_T2}, {n*16*4096}")
                for mp in range(2):
                    t = T + ((j * 2 + mp) % 2) * 12
                    for q in range(2):
                        a = G.acc(2 * mp + q, n)
                        for x in range(4):
                            e(f"v_accvgpr_read_b32 v{t+4+q*4+x}, a{a+x}")
                    for q in range(2):
                        e(f"v_cvt_pk_bf16_f32 v{t+2*q}, v{t+4+q*4}, v{t+5+q*4}")
                        e(f"v_cvt_pk_bf16_f32 v{t+2*q+1}, v{t+6+q*4}, v{t+7+q*4}")
                    for x in range(4):
                        e(f"v_xor_b32 v{t+x}, s{S_DL}, v{t+x}")
                    e("s_nop 1")
                    e(f"v_permlane16_swap_b32 v{t}, v{t+2}")
                    e(f"v_permlane16_swap_b32 v{t+1}, v{t+3}")
                    e(f"buffer_store_dwordx4 v[{t}:{t+3}], v6, s[{S_SRD_O}:{S_SRD_O+3}], s{S_T2} offen offset:{mp*64}")
        else:
            srd(e, S_SRD_O, 28, 29, 2048 * 7168, WS_H)
            srd(e, S_SRD_B, 26, 27, 7168)
            e(f"s_mul_i32 s{S_T1}, s{S_COL0}, 352")
            e(f"s_sub_u32 s{S_T1}, s{S_T1}, {(128 - r.g0) * 32}")
            e("v_lshlrev_b32 v7, 3, v3")
            e(f"v_add_u32 v7, s{S_T1}, v7")
            BB = 44
            for j in range(r.ng):
                e(f"buffer_load_dwordx2 v[{BB+2*j}:{BB+2*j+1}], v7, s[{S_SRD_B}:{S_SRD_B+3}], 0 offen offset:{32*j}")
            e(f"v_add_u32 v6, s{S_T0}, v2")
            e(f"s_mov_b32 s{S_T2}, 7168")
            e(f"v_mul_lo_u32 v6, v6, s{S_T2}")
            e(f"v_add_u32 v6, s{S_T1}, v6")
            e("v_lshl_add_u32 v8, v3, 3, v6")
            e("v_lshl_add_u32 v6, v4, 1, v6")
            c1 = -2.0 * math.log2(math.e) * math.sqrt(2.0 / math.pi)
            c2 = c1 * 0.044715
            import struct
            f2u = lambda f: struct.unpack("<I", struct.pack("<f", f))[0]
            e(f"v_mov_b32 v10, {f2u(c1):#x}")
            e(f"v_mov_b32 v11, {f2u(c1):#x}")
            e(f"v_mov_b32 v12, {f2u(c2):#x}")
            e(f"v_mov_b32 v13, {f2u(c2):#x}")
            e("v_mov_b32 v14, 1.0")
            e("v_mov_b32 v15, 1.0")
            e("s_waitcnt vmcnt(0)")
            j = 0
            while j < r.ng:
                npair = 2 if j + 1 < r.ng else 1
                for q in range(npair):
                    b = BB + 2 * (j + q)
                    e(f"v_lshlrev_b32 v{32+4*q}, 16, v{b}")
                    e(f"v_and_b32 v{33+4*q}, 0xffff0000, v{b}")
                    e(f"v_lshlrev_b32 v{34+4*q}, 16, v{b+1}")
                    e(f"v_and_b32 v{35+4*q}, 0xffff0000, v{b+1}")
                for m in range(4):
                    t = 16
                    for q in range(npair):
                        a = G.acc(m, r.g0 + j + q)
                        for x in range(4):
                            e(f"v_accvgpr_read_b32 v{t+4*q+x}, a{a+x}")
                    np_ = 2 * npair
                    for h in range(np_):
                        e(f"v_pk_add_f32 v[{t+2*h}:{t+2*h+1}], v[{t+2*h}:{t+2*h+1}], v[{32+2*h}:{33+2*h}]")
                    for h in range(np_):
                        e(f"v_pk_mul_f32 v[{t+8+2*h}:{t+9+2*h}], v[{t+2*h}:{t+2*h+1}], v[{t+2*h}:{t+2*h+1}]")
                    for h in range(np_):
                        e(f"v_pk_fma_f32 v[{t+8+2*h}:{t+9+2*h}], v[{t+8+2*h}:{t+9+2*h}], v[12:13], v[10:11]")
                    for h in range(np_):
                        e(f"v_pk_mul_f32 v[{t+8+2*h}:{t+9+2*h}], v[{t+8+2*h}:{t+9+2*h}], v[{t+2*h}:{t+2*h+1}]")
                    for x in range(2 * np_):
                        e(f"v_exp_f32 v{t+8+x}, v{t+8+x}")
                    for h in range(np_):
                        e(f"v_pk_add_f32 v[{t+8+2*h}:{t+9+2*h}], v[{t+8+2*h}:{t+9+2*h}], v[14:15]")
                    for x in range(2 * np_):
                        e(f"v_rcp_f32 v{t+8+x}, v{t+8+x}")
                    for h in range(np_):
                        e(f"v_pk_mul_f32 v[{t+2*h}:{t+2*h+1}], v[{t+2*h}:{t+2*h+1}], v[{t+8+2*h}:{t+9+2*h}]")
                    o = 40
                    for h in range(np_):
                        e(f"v_cvt_pk_bf16_f32 v{o+h}, v{t+2*h}, v{t+2*h+1}")
                    e(f"s_mov_b32 s{S_T2}, {m*16*7168}")
                    if npair == 2:
                        e("s_nop 0")
                        e(f"v_permlane16_swap_b32 v{o}, v{o+2}")
                        e(f"v_permlane16_swap_b32 v{o+1}, v{o+3}")
                        e(f"buffer_store_dwordx4 v[{o}:{o+3}], v6, s[{S_SRD_O}:{S_SRD_O+3}], s{S_T2} offen offset:{j*32}")
                    else:
                        e(f"buffer_store_dwordx2 v[{o}:{o+1}], v8, s[{S_SRD_O}:{S_SRD_O+3}], s{S_T2} offen offset:{j*32}")
                j += npair


def gen_g2(e):
    name = "g2_kernel"
    design, S, X = OPT['design2'], OPT['S2'], OPT['X']
    khead(e, name)
    e("s_cmp_ge_u32 s2, 256")
    e("s_cbranch_scc1 g2_done")
    e("s_load_dwordx4 s[20:23], s[0:1], 8")
    e("s_load_dwordx2 s[24:25], s[0:1], 64")
    e("s_load_dwordx2 s[28:29], s[0:1], 96")
    lane_wave(e, design)
    e("s_and_b32 s30, s2, 3")
    e("s_lshr_b32 s31, s2, 2")
    e("s_and_b32 s31, s31, 1")
    e("s_lshr_b32 s32, s2, 3")
    e(f"s_and_b32 s{S_ROW0}, s32, 3")
    e(f"s_lshl_b32 s31, s31, 2")
    e(f"s_add_u32 s{S_ROW0}, s{S_ROW0}, s31")
    e(f"s_lshl_b32 s{S_ROW0}, s{S_ROW0}, 8")
    e(f"s_lshr_b32 s{S_COL0}, s32, 2")
    e(f"s_lshl_b32 s{S_COL0}, s{S_COL0}, 7")
    e(f"s_mov_b32 s{S_KC}, 0")
    e("s_waitcnt lgkmcnt(0)")
    e("s_cmp_ge_u32 s30, 2")
    e("s_cbranch_scc1 g2o_start")
    variants = {
        'g2y': ([Region('T', 0, 8, 0, 4096)], 4096),
        'g2o': ([Region('Nxor', 0, 8, 0, 2048)], 7168),
    }
    vt_max = 0
    for pre, (regs, rstride) in variants.items():
        G = Gemm(e, pre, design, S, 8, 4, 2, 2, regs, rstride, 'R', ['CA'] * 4)
        e.lab(f"{pre}_start")
        if pre == 'g2y':
            e(f"s_mov_b32 s{S_NS}, 32")
            e(f"s_mov_b32 s{S_KR}, 0")
            e("s_cmp_eq_u32 s30, 0")
            e(f"s_cselect_b32 s{S_SRD_R}, s20, s22")
            e(f"s_cselect_b32 s{S_SRD_R+1}, s21, s23")
            e(f"s_mov_b32 s{S_SRD_R+2}, {8*MB}")
            e(f"s_mov_b32 s{S_SRD_R+3}, 0x20000")
        else:
            e(f"s_mov_b32 s{S_NS}, 28")
            e("s_and_b32 s33, s30, 1")
            e(f"s_mul_i32 s{S_KR}, s33, {1792*2}")
            e(f"s_mul_i32 s{S_KN}, s33, {1792*2048}")
            srd(e, S_SRD_R, 28, 29, 2048 * 7168, WS_H)

        def cset(ri, j, so, G=G, pre=pre):
            r = G.regions[ri]
            if r.typ == 'T':
                srd(e, so, 28, 29, 8 * MB, WS_AT)
                e(f"s_lshl_b32 s{S_T0}, s30, 10")
                e(f"s_add_u32 s{S_T0}, s{S_T0}, s{S_COL0}")
                e(f"s_lshl_b32 s{S_T1}, s{S_WAVE}, 5")
                e(f"s_add_u32 s{S_T0}, s{S_T0}, s{S_T1}")
                e(f"s_add_u32 s{S_T0}, s{S_T0}, {8*j}")
                e(f"s_lshl_b32 s{S_T0}, s{S_T0}, 12")
            else:
                srd(e, so, 24, 25, 3584 * 2048)
                e(f"s_lshl_b32 s{S_T0}, s{S_COL0}, 1")

        if design == 'B':
            e(f"s_cmp_ge_u32 s{S_T2}, 4")
            e(f"s_cbranch_scc0 {pre}_comp")
            G.loader_setup(1, 2, cset)
            G.loader_loop()
            e.lab(f"{pre}_comp")
        else:
            G.loader_setup(1, G.vfrag0, cset)
        e(f"v_mov_b32 v{G.vfrag0+16}, v1")
        G.compute_setup(G.vfrag0 + 16, G.vfrag0)
        G.compute_loop(X)
        e("v_mbcnt_lo_u32_b32 v1, -1, 0")
        e("v_mbcnt_hi_u32_b32 v1, -1, v1")
        e("v_and_b32 v2, 15, v1")
        e("v_lshrrev_b32 v3, 4, v1")
        e(f"s_lshr_b32 s{S_T0}, s{S_WAVE}, 1")
        e(f"s_lshl_b32 s{S_T0}, s{S_T0}, 7")
        e(f"s_add_u32 s{S_T0}, s{S_T0}, s{S_ROW0}")
        e(f"s_and_b32 s{S_T1}, s{S_WAVE}, 1")
        e(f"s_lshl_b32 s{S_T1}, s{S_T1}, 6")
        e(f"s_add_u32 s{S_T1}, s{S_T1}, s{S_COL0}")
        e(f"v_add_u32 v6, s{S_T0}, v2")
        if pre == 'g2y':
            srd(e, S_SRD_O, 28, 29, 8 * MB, WS_P0)
            e("v_and_b32 v4, 1, v3")
            e("v_lshlrev_b32 v4, 4, v4")
            e("v_lshrrev_b32 v5, 1, v3")
            e("v_lshl_add_u32 v4, v5, 3, v4")
            e(f"v_add_u32 v4, s{S_T1}, v4")
            e("v_lshlrev_b32 v6, 11, v6")
            e("v_lshl_add_u32 v6, v4, 1, v6")
            e("s_lshl_b32 s33, s30, 22")
            for m in range(8):
                e(f"s_add_u32 s{S_T2}, s33, {m*16*2048}")
                for np_ in range(2):
                    t = 16 + np_ * 12
                    for q in range(2):
                        a = G.acc(m, 2 * np_ + q)
                        for x in range(4):
                            e(f"v_accvgpr_read_b32 v{t+4+q*4+x}, a{a+x}")
                    for q in range(2):
                        e(f"v_cvt_pk_bf16_f32 v{t+2*q}, v{t+4+q*4}, v{t+5+q*4}")
                        e(f"v_cvt_pk_bf16_f32 v{t+2*q+1}, v{t+6+q*4}, v{t+7+q*4}")
                    e("s_nop 1")
                    e(f"v_permlane16_swap_b32 v{t}, v{t+2}")
                    e(f"v_permlane16_swap_b32 v{t+1}, v{t+3}")
                    e(f"buffer_store_dwordx4 v[{t}:{t+3}], v6, s[{S_SRD_O}:{S_SRD_O+3}], s{S_T2} offen offset:{np_*64}")
        else:
            srd(e, S_SRD_O, 28, 29, 16 * MB, WS_P2)
            e(f"v_lshl_add_u32 v4, v3, 2, s{S_T1}")
            e("v_lshlrev_b32 v6, 12, v6")
            e("v_lshl_add_u32 v6, v4, 2, v6")
            e("s_lshl_b32 s33, s33, 23")
            for m in range(8):
                e(f"s_add_u32 s{S_T2}, s33, {m*16*4096}")
                for n in range(4):
                    a = G.acc(m, n)
                    e(f"buffer_store_dwordx4 a[{a}:{a+3}], v6, s[{S_SRD_O}:{S_SRD_O+3}], s{S_T2} offen offset:{n*64}")
        e("s_endpgm")
        vt_max = max(vt_max, G.vtop)
    e.lab("g2_done")
    e("s_endpgm")
    acc0 = (vt_max + 3) // 4 * 4
    kdesc(e, name, acc0 + 128, acc0)
    return G.SS * S


def main():
    out = sys.argv[1]
    for a in sys.argv[2:]:
        k, v = a.split("=")
        OPT[k] = int(v) if v.lstrip('-').isdigit() else v
    e = E()
    gen_ln(e)
    l1 = gen_g1(e)
    l2 = gen_g2(e)
    gen_fin(e)
    hdr = open("cdna_kernels/%s.s.ref" % KN).read().split("; Override launch")[0]
    b1 = 512 if OPT['design1'] == 'B' else 256
    b2 = 512 if OPT['design2'] == 'B' else 256
    hdr += "; @launch kernel=ln_kernel grid=(512,1,1) block=(256,1,1) lds=0\n"
    hdr += f"; @launch kernel=g1_kernel grid=(256,1,1) block=({b1},1,1) lds={l1}\n"
    hdr += f"; @launch kernel=g2_kernel grid=(256,1,1) block=({b2},1,1) lds={l2}\n"
    hdr += "; @launch kernel=fin_kernel grid=(1024,1,1) block=(256,1,1) lds=0\n"
    hdr += '.amdgcn_target "amdgcn-amd-amdhsa--gfx950"\n.text\n'
    open(out, "w").write(hdr + "\n".join(e.L) + "\n")


if __name__ == "__main__":
    main()
```

```python
import sys, math

KN = "recurrent_scan__spectral_fnet__dense_activation_gelu__prompt"

MB = 1 << 20
WS_XN = 0
WS_AT = 5 * MB
WS_H = 14 * MB
XS, ATS, HS = 2176, 4224, 7296
WS_P0 = 32 * MB
WS_P1 = 36 * MB
WS_P2 = 40 * MB
WS_P3 = 48 * MB

OPT = dict(design1='B', design2='B', S1=2, S2=3, X=8)


class E:
    def __init__(s):
        s.L = []

    def __call__(s, x):
        s.L.append("    " + x)

    def lab(s, x):
        s.L.append(x + ":")

    def c(s, x):
        s.L.append("    ; " + x)

    def ext(s, lst):
        for x in lst:
            s(x)


def srd(e, d, lo, hi, nbytes, add=0):
    if add:
        e(f"s_add_u32 s{d}, s{lo}, {add}")
        e(f"s_addc_u32 s{d+1}, s{hi}, 0")
    else:
        e(f"s_mov_b32 s{d}, s{lo}")
        e(f"s_mov_b32 s{d+1}, s{hi}")
    e(f"s_mov_b32 s{d+2}, {nbytes}")
    e(f"s_mov_b32 s{d+3}, 0x20000")


def kdesc(e, name, vgpr, accoff, sgpr=102):
    e.L.append('.section .rodata,"a"')
    e.L.append(".p2align 6")
    e.L.append(f".amdhsa_kernel {name}")
    e.L.append(f"  .amdhsa_next_free_vgpr {vgpr}")
    e.L.append(f"  .amdhsa_next_free_sgpr {sgpr}")
    e.L.append(f"  .amdhsa_accum_offset {accoff}")
    e.L.append("  .amdhsa_group_segment_fixed_size 0")
    e.L.append("  .amdhsa_kernarg_size 104")
    e.L.append("  .amdhsa_user_sgpr_count 2")
    e.L.append("  .amdhsa_user_sgpr_kernarg_segment_ptr 1")
    e.L.append("  .amdhsa_system_sgpr_workgroup_id_x 1")
    e.L.append(".end_amdhsa_kernel")
    e.L.append(".text")


def khead(e, name):
    e.L.append(f".globl {name}")
    e.L.append(".p2align 8")
    e.L.append(f".type {name},@function")
    e.lab(name)


def gen_ln(e):
    name = "ln_kernel"
    khead(e, name)
    e("s_cmp_ge_u32 s2, 512")
    e("s_cbranch_scc1 ln_done")
    e("s_load_dwordx2 s[4:5], s[0:1], 0")
    e("s_load_dwordx2 s[6:7], s[0:1], 96")
    e("v_lshrrev_b32 v1, 6, v0")
    e("v_and_b32 v2, 63, v0")
    e("s_lshl_b32 s3, s2, 2")
    e("v_add_u32 v1, s3, v1")
    e(f"s_mov_b32 s16, {XS}")
    e("v_mul_lo_u32 v50, v1, s16")
    e("v_lshl_add_u32 v50, v2, 4, v50")
    e("v_lshlrev_b32 v1, 11, v1")
    e("v_lshl_add_u32 v1, v2, 4, v1")
    e("s_waitcnt lgkmcnt(0)")
    srd(e, 8, 4, 5, 4 * MB)
    srd(e, 12, 6, 7, 2048 * XS, WS_XN)
    e("buffer_load_dwordx4 v[4:7], v1, s[8:11], 0 offen")
    e("buffer_load_dwordx4 v[8:11], v1, s[8:11], 0 offen offset:1024")
    npf = 0
    if OPT.get('pfln'):
        e("s_load_dwordx8 s[36:43], s[0:1], 8")
        e("s_load_dwordx2 s[44:45], s[0:1], 48")
        e("s_load_dwordx2 s[46:47], s[0:1], 64")
        e("v_lshrrev_b32 v70, 6, v0")
        e("v_add_u32 v70, s3, v70")
        e("v_lshlrev_b32 v71, 7, v2")
        e("s_waitcnt lgkmcnt(0)")
        items = [(40, 2 * MB), (42, 2 * MB), (44, 1024 * 7168)]
        if OPT['pfln'] >= 2:
            items += [(36, 8 * MB), (38, 8 * MB), (46, 3584 * 2048)]
        for k, (lo, nb) in enumerate(items):
            per = nb // 128 // 2048
            srd(e, 48, lo, lo + 1, nb)
            e(f"v_mul_u32_u24 v72, {per*128}, v70")
            e("v_add_u32 v72, v72, v71")
            e(f"v_cmp_gt_u32 vcc, {per}, v2")
            e("v_mov_b32 v73, 0x7ff00000")
            e("s_nop 0")
            e("v_cndmask_b32 v72, v73, v72, vcc")
            e(f"buffer_load_dword v{74+k}, v72, s[48:51], 0 offen")
            npf += 1
    e(f"s_waitcnt vmcnt({npf})")
    for i in range(8):
        e(f"v_lshlrev_b32 v{16+2*i}, 16, v{4+i}")
        e(f"v_and_b32 v{17+2*i}, 0xffff0000, v{4+i}")

    def tree(dst, src):
        for i in range(8):
            e(f"v_add_f32 v{40+i}, v{src+2*i}, v{src+2*i+1}")
        for i in range(4):
            e(f"v_add_f32 v{40+i}, v{40+i}, v{44+i}")
        e("v_add_f32 v40, v40, v42")
        e("v_add_f32 v41, v41, v43")
        e(f"v_add_f32 v{dst}, v40, v41")

    def wred(v, sdst):
        for sh in (1, 2, 4, 8):
            e("s_nop 1")
            e(f"v_add_f32_dpp v{v}, v{v}, v{v} row_ror:{sh} row_mask:0xf bank_mask:0xf")
        e("s_nop 1")
        e(f"v_readlane_b32 s20, v{v}, 0")
        e(f"v_readlane_b32 s21, v{v}, 16")
        e(f"v_readlane_b32 s22, v{v}, 32")
        e(f"v_readlane_b32 s23, v{v}, 48")
        e("s_nop 1")
        e(f"v_mov_b32 v{v}, s20")
        e(f"v_add_f32 v{v}, s21, v{v}")
        e(f"v_mov_b32 v48, s22")
        e(f"v_add_f32 v48, s23, v48")
        e(f"v_add_f32 v{v}, v{v}, v48")

    tree(3, 16)
    wred(3, 24)
    e("v_mul_f32 v3, 0x3a800000, v3")
    for i in range(16):
        e(f"v_sub_f32 v{52+i}, v{16+i}, v3")
    for i in range(16):
        e(f"v_mul_f32 v{52+i}, v{52+i}, v{52+i}")
    tree(12, 52)
    wred(12, 25)
    e("v_mul_f32 v12, 0x3a800000, v12")
    e("v_cvt_pk_bf16_f32 v13, v3, v12")
    e("v_lshlrev_b32 v3, 16, v13")
    e("v_and_b32 v12, 0xffff0000, v13")
    e("v_add_f32 v12, 0x3727c5ac, v12")
    e("v_cvt_pk_bf16_f32 v13, v12, v12")
    e("v_lshlrev_b32 v12, 16, v13")
    e("v_sqrt_f32 v12, v12")
    e("s_nop 0")
    e("v_cvt_pk_bf16_f32 v13, v12, v12")
    e("v_lshlrev_b32 v12, 16, v13")
    e("v_rcp_f32 v14, v12")
    for i in range(8):
        e(f"v_sub_f32 v{16+2*i}, v{16+2*i}, v3")
        e(f"v_sub_f32 v{17+2*i}, v{17+2*i}, v3")
        e(f"v_cvt_pk_bf16_f32 v{4+i}, v{16+2*i}, v{17+2*i}")
        e(f"v_lshlrev_b32 v{16+2*i}, 16, v{4+i}")
        e(f"v_and_b32 v{17+2*i}, 0xffff0000, v{4+i}")
    for i in range(16):
        e(f"v_mul_f32 v{52+i}, v{16+i}, v14")
        e(f"v_fma_f32 v{16+i}, -v{52+i}, v12, v{16+i}")
        e(f"v_fma_f32 v{52+i}, v{16+i}, v14, v{52+i}")
    for i in range(8):
        e(f"v_cvt_pk_bf16_f32 v{4+i}, v{52+2*i}, v{53+2*i}")
    e("buffer_store_dwordx4 v[4:7], v50, s[12:15], 0 offen")
    e("buffer_store_dwordx4 v[8:11], v50, s[12:15], 0 offen offset:1024")
    e.lab("ln_done")
    e("s_endpgm")
    kdesc(e, name, 80, 80, 56)


def gen_fin(e):
    name = "fin_kernel"
    khead(e, name)
    e("s_cmp_ge_u32 s2, 1024")
    e("s_cbranch_scc1 fin_done")
    e("s_load_dwordx2 s[4:5], s[0:1], 0")
    e("s_load_dwordx4 s[24:27], s[0:1], 72")
    e("s_load_dwordx2 s[6:7], s[0:1], 96")
    e("s_lshl_b32 s3, s2, 8")
    e("v_add_u32 v1, s3, v0")
    e("v_lshlrev_b32 v2, 4, v1")
    e("v_lshlrev_b32 v3, 5, v1")
    e("v_and_b32 v4, 0x7ff, v2")
    e("s_mov_b32 s28, 0xbfb8aa3b")
    e("s_waitcnt lgkmcnt(0)")
    srd(e, 8, 4, 5, 4 * MB)
    srd(e, 12, 6, 7, 8 * MB, WS_P0)
    srd(e, 16, 6, 7, 16 * MB, WS_P2)
    srd(e, 20, 24, 25, 2048)
    srd(e, 32, 26, 27, 4 * MB)
    e(f"s_mov_b32 s29, {4*MB}")
    e(f"s_mov_b32 s30, {8*MB}")
    e("buffer_load_dwordx4 v[8:11], v2, s[12:15], 0 offen")
    e("buffer_load_dwordx4 v[12:15], v2, s[12:15], s29 offen")
    e("buffer_load_dwordx4 v[16:19], v3, s[16:19], 0 offen")
    e("buffer_load_dwordx4 v[20:23], v3, s[16:19], 0 offen offset:16")
    e("buffer_load_dwordx4 v[24:27], v3, s[16:19], s30 offen")
    e("buffer_load_dwordx4 v[28:31], v3, s[16:19], s30 offen offset:16")
    e("buffer_load_dwordx4 v[32:35], v4, s[20:23], 0 offen")
    e("buffer_load_dwordx4 v[36:39], v2, s[8:11], 0 offen")
    e("s_waitcnt vmcnt(6)")
    for i in range(4):
        e(f"v_lshlrev_b32 v{40+2*i}, 16, v{8+i}")
        e(f"v_and_b32 v{41+2*i}, 0xffff0000, v{8+i}")
        e(f"v_lshlrev_b32 v{48+2*i}, 16, v{12+i}")
        e(f"v_and_b32 v{49+2*i}, 0xffff0000, v{12+i}")
    for i in range(8):
        e(f"v_add_f32 v{40+i}, v{40+i}, v{48+i}")
    for i in range(4):
        e(f"v_cvt_pk_bf16_f32 v{8+i}, v{40+2*i}, v{41+2*i}")
        e(f"v_lshlrev_b32 v{40+2*i}, 16, v{8+i}")
        e(f"v_and_b32 v{41+2*i}, 0xffff0000, v{8+i}")
    e("s_waitcnt vmcnt(1)")
    for i in range(8):
        e(f"v_add_f32 v{16+i}, v{16+i}, v{24+i}")
    for i in range(4):
        e(f"v_cvt_pk_bf16_f32 v{8+i}, v{16+2*i}, v{17+2*i}")
        e(f"v_lshlrev_b32 v{16+2*i}, 16, v{8+i}")
        e(f"v_and_b32 v{17+2*i}, 0xffff0000, v{8+i}")
        e(f"v_lshlrev_b32 v{24+2*i}, 16, v{32+i}")
        e(f"v_and_b32 v{25+2*i}, 0xffff0000, v{32+i}")
    for i in range(8):
        e(f"v_add_f32 v{16+i}, v{16+i}, v{24+i}")
    for i in range(4):
        e(f"v_cvt_pk_bf16_f32 v{8+i}, v{16+2*i}, v{17+2*i}")
        e(f"v_lshlrev_b32 v{16+2*i}, 16, v{8+i}")
        e(f"v_and_b32 v{17+2*i}, 0xffff0000, v{8+i}")
    for i in range(8):
        e(f"v_mul_f32 v{24+i}, s28, v{16+i}")
    for i in range(8):
        e(f"v_exp_f32 v{24+i}, v{24+i}")
    for i in range(8):
        e(f"v_add_f32 v{24+i}, 1.0, v{24+i}")
    for i in range(8):
        e(f"v_rcp_f32 v{24+i}, v{24+i}")
    for i in range(8):
        e(f"v_mul_f32 v{16+i}, v{16+i}, v{24+i}")
    for i in range(4):
        e(f"v_cvt_pk_bf16_f32 v{8+i}, v{16+2*i}, v{17+2*i}")
        e(f"v_lshlrev_b32 v{16+2*i}, 16, v{8+i}")
        e(f"v_and_b32 v{17+2*i}, 0xffff0000, v{8+i}")
    for i in range(8):
        e(f"v_mul_f32 v{16+i}, v{16+i}, v{40+i}")
    e("s_waitcnt vmcnt(0)")
    for i in range(4):
        e(f"v_cvt_pk_bf16_f32 v{8+i}, v{16+2*i}, v{17+2*i}")
        e(f"v_lshlrev_b32 v{16+2*i}, 16, v{8+i}")
        e(f"v_and_b32 v{17+2*i}, 0xffff0000, v{8+i}")
        e(f"v_lshlrev_b32 v{24+2*i}, 16, v{36+i}")
        e(f"v_and_b32 v{25+2*i}, 0xffff0000, v{36+i}")
    for i in range(8):
        e(f"v_add_f32 v{16+i}, v{16+i}, v{24+i}")
    for i in range(4):
        e(f"v_cvt_pk_bf16_f32 v{8+i}, v{16+2*i}, v{17+2*i}")
    e("buffer_store_dwordx4 v[8:11], v2, s[32:35], 0 offen")
    e.lab("fin_done")
    e("s_endpgm")
    kdesc(e, name, 56, 56, 40)


S_WAVE = 3
S_ROW0 = 40
S_COL0 = 41
S_KR = 42
S_KC = 43
S_KN = 44
S_CNT = 45
S_WR = 46
S_RD = 47
S_DL = 48
S_T0 = 49
S_T1 = 50
S_T2 = 51
S_M0 = 52
S_NS = 60
S_LEFT = 61
S_KI = 62
S_SRD_R = 8
S_SRD_O = 12
S_SRD_B = 16
S_SRD_C = 64
S_NREC = 88
RT = 32768


class Region:
    def __init__(s, typ, g0, ng, lds_off, gstride):
        s.typ, s.g0, s.ng, s.lds_off, s.gstride = typ, g0, ng, lds_off, gstride
        if typ == 'T':
            s.ninstr = ng * 2
        elif typ == 'Nadd':
            W = ng * 32
            s.RS = W if ng % 2 else W + 32
            s.BL = 8 * s.RS // 16 + 8
            s.ninstr = -(-8 * s.BL // 64)
        elif typ == 'Nxor':
            assert ng in (4, 8)
            s.RS = ng * 32
            s.ninstr = ng * 2
        s.DW = -(-s.ninstr // 4)
        s.bytes = s.DW * 4 * 1024


def magic(d, n):
    for sh in range(8, 24):
        m = -(-(1 << sh) // d)
        if m < (1 << 24) and all((x * m) >> sh == x // d for x in range(n)):
            return m, sh
    raise Exception


class Gemm:
    def __init__(s, e, pre, design, S, MT, NT, WM, WN, regions, rstride, outer, orient, nsteps_sgpr=False, nsteps=None):
        s.e, s.pre, s.design, s.S = e, pre, design, S
        s.MT, s.NT, s.WM, s.WN = MT, NT, WM, WN
        s.regions, s.rstride, s.outer, s.orient = regions, rstride, outer, orient
        s.CS = sum(r.bytes for r in regions)
        s.SS = RT + s.CS
        s.nsteps = nsteps
        s.rot = None
        s.pfstub = None
        s.st_off = 0
        s.D = 8 + sum(r.DW for r in regions)
        nacc = MT * NT * 4
        s.nacc = nacc
        v = 0
        s.vR = [0]
        v = 1
        s.vC = {}
        for ri, r in enumerate(regions):
            if r.typ == 'T':
                s.vC[ri] = [v]; v += 1
            elif r.typ == 'Nadd':
                s.vC[ri] = [v]; v += 1
            else:
                n = min(NT, r.ng)
                s.vC[ri] = list(range(v, v + n)); v += n
        s.naddr = v
        v = (v + 3) // 4 * 4
        if outer == 'C':
            s.fR = [[v + (st * MT + m) * 4 for m in range(MT)] for st in range(2)]
            v += 2 * MT * 4
            s.fC = [[v + n * 4 for n in range(NT)]] * 2
            v += NT * 4
        else:
            s.fR = [[v + m * 4 for m in range(MT)]] * 2
            v += MT * 4
            s.fC = [[v + (st * NT + n) * 4 for n in range(NT)] for st in range(2)]
            v += 2 * NT * 4
        s.vfrag0 = (s.naddr + 3) // 4 * 4
        s.vend = v
        if design == 'A':
            s.vL = v
            v += s.D
        else:
            s.vL = 8
        s.vtop = v

    def region_of(s, n):
        if s.WN > 1:
            return 0, n
        for ri, r in enumerate(s.regions):
            if r.g0 <= n < r.g0 + r.ng:
                return ri, n - r.g0
        raise Exception

    def rd_R(s, kk, m):
        d = s.fR[kk][m]
        return [(f"ds_read_b128 v[{d}:{d+3}], v{s.vR[0]} offset:{m*2048+kk*512}", d)]

    def rd_C(s, kk, n):
        d = s.fC[kk][n]
        ri, j = s.region_of(n)
        r = s.regions[ri]
        if r.typ == 'T':
            return [(f"ds_read_b128 v[{d}:{d+3}], v{s.vC[ri][0]} offset:{j*2048+kk*512}", d)]
        if r.typ == 'Nadd':
            o = kk * (32 * r.RS + 512) + j * 32
            return [(f"ds_read_b64_tr_b16 v[{d}:{d+1}], v{s.vC[ri][0]} offset:{o}", d),
                    (f"ds_read_b64_tr_b16 v[{d+2}:{d+3}], v{s.vC[ri][0]} offset:{o+4*r.RS}", d + 2)]
        o = kk * 32 * r.RS
        return [(f"ds_read_b64_tr_b16 v[{d}:{d+1}], v{s.vC[ri][j]} offset:{o}", d),
                (f"ds_read_b64_tr_b16 v[{d+2}:{d+3}], v{s.vC[ri][j]} offset:{o+4*r.RS}", d + 2)]

    def acc(s, m, n):
        return (m * s.NT + n) * 4

    def mfma(s, kk, m, n):
        a = s.acc(m, n)
        r, c = s.fR[kk][m], s.fC[kk][n]
        if s.orient[n] == 'RA':
            x, y = r, c
        else:
            x, y = c, r
        return (f"v_mfma_f32_16x16x32_bf16 a[{a}:{a+3}], v[{x}:{x+3}], v[{y}:{y+3}], a[{a}:{a+3}]", [r, c, c + 2])

    def loader_setup(s, vlane, vt, cset):
        e = s.e
        L = s.vL
        def tparts(stride):
            e(f"v_lshrrev_b32 v{vt}, 2, v{vlane}")
            e(f"v_and_b32 v{vt}, 7, v{vt}")
            e(f"s_mov_b32 s{S_T1}, {stride}")
            e(f"v_mul_lo_u32 v{vt}, v{vt}, s{S_T1}")
            e(f"v_lshrrev_b32 v{vt+1}, 5, v{vlane}")
            e(f"v_lshl_add_u32 v{vt}, v{vt+1}, 6, v{vt}")
            e(f"v_lshrrev_b32 v{vt+1}, 3, v{vlane}")
            e(f"v_and_b32 v{vt+1}, 2, v{vt+1}")
            e(f"v_and_b32 v{vt+2}, 3, v{vlane}")
            e(f"v_xor_b32 v{vt+1}, v{vt+1}, v{vt+2}")
            e(f"v_lshlrev_b32 v{vt+1}, 4, v{vt+1}")
            e(f"v_xor_b32 v{vt+2}, 48, v{vt+1}")
            e(f"v_add_u32 v{vt+1}, v{vt+1}, v{vt}")
            e(f"v_add_u32 v{vt+2}, v{vt+2}, v{vt}")
        tparts(s.rstride)
        e(f"s_lshl_b32 s{S_T0}, s{S_WAVE}, 6")
        e(f"s_add_u32 s{S_T0}, s{S_T0}, s{S_ROW0}")
        e(f"s_mul_i32 s{S_T0}, s{S_T0}, {s.rstride}")
        for j in range(8):
            e(f"s_add_u32 s{S_T1}, s{S_T0}, {j*8*s.rstride - (j&3)*1024}")
            e(f"v_add_u32 v{L+j}, s{S_T1}, v{vt+1+(j&1)}")
        e(f"s_lshl_b32 s{S_M0}, s{S_WAVE}, 13")
        e(f"s_add_u32 s{S_M0+1}, s{S_M0}, 4096")
        s.dma = []
        for j in range(8):
            s.dma.append((L + j, S_SRD_R, S_KR, S_M0 + (j >> 2) if (j & 3) == 0 else None, (j & 3) * 1024))
        vo = L + 8
        mo = S_M0 + 2
        so = S_SRD_C
        s.srds = [S_SRD_R]
        for ri, r in enumerate(s.regions):
            ng4 = -(-r.DW // 4)
            e(f"s_mul_i32 s{mo}, s{S_WAVE}, {r.DW*1024}")
            e(f"s_add_u32 s{mo}, s{mo}, {RT + r.lds_off}")
            for g in range(1, ng4):
                e(f"s_add_u32 s{mo+g}, s{mo}, {4096*g}")
            if r.typ == 'T':
                assert r.DW % 2 == 0
                tparts(r.gstride)
                for j in range(r.DW):
                    cset(ri, j, so)
                    if (j & 3):
                        e(f"s_sub_u32 s{S_T0}, s{S_T0}, {(j&3)*1024}")
                    e(f"v_add_u32 v{vo+j}, s{S_T0}, v{vt+1+(j&1)}")
                    s.dma.append((vo + j, so, S_KC, mo + (j >> 2) if (j & 3) == 0 else None, (j & 3) * 1024))
                    s.srds.append(so)
                    so += 4
            elif r.typ == 'Nadd':
                cset(ri, None, so)
                s.srds.append(so)
                m1, sh1 = magic(r.BL, 4 * r.DW * 64)
                rc = r.RS // 16
                m2, sh2 = magic(rc, r.BL)
                e(f"s_mul_i32 s{S_T1}, s{S_WAVE}, {r.DW*64}")
                for j in range(r.DW):
                    e(f"v_add_u32 v{vt}, s{S_T1}, v{vlane}")
                    if j:
                        e(f"v_add_u32 v{vt}, {64*j}, v{vt}")
                    e(f"v_mul_u32_u24 v{vt+1}, {m1}, v{vt}")
                    e(f"v_lshrrev_b32 v{vt+1}, {sh1}, v{vt+1}")
                    e(f"v_mul_u32_u24 v{vt+2}, {r.BL}, v{vt+1}")
                    e(f"v_sub_u32 v{vt}, v{vt}, v{vt+2}")
                    e(f"v_mul_u32_u24 v{vt+2}, {m2}, v{vt}")
                    e(f"v_lshrrev_b32 v{vt+2}, {sh2}, v{vt+2}")
                    e(f"v_mul_u32_u24 v{vt+3}, {rc}, v{vt+2}")
                    e(f"v_sub_u32 v{vt+3}, v{vt}, v{vt+3}")
                    e(f"v_lshl_add_u32 v{vt+1}, v{vt+1}, 3, v{vt+2}")
                    e(f"v_mul_u32_u24 v{vt+4}, {r.gstride}, v{vt+1}")
                    e(f"v_lshl_add_u32 v{vt+4}, v{vt+3}, 4, v{vt+4}")
                    e(f"v_add_u32 v{vt+4}, s{S_T0}, v{vt+4}")
                    if j & 3:
                        e(f"v_subrev_u32 v{vt+4}, {(j&3)*1024}, v{vt+4}")
                    e(f"v_cmp_gt_u32 vcc, 8, v{vt+2}")
                    e(f"v_mov_b32 v{vt+5}, 0x7ff00000")
                    e("s_nop 0")
                    e(f"v_cndmask_b32 v{vt+4}, v{vt+5}, v{vt+4}, vcc")
                    e(f"v_cmp_gt_u32 vcc, {r.ng*2}, v{vt+3}")
                    e("s_nop 1")
                    e(f"v_cndmask_b32 v{vt+4}, v{vt+5}, v{vt+4}, vcc")
                    e(f"v_cmp_gt_u32 vcc, 64, v{vt+1}")
                    e("s_nop 1")
                    e(f"v_cndmask_b32 v{vo+j}, v{vt+5}, v{vt+4}, vcc")
                    s.dma.append((vo + j, so, S_KN, mo + (j >> 2) if (j & 3) == 0 else None, (j & 3) * 1024))
                so += 4
            else:
                cset(ri, None, so)
                s.srds.append(so)
                if r.ng == 8:
                    assert r.DW == 4
                    e(f"v_lshrrev_b32 v{vt}, 4, v{vlane}")
                    e(f"v_mul_u32_u24 v{vt+1}, {r.gstride}, v{vt}")
                    e(f"v_lshlrev_b32 v{vt}, 5, v{vt}")
                    e(f"v_and_b32 v{vt+2}, 15, v{vlane}")
                    e(f"v_lshlrev_b32 v{vt+2}, 4, v{vt+2}")
                    e(f"v_xor_b32 v{vt+2}, v{vt+2}, v{vt}")
                    e(f"v_xor_b32 v{vt+3}, 128, v{vt+2}")
                    e(f"v_add_u32 v{vt+2}, v{vt+2}, v{vt+1}")
                    e(f"v_add_u32 v{vt+3}, v{vt+3}, v{vt+1}")
                    e(f"s_mul_i32 s{S_T1}, s{S_WAVE}, {16*r.gstride}")
                    e(f"s_add_u32 s{S_T0}, s{S_T0}, s{S_T1}")
                    for j in range(4):
                        e(f"s_add_u32 s{S_T1}, s{S_T0}, {j*4*r.gstride - (j&3)*1024}")
                        e(f"v_add_u32 v{vo+j}, s{S_T1}, v{vt+2+((j>>1)&1)}")
                        s.dma.append((vo + j, so, S_KN, mo if j == 0 else None, j * 1024))
                else:
                    assert r.DW == 2
                    e(f"v_lshrrev_b32 v{vt}, 3, v{vlane}")
                    e(f"v_mul_u32_u24 v{vt+1}, {r.gstride}, v{vt}")
                    e(f"v_lshrrev_b32 v{vt}, 4, v{vlane}")
                    e(f"v_and_b32 v{vt}, 1, v{vt}")
                    e(f"v_lshlrev_b32 v{vt}, 5, v{vt}")
                    e(f"v_and_b32 v{vt+2}, 7, v{vlane}")
                    e(f"v_lshlrev_b32 v{vt+2}, 4, v{vt+2}")
                    e(f"v_xor_b32 v{vt+2}, v{vt+2}, v{vt}")
                    e(f"v_xor_b32 v{vt+3}, 64, v{vt+2}")
                    e(f"v_add_u32 v{vt+2}, v{vt+2}, v{vt+1}")
                    e(f"v_add_u32 v{vt+3}, v{vt+3}, v{vt+1}")
                    e(f"s_mul_i32 s{S_T1}, s{S_WAVE}, {16*r.gstride}")
                    e(f"s_add_u32 s{S_T0}, s{S_T0}, s{S_T1}")
                    for j in range(2):
                        e(f"s_add_u32 s{S_T1}, s{S_T0}, {j*8*r.gstride - j*1024}")
                        e(f"v_add_u32 v{vo+j}, s{S_T1}, v{vt+2+j}")
                        s.dma.append((vo + j, so, S_KN, mo if j == 0 else None, j * 1024))
                so += 4
            vo += r.DW
            mo += ng4
        assert len(s.dma) == s.D
        assert mo <= S_NS and so <= S_NREC

    def dma_groups(s):
        out = []
        for (v, sr, so, m0, io) in s.dma:
            g = []
            if m0 is not None:
                g.append(f"s_add_u32 m0, s{S_WR}, s{m0}")
                g.append("s_nop 0")
            g.append(f"buffer_load_dwordx4 v{v}, s[{sr}:{sr+3}], s{so} offen offset:{io} lds" if io else
                     f"buffer_load_dwordx4 v{v}, s[{sr}:{sr+3}], s{so} offen lds")
            out.append(g)
        return out

    def dma_book(s):
        g = [f"s_add_u32 s{S_KR}, s{S_KR}, 128"]
        if any(r.typ == 'T' for r in s.regions):
            g.append(f"s_add_u32 s{S_KC}, s{S_KC}, 128")
        for r in s.regions:
            if r.typ != 'T':
                g.append(f"s_add_u32 s{S_KN}, s{S_KN}, {64*r.gstride}")
        if s.rot:
            g.append(f"s_add_u32 s{S_KI}, s{S_KI}, 1")
            g.append(f"s_cmp_ge_u32 s{S_KI}, s{S_NS}")
            g.append(f"s_cselect_b32 s{S_KI}, 0, s{S_KI}")
            g.append(f"s_cselect_b32 s{S_T0}, {128*s.nsteps}, 0")
            g.append(f"s_sub_u32 s{S_KR}, s{S_KR}, s{S_T0}")
            if any(r.typ == 'T' for r in s.regions):
                g.append(f"s_sub_u32 s{S_KC}, s{S_KC}, s{S_T0}")
            for r in s.regions:
                if r.typ != 'T':
                    g.append(f"s_mul_i32 s{S_T0}, s{S_KI}, 1")
                    g.append(f"s_cmp_eq_u32 s{S_KI}, 0")
                    g.append(f"s_cselect_b32 s{S_T0}, {64*r.gstride*s.nsteps}, 0")
                    g.append(f"s_sub_u32 s{S_KN}, s{S_KN}, s{S_T0}")
        g.append(f"s_add_u32 s{S_WR}, s{S_WR}, {s.SS}")
        g.append(f"s_cmp_ge_u32 s{S_WR}, {s.SS*s.S}")
        g.append(f"s_cselect_b32 s{S_WR}, 0, s{S_WR}")
        g.append(f"s_sub_u32 s{S_LEFT}, s{S_LEFT}, 1")
        g.append(f"s_cmp_lt_i32 s{S_LEFT}, 1")
        for sr in s.srds:
            g.append(f"s_cselect_b32 s{sr+2}, 0, s{sr+2}")
        return g

    def loader_init(s):
        e = s.e
        e(f"s_mov_b32 s{S_WR}, 0")
        e(f"s_mov_b32 s{S_LEFT}, s{S_NS}")
        if s.rot:
            W, mul = s.rot
            if W == 1:
                e(f"s_and_b32 s{S_KI}, s2, 7")
            elif W == 2:
                e(f"s_lshr_b32 s{S_KI}, s2, 3")
                e(f"s_and_b32 s{S_KI}, s{S_KI}, 3")
                e(f"s_and_b32 s{S_T0}, s2, 1")
                e(f"s_lshl_b32 s{S_T0}, s{S_T0}, 2")
                e(f"s_add_u32 s{S_KI}, s{S_KI}, s{S_T0}")
                e(f"s_and_b32 s{S_T0}, s2, 4")
                e(f"s_lshl_b32 s{S_T0}, s{S_T0}, 1")
                e(f"s_add_u32 s{S_KI}, s{S_KI}, s{S_T0}")
            elif W == 3:
                e(f"s_and_b32 s{S_KI}, s2, 1")
                e(f"s_and_b32 s{S_T0}, s2, 4")
                e(f"s_lshr_b32 s{S_T0}, s{S_T0}, 1")
                e(f"s_add_u32 s{S_KI}, s{S_KI}, s{S_T0}")
            elif W == 4:
                e(f"s_and_b32 s{S_KI}, s2, 7")
                e(f"s_lshl_b32 s{S_KI}, s{S_KI}, 1")
                e(f"s_lshr_b32 s{S_T0}, s2, 3")
                e(f"s_and_b32 s{S_T0}, s{S_T0}, 1")
                e(f"s_add_u32 s{S_KI}, s{S_KI}, s{S_T0}")
            elif W == 5:
                e(f"s_lshr_b32 s{S_KI}, s2, 5")
                e(f"s_and_b32 s{S_T0}, s2, 8")
                e(f"s_add_u32 s{S_KI}, s{S_KI}, s{S_T0}")
            elif W == 6:
                e(f"s_lshr_b32 s{S_KI}, s2, 5")
                e(f"s_and_b32 s{S_T0}, s2, 24")
                e(f"s_add_u32 s{S_KI}, s{S_KI}, s{S_T0}")
            elif W == 7:
                e(f"s_lshr_b32 s{S_KI}, s2, 3")
                e(f"s_and_b32 s{S_KI}, s{S_KI}, 15")
            elif W == 8:
                e(f"s_lshr_b32 s{S_KI}, s2, 5")
            elif W == 9:
                e(f"s_lshr_b32 s{S_KI}, s2, 5")
                e(f"s_and_b32 s{S_KI}, s{S_KI}, 3")
                e(f"s_and_b32 s{S_T0}, s2, 24")
                e(f"s_lshr_b32 s{S_T0}, s{S_T0}, 1")
                e(f"s_add_u32 s{S_KI}, s{S_KI}, s{S_T0}")
            e(f"s_mul_i32 s{S_KI}, s{S_KI}, {mul}")
            e(f"s_cmp_ge_u32 s{S_KI}, s{S_NS}")
            e(f"s_cselect_b32 s{S_T0}, s{S_NS}, 0")
            e(f"s_sub_u32 s{S_KI}, s{S_KI}, s{S_T0}")
            e(f"s_lshl_b32 s{S_T0}, s{S_KI}, 7")
            e(f"s_add_u32 s{S_KR}, s{S_KR}, s{S_T0}")
            e(f"s_add_u32 s{S_KC}, s{S_KC}, s{S_T0}")
            for r in s.regions:
                if r.typ != 'T':
                    e(f"s_mul_i32 s{S_T0}, s{S_KI}, {64*r.gstride}")
                    e(f"s_add_u32 s{S_KN}, s{S_KN}, s{S_T0}")

    def stats_step(s):
        e = s.e
        for kk in range(2):
            for m in range(4):
                e(f"ds_read_b128 v[{40+16*kk+4*m}:{43+16*kk+4*m}], v24 offset:{m*2048+kk*512}")
        for kk in range(2):
            for m in range(4):
                e(f"s_waitcnt lgkmcnt({7-4*kk-m})")
                for x in range(4):
                    r = 40 + 16 * kk + 4 * m + x
                    e(f"v_dot2_f32_bf16 v{28+m}, v{r}, v39, v{28+m}")
                    e(f"v_dot2_f32_bf16 v{32+m}, v{r}, v{r}, v{32+m}")
        t = 40
        lst = []
        for ri, r in enumerate(s.regions):
            for j in range(-(-r.ng // 4)):
                for kk in range(2):
                    if r.typ == 'T':
                        e(f"ds_read_b128 v[{t}:{t+3}], v{25+ri} offset:{4*j*2048+kk*512}")
                    else:
                        o = kk * (32 * r.RS + 512) + 4 * j * 32
                        e(f"ds_read_b64_tr_b16 v[{t}:{t+1}], v{25+ri} offset:{o}")
                        e(f"ds_read_b64_tr_b16 v[{t+2}:{t+3}], v{25+ri} offset:{o+4*r.RS}")
                    lst.append((t, len(lst) // 2))
                    t += 4
        e("s_waitcnt lgkmcnt(0)")
        for (t, a) in lst:
            for x in range(4):
                e(f"v_dot2_f32_bf16 v{36+a}, v{t+x}, v39, v{36+a}")
        sg, _ = s.adv_addr()
        e.ext(sg)
        for a in range(1 + len(s.regions)):
            e(f"v_add_u32 v{24+a}, s{S_DL}, v{24+a}")

    def stats_final(s):
        e = s.e
        regs = list(range(28, 39))
        for r in regs:
            e(f"v_mov_b32 v40, v{r}")
            e("s_nop 1")
            e(f"v_permlane32_swap_b32 v{r}, v40")
            e(f"v_add_f32 v{r}, v{r}, v40")
            e(f"v_mov_b32 v40, v{r}")
            e("s_nop 1")
            e(f"v_permlane16_swap_b32 v{r}, v40")
            e(f"v_add_f32 v{r}, v{r}, v40")
        e("v_and_b32 v2, 15, v1")
        e(f"s_lshl_b32 s{S_T0}, s{S_WAVE}, 8")
        e(f"s_add_u32 s{S_T0}, s{S_T0}, {s.st_off}")
        e(f"v_lshl_add_u32 v3, v2, 2, s{S_T0}")
        for m in range(4):
            a, q = 28 + m, 32 + m
            e(f"v_mul_f32 v{a}, 0x3a800000, v{a}")
            e(f"v_mul_f32 v{q}, 0x3a800000, v{q}")
            e(f"v_fma_f32 v{q}, -v{a}, v{a}, v{q}")
            e(f"v_max_f32 v{q}, 0, v{q}")
            e(f"v_cvt_pk_bf16_f32 v40, v{a}, v{q}")
            e(f"v_lshlrev_b32 v{a}, 16, v40")
            e(f"v_and_b32 v{q}, 0xffff0000, v40")
            e(f"v_add_f32 v{q}, 0x3727c5ac, v{q}")
            e(f"v_cvt_pk_bf16_f32 v40, v{q}, v{q}")
            e(f"v_lshlrev_b32 v{q}, 16, v40")
            e(f"v_sqrt_f32 v{q}, v{q}")
            e("s_nop 0")
            e(f"v_cvt_pk_bf16_f32 v40, v{q}, v{q}")
            e(f"v_lshlrev_b32 v{q}, 16, v40")
            e(f"v_rcp_f32 v41, v{q}")
            e("s_nop 0")
            e(f"v_fma_f32 v42, -v{q}, v41, 1.0")
            e(f"v_fma_f32 v41, v42, v41, v41")
            e(f"v_mul_f32 v{a}, v{a}, v41")
            e(f"ds_write_b32 v3, v41 offset:{64*m}")
            e(f"ds_write_b32 v3, v{a} offset:{1024+64*m}")
        k = 0
        for ri, r in enumerate(s.regions):
            for j in range(-(-r.ng // 4)):
                e(f"s_add_u32 s{S_T0}, s{S_WAVE}, {4*j}")
                e(f"s_cmp_lt_u32 s{S_T0}, {r.ng}")
                e(f"s_cselect_b32 s{S_T0}, s{S_T0}, {12 - r.g0}")
                e(f"s_lshl_b32 s{S_T0}, s{S_T0}, 6")
                e(f"s_add_u32 s{S_T0}, s{S_T0}, {s.st_off + 2048 + 64 * r.g0}")
                e(f"v_lshl_add_u32 v3, v2, 2, s{S_T0}")
                e(f"ds_write_b32 v3, v{36+k}")
                k += 1
        e("s_waitcnt lgkmcnt(0)")
        e("s_barrier")

    def loader_loop(s):
        e, p = s.e, s.pre
        s.loader_init()
        for st in range(s.S):
            for g in s.dma_groups():
                e.ext(g)
            e.ext(s.dma_book())
        if s.st_off:
            s.compute_setup(1, 40, ldst=24)
            for r in range(28, 39):
                e(f"v_mov_b32 v{r}, 0")
            e("v_mov_b32 v39, 0x3f803f80")
            e(f"s_mov_b32 s{S_RD}, 0")
            e(f"s_mov_b32 s{S_NREC}, {s.SS}")
        e(f"s_waitcnt vmcnt({(s.S-1)*s.D})")
        e("s_barrier")
        e(f"s_mov_b32 s{S_CNT}, s{S_NS}")
        e.lab(f"{p}_lloop")
        if s.st_off:
            s.stats_step()
        e(f"s_waitcnt vmcnt({(s.S-2)*s.D})")
        e("s_barrier")
        for g in s.dma_groups():
            e.ext(g)
        e.ext(s.dma_book())
        e(f"s_sub_u32 s{S_CNT}, s{S_CNT}, 1")
        e(f"s_cmp_lg_u32 s{S_CNT}, 0")
        e(f"s_cbranch_scc1 {p}_lloop")
        if s.st_off:
            s.stats_final()
        e("s_endpgm")

    def compute_setup(s, vlane, vt, ldst=None):
        e = s.e
        if s.WN == 1:
            e(f"s_mul_i32 s{S_T0}, s{S_WAVE}, {s.MT*16*128}")
            e(f"s_mov_b32 s{S_T1}, 0")
        else:
            e(f"s_lshr_b32 s{S_T0}, s{S_WAVE}, 1")
            e(f"s_mul_i32 s{S_T0}, s{S_T0}, {s.MT*16*128}")
            e(f"s_and_b32 s{S_T1}, s{S_WAVE}, 1")
        e(f"v_and_b32 v{vt}, 15, v{vlane}")
        e(f"v_lshrrev_b32 v{vt+1}, 4, v{vlane}")
        e(f"v_lshrrev_b32 v{vt+2}, 3, v{vt}")
        e(f"v_lshrrev_b32 v{vt+3}, 2, v{vt}")
        e(f"v_and_b32 v{vt+3}, 1, v{vt+3}")
        e(f"v_xor_b32 v{vt+3}, v{vt+3}, v{vt+2}")
        e(f"v_lshl_add_u32 v{vt+3}, v{vt+3}, 1, v{vt+2}")
        e(f"v_xor_b32 v{vt+3}, v{vt+3}, v{vt+1}")
        e(f"v_lshlrev_b32 v{vt+3}, 4, v{vt+3}")
        e(f"v_lshl_add_u32 v{vt+3}, v{vt+2}, 10, v{vt+3}")
        e(f"v_and_b32 v{vt+2}, 7, v{vt}")
        e(f"v_lshl_add_u32 v{vt+2}, v{vt+2}, 6, v{vt+3}")
        e(f"v_lshrrev_b32 v{vt+4}, 2, v{vlane}")
        e(f"v_and_b32 v{vt+4}, 3, v{vt+4}")
        e(f"v_and_b32 v{vt+5}, 3, v{vlane}")
        tmp = {}
        for ri, r in enumerate(s.regions):
            base = RT + r.lds_off
            if r.typ == 'T':
                e(f"s_mul_i32 s{S_T2}, s{S_T1}, {s.NT*16*128}")
                e(f"s_add_u32 s{S_T2}, s{S_T2}, {base}")
                e(f"v_add_u32 v{vt+6+2*ri}, s{S_T2}, v{vt+2}")
                tmp[ri] = [vt + 6 + 2 * ri]
            elif r.typ == 'Nadd':
                assert s.WN == 1
                d = vt + 6 + 2 * ri
                e(f"v_lshl_add_u32 v{d}, v{vt+1}, 3, v{vt+4}")
                e(f"v_mul_u32_u24 v{d}, {r.RS}, v{d}")
                e(f"v_lshl_add_u32 v{d}, v{vt+1}, 7, v{d}")
                e(f"v_lshl_add_u32 v{d}, v{vt+5}, 3, v{d}")
                e(f"v_add_u32 v{d}, {base}, v{d}")
                tmp[ri] = [d]
            else:
                d = vt + 6 + 2 * ri
                e(f"v_lshl_add_u32 v{d}, v{vt+1}, 3, v{vt+4}")
                e(f"v_mul_u32_u24 v{d}, {r.RS}, v{d}")
                e(f"v_lshl_add_u32 v{d}, v{vt+5}, 3, v{d}")
                e(f"v_add_u32 v{d}, {base}, v{d}")
                e(f"v_and_b32 v{d+1}, 1, v{vt+1}")
                if r.ng == 8:
                    e(f"v_lshl_add_u32 v{d+1}, v{d+1}, 2, v{vt+4}")
                    e(f"s_mul_i32 s{S_T2}, s{S_T1}, {s.NT}")
                    e(f"v_xor_b32 v{d+1}, s{S_T2}, v{d+1}")
                else:
                    e(f"v_lshrrev_b32 v{vt+10}, 1, v{vt+4}")
                    e(f"v_lshl_add_u32 v{d+1}, v{d+1}, 1, v{vt+10}")
                e(f"v_lshl_add_u32 v{d}, v{d+1}, 5, v{d}")
                tmp[ri] = [d]
        if ldst is not None:
            e(f"v_add_u32 v{ldst}, s{S_T0}, v{vt+2}")
            for ri, r in enumerate(s.regions):
                e(f"s_mul_i32 s{S_T2}, s{S_WAVE}, {2048 if r.typ == 'T' else 32}")
                e(f"v_add_u32 v{ldst+1+ri}, s{S_T2}, v{tmp[ri][0]}")
            return
        for ri, r in enumerate(s.regions):
            if r.typ == 'Nxor':
                for j, vv in enumerate(s.vC[ri]):
                    e(f"v_xor_b32 v{vv}, {32*j}, v{tmp[ri][0]}")
            else:
                for vv, t in zip(s.vC[ri], tmp[ri]):
                    e(f"v_mov_b32 v{vv}, v{t}")
        e(f"v_add_u32 v{s.vR[0]}, s{S_T0}, v{vt+2}")
        for a in range(s.nacc):
            e(f"v_accvgpr_write_b32 a{a}, 0")

    def adv_addr(s):
        g = [f"s_add_u32 s{S_RD}, s{S_RD}, {s.SS}",
             f"s_cmp_ge_u32 s{S_RD}, {s.SS*s.S}",
             f"s_cselect_b32 s{S_RD}, 0, s{S_RD}",
             f"s_cselect_b32 s{S_DL}, {-(s.S-1)*s.SS & 0xffffffff}, s{S_NREC}"]
        v = [f"v_add_u32 v{a}, s{S_DL}, v{a}" for a in range(s.naddr)]
        return g, v

    def compute_loop(s, X):
        e, p = s.e, s.pre
        MT, NT = s.MT, s.NT
        if s.outer == 'C':
            NO, NI = NT, MT
            order = [(m, n) for n in range(NT) for m in range(MT)]
        else:
            NO, NI = MT, NT
            order = [(m, n) for m in range(MT) for n in range(NT)]
        NM = MT * NT

        def rd_outer(kk, o):
            return s.rd_C(kk, o) if s.outer == 'C' else s.rd_R(kk, o)

        def rd_inner(kk, i):
            return s.rd_R(kk, i) if s.outer == 'C' else s.rd_C(kk, i)

        seq = [(1, t) for t in range(X, NM)] + [(0, t) for t in range(NM)] + [(1, t) for t in range(X)]
        P1 = NM - X
        NSEQ = len(seq)
        BR = OPT.get('BR', 6)
        sg, vg = s.adv_addr()
        fill = []
        fill.append([0, -10, [(x, None) for x in vg], 'x'])
        first_rd = 0 if len(vg) <= 1 else 1
        for i in range(NI):
            fill.append([first_rd, 0 + i * 0.01, rd_inner(0, i), 'lds'])
        for o in range(NO):
            last = (o + 1) * NI - 1
            fill.append([max(last - X, first_rd), 0.5 + o, rd_outer(0, o), 'lds'])
        for i in range(NI):
            fill.append([P1 - 1, 100 + i * 0.01, rd_inner(1, i), 'lds'])
        for o in range(NO):
            fill.append([P1 + (o + 1) * NI - 1, 100.5 + o, rd_outer(1, o), 'lds'])
        fill.append([P1 + 2, 200, [(x, None) for x in sg[:2]], 'x'])
        fill.append([P1 + 3, 201, [(x, None) for x in sg[2:]], 'x'])
        if s.pfstub:
            fill.append([P1 + 9, 202, [(f"s_cmp_eq_u32 s{S_CNT}, s80", None), (f"s_cbranch_scc1 {p}_pf", None), (f"@{p}_pfret", None)], 'x'])
        dg = []
        if s.design == 'A':
            dg = s.dma_groups()
            tot = NSEQ - 4
            for k, g in enumerate(dg):
                fill.append([int(k * tot / len(dg)) + 1, 50 + k, [(x, None) for x in g], 'dma'])
        body = []
        pend = sorted(fill, key=lambda f: f[1])
        n_dma_part1 = 0
        CAP = OPT.get('CAP', 2)

        def emit_gap(gi, cap):
            nonlocal pend, n_dma_part1
            used = 0
            rest = []
            for f in pend:
                n = len(f[2])
                if f[0] <= gi and (used == 0 or used + n <= cap):
                    for (x, d) in f[2]:
                        body.append(('lds', x, d) if f[3] == 'lds' else ('x', x, None))
                    used += n + (1 if f[3] == 'lds' and OPT.get('LDS1', 1) else 0)
                    if f[3] == 'dma' and gi < P1 - 1:
                        n_dma_part1 += 1
                else:
                    rest.append(f)
            pend = rest

        for gi, (kk, t) in enumerate(seq):
            m, n = order[t]
            x, srcs = s.mfma(kk, m, n)
            body.append(('mfma', x, srcs))
            if gi == P1 - 1:
                body.append(('lab', f"{p}_mid", None))
            if gi == BR - 2:
                body.append(('x', f"s_sub_u32 s{S_CNT}, s{S_CNT}, 1", None))
                body.append(('x', f"s_cmp_lg_u32 s{S_CNT}, 0", None))
                continue
            if gi == BR - 1:
                body.append(('br', None, None))
                continue
            if gi == NSEQ - 1:
                continue
            emit_gap(gi, CAP if gi < NSEQ - 2 else 99)
            if gi == NSEQ - 3 and s.design == 'A':
                assert not any(f[3] == 'dma' for f in pend)
                for x in s.dma_book():
                    body.append(('x', x, None))
        assert not pend, pend
        body.append(('w0', "s_waitcnt lgkmcnt(0)" + (f" vmcnt({(s.S-2)*s.D})" if s.design == 'A' else ""), None))
        body.append(('x', "s_barrier", None))
        issued = 0
        done = 0
        lastw = {}
        outb = None
        for ps in range(2):
            outb = []
            for (k, x, d) in body:
                if k == 'lds':
                    issued += 1
                    lastw[d] = issued
                    outb.append((k, x))
                elif k == 'w0':
                    done = issued
                    outb.append((k, x))
                elif k == 'mfma':
                    need = max([lastw.get(r, 0) for r in d])
                    if need > done:
                        outb.append(('x', f"s_waitcnt lgkmcnt({min(issued-need, 15)})"))
                        done = need
                    outb.append((k, x))
                else:
                    outb.append((k, x))
        e(f"s_mov_b32 s{S_RD}, 0")
        e(f"s_mov_b32 s{S_NREC}, {s.SS}")
        e(f"s_mov_b32 s{S_DL}, {s.SS}")
        if s.design == 'A':
            s.loader_init()
            for st in range(s.S - 1):
                for g in dg:
                    e.ext(g)
                e.ext(s.dma_book())
            for g in dg[:n_dma_part1]:
                e.ext(g)
            e(f"s_waitcnt vmcnt({(s.S-2)*s.D + n_dma_part1})")
        stamp(e, 1)
        e("s_barrier")
        stamp(e, 2)
        for i in range(NI):
            for (x, d) in rd_inner(0, i):
                e(x)
        for o in range(NO):
            for (x, d) in rd_outer(0, o):
                e(x)
        e(f"s_mov_b32 s{S_CNT}, s{S_NS}")
        e("s_waitcnt lgkmcnt(0)")
        e(f"s_branch {p}_mid")
        if s.pfstub:
            e.lab(f"{p}_pf")
            e(f"s_mov_b32 m0, {s.pfstub}")
            e("s_nop 0")
            for q in range(3):
                e(f"buffer_load_dword v3, s[{64+4*q}:{67+4*q}], s81 offen lds")
            e(f"s_branch {p}_pfret")
        e.L.append(".p2align 6")
        bi = [i for i, (k, x) in enumerate(outb) if k == 'br'][0]
        e.lab(f"{p}_top")
        for (k, x) in outb[bi + 1:] + outb[:bi]:
            if k == 'lab':
                e.lab(x)
            elif x.startswith('@'):
                e.lab(x[1:])
            else:
                e(x)
        e(f"s_cbranch_scc1 {p}_top")
        for (kk, t) in seq[BR:P1]:
            m, n = order[t]
            e(s.mfma(kk, m, n)[0])
        e("s_waitcnt lgkmcnt(0)")
        e("s_nop 7")
        e("s_nop 7")
        stamp(e, 3)


WS_ST = 64 * MB


def stamp(e, k):
    if OPT.get('stamp'):
        e(f"s_memtime s[{90+2*k}:{91+2*k}]")
        if k == 0:
            e("s_memrealtime s[34:35]")
        if k == 4:
            e("s_memrealtime s[36:37]")
        e("s_waitcnt lgkmcnt(0)")


def stamp_out(e, kid):
    if OPT.get('stamp'):
        e("s_waitcnt vmcnt(0)")
        stamp(e, 4)
        srd(e, S_SRD_O, 28, 29, 4 * MB, WS_ST + kid * MB)
        e("s_lshl_b32 s38, s2, 2")
        e(f"s_add_u32 s38, s38, s{S_WAVE}")
        e("s_lshl_b32 s38, s38, 5")
        e("v_mov_b32 v0, s38")
        for k in range(5):
            e(f"v_mov_b32 v{2+k}, s{90+2*k}")
        e("v_mov_b32 v7, s34")
        e("v_mov_b32 v8, s36")
        e("s_getreg_b32 s38, hwreg(HW_REG_XCC_ID)")
        e("v_mov_b32 v9, s38")
        e(f"buffer_store_dwordx4 v[2:5], v0, s[{S_SRD_O}:{S_SRD_O+3}], 0 offen")
        e(f"buffer_store_dwordx4 v[6:9], v0, s[{S_SRD_O}:{S_SRD_O+3}], 0 offen offset:16")


def prefetch(e, vtmp, items, lds_dummy):
    e(f"v_mbcnt_lo_u32_b32 v{vtmp}, -1, 0")
    e(f"v_mbcnt_hi_u32_b32 v{vtmp}, -1, v{vtmp}")
    e(f"s_lshl_b32 s{S_T0}, s2, 2")
    e(f"s_add_u32 s{S_T0}, s{S_T0}, s{S_WAVE}")
    e(f"s_mov_b32 m0, {lds_dummy}")
    for (lo, hi, nb) in items:
        per = -(-(nb // 128) // 1024)
        srd(e, 64, lo, hi, nb)
        e(f"s_mul_i32 s{S_T1}, s{S_T0}, {per*128}")
        e(f"v_lshlrev_b32 v{vtmp+1}, 7, v{vtmp}")
        if per < 64:
            e(f"v_cmp_gt_u32 vcc, {per}, v{vtmp}")
            e(f"v_mov_b32 v{vtmp+2}, 0x7ff00000")
            e("s_nop 0")
            e(f"v_cndmask_b32 v{vtmp+1}, v{vtmp+2}, v{vtmp+1}, vcc")
        for hh in range(OPT.get('pfhalves', 1)):
            e(f"buffer_load_dword v{vtmp+1}, s[64:67], s{S_T1} offen offset:{hh*64} lds" + (" nt" if OPT.get('pfnt') else ""))


def lane_wave(e, design):
    stamp(e, 0)
    e("v_lshrrev_b32 v1, 6, v0")
    e("s_nop 0")
    e(f"v_readfirstlane_b32 s{S_T2}, v1")
    e("v_and_b32 v1, 63, v0")
    e("s_nop 2")
    e(f"s_and_b32 s{S_WAVE}, s{S_T2}, 3")


def gen_g1(e):
    name = "g1_kernel"
    design, S, X = OPT['design1'], OPT['S1'], OPT['X']
    khead(e, name)
    e("s_cmp_ge_u32 s2, 256")
    e("s_cbranch_scc1 g1_done")
    e("s_load_dwordx4 s[20:23], s[0:1], 24")
    e("s_load_dwordx4 s[24:27], s[0:1], 48")
    e("s_load_dwordx2 s[28:29], s[0:1], 96")
    e("s_load_dwordx2 s[32:33], s[0:1], 0")
    e("s_load_dwordx4 s[72:75], s[0:1], 8")
    e("s_load_dwordx2 s[76:77], s[0:1], 64")
    lane_wave(e, design)
    e("s_and_b32 s30, s2, 1")
    e("s_lshl_b32 s30, s30, 2")
    e("s_lshr_b32 s31, s2, 3")
    e(f"s_and_b32 s{S_ROW0}, s31, 3")
    e(f"s_add_u32 s{S_ROW0}, s{S_ROW0}, s30")
    e(f"s_lshl_b32 s{S_ROW0}, s{S_ROW0}, 8")
    e("s_and_b32 s30, s2, 6")
    e("s_lshl_b32 s30, s30, 2")
    e(f"s_lshr_b32 s{S_COL0}, s31, 2")
    e(f"s_add_u32 s{S_COL0}, s{S_COL0}, s30")
    e(f"s_mov_b32 s{S_NS}, 16")
    e(f"s_mov_b32 s{S_KR}, 0")
    e(f"s_mov_b32 s{S_KC}, 0")
    e(f"s_mov_b32 s{S_KN}, 0")
    e("s_waitcnt lgkmcnt(0)")
    FL = OPT.get('fuse_ln')
    if FL:
        srd(e, S_SRD_R, 32, 33, 4 * MB)
    else:
        srd(e, S_SRD_R, 28, 29, 2048 * XS, WS_XN)
    e(f"s_cmp_lt_u32 s{S_COL0}, 11")
    e("s_cbranch_scc1 g1d_start")
    e(f"s_cmp_eq_u32 s{S_COL0}, 11")
    e("s_cbranch_scc1 g1m_start")
    e("s_branch g1f_start")

    variants = {
        'g1d': [Region('T', 0, 11, 0, 2048)],
        'g1m': [Region('T', 0, 7, 0, 2048), Region('Nadd', 7, 4, 16384, 7168)],
        'g1f': [Region('Nadd', 0, 11, 0, 7168)],
    }
    vt_max = 0
    ss_max = 0
    for pre, regs in variants.items():
        orient = []
        for r in regs:
            orient += ['RA' if r.typ == 'T' else 'CA'] * r.ng
        G = Gemm(e, pre, design, S, 4, 11, 4, 1, regs, 2048 if FL else XS, 'C', orient, nsteps=16)
        if FL:
            G.st_off = 122880 + 1024
        if OPT.get('rot1'):
            G.rot = (OPT['rot1'], OPT.get('rotmul1', 1))
        e.lab(f"{pre}_start")

        def cset(ri, j, so, G=G, pre=pre):
            r = G.regions[ri]
            if r.typ == 'T':
                e(f"s_mul_i32 s{S_T0}, s{S_COL0}, 22")
                e(f"s_mul_i32 s{S_T1}, s{S_WAVE}, {r.DW}")
                e(f"s_add_u32 s{S_T1}, s{S_T1}, {j}")
                e(f"s_add_u32 s{S_T0}, s{S_T0}, s{S_T1}")
                e(f"s_cmp_lt_u32 s{S_T0}, 128")
                e(f"s_cselect_b32 s{so}, s20, s22")
                e(f"s_cselect_b32 s{so+1}, s21, s23")
                e(f"s_and_b32 s{S_T0}, s{S_T0}, 127")
                e(f"s_lshl_b32 s{S_T0}, s{S_T0}, 14")
                e(f"s_cmp_lt_u32 s{S_T1}, {r.ninstr}")
                e(f"s_cselect_b32 s{so+2}, {2*MB}, 0")
                e(f"s_mov_b32 s{so+3}, 0x20000")
                e(f"s_cselect_b32 s{S_T0}, s{S_T0}, 4096")
            else:
                srd(e, so, 24, 25, 1024 * 7168)
                e(f"s_mul_i32 s{S_T0}, s{S_COL0}, 352")
                e(f"s_sub_u32 s{S_T0}, s{S_T0}, {(128 - r.g0) * 32}")

        if design == 'B':
            e(f"s_cmp_ge_u32 s{S_T2}, 4")
            e(f"s_cbranch_scc0 {pre}_comp")
            G.loader_setup(1, 2, cset)
            G.loader_loop()
            e.lab(f"{pre}_comp")
        else:
            G.loader_setup(1, G.vfrag0, cset)
        e(f"v_mov_b32 v{G.vfrag0+16}, v1")
        if OPT.get('pf1'):
            prefetch(e, G.vfrag0 + 20, [(20, 21, 2 * MB), (22, 23, 2 * MB), (24, 25, 1024 * 7168)], 122880)
        if OPT.get('pf2') == 1:
            prefetch(e, G.vfrag0 + 20, [(72, 73, 8 * MB), (74, 75, 8 * MB), (76, 77, 3584 * 2048)], 122880)
        if OPT.get('pf2') == 3:
            G.pfstub = 122880
            e("s_mov_b64 s[82:83], s[72:73]")
            e("s_mov_b64 s[84:85], s[74:75]")
            e("s_mov_b64 s[86:87], s[76:77]")
            srd(e, 64, 82, 83, 8 * MB)
            srd(e, 68, 84, 85, 8 * MB)
            srd(e, 72, 86, 87, 3584 * 2048)
            e(f"s_lshl_b32 s81, s2, 2")
            e(f"s_add_u32 s81, s81, s{S_WAVE}")
            e(f"s_lshl_b32 s81, s81, 13")
            e(f"s_mul_i32 s80, s{S_WAVE}, {OPT.get('pfsp', 2)}")
            e(f"s_sub_u32 s80, {OPT.get('pfat', 12)}, s80")
            e("v_lshlrev_b32 v3, 7, v1")
        G.compute_setup(G.vfrag0 + 16, G.vfrag0)
        G.compute_loop(X)
        if OPT.get('pf2') == 2:
            prefetch(e, 8, [(72, 73, 8 * MB), (74, 75, 8 * MB), (76, 77, 3584 * 2048)], 122880)
        g1_epilogue(e, G, pre)
        stamp_out(e, 0)
        e("s_endpgm")
        vt_max = max(vt_max, G.vtop)
        ss_max = max(ss_max, G.SS)
    e.lab("g1_done")
    e("s_endpgm")
    acc0 = (vt_max + 3) // 4 * 4
    kdesc(e, name, acc0 + 176, acc0)
    return ss_max * S + 1024 + 3072


def f2u(f):
    import struct
    return struct.unpack("<I", struct.pack("<f", f))[0]


def g1_epilogue(e, G, pre):
    FL = G.st_off
    if FL:
        e("s_barrier")
    e("v_mbcnt_lo_u32_b32 v1, -1, 0")
    e("v_mbcnt_hi_u32_b32 v1, -1, v1")
    e("v_and_b32 v2, 15, v1")
    e("v_lshrrev_b32 v3, 4, v1")
    e("v_and_b32 v4, 1, v3")
    e("v_lshlrev_b32 v4, 4, v4")
    e("v_lshrrev_b32 v5, 1, v3")
    e("v_lshl_add_u32 v4, v5, 3, v4")
    e(f"s_lshl_b32 s{S_T0}, s{S_WAVE}, 6")
    e(f"s_add_u32 s{S_T0}, s{S_T0}, s{S_ROW0}")
    T = 16
    for r in G.regions:
        if r.typ == 'T':
            srd(e, S_SRD_O, 28, 29, 2048 * ATS, WS_AT)
            if FL:
                e(f"s_lshl_b32 s{S_T1}, s{S_WAVE}, 8")
                e(f"s_add_u32 s{S_T1}, s{S_T1}, {FL}")
                e(f"v_lshl_add_u32 v7, v3, 4, s{S_T1}")
                for m in range(4):
                    e(f"ds_read_b128 v[{44+4*m}:{47+4*m}], v7 offset:{64*m}")
                    e(f"ds_read_b128 v[{60+4*m}:{63+4*m}], v7 offset:{1024+64*m}")
                e(f"v_lshlrev_b32 v7, 2, v2")
                e(f"v_add_u32 v7, {FL}, v7")
                for j in range(r.ng):
                    e(f"ds_read_b32 v{32+j}, v7 offset:{2048 + 64*(r.g0+j)}")
            e(f"s_mul_i32 s{S_T1}, s{S_COL0}, 176")
            e(f"v_add_u32 v6, s{S_T1}, v2")
            e(f"s_mov_b32 s{S_T2}, {ATS}")
            e(f"v_mul_lo_u32 v6, v6, s{S_T2}")
            e(f"v_add_u32 v7, s{S_T0}, v4")
            e("v_lshl_add_u32 v6, v7, 1, v6")
            e(f"s_mul_i32 s{S_T1}, s{S_COL0}, 11")
            e("s_waitcnt lgkmcnt(0)")
            for j in range(r.ng):
                n = r.g0 + j
                e(f"s_add_u32 s{S_T2}, s{S_T1}, {n}")
                e(f"s_cmp_lt_u32 s{S_T2}, 64")
                e(f"s_cselect_b32 s{S_DL}, 0, 0x80008000")
                e(f"s_mov_b32 s{S_T2}, {n*16*ATS}")
                for mp in range(2):
                    t = 8 + ((j * 2 + mp) % 2) * 12
                    for q in range(2):
                        a = G.acc(2 * mp + q, n)
                        for x in range(4):
                            e(f"v_accvgpr_read_b32 v{t+4+q*4+x}, a{a+x}")
                    if FL:
                        for q in range(2):
                            m = 2 * mp + q
                            for h in range(2):
                                d = t + 4 + q * 4 + 2 * h
                                e(f"v_pk_mul_f32 v[{d}:{d+1}], v[{d}:{d+1}], v[{44+4*m+2*h}:{45+4*m+2*h}]")
                        for q in range(2):
                            m = 2 * mp + q
                            for h in range(2):
                                d = t + 4 + q * 4 + 2 * h
                                c = 32 + j
                                ce = c & ~1
                                sel = "op_sel:[0,1,0] op_sel_hi:[1,1,1]" if c & 1 else "op_sel_hi:[1,0,1]"
                                e(f"v_pk_fma_f32 v[{d}:{d+1}], v[{60+4*m+2*h}:{61+4*m+2*h}], v[{ce}:{ce+1}], v[{d}:{d+1}] {sel} neg_lo:[1,0,0] neg_hi:[1,0,0]")
                    for q in range(2):
                        e(f"v_cvt_pk_bf16_f32 v{t+2*q}, v{t+4+q*4}, v{t+5+q*4}")
                        e(f"v_cvt_pk_bf16_f32 v{t+2*q+1}, v{t+6+q*4}, v{t+7+q*4}")
                    for x in range(4):
                        e(f"v_xor_b32 v{t+x}, s{S_DL}, v{t+x}")
                    e("s_nop 1")
                    e(f"v_permlane16_swap_b32 v{t}, v{t+2}")
                    e(f"v_permlane16_swap_b32 v{t+1}, v{t+3}")
                    e(f"buffer_store_dwordx4 v[{t}:{t+3}], v6, s[{S_SRD_O}:{S_SRD_O+3}], s{S_T2} offen offset:{mp*64}")
        else:
            srd(e, S_SRD_O, 28, 29, 2048 * HS, WS_H)
            srd(e, S_SRD_B, 26, 27, 7168)
            e(f"s_mul_i32 s{S_T1}, s{S_COL0}, 352")
            e(f"s_sub_u32 s{S_T1}, s{S_T1}, {(128 - r.g0) * 32}")
            e("v_lshlrev_b32 v7, 3, v3")
            e(f"v_add_u32 v7, s{S_T1}, v7")
            BB = 52
            for j in range(r.ng):
                e(f"buffer_load_dwordx2 v[{BB+2*j}:{BB+2*j+1}], v7, s[{S_SRD_B}:{S_SRD_B+3}], 0 offen offset:{32*j}")
            if FL:
                e(f"s_lshl_b32 s{S_T2}, s{S_WAVE}, 8")
                e(f"s_add_u32 s{S_T2}, s{S_T2}, {FL}")
                e(f"v_lshl_add_u32 v7, v2, 2, s{S_T2}")
                for m in range(4):
                    e(f"ds_read_b32 v{44+2*m}, v7 offset:{64*m}")
                    e(f"ds_read_b32 v{45+2*m}, v7 offset:{1024+64*m}")
                e("v_lshlrev_b32 v9, 4, v3")
                e(f"v_add_u32 v9, {FL}, v9")
            e(f"v_add_u32 v6, s{S_T0}, v2")
            e(f"s_mov_b32 s{S_T2}, {HS}")
            e(f"v_mul_lo_u32 v6, v6, s{S_T2}")
            e(f"v_add_u32 v6, s{S_T1}, v6")
            e("v_lshl_add_u32 v8, v3, 3, v6")
            e("v_lshl_add_u32 v6, v4, 1, v6")
            c1 = -2.0 * math.log2(math.e) * math.sqrt(2.0 / math.pi)
            c2 = c1 * 0.044715
            e(f"v_mov_b32 v10, {f2u(c1):#x}")
            e(f"v_mov_b32 v11, {f2u(c1):#x}")
            e(f"v_mov_b32 v12, {f2u(c2):#x}")
            e(f"v_mov_b32 v13, {f2u(c2):#x}")
            e("v_mov_b32 v14, 1.0")
            e("v_mov_b32 v15, 1.0")
            e("s_waitcnt vmcnt(0)")
            j = 0
            while j < r.ng:
                npair = 2 if j + 1 < r.ng else 1
                for q in range(npair):
                    b = BB + 2 * (j + q)
                    e(f"v_lshlrev_b32 v{32+4*q}, 16, v{b}")
                    e(f"v_and_b32 v{33+4*q}, 0xffff0000, v{b}")
                    e(f"v_lshlrev_b32 v{34+4*q}, 16, v{b+1}")
                    e(f"v_and_b32 v{35+4*q}, 0xffff0000, v{b+1}")
                if FL:
                    csr = [76, BB + 2 * j if npair == 2 else 76]
                    e(f"ds_read_b128 v[76:79], v9 offset:{2048 + 64*(r.g0+j)}")
                    if npair == 2:
                        e(f"ds_read_b128 v[{csr[1]}:{csr[1]+3}], v9 offset:{2048 + 64*(r.g0+j+1)}")
                    e("s_waitcnt lgkmcnt(0)")
                for m in range(4):
                    t = 16
                    for q in range(npair):
                        a = G.acc(m, r.g0 + j + q)
                        for x in range(4):
                            e(f"v_accvgpr_read_b32 v{t+4*q+x}, a{a+x}")
                    np_ = 2 * npair
                    if FL:
                        st = 44 + 2 * m
                        for h in range(np_):
                            c = csr[h >> 1] + 2 * (h & 1)
                            e(f"v_pk_fma_f32 v[{t+8+2*h}:{t+9+2*h}], v[{c}:{c+1}], v[{st}:{st+1}], v[{32+2*h}:{33+2*h}] op_sel:[0,1,0] op_sel_hi:[1,1,1] neg_lo:[1,0,0] neg_hi:[1,0,0]")
                        for h in range(np_):
                            e(f"v_pk_fma_f32 v[{t+2*h}:{t+2*h+1}], v[{t+2*h}:{t+2*h+1}], v[{st}:{st+1}], v[{t+8+2*h}:{t+9+2*h}] op_sel_hi:[1,0,1]")
                    else:
                        for h in range(np_):
                            e(f"v_pk_add_f32 v[{t+2*h}:{t+2*h+1}], v[{t+2*h}:{t+2*h+1}], v[{32+2*h}:{33+2*h}]")
                    for h in range(np_):
                        e(f"v_pk_mul_f32 v[{t+8+2*h}:{t+9+2*h}], v[{t+2*h}:{t+2*h+1}], v[{t+2*h}:{t+2*h+1}]")
                    for h in range(np_):
                        e(f"v_pk_fma_f32 v[{t+8+2*h}:{t+9+2*h}], v[{t+8+2*h}:{t+9+2*h}], v[12:13], v[10:11]")
                    for h in range(np_):
                        e(f"v_pk_mul_f32 v[{t+8+2*h}:{t+9+2*h}], v[{t+8+2*h}:{t+9+2*h}], v[{t+2*h}:{t+2*h+1}]")
                    for x in range(2 * np_):
                        e(f"v_exp_f32 v{t+8+x}, v{t+8+x}")
                    for h in range(np_):
                        e(f"v_pk_add_f32 v[{t+8+2*h}:{t+9+2*h}], v[{t+8+2*h}:{t+9+2*h}], v[14:15]")
                    for x in range(2 * np_):
                        e(f"v_rcp_f32 v{t+8+x}, v{t+8+x}")
                    for h in range(np_):
                        e(f"v_pk_mul_f32 v[{t+2*h}:{t+2*h+1}], v[{t+2*h}:{t+2*h+1}], v[{t+8+2*h}:{t+9+2*h}]")
                    o = 40
                    for h in range(np_):
                        e(f"v_cvt_pk_bf16_f32 v{o+h}, v{t+2*h}, v{t+2*h+1}")
                    e(f"s_mov_b32 s{S_T2}, {m*16*HS}")
                    if npair == 2:
                        e("s_nop 0")
                        e(f"v_permlane16_swap_b32 v{o}, v{o+2}")
                        e(f"v_permlane16_swap_b32 v{o+1}, v{o+3}")
                        e(f"buffer_store_dwordx4 v[{o}:{o+3}], v6, s[{S_SRD_O}:{S_SRD_O+3}], s{S_T2} offen offset:{j*32}")
                    else:
                        e(f"buffer_store_dwordx2 v[{o}:{o+1}], v8, s[{S_SRD_O}:{S_SRD_O+3}], s{S_T2} offen offset:{j*32}")
                j += npair


def gen_g2(e):
    name = "g2_kernel"
    design, S, X = OPT['design2'], OPT['S2'], OPT['X']
    khead(e, name)
    e("s_cmp_ge_u32 s2, 256")
    e("s_cbranch_scc1 g2_done")
    e("s_load_dwordx4 s[20:23], s[0:1], 8")
    e("s_load_dwordx2 s[24:25], s[0:1], 64")
    e("s_load_dwordx2 s[28:29], s[0:1], 96")
    lane_wave(e, design)
    e("s_and_b32 s30, s2, 3")
    e("s_lshr_b32 s31, s2, 2")
    e("s_and_b32 s31, s31, 1")
    e("s_lshr_b32 s32, s2, 3")
    e(f"s_and_b32 s{S_ROW0}, s32, 3")
    e(f"s_lshl_b32 s31, s31, 2")
    e(f"s_add_u32 s{S_ROW0}, s{S_ROW0}, s31")
    e(f"s_lshl_b32 s{S_ROW0}, s{S_ROW0}, 8")
    e(f"s_lshr_b32 s{S_COL0}, s32, 2")
    e(f"s_lshl_b32 s{S_COL0}, s{S_COL0}, 7")
    e(f"s_mov_b32 s{S_KC}, 0")
    e("s_waitcnt lgkmcnt(0)")
    e("s_cmp_ge_u32 s30, 2")
    e("s_cbranch_scc1 g2o_start")
    variants = {
        'g2y': ([Region('T', 0, 8, 0, ATS)], 4096),
        'g2o': ([Region('Nxor', 0, 8, 0, 2048)], HS),
    }
    vt_max = 0
    for pre, (regs, rstride) in variants.items():
        G = Gemm(e, pre, design, S, 8, 4, 2, 2, regs, rstride, 'R', ['CA'] * 4, nsteps=32 if pre == 'g2y' else 28)
        if OPT.get('rot2') and (pre == 'g2y' or OPT.get('rot2o')):
            G.rot = (OPT['rot2'], OPT.get('rotmul2', 1))
        e.lab(f"{pre}_start")
        if pre == 'g2y':
            e(f"s_mov_b32 s{S_NS}, 32")
            e(f"s_mov_b32 s{S_KR}, 0")
            e("s_cmp_eq_u32 s30, 0")
            e(f"s_cselect_b32 s{S_SRD_R}, s20, s22")
            e(f"s_cselect_b32 s{S_SRD_R+1}, s21, s23")
            e(f"s_mov_b32 s{S_SRD_R+2}, {8*MB}")
            e(f"s_mov_b32 s{S_SRD_R+3}, 0x20000")
        else:
            e(f"s_mov_b32 s{S_NS}, 28")
            e("s_and_b32 s33, s30, 1")
            e(f"s_mul_i32 s{S_KR}, s33, {1792*2}")
            e(f"s_mul_i32 s{S_KN}, s33, {1792*2048}")
            srd(e, S_SRD_R, 28, 29, 2048 * HS, WS_H)

        def cset(ri, j, so, G=G, pre=pre):
            r = G.regions[ri]
            if r.typ == 'T':
                srd(e, so, 28, 29, 2048 * ATS, WS_AT)
                e(f"s_lshl_b32 s{S_T0}, s30, 10")
                e(f"s_add_u32 s{S_T0}, s{S_T0}, s{S_COL0}")
                e(f"s_lshl_b32 s{S_T1}, s{S_WAVE}, 5")
                e(f"s_add_u32 s{S_T0}, s{S_T0}, s{S_T1}")
                e(f"s_add_u32 s{S_T0}, s{S_T0}, {8*j}")
                e(f"s_mul_i32 s{S_T0}, s{S_T0}, {ATS}")
            else:
                srd(e, so, 24, 25, 3584 * 2048)
                e(f"s_lshl_b32 s{S_T0}, s{S_COL0}, 1")

        if design == 'B':
            e(f"s_cmp_ge_u32 s{S_T2}, 4")
            e(f"s_cbranch_scc0 {pre}_comp")
            G.loader_setup(1, 2, cset)
            G.loader_loop()
            e.lab(f"{pre}_comp")
        else:
            G.loader_setup(1, G.vfrag0, cset)
        e(f"v_mov_b32 v{G.vfrag0+16}, v1")
        G.compute_setup(G.vfrag0 + 16, G.vfrag0)
        G.compute_loop(X)
        e("v_mbcnt_lo_u32_b32 v1, -1, 0")
        e("v_mbcnt_hi_u32_b32 v1, -1, v1")
        e("v_and_b32 v2, 15, v1")
        e("v_lshrrev_b32 v3, 4, v1")
        e(f"s_lshr_b32 s{S_T0}, s{S_WAVE}, 1")
        e(f"s_lshl_b32 s{S_T0}, s{S_T0}, 7")
        e(f"s_add_u32 s{S_T0}, s{S_T0}, s{S_ROW0}")
        e(f"s_and_b32 s{S_T1}, s{S_WAVE}, 1")
        e(f"s_lshl_b32 s{S_T1}, s{S_T1}, 6")
        e(f"s_add_u32 s{S_T1}, s{S_T1}, s{S_COL0}")
        e(f"v_add_u32 v6, s{S_T0}, v2")
        if pre == 'g2y':
            srd(e, S_SRD_O, 28, 29, 8 * MB, WS_P0)
            e("v_and_b32 v4, 1, v3")
            e("v_lshlrev_b32 v4, 4, v4")
            e("v_lshrrev_b32 v5, 1, v3")
            e("v_lshl_add_u32 v4, v5, 3, v4")
            e(f"v_add_u32 v4, s{S_T1}, v4")
            e("v_lshlrev_b32 v6, 11, v6")
            e("v_lshl_add_u32 v6, v4, 1, v6")
            e("s_lshl_b32 s33, s30, 22")
            for m in range(8):
                e(f"s_add_u32 s{S_T2}, s33, {m*16*2048}")
                for np_ in range(2):
                    t = 16 + np_ * 12
                    for q in range(2):
                        a = G.acc(m, 2 * np_ + q)
                        for x in range(4):
                            e(f"v_accvgpr_read_b32 v{t+4+q*4+x}, a{a+x}")
                    for q in range(2):
                        e(f"v_cvt_pk_bf16_f32 v{t+2*q}, v{t+4+q*4}, v{t+5+q*4}")
                        e(f"v_cvt_pk_bf16_f32 v{t+2*q+1}, v{t+6+q*4}, v{t+7+q*4}")
                    e("s_nop 1")
                    e(f"v_permlane16_swap_b32 v{t}, v{t+2}")
                    e(f"v_permlane16_swap_b32 v{t+1}, v{t+3}")
                    e(f"buffer_store_dwordx4 v[{t}:{t+3}], v6, s[{S_SRD_O}:{S_SRD_O+3}], s{S_T2} offen offset:{np_*64}")
        else:
            srd(e, S_SRD_O, 28, 29, 16 * MB, WS_P2)
            e(f"v_lshl_add_u32 v4, v3, 2, s{S_T1}")
            e("v_lshlrev_b32 v6, 12, v6")
            e("v_lshl_add_u32 v6, v4, 2, v6")
            e("s_lshl_b32 s33, s33, 23")
            for m in range(8):
                e(f"s_add_u32 s{S_T2}, s33, {m*16*4096}")
                for n in range(4):
                    a = G.acc(m, n)
                    e(f"buffer_store_dwordx4 a[{a}:{a+3}], v6, s[{S_SRD_O}:{S_SRD_O+3}], s{S_T2} offen offset:{n*64}")
        stamp_out(e, 1)
        e("s_endpgm")
        vt_max = max(vt_max, G.vtop)
    e.lab("g2_done")
    e("s_endpgm")
    acc0 = (vt_max + 3) // 4 * 4
    kdesc(e, name, acc0 + 128, acc0)
    return G.SS * S


def main():
    out = sys.argv[1]
    for a in sys.argv[2:]:
        k, v = a.split("=")
        OPT[k] = int(v) if v.lstrip('-').isdigit() else v
    e = E()
    if not OPT.get('fuse_ln'):
        gen_ln(e)
    l1 = gen_g1(e)
    l2 = gen_g2(e)
    gen_fin(e)
    hdr = open("cdna_kernels/%s.s.ref" % KN).read().split("; Override launch")[0]
    b1 = 512 if OPT['design1'] == 'B' else 256
    b2 = 512 if OPT['design2'] == 'B' else 256
    if not OPT.get('fuse_ln'):
        hdr += "; @launch kernel=ln_kernel grid=(512,1,1) block=(256,1,1) lds=0\n"
    hdr += f"; @launch kernel=g1_kernel grid=(256,1,1) block=({b1},1,1) lds={l1}\n"
    hdr += f"; @launch kernel=g2_kernel grid=(256,1,1) block=({b2},1,1) lds={l2}\n"
    hdr += "; @launch kernel=fin_kernel grid=(1024,1,1) block=(256,1,1) lds=0\n"
    hdr += '.amdgcn_target "amdgcn-amd-amdhsa--gfx950"\n.text\n'
    open(out, "w").write(hdr + "\n".join(e.L) + "\n")


if __name__ == "__main__":
    main()
```

```python
import sys, math

KN = "recurrent_scan__spectral_fnet__dense_activation_gelu__prompt"

MB = 1 << 20
WS_XN = 0
WS_AT = 5 * MB
WS_H = 14 * MB
XS, ATS, HS = 2176, 4224, 7296
WS_P0 = 32 * MB
WS_P1 = 36 * MB
WS_P2 = 40 * MB
WS_P3 = 48 * MB

OPT = dict(design1='B', design2='B', S1=2, S2=3, X=8)


class E:
    def __init__(s):
        s.L = []

    def __call__(s, x):
        s.L.append("    " + x)

    def lab(s, x):
        s.L.append(x + ":")

    def c(s, x):
        s.L.append("    ; " + x)

    def ext(s, lst):
        for x in lst:
            s(x)


def srd(e, d, lo, hi, nbytes, add=0):
    if add:
        e(f"s_add_u32 s{d}, s{lo}, {add}")
        e(f"s_addc_u32 s{d+1}, s{hi}, 0")
    else:
        e(f"s_mov_b32 s{d}, s{lo}")
        e(f"s_mov_b32 s{d+1}, s{hi}")
    e(f"s_mov_b32 s{d+2}, {nbytes}")
    e(f"s_mov_b32 s{d+3}, 0x20000")


def kdesc(e, name, vgpr, accoff, sgpr=102):
    e.L.append('.section .rodata,"a"')
    e.L.append(".p2align 6")
    e.L.append(f".amdhsa_kernel {name}")
    e.L.append(f"  .amdhsa_next_free_vgpr {vgpr}")
    e.L.append(f"  .amdhsa_next_free_sgpr {sgpr}")
    e.L.append(f"  .amdhsa_accum_offset {accoff}")
    e.L.append("  .amdhsa_group_segment_fixed_size 0")
    e.L.append("  .amdhsa_kernarg_size 104")
    e.L.append("  .amdhsa_user_sgpr_count 2")
    e.L.append("  .amdhsa_user_sgpr_kernarg_segment_ptr 1")
    e.L.append("  .amdhsa_system_sgpr_workgroup_id_x 1")
    e.L.append(".end_amdhsa_kernel")
    e.L.append(".text")


def khead(e, name):
    e.L.append(f".globl {name}")
    e.L.append(".p2align 8")
    e.L.append(f".type {name},@function")
    e.lab(name)


def gen_ln(e):
    name = "ln_kernel"
    khead(e, name)
    e("s_cmp_ge_u32 s2, 512")
    e("s_cbranch_scc1 ln_done")
    e("s_load_dwordx2 s[4:5], s[0:1], 0")
    e("s_load_dwordx2 s[6:7], s[0:1], 96")
    e("v_lshrrev_b32 v1, 6, v0")
    e("v_and_b32 v2, 63, v0")
    e("s_lshl_b32 s3, s2, 2")
    e("v_add_u32 v1, s3, v1")
    e(f"s_mov_b32 s16, {XS}")
    e("v_mul_lo_u32 v50, v1, s16")
    e("v_lshl_add_u32 v50, v2, 4, v50")
    e("v_lshlrev_b32 v1, 11, v1")
    e("v_lshl_add_u32 v1, v2, 4, v1")
    e("s_waitcnt lgkmcnt(0)")
    srd(e, 8, 4, 5, 4 * MB)
    srd(e, 12, 6, 7, 2048 * XS, WS_XN)
    e("buffer_load_dwordx4 v[4:7], v1, s[8:11], 0 offen")
    e("buffer_load_dwordx4 v[8:11], v1, s[8:11], 0 offen offset:1024")
    npf = 0
    if OPT.get('pfln'):
        e("s_load_dwordx8 s[36:43], s[0:1], 8")
        e("s_load_dwordx2 s[44:45], s[0:1], 48")
        e("s_load_dwordx2 s[46:47], s[0:1], 64")
        e("v_lshrrev_b32 v70, 6, v0")
        e("v_add_u32 v70, s3, v70")
        e("v_lshlrev_b32 v71, 7, v2")
        e("s_waitcnt lgkmcnt(0)")
        items = [(40, 2 * MB), (42, 2 * MB), (44, 1024 * 7168)]
        if OPT['pfln'] >= 2:
            items += [(36, 8 * MB), (38, 8 * MB), (46, 3584 * 2048)]
        for k, (lo, nb) in enumerate(items):
            per = nb // 128 // 2048
            srd(e, 48, lo, lo + 1, nb)
            e(f"v_mul_u32_u24 v72, {per*128}, v70")
            e("v_add_u32 v72, v72, v71")
            e(f"v_cmp_gt_u32 vcc, {per}, v2")
            e("v_mov_b32 v73, 0x7ff00000")
            e("s_nop 0")
            e("v_cndmask_b32 v72, v73, v72, vcc")
            e(f"buffer_load_dword v{74+k}, v72, s[48:51], 0 offen")
            npf += 1
    if OPT.get('pfcode'):
        e("s_getpc_b64 s[52:53]")
        e.lab("ln_pc")
        e("s_lshr_b32 s54, s2, 3")
        e("s_lshl_b32 s54, s54, 8")
        e("v_add_u32 v72, s54, v0")
        e("v_lshlrev_b32 v72, 7, v72")
        e("v_min_u32 v72, text_end-ln_pc-4, v72")
        e("v_and_b32 v72, 0xfffffffc, v72")
        e("global_load_dword v69, v72, s[52:53]")
        npf += 1
    e(f"s_waitcnt vmcnt({npf})")
    for i in range(8):
        e(f"v_lshlrev_b32 v{16+2*i}, 16, v{4+i}")
        e(f"v_and_b32 v{17+2*i}, 0xffff0000, v{4+i}")

    def tree(dst, src):
        for i in range(8):
            e(f"v_add_f32 v{40+i}, v{src+2*i}, v{src+2*i+1}")
        for i in range(4):
            e(f"v_add_f32 v{40+i}, v{40+i}, v{44+i}")
        e("v_add_f32 v40, v40, v42")
        e("v_add_f32 v41, v41, v43")
        e(f"v_add_f32 v{dst}, v40, v41")

    def wred(v, sdst):
        for sh in (1, 2, 4, 8):
            e("s_nop 1")
            e(f"v_add_f32_dpp v{v}, v{v}, v{v} row_ror:{sh} row_mask:0xf bank_mask:0xf")
        e("s_nop 1")
        e(f"v_readlane_b32 s20, v{v}, 0")
        e(f"v_readlane_b32 s21, v{v}, 16")
        e(f"v_readlane_b32 s22, v{v}, 32")
        e(f"v_readlane_b32 s23, v{v}, 48")
        e("s_nop 1")
        e(f"v_mov_b32 v{v}, s20")
        e(f"v_add_f32 v{v}, s21, v{v}")
        e(f"v_mov_b32 v48, s22")
        e(f"v_add_f32 v48, s23, v48")
        e(f"v_add_f32 v{v}, v{v}, v48")

    tree(3, 16)
    wred(3, 24)
    e("v_mul_f32 v3, 0x3a800000, v3")
    for i in range(16):
        e(f"v_sub_f32 v{52+i}, v{16+i}, v3")
    for i in range(16):
        e(f"v_mul_f32 v{52+i}, v{52+i}, v{52+i}")
    tree(12, 52)
    wred(12, 25)
    e("v_mul_f32 v12, 0x3a800000, v12")
    e("v_cvt_pk_bf16_f32 v13, v3, v12")
    e("v_lshlrev_b32 v3, 16, v13")
    e("v_and_b32 v12, 0xffff0000, v13")
    e("v_add_f32 v12, 0x3727c5ac, v12")
    e("v_cvt_pk_bf16_f32 v13, v12, v12")
    e("v_lshlrev_b32 v12, 16, v13")
    e("v_sqrt_f32 v12, v12")
    e("s_nop 0")
    e("v_cvt_pk_bf16_f32 v13, v12, v12")
    e("v_lshlrev_b32 v12, 16, v13")
    e("v_rcp_f32 v14, v12")
    for i in range(8):
        e(f"v_sub_f32 v{16+2*i}, v{16+2*i}, v3")
        e(f"v_sub_f32 v{17+2*i}, v{17+2*i}, v3")
        e(f"v_cvt_pk_bf16_f32 v{4+i}, v{16+2*i}, v{17+2*i}")
        e(f"v_lshlrev_b32 v{16+2*i}, 16, v{4+i}")
        e(f"v_and_b32 v{17+2*i}, 0xffff0000, v{4+i}")
    for i in range(16):
        e(f"v_mul_f32 v{52+i}, v{16+i}, v14")
        e(f"v_fma_f32 v{16+i}, -v{52+i}, v12, v{16+i}")
        e(f"v_fma_f32 v{52+i}, v{16+i}, v14, v{52+i}")
    for i in range(8):
        e(f"v_cvt_pk_bf16_f32 v{4+i}, v{52+2*i}, v{53+2*i}")
    e("buffer_store_dwordx4 v[4:7], v50, s[12:15], 0 offen")
    e("buffer_store_dwordx4 v[8:11], v50, s[12:15], 0 offen offset:1024")
    e.lab("ln_done")
    e("s_endpgm")
    kdesc(e, name, 80, 80, 56)


def gen_fin(e):
    name = "fin_kernel"
    khead(e, name)
    e("s_cmp_ge_u32 s2, 1024")
    e("s_cbranch_scc1 fin_done")
    e("s_load_dwordx2 s[4:5], s[0:1], 0")
    e("s_load_dwordx4 s[24:27], s[0:1], 72")
    e("s_load_dwordx2 s[6:7], s[0:1], 96")
    e("s_lshl_b32 s3, s2, 8")
    e("v_add_u32 v1, s3, v0")
    e("v_lshlrev_b32 v2, 4, v1")
    e("v_lshlrev_b32 v3, 5, v1")
    e("v_and_b32 v4, 0x7ff, v2")
    e("s_mov_b32 s28, 0xbfb8aa3b")
    e("s_waitcnt lgkmcnt(0)")
    srd(e, 8, 4, 5, 4 * MB)
    srd(e, 12, 6, 7, 8 * MB, WS_P0)
    srd(e, 16, 6, 7, 16 * MB, WS_P2)
    srd(e, 20, 24, 25, 2048)
    srd(e, 32, 26, 27, 4 * MB)
    e(f"s_mov_b32 s29, {4*MB}")
    e(f"s_mov_b32 s30, {8*MB}")
    e("buffer_load_dwordx4 v[8:11], v2, s[12:15], 0 offen")
    e("buffer_load_dwordx4 v[12:15], v2, s[12:15], s29 offen")
    e("buffer_load_dwordx4 v[16:19], v3, s[16:19], 0 offen")
    e("buffer_load_dwordx4 v[20:23], v3, s[16:19], 0 offen offset:16")
    e("buffer_load_dwordx4 v[24:27], v3, s[16:19], s30 offen")
    e("buffer_load_dwordx4 v[28:31], v3, s[16:19], s30 offen offset:16")
    e("buffer_load_dwordx4 v[32:35], v4, s[20:23], 0 offen")
    e("buffer_load_dwordx4 v[36:39], v2, s[8:11], 0 offen")
    e("s_waitcnt vmcnt(6)")
    for i in range(4):
        e(f"v_lshlrev_b32 v{40+2*i}, 16, v{8+i}")
        e(f"v_and_b32 v{41+2*i}, 0xffff0000, v{8+i}")
        e(f"v_lshlrev_b32 v{48+2*i}, 16, v{12+i}")
        e(f"v_and_b32 v{49+2*i}, 0xffff0000, v{12+i}")
    for i in range(8):
        e(f"v_add_f32 v{40+i}, v{40+i}, v{48+i}")
    for i in range(4):
        e(f"v_cvt_pk_bf16_f32 v{8+i}, v{40+2*i}, v{41+2*i}")
        e(f"v_lshlrev_b32 v{40+2*i}, 16, v{8+i}")
        e(f"v_and_b32 v{41+2*i}, 0xffff0000, v{8+i}")
    e("s_waitcnt vmcnt(1)")
    for i in range(8):
        e(f"v_add_f32 v{16+i}, v{16+i}, v{24+i}")
    for i in range(4):
        e(f"v_cvt_pk_bf16_f32 v{8+i}, v{16+2*i}, v{17+2*i}")
        e(f"v_lshlrev_b32 v{16+2*i}, 16, v{8+i}")
        e(f"v_and_b32 v{17+2*i}, 0xffff0000, v{8+i}")
        e(f"v_lshlrev_b32 v{24+2*i}, 16, v{32+i}")
        e(f"v_and_b32 v{25+2*i}, 0xffff0000, v{32+i}")
    for i in range(8):
        e(f"v_add_f32 v{16+i}, v{16+i}, v{24+i}")
    for i in range(4):
        e(f"v_cvt_pk_bf16_f32 v{8+i}, v{16+2*i}, v{17+2*i}")
        e(f"v_lshlrev_b32 v{16+2*i}, 16, v{8+i}")
        e(f"v_and_b32 v{17+2*i}, 0xffff0000, v{8+i}")
    for i in range(8):
        e(f"v_mul_f32 v{24+i}, s28, v{16+i}")
    for i in range(8):
        e(f"v_exp_f32 v{24+i}, v{24+i}")
    for i in range(8):
        e(f"v_add_f32 v{24+i}, 1.0, v{24+i}")
    for i in range(8):
        e(f"v_rcp_f32 v{24+i}, v{24+i}")
    for i in range(8):
        e(f"v_mul_f32 v{16+i}, v{16+i}, v{24+i}")
    for i in range(4):
        e(f"v_cvt_pk_bf16_f32 v{8+i}, v{16+2*i}, v{17+2*i}")
        e(f"v_lshlrev_b32 v{16+2*i}, 16, v{8+i}")
        e(f"v_and_b32 v{17+2*i}, 0xffff0000, v{8+i}")
    for i in range(8):
        e(f"v_mul_f32 v{16+i}, v{16+i}, v{40+i}")
    e("s_waitcnt vmcnt(0)")
    for i in range(4):
        e(f"v_cvt_pk_bf16_f32 v{8+i}, v{16+2*i}, v{17+2*i}")
        e(f"v_lshlrev_b32 v{16+2*i}, 16, v{8+i}")
        e(f"v_and_b32 v{17+2*i}, 0xffff0000, v{8+i}")
        e(f"v_lshlrev_b32 v{24+2*i}, 16, v{36+i}")
        e(f"v_and_b32 v{25+2*i}, 0xffff0000, v{36+i}")
    for i in range(8):
        e(f"v_add_f32 v{16+i}, v{16+i}, v{24+i}")
    for i in range(4):
        e(f"v_cvt_pk_bf16_f32 v{8+i}, v{16+2*i}, v{17+2*i}")
    e("buffer_store_dwordx4 v[8:11], v2, s[32:35], 0 offen")
    e.lab("fin_done")
    e("s_endpgm")
    kdesc(e, name, 56, 56, 40)


S_WAVE = 3
S_ROW0 = 40
S_COL0 = 41
S_KR = 42
S_KC = 43
S_KN = 44
S_CNT = 45
S_WR = 46
S_RD = 47
S_DL = 48
S_T0 = 49
S_T1 = 50
S_T2 = 51
S_M0 = 52
S_NS = 60
S_LEFT = 61
S_KI = 62
S_SRD_R = 8
S_SRD_O = 12
S_SRD_B = 16
S_SRD_C = 64
S_NREC = 88
RT = 32768


class Region:
    def __init__(s, typ, g0, ng, lds_off, gstride):
        s.typ, s.g0, s.ng, s.lds_off, s.gstride = typ, g0, ng, lds_off, gstride
        if typ == 'T':
            s.ninstr = ng * 2
        elif typ == 'Nadd':
            W = ng * 32
            s.RS = W if ng % 2 else W + 32
            s.BL = 8 * s.RS // 16 + 8
            s.ninstr = -(-8 * s.BL // 64)
        elif typ == 'Nxor':
            assert ng in (4, 8)
            s.RS = ng * 32
            s.ninstr = ng * 2
        s.DW = -(-s.ninstr // 4)
        s.bytes = s.DW * 4 * 1024


def magic(d, n):
    for sh in range(8, 24):
        m = -(-(1 << sh) // d)
        if m < (1 << 24) and all((x * m) >> sh == x // d for x in range(n)):
            return m, sh
    raise Exception


class Gemm:
    def __init__(s, e, pre, design, S, MT, NT, WM, WN, regions, rstride, outer, orient, nsteps_sgpr=False, nsteps=None):
        s.e, s.pre, s.design, s.S = e, pre, design, S
        s.MT, s.NT, s.WM, s.WN = MT, NT, WM, WN
        s.regions, s.rstride, s.outer, s.orient = regions, rstride, outer, orient
        s.CS = sum(r.bytes for r in regions)
        s.SS = RT + s.CS
        s.nsteps = nsteps
        s.rot = None
        s.pfstub = None
        s.st_off = 0
        s.D = 8 + sum(r.DW for r in regions)
        nacc = MT * NT * 4
        s.nacc = nacc
        v = 0
        s.vR = [0]
        v = 1
        s.vC = {}
        for ri, r in enumerate(regions):
            if r.typ == 'T':
                s.vC[ri] = [v]; v += 1
            elif r.typ == 'Nadd':
                s.vC[ri] = [v]; v += 1
            else:
                n = min(NT, r.ng)
                s.vC[ri] = list(range(v, v + n)); v += n
        s.naddr = v
        v = (v + 3) // 4 * 4
        if outer == 'C':
            s.fR = [[v + (st * MT + m) * 4 for m in range(MT)] for st in range(2)]
            v += 2 * MT * 4
            s.fC = [[v + n * 4 for n in range(NT)]] * 2
            v += NT * 4
        else:
            s.fR = [[v + m * 4 for m in range(MT)]] * 2
            v += MT * 4
            s.fC = [[v + (st * NT + n) * 4 for n in range(NT)] for st in range(2)]
            v += 2 * NT * 4
        s.vfrag0 = (s.naddr + 3) // 4 * 4
        s.vend = v
        if design == 'A':
            s.vL = v
            v += s.D
        else:
            s.vL = 8
        s.vtop = v

    def region_of(s, n):
        if s.WN > 1:
            return 0, n
        for ri, r in enumerate(s.regions):
            if r.g0 <= n < r.g0 + r.ng:
                return ri, n - r.g0
        raise Exception

    def rd_R(s, kk, m):
        d = s.fR[kk][m]
        return [(f"ds_read_b128 v[{d}:{d+3}], v{s.vR[0]} offset:{m*2048+kk*512}", d)]

    def rd_C(s, kk, n):
        d = s.fC[kk][n]
        ri, j = s.region_of(n)
        r = s.regions[ri]
        if r.typ == 'T':
            return [(f"ds_read_b128 v[{d}:{d+3}], v{s.vC[ri][0]} offset:{j*2048+kk*512}", d)]
        if r.typ == 'Nadd':
            o = kk * (32 * r.RS + 512) + j * 32
            return [(f"ds_read_b64_tr_b16 v[{d}:{d+1}], v{s.vC[ri][0]} offset:{o}", d),
                    (f"ds_read_b64_tr_b16 v[{d+2}:{d+3}], v{s.vC[ri][0]} offset:{o+4*r.RS}", d + 2)]
        o = kk * 32 * r.RS
        return [(f"ds_read_b64_tr_b16 v[{d}:{d+1}], v{s.vC[ri][j]} offset:{o}", d),
                (f"ds_read_b64_tr_b16 v[{d+2}:{d+3}], v{s.vC[ri][j]} offset:{o+4*r.RS}", d + 2)]

    def acc(s, m, n):
        return (m * s.NT + n) * 4

    def mfma(s, kk, m, n):
        a = s.acc(m, n)
        r, c = s.fR[kk][m], s.fC[kk][n]
        if s.orient[n] == 'RA':
            x, y = r, c
        else:
            x, y = c, r
        return (f"v_mfma_f32_16x16x32_bf16 a[{a}:{a+3}], v[{x}:{x+3}], v[{y}:{y+3}], a[{a}:{a+3}]", [r, c, c + 2])

    def loader_setup(s, vlane, vt, cset):
        e = s.e
        L = s.vL
        def tparts(stride):
            e(f"v_lshrrev_b32 v{vt}, 2, v{vlane}")
            e(f"v_and_b32 v{vt}, 7, v{vt}")
            e(f"s_mov_b32 s{S_T1}, {stride}")
            e(f"v_mul_lo_u32 v{vt}, v{vt}, s{S_T1}")
            e(f"v_lshrrev_b32 v{vt+1}, 5, v{vlane}")
            e(f"v_lshl_add_u32 v{vt}, v{vt+1}, 6, v{vt}")
            e(f"v_lshrrev_b32 v{vt+1}, 3, v{vlane}")
            e(f"v_and_b32 v{vt+1}, 2, v{vt+1}")
            e(f"v_and_b32 v{vt+2}, 3, v{vlane}")
            e(f"v_xor_b32 v{vt+1}, v{vt+1}, v{vt+2}")
            e(f"v_lshlrev_b32 v{vt+1}, 4, v{vt+1}")
            e(f"v_xor_b32 v{vt+2}, 48, v{vt+1}")
            e(f"v_add_u32 v{vt+1}, v{vt+1}, v{vt}")
            e(f"v_add_u32 v{vt+2}, v{vt+2}, v{vt}")
        tparts(s.rstride)
        e(f"s_lshl_b32 s{S_T0}, s{S_WAVE}, 6")
        e(f"s_add_u32 s{S_T0}, s{S_T0}, s{S_ROW0}")
        e(f"s_mul_i32 s{S_T0}, s{S_T0}, {s.rstride}")
        for j in range(8):
            e(f"s_add_u32 s{S_T1}, s{S_T0}, {j*8*s.rstride - (j&3)*1024}")
            e(f"v_add_u32 v{L+j}, s{S_T1}, v{vt+1+(j&1)}")
        e(f"s_lshl_b32 s{S_M0}, s{S_WAVE}, 13")
        e(f"s_add_u32 s{S_M0+1}, s{S_M0}, 4096")
        s.dma = []
        for j in range(8):
            s.dma.append((L + j, S_SRD_R, S_KR, S_M0 + (j >> 2) if (j & 3) == 0 else None, (j & 3) * 1024))
        vo = L + 8
        mo = S_M0 + 2
        so = S_SRD_C
        s.srds = [S_SRD_R]
        for ri, r in enumerate(s.regions):
            ng4 = -(-r.DW // 4)
            e(f"s_mul_i32 s{mo}, s{S_WAVE}, {r.DW*1024}")
            e(f"s_add_u32 s{mo}, s{mo}, {RT + r.lds_off}")
            for g in range(1, ng4):
                e(f"s_add_u32 s{mo+g}, s{mo}, {4096*g}")
            if r.typ == 'T':
                assert r.DW % 2 == 0
                tparts(r.gstride)
                for j in range(r.DW):
                    cset(ri, j, so)
                    if (j & 3):
                        e(f"s_sub_u32 s{S_T0}, s{S_T0}, {(j&3)*1024}")
                    e(f"v_add_u32 v{vo+j}, s{S_T0}, v{vt+1+(j&1)}")
                    s.dma.append((vo + j, so, S_KC, mo + (j >> 2) if (j & 3) == 0 else None, (j & 3) * 1024))
                    s.srds.append(so)
                    so += 4
            elif r.typ == 'Nadd':
                cset(ri, None, so)
                s.srds.append(so)
                m1, sh1 = magic(r.BL, 4 * r.DW * 64)
                rc = r.RS // 16
                m2, sh2 = magic(rc, r.BL)
                e(f"s_mul_i32 s{S_T1}, s{S_WAVE}, {r.DW*64}")
                for j in range(r.DW):
                    e(f"v_add_u32 v{vt}, s{S_T1}, v{vlane}")
                    if j:
                        e(f"v_add_u32 v{vt}, {64*j}, v{vt}")
                    e(f"v_mul_u32_u24 v{vt+1}, {m1}, v{vt}")
                    e(f"v_lshrrev_b32 v{vt+1}, {sh1}, v{vt+1}")
                    e(f"v_mul_u32_u24 v{vt+2}, {r.BL}, v{vt+1}")
                    e(f"v_sub_u32 v{vt}, v{vt}, v{vt+2}")
                    e(f"v_mul_u32_u24 v{vt+2}, {m2}, v{vt}")
                    e(f"v_lshrrev_b32 v{vt+2}, {sh2}, v{vt+2}")
                    e(f"v_mul_u32_u24 v{vt+3}, {rc}, v{vt+2}")
                    e(f"v_sub_u32 v{vt+3}, v{vt}, v{vt+3}")
                    e(f"v_lshl_add_u32 v{vt+1}, v{vt+1}, 3, v{vt+2}")
                    e(f"v_mul_u32_u24 v{vt+4}, {r.gstride}, v{vt+1}")
                    e(f"v_lshl_add_u32 v{vt+4}, v{vt+3}, 4, v{vt+4}")
                    e(f"v_add_u32 v{vt+4}, s{S_T0}, v{vt+4}")
                    if j & 3:
                        e(f"v_subrev_u32 v{vt+4}, {(j&3)*1024}, v{vt+4}")
                    e(f"v_cmp_gt_u32 vcc, 8, v{vt+2}")
                    e(f"v_mov_b32 v{vt+5}, 0x7ff00000")
                    e("s_nop 0")
                    e(f"v_cndmask_b32 v{vt+4}, v{vt+5}, v{vt+4}, vcc")
                    e(f"v_cmp_gt_u32 vcc, {r.ng*2}, v{vt+3}")
                    e("s_nop 1")
                    e(f"v_cndmask_b32 v{vt+4}, v{vt+5}, v{vt+4}, vcc")
                    e(f"v_cmp_gt_u32 vcc, 64, v{vt+1}")
                    e("s_nop 1")
                    e(f"v_cndmask_b32 v{vo+j}, v{vt+5}, v{vt+4}, vcc")
                    s.dma.append((vo + j, so, S_KN, mo + (j >> 2) if (j & 3) == 0 else None, (j & 3) * 1024))
                so += 4
            else:
                cset(ri, None, so)
                s.srds.append(so)
                if r.ng == 8:
                    assert r.DW == 4
                    e(f"v_lshrrev_b32 v{vt}, 4, v{vlane}")
                    e(f"v_mul_u32_u24 v{vt+1}, {r.gstride}, v{vt}")
                    e(f"v_lshlrev_b32 v{vt}, 5, v{vt}")
                    e(f"v_and_b32 v{vt+2}, 15, v{vlane}")
                    e(f"v_lshlrev_b32 v{vt+2}, 4, v{vt+2}")
                    e(f"v_xor_b32 v{vt+2}, v{vt+2}, v{vt}")
                    e(f"v_xor_b32 v{vt+3}, 128, v{vt+2}")
                    e(f"v_add_u32 v{vt+2}, v{vt+2}, v{vt+1}")
                    e(f"v_add_u32 v{vt+3}, v{vt+3}, v{vt+1}")
                    e(f"s_mul_i32 s{S_T1}, s{S_WAVE}, {16*r.gstride}")
                    e(f"s_add_u32 s{S_T0}, s{S_T0}, s{S_T1}")
                    for j in range(4):
                        e(f"s_add_u32 s{S_T1}, s{S_T0}, {j*4*r.gstride - (j&3)*1024}")
                        e(f"v_add_u32 v{vo+j}, s{S_T1}, v{vt+2+((j>>1)&1)}")
                        s.dma.append((vo + j, so, S_KN, mo if j == 0 else None, j * 1024))
                else:
                    assert r.DW == 2
                    e(f"v_lshrrev_b32 v{vt}, 3, v{vlane}")
                    e(f"v_mul_u32_u24 v{vt+1}, {r.gstride}, v{vt}")
                    e(f"v_lshrrev_b32 v{vt}, 4, v{vlane}")
                    e(f"v_and_b32 v{vt}, 1, v{vt}")
                    e(f"v_lshlrev_b32 v{vt}, 5, v{vt}")
                    e(f"v_and_b32 v{vt+2}, 7, v{vlane}")
                    e(f"v_lshlrev_b32 v{vt+2}, 4, v{vt+2}")
                    e(f"v_xor_b32 v{vt+2}, v{vt+2}, v{vt}")
                    e(f"v_xor_b32 v{vt+3}, 64, v{vt+2}")
                    e(f"v_add_u32 v{vt+2}, v{vt+2}, v{vt+1}")
                    e(f"v_add_u32 v{vt+3}, v{vt+3}, v{vt+1}")
                    e(f"s_mul_i32 s{S_T1}, s{S_WAVE}, {16*r.gstride}")
                    e(f"s_add_u32 s{S_T0}, s{S_T0}, s{S_T1}")
                    for j in range(2):
                        e(f"s_add_u32 s{S_T1}, s{S_T0}, {j*8*r.gstride - j*1024}")
                        e(f"v_add_u32 v{vo+j}, s{S_T1}, v{vt+2+j}")
                        s.dma.append((vo + j, so, S_KN, mo if j == 0 else None, j * 1024))
                so += 4
            vo += r.DW
            mo += ng4
        assert len(s.dma) == s.D
        assert mo <= S_NS and so <= S_NREC

    def dma_groups(s):
        out = []
        for (v, sr, so, m0, io) in s.dma:
            g = []
            if m0 is not None:
                g.append(f"s_add_u32 m0, s{S_WR}, s{m0}")
                g.append("s_nop 0")
            g.append(f"buffer_load_dwordx4 v{v}, s[{sr}:{sr+3}], s{so} offen offset:{io} lds" if io else
                     f"buffer_load_dwordx4 v{v}, s[{sr}:{sr+3}], s{so} offen lds")
            out.append(g)
        return out

    def dma_book(s):
        g = [f"s_add_u32 s{S_KR}, s{S_KR}, 128"]
        if any(r.typ == 'T' for r in s.regions):
            g.append(f"s_add_u32 s{S_KC}, s{S_KC}, 128")
        for r in s.regions:
            if r.typ != 'T':
                g.append(f"s_add_u32 s{S_KN}, s{S_KN}, {64*r.gstride}")
        if s.rot:
            g.append(f"s_add_u32 s{S_KI}, s{S_KI}, 1")
            g.append(f"s_cmp_ge_u32 s{S_KI}, s{S_NS}")
            g.append(f"s_cselect_b32 s{S_KI}, 0, s{S_KI}")
            g.append(f"s_cselect_b32 s{S_T0}, {128*s.nsteps}, 0")
            g.append(f"s_sub_u32 s{S_KR}, s{S_KR}, s{S_T0}")
            if any(r.typ == 'T' for r in s.regions):
                g.append(f"s_sub_u32 s{S_KC}, s{S_KC}, s{S_T0}")
            for r in s.regions:
                if r.typ != 'T':
                    g.append(f"s_mul_i32 s{S_T0}, s{S_KI}, 1")
                    g.append(f"s_cmp_eq_u32 s{S_KI}, 0")
                    g.append(f"s_cselect_b32 s{S_T0}, {64*r.gstride*s.nsteps}, 0")
                    g.append(f"s_sub_u32 s{S_KN}, s{S_KN}, s{S_T0}")
        g.append(f"s_add_u32 s{S_WR}, s{S_WR}, {s.SS}")
        g.append(f"s_cmp_ge_u32 s{S_WR}, {s.SS*s.S}")
        g.append(f"s_cselect_b32 s{S_WR}, 0, s{S_WR}")
        g.append(f"s_sub_u32 s{S_LEFT}, s{S_LEFT}, 1")
        g.append(f"s_cmp_lt_i32 s{S_LEFT}, 1")
        for sr in s.srds:
            g.append(f"s_cselect_b32 s{sr+2}, 0, s{sr+2}")
        return g

    def loader_init(s):
        e = s.e
        e(f"s_mov_b32 s{S_WR}, 0")
        e(f"s_mov_b32 s{S_LEFT}, s{S_NS}")
        if s.rot:
            W, mul = s.rot
            if W == 1:
                e(f"s_and_b32 s{S_KI}, s2, 7")
            elif W == 2:
                e(f"s_lshr_b32 s{S_KI}, s2, 3")
                e(f"s_and_b32 s{S_KI}, s{S_KI}, 3")
                e(f"s_and_b32 s{S_T0}, s2, 1")
                e(f"s_lshl_b32 s{S_T0}, s{S_T0}, 2")
                e(f"s_add_u32 s{S_KI}, s{S_KI}, s{S_T0}")
                e(f"s_and_b32 s{S_T0}, s2, 4")
                e(f"s_lshl_b32 s{S_T0}, s{S_T0}, 1")
                e(f"s_add_u32 s{S_KI}, s{S_KI}, s{S_T0}")
            elif W == 3:
                e(f"s_and_b32 s{S_KI}, s2, 1")
                e(f"s_and_b32 s{S_T0}, s2, 4")
                e(f"s_lshr_b32 s{S_T0}, s{S_T0}, 1")
                e(f"s_add_u32 s{S_KI}, s{S_KI}, s{S_T0}")
            elif W == 4:
                e(f"s_and_b32 s{S_KI}, s2, 7")
                e(f"s_lshl_b32 s{S_KI}, s{S_KI}, 1")
                e(f"s_lshr_b32 s{S_T0}, s2, 3")
                e(f"s_and_b32 s{S_T0}, s{S_T0}, 1")
                e(f"s_add_u32 s{S_KI}, s{S_KI}, s{S_T0}")
            elif W == 5:
                e(f"s_lshr_b32 s{S_KI}, s2, 5")
                e(f"s_and_b32 s{S_T0}, s2, 8")
                e(f"s_add_u32 s{S_KI}, s{S_KI}, s{S_T0}")
            elif W == 6:
                e(f"s_lshr_b32 s{S_KI}, s2, 5")
                e(f"s_and_b32 s{S_T0}, s2, 24")
                e(f"s_add_u32 s{S_KI}, s{S_KI}, s{S_T0}")
            elif W == 7:
                e(f"s_lshr_b32 s{S_KI}, s2, 3")
                e(f"s_and_b32 s{S_KI}, s{S_KI}, 15")
            elif W == 8:
                e(f"s_lshr_b32 s{S_KI}, s2, 5")
            elif W == 9:
                e(f"s_lshr_b32 s{S_KI}, s2, 5")
                e(f"s_and_b32 s{S_KI}, s{S_KI}, 3")
                e(f"s_and_b32 s{S_T0}, s2, 24")
                e(f"s_lshr_b32 s{S_T0}, s{S_T0}, 1")
                e(f"s_add_u32 s{S_KI}, s{S_KI}, s{S_T0}")
            e(f"s_mul_i32 s{S_KI}, s{S_KI}, {mul}")
            e(f"s_cmp_ge_u32 s{S_KI}, s{S_NS}")
            e(f"s_cselect_b32 s{S_T0}, s{S_NS}, 0")
            e(f"s_sub_u32 s{S_KI}, s{S_KI}, s{S_T0}")
            e(f"s_lshl_b32 s{S_T0}, s{S_KI}, 7")
            e(f"s_add_u32 s{S_KR}, s{S_KR}, s{S_T0}")
            e(f"s_add_u32 s{S_KC}, s{S_KC}, s{S_T0}")
            for r in s.regions:
                if r.typ != 'T':
                    e(f"s_mul_i32 s{S_T0}, s{S_KI}, {64*r.gstride}")
                    e(f"s_add_u32 s{S_KN}, s{S_KN}, s{S_T0}")

    def stats_step(s):
        e = s.e
        for kk in range(2):
            for m in range(4):
                e(f"ds_read_b128 v[{40+16*kk+4*m}:{43+16*kk+4*m}], v24 offset:{m*2048+kk*512}")
        for kk in range(2):
            for m in range(4):
                e(f"s_waitcnt lgkmcnt({7-4*kk-m})")
                for x in range(4):
                    r = 40 + 16 * kk + 4 * m + x
                    e(f"v_dot2_f32_bf16 v{28+m}, v{r}, v39, v{28+m}")
                    e(f"v_dot2_f32_bf16 v{32+m}, v{r}, v{r}, v{32+m}")
        t = 40
        lst = []
        for ri, r in enumerate(s.regions):
            for j in range(-(-r.ng // 4)):
                for kk in range(2):
                    if r.typ == 'T':
                        e(f"ds_read_b128 v[{t}:{t+3}], v{25+ri} offset:{4*j*2048+kk*512}")
                    else:
                        o = kk * (32 * r.RS + 512) + 4 * j * 32
                        e(f"ds_read_b64_tr_b16 v[{t}:{t+1}], v{25+ri} offset:{o}")
                        e(f"ds_read_b64_tr_b16 v[{t+2}:{t+3}], v{25+ri} offset:{o+4*r.RS}")
                    lst.append((t, len(lst) // 2))
                    t += 4
        e("s_waitcnt lgkmcnt(0)")
        for (t, a) in lst:
            for x in range(4):
                e(f"v_dot2_f32_bf16 v{36+a}, v{t+x}, v39, v{36+a}")
        sg, _ = s.adv_addr()
        e.ext(sg)
        for a in range(1 + len(s.regions)):
            e(f"v_add_u32 v{24+a}, s{S_DL}, v{24+a}")

    def stats_final(s):
        e = s.e
        regs = list(range(28, 39))
        for r in regs:
            e(f"v_mov_b32 v40, v{r}")
            e("s_nop 1")
            e(f"v_permlane32_swap_b32 v{r}, v40")
            e(f"v_add_f32 v{r}, v{r}, v40")
            e(f"v_mov_b32 v40, v{r}")
            e("s_nop 1")
            e(f"v_permlane16_swap_b32 v{r}, v40")
            e(f"v_add_f32 v{r}, v{r}, v40")
        e("v_and_b32 v2, 15, v1")
        e(f"s_lshl_b32 s{S_T0}, s{S_WAVE}, 8")
        e(f"s_add_u32 s{S_T0}, s{S_T0}, {s.st_off}")
        e(f"v_lshl_add_u32 v3, v2, 2, s{S_T0}")
        for m in range(4):
            a, q = 28 + m, 32 + m
            e(f"v_mul_f32 v{a}, 0x3a800000, v{a}")
            e(f"v_mul_f32 v{q}, 0x3a800000, v{q}")
            e(f"v_fma_f32 v{q}, -v{a}, v{a}, v{q}")
            e(f"v_max_f32 v{q}, 0, v{q}")
            e(f"v_cvt_pk_bf16_f32 v40, v{a}, v{q}")
            e(f"v_lshlrev_b32 v{a}, 16, v40")
            e(f"v_and_b32 v{q}, 0xffff0000, v40")
            e(f"v_add_f32 v{q}, 0x3727c5ac, v{q}")
            e(f"v_cvt_pk_bf16_f32 v40, v{q}, v{q}")
            e(f"v_lshlrev_b32 v{q}, 16, v40")
            e(f"v_sqrt_f32 v{q}, v{q}")
            e("s_nop 0")
            e(f"v_cvt_pk_bf16_f32 v40, v{q}, v{q}")
            e(f"v_lshlrev_b32 v{q}, 16, v40")
            e(f"v_rcp_f32 v41, v{q}")
            e("s_nop 0")
            e(f"v_fma_f32 v42, -v{q}, v41, 1.0")
            e(f"v_fma_f32 v41, v42, v41, v41")
            e(f"v_mul_f32 v{a}, v{a}, v41")
            e(f"ds_write_b32 v3, v41 offset:{64*m}")
            e(f"ds_write_b32 v3, v{a} offset:{1024+64*m}")
        k = 0
        for ri, r in enumerate(s.regions):
            for j in range(-(-r.ng // 4)):
                e(f"s_add_u32 s{S_T0}, s{S_WAVE}, {4*j}")
                e(f"s_cmp_lt_u32 s{S_T0}, {r.ng}")
                e(f"s_cselect_b32 s{S_T0}, s{S_T0}, {12 - r.g0}")
                e(f"s_lshl_b32 s{S_T0}, s{S_T0}, 6")
                e(f"s_add_u32 s{S_T0}, s{S_T0}, {s.st_off + 2048 + 64 * r.g0}")
                e(f"v_lshl_add_u32 v3, v2, 2, s{S_T0}")
                e(f"ds_write_b32 v3, v{36+k}")
                k += 1
        e("s_waitcnt lgkmcnt(0)")
        e("s_barrier")

    def loader_loop(s):
        e, p = s.e, s.pre
        s.loader_init()
        for st in range(s.S):
            for g in s.dma_groups():
                e.ext(g)
            e.ext(s.dma_book())
        if s.st_off:
            s.compute_setup(1, 40, ldst=24)
            for r in range(28, 39):
                e(f"v_mov_b32 v{r}, 0")
            e("v_mov_b32 v39, 0x3f803f80")
            e(f"s_mov_b32 s{S_RD}, 0")
            e(f"s_mov_b32 s{S_NREC}, {s.SS}")
        e(f"s_waitcnt vmcnt({(s.S-1)*s.D})")
        e("s_barrier")
        e(f"s_mov_b32 s{S_CNT}, s{S_NS}")
        e.lab(f"{p}_lloop")
        if s.st_off:
            s.stats_step()
        e(f"s_waitcnt vmcnt({(s.S-2)*s.D})")
        e("s_barrier")
        for g in s.dma_groups():
            e.ext(g)
        e.ext(s.dma_book())
        e(f"s_sub_u32 s{S_CNT}, s{S_CNT}, 1")
        e(f"s_cmp_lg_u32 s{S_CNT}, 0")
        e(f"s_cbranch_scc1 {p}_lloop")
        if s.st_off:
            s.stats_final()
        e("s_endpgm")

    def compute_setup(s, vlane, vt, ldst=None):
        e = s.e
        if s.WN == 1:
            e(f"s_mul_i32 s{S_T0}, s{S_WAVE}, {s.MT*16*128}")
            e(f"s_mov_b32 s{S_T1}, 0")
        else:
            e(f"s_lshr_b32 s{S_T0}, s{S_WAVE}, 1")
            e(f"s_mul_i32 s{S_T0}, s{S_T0}, {s.MT*16*128}")
            e(f"s_and_b32 s{S_T1}, s{S_WAVE}, 1")
        e(f"v_and_b32 v{vt}, 15, v{vlane}")
        e(f"v_lshrrev_b32 v{vt+1}, 4, v{vlane}")
        e(f"v_lshrrev_b32 v{vt+2}, 3, v{vt}")
        e(f"v_lshrrev_b32 v{vt+3}, 2, v{vt}")
        e(f"v_and_b32 v{vt+3}, 1, v{vt+3}")
        e(f"v_xor_b32 v{vt+3}, v{vt+3}, v{vt+2}")
        e(f"v_lshl_add_u32 v{vt+3}, v{vt+3}, 1, v{vt+2}")
        e(f"v_xor_b32 v{vt+3}, v{vt+3}, v{vt+1}")
        e(f"v_lshlrev_b32 v{vt+3}, 4, v{vt+3}")
        e(f"v_lshl_add_u32 v{vt+3}, v{vt+2}, 10, v{vt+3}")
        e(f"v_and_b32 v{vt+2}, 7, v{vt}")
        e(f"v_lshl_add_u32 v{vt+2}, v{vt+2}, 6, v{vt+3}")
        e(f"v_lshrrev_b32 v{vt+4}, 2, v{vlane}")
        e(f"v_and_b32 v{vt+4}, 3, v{vt+4}")
        e(f"v_and_b32 v{vt+5}, 3, v{vlane}")
        tmp = {}
        for ri, r in enumerate(s.regions):
            base = RT + r.lds_off
            if r.typ == 'T':
                e(f"s_mul_i32 s{S_T2}, s{S_T1}, {s.NT*16*128}")
                e(f"s_add_u32 s{S_T2}, s{S_T2}, {base}")
                e(f"v_add_u32 v{vt+6+2*ri}, s{S_T2}, v{vt+2}")
                tmp[ri] = [vt + 6 + 2 * ri]
            elif r.typ == 'Nadd':
                assert s.WN == 1
                d = vt + 6 + 2 * ri
                e(f"v_lshl_add_u32 v{d}, v{vt+1}, 3, v{vt+4}")
                e(f"v_mul_u32_u24 v{d}, {r.RS}, v{d}")
                e(f"v_lshl_add_u32 v{d}, v{vt+1}, 7, v{d}")
                e(f"v_lshl_add_u32 v{d}, v{vt+5}, 3, v{d}")
                e(f"v_add_u32 v{d}, {base}, v{d}")
                tmp[ri] = [d]
            else:
                d = vt + 6 + 2 * ri
                e(f"v_lshl_add_u32 v{d}, v{vt+1}, 3, v{vt+4}")
                e(f"v_mul_u32_u24 v{d}, {r.RS}, v{d}")
                e(f"v_lshl_add_u32 v{d}, v{vt+5}, 3, v{d}")
                e(f"v_add_u32 v{d}, {base}, v{d}")
                e(f"v_and_b32 v{d+1}, 1, v{vt+1}")
                if r.ng == 8:
                    e(f"v_lshl_add_u32 v{d+1}, v{d+1}, 2, v{vt+4}")
                    e(f"s_mul_i32 s{S_T2}, s{S_T1}, {s.NT}")
                    e(f"v_xor_b32 v{d+1}, s{S_T2}, v{d+1}")
                else:
                    e(f"v_lshrrev_b32 v{vt+10}, 1, v{vt+4}")
                    e(f"v_lshl_add_u32 v{d+1}, v{d+1}, 1, v{vt+10}")
                e(f"v_lshl_add_u32 v{d}, v{d+1}, 5, v{d}")
                tmp[ri] = [d]
        if ldst is not None:
            e(f"v_add_u32 v{ldst}, s{S_T0}, v{vt+2}")
            for ri, r in enumerate(s.regions):
                e(f"s_mul_i32 s{S_T2}, s{S_WAVE}, {2048 if r.typ == 'T' else 32}")
                e(f"v_add_u32 v{ldst+1+ri}, s{S_T2}, v{tmp[ri][0]}")
            return
        for ri, r in enumerate(s.regions):
            if r.typ == 'Nxor':
                for j, vv in enumerate(s.vC[ri]):
                    e(f"v_xor_b32 v{vv}, {32*j}, v{tmp[ri][0]}")
            else:
                for vv, t in zip(s.vC[ri], tmp[ri]):
                    e(f"v_mov_b32 v{vv}, v{t}")
        e(f"v_add_u32 v{s.vR[0]}, s{S_T0}, v{vt+2}")
        for a in range(s.nacc):
            e(f"v_accvgpr_write_b32 a{a}, 0")

    def adv_addr(s):
        g = [f"s_add_u32 s{S_RD}, s{S_RD}, {s.SS}",
             f"s_cmp_ge_u32 s{S_RD}, {s.SS*s.S}",
             f"s_cselect_b32 s{S_RD}, 0, s{S_RD}",
             f"s_cselect_b32 s{S_DL}, {-(s.S-1)*s.SS & 0xffffffff}, s{S_NREC}"]
        v = [f"v_add_u32 v{a}, s{S_DL}, v{a}" for a in range(s.naddr)]
        return g, v

    def compute_loop(s, X):
        e, p = s.e, s.pre
        MT, NT = s.MT, s.NT
        if s.outer == 'C':
            NO, NI = NT, MT
            order = [(m, n) for n in range(NT) for m in range(MT)]
        else:
            NO, NI = MT, NT
            order = [(m, n) for m in range(MT) for n in range(NT)]
        NM = MT * NT

        def rd_outer(kk, o):
            return s.rd_C(kk, o) if s.outer == 'C' else s.rd_R(kk, o)

        def rd_inner(kk, i):
            return s.rd_R(kk, i) if s.outer == 'C' else s.rd_C(kk, i)

        seq = [(1, t) for t in range(X, NM)] + [(0, t) for t in range(NM)] + [(1, t) for t in range(X)]
        P1 = NM - X
        NSEQ = len(seq)
        BR = OPT.get('BR', 6)
        sg, vg = s.adv_addr()
        fill = []
        fill.append([0, -10, [(x, None) for x in vg], 'x'])
        first_rd = 0 if len(vg) <= 1 else 1
        for i in range(NI):
            fill.append([first_rd, 0 + i * 0.01, rd_inner(0, i), 'lds'])
        for o in range(NO):
            last = (o + 1) * NI - 1
            fill.append([max(last - X, first_rd), 0.5 + o, rd_outer(0, o), 'lds'])
        for i in range(NI):
            fill.append([P1 - 1, 100 + i * 0.01, rd_inner(1, i), 'lds'])
        for o in range(NO):
            fill.append([P1 + (o + 1) * NI - 1, 100.5 + o, rd_outer(1, o), 'lds'])
        fill.append([P1 + 2, 200, [(x, None) for x in sg[:2]], 'x'])
        fill.append([P1 + 3, 201, [(x, None) for x in sg[2:]], 'x'])
        if s.pfstub:
            fill.append([P1 + 9, 202, [(f"s_cmp_eq_u32 s{S_CNT}, s80", None), (f"s_cbranch_scc1 {p}_pf", None), (f"@{p}_pfret", None)], 'x'])
        dg = []
        if s.design == 'A':
            dg = s.dma_groups()
            tot = NSEQ - 4
            for k, g in enumerate(dg):
                fill.append([int(k * tot / len(dg)) + 1, 50 + k, [(x, None) for x in g], 'dma'])
        body = []
        pend = sorted(fill, key=lambda f: f[1])
        n_dma_part1 = 0
        CAP = OPT.get('CAP', 2)

        def emit_gap(gi, cap):
            nonlocal pend, n_dma_part1
            used = 0
            rest = []
            for f in pend:
                n = len(f[2])
                if f[0] <= gi and (used == 0 or used + n <= cap):
                    for (x, d) in f[2]:
                        body.append(('lds', x, d) if f[3] == 'lds' else ('x', x, None))
                    used += n + (1 if f[3] == 'lds' and OPT.get('LDS1', 1) else 0)
                    if f[3] == 'dma' and gi < P1 - 1:
                        n_dma_part1 += 1
                else:
                    rest.append(f)
            pend = rest

        for gi, (kk, t) in enumerate(seq):
            m, n = order[t]
            x, srcs = s.mfma(kk, m, n)
            body.append(('mfma', x, srcs))
            if gi == P1 - 1:
                body.append(('lab', f"{p}_mid", None))
            if gi == BR - 2:
                body.append(('x', f"s_sub_u32 s{S_CNT}, s{S_CNT}, 1", None))
                body.append(('x', f"s_cmp_lg_u32 s{S_CNT}, 0", None))
                continue
            if gi == BR - 1:
                body.append(('br', None, None))
                continue
            if gi == NSEQ - 1:
                continue
            emit_gap(gi, CAP if gi < NSEQ - 2 else 99)
            if gi == NSEQ - 3 and s.design == 'A':
                assert not any(f[3] == 'dma' for f in pend)
                for x in s.dma_book():
                    body.append(('x', x, None))
        assert not pend, pend
        body.append(('w0', "s_waitcnt lgkmcnt(0)" + (f" vmcnt({(s.S-2)*s.D})" if s.design == 'A' else ""), None))
        body.append(('x', "s_barrier", None))
        issued = 0
        done = 0
        lastw = {}
        outb = None
        for ps in range(2):
            outb = []
            for (k, x, d) in body:
                if k == 'lds':
                    issued += 1
                    lastw[d] = issued
                    outb.append((k, x))
                elif k == 'w0':
                    done = issued
                    outb.append((k, x))
                elif k == 'mfma':
                    need = max([lastw.get(r, 0) for r in d])
                    if need > done:
                        outb.append(('x', f"s_waitcnt lgkmcnt({min(issued-need, 15)})"))
                        done = need
                    outb.append((k, x))
                else:
                    outb.append((k, x))
        e(f"s_mov_b32 s{S_RD}, 0")
        e(f"s_mov_b32 s{S_NREC}, {s.SS}")
        e(f"s_mov_b32 s{S_DL}, {s.SS}")
        if s.design == 'A':
            s.loader_init()
            for st in range(s.S - 1):
                for g in dg:
                    e.ext(g)
                e.ext(s.dma_book())
            for g in dg[:n_dma_part1]:
                e.ext(g)
            e(f"s_waitcnt vmcnt({(s.S-2)*s.D + n_dma_part1})")
        stamp(e, 1)
        e("s_barrier")
        stamp(e, 2)
        for i in range(NI):
            for (x, d) in rd_inner(0, i):
                e(x)
        for o in range(NO):
            for (x, d) in rd_outer(0, o):
                e(x)
        e(f"s_mov_b32 s{S_CNT}, s{S_NS}")
        e("s_waitcnt lgkmcnt(0)")
        e(f"s_branch {p}_mid")
        if s.pfstub:
            e.lab(f"{p}_pf")
            e(f"s_mov_b32 m0, {s.pfstub}")
            e("s_nop 0")
            for q in range(3):
                e(f"buffer_load_dword v3, s[{64+4*q}:{67+4*q}], s81 offen lds")
            e(f"s_branch {p}_pfret")
        e.L.append(".p2align 6")
        bi = [i for i, (k, x) in enumerate(outb) if k == 'br'][0]
        e.lab(f"{p}_top")
        for (k, x) in outb[bi + 1:] + outb[:bi]:
            if k == 'lab':
                e.lab(x)
            elif x.startswith('@'):
                e.lab(x[1:])
            else:
                e(x)
        e(f"s_cbranch_scc1 {p}_top")
        for (kk, t) in seq[BR:P1]:
            m, n = order[t]
            e(s.mfma(kk, m, n)[0])
        e("s_waitcnt lgkmcnt(0)")
        e("s_nop 7")
        e("s_nop 7")
        stamp(e, 3)


WS_ST = 64 * MB


def stamp(e, k):
    if OPT.get('stamp'):
        e(f"s_memtime s[{90+2*k}:{91+2*k}]")
        if k == 0:
            e("s_memrealtime s[34:35]")
        if k == 4:
            e("s_memrealtime s[36:37]")
        e("s_waitcnt lgkmcnt(0)")


def stamp_out(e, kid):
    if OPT.get('stamp'):
        e("s_waitcnt vmcnt(0)")
        stamp(e, 4)
        srd(e, S_SRD_O, 28, 29, 4 * MB, WS_ST + kid * MB)
        e("s_lshl_b32 s38, s2, 2")
        e(f"s_add_u32 s38, s38, s{S_WAVE}")
        e("s_lshl_b32 s38, s38, 5")
        e("v_mov_b32 v0, s38")
        for k in range(5):
            e(f"v_mov_b32 v{2+k}, s{90+2*k}")
        e("v_mov_b32 v7, s34")
        e("v_mov_b32 v8, s36")
        e("s_getreg_b32 s38, hwreg(HW_REG_XCC_ID)")
        e("v_mov_b32 v9, s38")
        e(f"buffer_store_dwordx4 v[2:5], v0, s[{S_SRD_O}:{S_SRD_O+3}], 0 offen")
        e(f"buffer_store_dwordx4 v[6:9], v0, s[{S_SRD_O}:{S_SRD_O+3}], 0 offen offset:16")


def prefetch(e, vtmp, items, lds_dummy):
    e(f"v_mbcnt_lo_u32_b32 v{vtmp}, -1, 0")
    e(f"v_mbcnt_hi_u32_b32 v{vtmp}, -1, v{vtmp}")
    e(f"s_lshl_b32 s{S_T0}, s2, 2")
    e(f"s_add_u32 s{S_T0}, s{S_T0}, s{S_WAVE}")
    e(f"s_mov_b32 m0, {lds_dummy}")
    for (lo, hi, nb) in items:
        per = -(-(nb // 128) // 1024)
        srd(e, 64, lo, hi, nb)
        e(f"s_mul_i32 s{S_T1}, s{S_T0}, {per*128}")
        e(f"v_lshlrev_b32 v{vtmp+1}, 7, v{vtmp}")
        if per < 64:
            e(f"v_cmp_gt_u32 vcc, {per}, v{vtmp}")
            e(f"v_mov_b32 v{vtmp+2}, 0x7ff00000")
            e("s_nop 0")
            e(f"v_cndmask_b32 v{vtmp+1}, v{vtmp+2}, v{vtmp+1}, vcc")
        for hh in range(OPT.get('pfhalves', 1)):
            e(f"buffer_load_dword v{vtmp+1}, s[64:67], s{S_T1} offen offset:{hh*64} lds" + (" nt" if OPT.get('pfnt') else ""))


def lane_wave(e, design):
    stamp(e, 0)
    e("v_lshrrev_b32 v1, 6, v0")
    e("s_nop 0")
    e(f"v_readfirstlane_b32 s{S_T2}, v1")
    e("v_and_b32 v1, 63, v0")
    e("s_nop 2")
    e(f"s_and_b32 s{S_WAVE}, s{S_T2}, 3")


def gen_g1(e):
    name = "g1_kernel"
    design, S, X = OPT['design1'], OPT['S1'], OPT['X']
    khead(e, name)
    e("s_cmp_ge_u32 s2, 256")
    e("s_cbranch_scc1 g1_done")
    e("s_load_dwordx4 s[20:23], s[0:1], 24")
    e("s_load_dwordx4 s[24:27], s[0:1], 48")
    e("s_load_dwordx2 s[28:29], s[0:1], 96")
    e("s_load_dwordx2 s[32:33], s[0:1], 0")
    e("s_load_dwordx4 s[72:75], s[0:1], 8")
    e("s_load_dwordx2 s[76:77], s[0:1], 64")
    lane_wave(e, design)
    e("s_and_b32 s30, s2, 1")
    e("s_lshl_b32 s30, s30, 2")
    e("s_lshr_b32 s31, s2, 3")
    e(f"s_and_b32 s{S_ROW0}, s31, 3")
    e(f"s_add_u32 s{S_ROW0}, s{S_ROW0}, s30")
    e(f"s_lshl_b32 s{S_ROW0}, s{S_ROW0}, 8")
    e("s_and_b32 s30, s2, 6")
    e("s_lshl_b32 s30, s30, 2")
    e(f"s_lshr_b32 s{S_COL0}, s31, 2")
    e(f"s_add_u32 s{S_COL0}, s{S_COL0}, s30")
    e(f"s_mov_b32 s{S_NS}, 16")
    e(f"s_mov_b32 s{S_KR}, 0")
    e(f"s_mov_b32 s{S_KC}, 0")
    e(f"s_mov_b32 s{S_KN}, 0")
    e("s_waitcnt lgkmcnt(0)")
    FL = OPT.get('fuse_ln')
    if FL:
        srd(e, S_SRD_R, 32, 33, 4 * MB)
    else:
        srd(e, S_SRD_R, 28, 29, 2048 * XS, WS_XN)
    e(f"s_cmp_lt_u32 s{S_COL0}, 11")
    e("s_cbranch_scc1 g1d_start")
    e(f"s_cmp_eq_u32 s{S_COL0}, 11")
    e("s_cbranch_scc1 g1m_start")
    e("s_branch g1f_start")

    variants = {
        'g1d': [Region('T', 0, 11, 0, 2048)],
        'g1m': [Region('T', 0, 7, 0, 2048), Region('Nadd', 7, 4, 16384, 7168)],
        'g1f': [Region('Nadd', 0, 11, 0, 7168)],
    }
    vt_max = 0
    ss_max = 0
    for pre, regs in variants.items():
        orient = []
        for r in regs:
            orient += ['RA' if r.typ == 'T' else 'CA'] * r.ng
        G = Gemm(e, pre, design, S, 4, 11, 4, 1, regs, 2048 if FL else XS, 'C', orient, nsteps=16)
        if FL:
            G.st_off = 122880 + 1024
        if OPT.get('rot1'):
            G.rot = (OPT['rot1'], OPT.get('rotmul1', 1))
        e.lab(f"{pre}_start")

        def cset(ri, j, so, G=G, pre=pre):
            r = G.regions[ri]
            if r.typ == 'T':
                e(f"s_mul_i32 s{S_T0}, s{S_COL0}, 22")
                e(f"s_mul_i32 s{S_T1}, s{S_WAVE}, {r.DW}")
                e(f"s_add_u32 s{S_T1}, s{S_T1}, {j}")
                e(f"s_add_u32 s{S_T0}, s{S_T0}, s{S_T1}")
                e(f"s_cmp_lt_u32 s{S_T0}, 128")
                e(f"s_cselect_b32 s{so}, s20, s22")
                e(f"s_cselect_b32 s{so+1}, s21, s23")
                e(f"s_and_b32 s{S_T0}, s{S_T0}, 127")
                e(f"s_lshl_b32 s{S_T0}, s{S_T0}, 14")
                e(f"s_cmp_lt_u32 s{S_T1}, {r.ninstr}")
                e(f"s_cselect_b32 s{so+2}, {2*MB}, 0")
                e(f"s_mov_b32 s{so+3}, 0x20000")
                e(f"s_cselect_b32 s{S_T0}, s{S_T0}, 4096")
            else:
                srd(e, so, 24, 25, 1024 * 7168)
                e(f"s_mul_i32 s{S_T0}, s{S_COL0}, 352")
                e(f"s_sub_u32 s{S_T0}, s{S_T0}, {(128 - r.g0) * 32}")

        if design == 'B':
            e(f"s_cmp_ge_u32 s{S_T2}, 4")
            e(f"s_cbranch_scc0 {pre}_comp")
            G.loader_setup(1, 2, cset)
            G.loader_loop()
            e.lab(f"{pre}_comp")
        else:
            G.loader_setup(1, G.vfrag0, cset)
        e(f"v_mov_b32 v{G.vfrag0+16}, v1")
        if OPT.get('pf1'):
            prefetch(e, G.vfrag0 + 20, [(20, 21, 2 * MB), (22, 23, 2 * MB), (24, 25, 1024 * 7168)], 122880)
        if OPT.get('pf2') == 1:
            prefetch(e, G.vfrag0 + 20, [(72, 73, 8 * MB), (74, 75, 8 * MB), (76, 77, 3584 * 2048)], 122880)
        if OPT.get('pf2') == 3:
            G.pfstub = 122880
            e("s_mov_b64 s[82:83], s[72:73]")
            e("s_mov_b64 s[84:85], s[74:75]")
            e("s_mov_b64 s[86:87], s[76:77]")
            srd(e, 64, 82, 83, 8 * MB)
            srd(e, 68, 84, 85, 8 * MB)
            srd(e, 72, 86, 87, 3584 * 2048)
            e(f"s_lshl_b32 s81, s2, 2")
            e(f"s_add_u32 s81, s81, s{S_WAVE}")
            e(f"s_lshl_b32 s81, s81, 13")
            e(f"s_mul_i32 s80, s{S_WAVE}, {OPT.get('pfsp', 2)}")
            e(f"s_sub_u32 s80, {OPT.get('pfat', 12)}, s80")
            e("v_lshlrev_b32 v3, 7, v1")
        G.compute_setup(G.vfrag0 + 16, G.vfrag0)
        G.compute_loop(X)
        if OPT.get('pf2') == 2:
            prefetch(e, 8, [(72, 73, 8 * MB), (74, 75, 8 * MB), (76, 77, 3584 * 2048)], 122880)
        g1_epilogue(e, G, pre)
        stamp_out(e, 0)
        e("s_endpgm")
        vt_max = max(vt_max, G.vtop)
        ss_max = max(ss_max, G.SS)
    e.lab("g1_done")
    e("s_endpgm")
    acc0 = (vt_max + 3) // 4 * 4
    kdesc(e, name, acc0 + 176, acc0)
    return ss_max * S + 1024 + 3072


def f2u(f):
    import struct
    return struct.unpack("<I", struct.pack("<f", f))[0]


def g1_epilogue(e, G, pre):
    FL = G.st_off
    if FL:
        e("s_barrier")
    e("v_mbcnt_lo_u32_b32 v1, -1, 0")
    e("v_mbcnt_hi_u32_b32 v1, -1, v1")
    e("v_and_b32 v2, 15, v1")
    e("v_lshrrev_b32 v3, 4, v1")
    e("v_and_b32 v4, 1, v3")
    e("v_lshlrev_b32 v4, 4, v4")
    e("v_lshrrev_b32 v5, 1, v3")
    e("v_lshl_add_u32 v4, v5, 3, v4")
    e(f"s_lshl_b32 s{S_T0}, s{S_WAVE}, 6")
    e(f"s_add_u32 s{S_T0}, s{S_T0}, s{S_ROW0}")
    T = 16
    for r in G.regions:
        if r.typ == 'T':
            srd(e, S_SRD_O, 28, 29, 2048 * ATS, WS_AT)
            if FL:
                e(f"s_lshl_b32 s{S_T1}, s{S_WAVE}, 8")
                e(f"s_add_u32 s{S_T1}, s{S_T1}, {FL}")
                e(f"v_lshl_add_u32 v7, v3, 4, s{S_T1}")
                for m in range(4):
                    e(f"ds_read_b128 v[{44+4*m}:{47+4*m}], v7 offset:{64*m}")
                    e(f"ds_read_b128 v[{60+4*m}:{63+4*m}], v7 offset:{1024+64*m}")
                e(f"v_lshlrev_b32 v7, 2, v2")
                e(f"v_add_u32 v7, {FL}, v7")
                for j in range(r.ng):
                    e(f"ds_read_b32 v{32+j}, v7 offset:{2048 + 64*(r.g0+j)}")
            e(f"s_mul_i32 s{S_T1}, s{S_COL0}, 176")
            e(f"v_add_u32 v6, s{S_T1}, v2")
            e(f"s_mov_b32 s{S_T2}, {ATS}")
            e(f"v_mul_lo_u32 v6, v6, s{S_T2}")
            e(f"v_add_u32 v7, s{S_T0}, v4")
            e("v_lshl_add_u32 v6, v7, 1, v6")
            e(f"s_mul_i32 s{S_T1}, s{S_COL0}, 11")
            e("s_waitcnt lgkmcnt(0)")
            for j in range(r.ng):
                n = r.g0 + j
                e(f"s_add_u32 s{S_T2}, s{S_T1}, {n}")
                e(f"s_cmp_lt_u32 s{S_T2}, 64")
                e(f"s_cselect_b32 s{S_DL}, 0, 0x80008000")
                e(f"s_mov_b32 s{S_T2}, {n*16*ATS}")
                for mp in range(2):
                    t = 8 + ((j * 2 + mp) % 2) * 12
                    for q in range(2):
                        a = G.acc(2 * mp + q, n)
                        for x in range(4):
                            e(f"v_accvgpr_read_b32 v{t+4+q*4+x}, a{a+x}")
                    if FL:
                        for q in range(2):
                            m = 2 * mp + q
                            for h in range(2):
                                d = t + 4 + q * 4 + 2 * h
                                e(f"v_pk_mul_f32 v[{d}:{d+1}], v[{d}:{d+1}], v[{44+4*m+2*h}:{45+4*m+2*h}]")
                        for q in range(2):
                            m = 2 * mp + q
                            for h in range(2):
                                d = t + 4 + q * 4 + 2 * h
                                c = 32 + j
                                ce = c & ~1
                                sel = "op_sel:[0,1,0] op_sel_hi:[1,1,1]" if c & 1 else "op_sel_hi:[1,0,1]"
                                e(f"v_pk_fma_f32 v[{d}:{d+1}], v[{60+4*m+2*h}:{61+4*m+2*h}], v[{ce}:{ce+1}], v[{d}:{d+1}] {sel} neg_lo:[1,0,0] neg_hi:[1,0,0]")
                    for q in range(2):
                        e(f"v_cvt_pk_bf16_f32 v{t+2*q}, v{t+4+q*4}, v{t+5+q*4}")
                        e(f"v_cvt_pk_bf16_f32 v{t+2*q+1}, v{t+6+q*4}, v{t+7+q*4}")
                    for x in range(4):
                        e(f"v_xor_b32 v{t+x}, s{S_DL}, v{t+x}")
                    e("s_nop 1")
                    e(f"v_permlane16_swap_b32 v{t}, v{t+2}")
                    e(f"v_permlane16_swap_b32 v{t+1}, v{t+3}")
                    e(f"buffer_store_dwordx4 v[{t}:{t+3}], v6, s[{S_SRD_O}:{S_SRD_O+3}], s{S_T2} offen offset:{mp*64}")
        else:
            srd(e, S_SRD_O, 28, 29, 2048 * HS, WS_H)
            srd(e, S_SRD_B, 26, 27, 7168)
            e(f"s_mul_i32 s{S_T1}, s{S_COL0}, 352")
            e(f"s_sub_u32 s{S_T1}, s{S_T1}, {(128 - r.g0) * 32}")
            e("v_lshlrev_b32 v7, 3, v3")
            e(f"v_add_u32 v7, s{S_T1}, v7")
            BB = 52
            for j in range(r.ng):
                e(f"buffer_load_dwordx2 v[{BB+2*j}:{BB+2*j+1}], v7, s[{S_SRD_B}:{S_SRD_B+3}], 0 offen offset:{32*j}")
            if FL:
                e(f"s_lshl_b32 s{S_T2}, s{S_WAVE}, 8")
                e(f"s_add_u32 s{S_T2}, s{S_T2}, {FL}")
                e(f"v_lshl_add_u32 v7, v2, 2, s{S_T2}")
                for m in range(4):
                    e(f"ds_read_b32 v{44+2*m}, v7 offset:{64*m}")
                    e(f"ds_read_b32 v{45+2*m}, v7 offset:{1024+64*m}")
                e("v_lshlrev_b32 v9, 4, v3")
                e(f"v_add_u32 v9, {FL}, v9")
            e(f"v_add_u32 v6, s{S_T0}, v2")
            e(f"s_mov_b32 s{S_T2}, {HS}")
            e(f"v_mul_lo_u32 v6, v6, s{S_T2}")
            e(f"v_add_u32 v6, s{S_T1}, v6")
            e("v_lshl_add_u32 v8, v3, 3, v6")
            e("v_lshl_add_u32 v6, v4, 1, v6")
            c1 = -2.0 * math.log2(math.e) * math.sqrt(2.0 / math.pi)
            c2 = c1 * 0.044715
            e(f"v_mov_b32 v10, {f2u(c1):#x}")
            e(f"v_mov_b32 v11, {f2u(c1):#x}")
            e(f"v_mov_b32 v12, {f2u(c2):#x}")
            e(f"v_mov_b32 v13, {f2u(c2):#x}")
            e("v_mov_b32 v14, 1.0")
            e("v_mov_b32 v15, 1.0")
            e("s_waitcnt vmcnt(0)")
            j = 0
            while j < r.ng:
                npair = 2 if j + 1 < r.ng else 1
                for q in range(npair):
                    b = BB + 2 * (j + q)
                    e(f"v_lshlrev_b32 v{32+4*q}, 16, v{b}")
                    e(f"v_and_b32 v{33+4*q}, 0xffff0000, v{b}")
                    e(f"v_lshlrev_b32 v{34+4*q}, 16, v{b+1}")
                    e(f"v_and_b32 v{35+4*q}, 0xffff0000, v{b+1}")
                if FL:
                    csr = [76, BB + 2 * j if npair == 2 else 76]
                    e(f"ds_read_b128 v[76:79], v9 offset:{2048 + 64*(r.g0+j)}")
                    if npair == 2:
                        e(f"ds_read_b128 v[{csr[1]}:{csr[1]+3}], v9 offset:{2048 + 64*(r.g0+j+1)}")
                    e("s_waitcnt lgkmcnt(0)")
                for m in range(4):
                    t = 16
                    for q in range(npair):
                        a = G.acc(m, r.g0 + j + q)
                        for x in range(4):
                            e(f"v_accvgpr_read_b32 v{t+4*q+x}, a{a+x}")
                    np_ = 2 * npair
                    if FL:
                        st = 44 + 2 * m
                        for h in range(np_):
                            c = csr[h >> 1] + 2 * (h & 1)
                            e(f"v_pk_fma_f32 v[{t+8+2*h}:{t+9+2*h}], v[{c}:{c+1}], v[{st}:{st+1}], v[{32+2*h}:{33+2*h}] op_sel:[0,1,0] op_sel_hi:[1,1,1] neg_lo:[1,0,0] neg_hi:[1,0,0]")
                        for h in range(np_):
                            e(f"v_pk_fma_f32 v[{t+2*h}:{t+2*h+1}], v[{t+2*h}:{t+2*h+1}], v[{st}:{st+1}], v[{t+8+2*h}:{t+9+2*h}] op_sel_hi:[1,0,1]")
                    else:
                        for h in range(np_):
                            e(f"v_pk_add_f32 v[{t+2*h}:{t+2*h+1}], v[{t+2*h}:{t+2*h+1}], v[{32+2*h}:{33+2*h}]")
                    for h in range(np_):
                        e(f"v_pk_mul_f32 v[{t+8+2*h}:{t+9+2*h}], v[{t+2*h}:{t+2*h+1}], v[{t+2*h}:{t+2*h+1}]")
                    for h in range(np_):
                        e(f"v_pk_fma_f32 v[{t+8+2*h}:{t+9+2*h}], v[{t+8+2*h}:{t+9+2*h}], v[12:13], v[10:11]")
                    for h in range(np_):
                        e(f"v_pk_mul_f32 v[{t+8+2*h}:{t+9+2*h}], v[{t+8+2*h}:{t+9+2*h}], v[{t+2*h}:{t+2*h+1}]")
                    for x in range(2 * np_):
                        e(f"v_exp_f32 v{t+8+x}, v{t+8+x}")
                    for h in range(np_):
                        e(f"v_pk_add_f32 v[{t+8+2*h}:{t+9+2*h}], v[{t+8+2*h}:{t+9+2*h}], v[14:15]")
                    for x in range(2 * np_):
                        e(f"v_rcp_f32 v{t+8+x}, v{t+8+x}")
                    for h in range(np_):
                        e(f"v_pk_mul_f32 v[{t+2*h}:{t+2*h+1}], v[{t+2*h}:{t+2*h+1}], v[{t+8+2*h}:{t+9+2*h}]")
                    o = 40
                    for h in range(np_):
                        e(f"v_cvt_pk_bf16_f32 v{o+h}, v{t+2*h}, v{t+2*h+1}")
                    e(f"s_mov_b32 s{S_T2}, {m*16*HS}")
                    if npair == 2:
                        e("s_nop 0")
                        e(f"v_permlane16_swap_b32 v{o}, v{o+2}")
                        e(f"v_permlane16_swap_b32 v{o+1}, v{o+3}")
                        e(f"buffer_store_dwordx4 v[{o}:{o+3}], v6, s[{S_SRD_O}:{S_SRD_O+3}], s{S_T2} offen offset:{j*32}")
                    else:
                        e(f"buffer_store_dwordx2 v[{o}:{o+1}], v8, s[{S_SRD_O}:{S_SRD_O+3}], s{S_T2} offen offset:{j*32}")
                j += npair


def gen_g2(e):
    name = "g2_kernel"
    design, S, X = OPT['design2'], OPT['S2'], OPT['X']
    khead(e, name)
    e("s_cmp_ge_u32 s2, 256")
    e("s_cbranch_scc1 g2_done")
    e("s_load_dwordx4 s[20:23], s[0:1], 8")
    e("s_load_dwordx2 s[24:25], s[0:1], 64")
    e("s_load_dwordx2 s[28:29], s[0:1], 96")
    lane_wave(e, design)
    e("s_and_b32 s30, s2, 3")
    e("s_lshr_b32 s31, s2, 2")
    e("s_and_b32 s31, s31, 1")
    e("s_lshr_b32 s32, s2, 3")
    e(f"s_and_b32 s{S_ROW0}, s32, 3")
    e(f"s_lshl_b32 s31, s31, 2")
    e(f"s_add_u32 s{S_ROW0}, s{S_ROW0}, s31")
    e(f"s_lshl_b32 s{S_ROW0}, s{S_ROW0}, 8")
    e(f"s_lshr_b32 s{S_COL0}, s32, 2")
    e(f"s_lshl_b32 s{S_COL0}, s{S_COL0}, 7")
    e(f"s_mov_b32 s{S_KC}, 0")
    e("s_waitcnt lgkmcnt(0)")
    e("s_cmp_ge_u32 s30, 2")
    e("s_cbranch_scc1 g2o_start")
    variants = {
        'g2y': ([Region('T', 0, 8, 0, ATS)], 4096),
        'g2o': ([Region('Nxor', 0, 8, 0, 2048)], HS),
    }
    vt_max = 0
    for pre, (regs, rstride) in variants.items():
        G = Gemm(e, pre, design, S, 8, 4, 2, 2, regs, rstride, 'R', ['CA'] * 4, nsteps=32 if pre == 'g2y' else 28)
        if OPT.get('rot2') and (pre == 'g2y' or OPT.get('rot2o')):
            G.rot = (OPT['rot2'], OPT.get('rotmul2', 1))
        e.lab(f"{pre}_start")
        if pre == 'g2y':
            e(f"s_mov_b32 s{S_NS}, 32")
            e(f"s_mov_b32 s{S_KR}, 0")
            e("s_cmp_eq_u32 s30, 0")
            e(f"s_cselect_b32 s{S_SRD_R}, s20, s22")
            e(f"s_cselect_b32 s{S_SRD_R+1}, s21, s23")
            e(f"s_mov_b32 s{S_SRD_R+2}, {8*MB}")
            e(f"s_mov_b32 s{S_SRD_R+3}, 0x20000")
        else:
            e(f"s_mov_b32 s{S_NS}, 28")
            e("s_and_b32 s33, s30, 1")
            e(f"s_mul_i32 s{S_KR}, s33, {1792*2}")
            e(f"s_mul_i32 s{S_KN}, s33, {1792*2048}")
            srd(e, S_SRD_R, 28, 29, 2048 * HS, WS_H)

        def cset(ri, j, so, G=G, pre=pre):
            r = G.regions[ri]
            if r.typ == 'T':
                srd(e, so, 28, 29, 2048 * ATS, WS_AT)
                e(f"s_lshl_b32 s{S_T0}, s30, 10")
                e(f"s_add_u32 s{S_T0}, s{S_T0}, s{S_COL0}")
                e(f"s_lshl_b32 s{S_T1}, s{S_WAVE}, 5")
                e(f"s_add_u32 s{S_T0}, s{S_T0}, s{S_T1}")
                e(f"s_add_u32 s{S_T0}, s{S_T0}, {8*j}")
                e(f"s_mul_i32 s{S_T0}, s{S_T0}, {ATS}")
            else:
                srd(e, so, 24, 25, 3584 * 2048)
                e(f"s_lshl_b32 s{S_T0}, s{S_COL0}, 1")

        if design == 'B':
            e(f"s_cmp_ge_u32 s{S_T2}, 4")
            e(f"s_cbranch_scc0 {pre}_comp")
            G.loader_setup(1, 2, cset)
            G.loader_loop()
            e.lab(f"{pre}_comp")
        else:
            G.loader_setup(1, G.vfrag0, cset)
        e(f"v_mov_b32 v{G.vfrag0+16}, v1")
        G.compute_setup(G.vfrag0 + 16, G.vfrag0)
        G.compute_loop(X)
        e("v_mbcnt_lo_u32_b32 v1, -1, 0")
        e("v_mbcnt_hi_u32_b32 v1, -1, v1")
        e("v_and_b32 v2, 15, v1")
        e("v_lshrrev_b32 v3, 4, v1")
        e(f"s_lshr_b32 s{S_T0}, s{S_WAVE}, 1")
        e(f"s_lshl_b32 s{S_T0}, s{S_T0}, 7")
        e(f"s_add_u32 s{S_T0}, s{S_T0}, s{S_ROW0}")
        e(f"s_and_b32 s{S_T1}, s{S_WAVE}, 1")
        e(f"s_lshl_b32 s{S_T1}, s{S_T1}, 6")
        e(f"s_add_u32 s{S_T1}, s{S_T1}, s{S_COL0}")
        e(f"v_add_u32 v6, s{S_T0}, v2")
        if pre == 'g2y':
            srd(e, S_SRD_O, 28, 29, 8 * MB, WS_P0)
            e("v_and_b32 v4, 1, v3")
            e("v_lshlrev_b32 v4, 4, v4")
            e("v_lshrrev_b32 v5, 1, v3")
            e("v_lshl_add_u32 v4, v5, 3, v4")
            e(f"v_add_u32 v4, s{S_T1}, v4")
            e("v_lshlrev_b32 v6, 11, v6")
            e("v_lshl_add_u32 v6, v4, 1, v6")
            e("s_lshl_b32 s33, s30, 22")
            for m in range(8):
                e(f"s_add_u32 s{S_T2}, s33, {m*16*2048}")
                for np_ in range(2):
                    t = 16 + np_ * 12
                    for q in range(2):
                        a = G.acc(m, 2 * np_ + q)
                        for x in range(4):
                            e(f"v_accvgpr_read_b32 v{t+4+q*4+x}, a{a+x}")
                    for q in range(2):
                        e(f"v_cvt_pk_bf16_f32 v{t+2*q}, v{t+4+q*4}, v{t+5+q*4}")
                        e(f"v_cvt_pk_bf16_f32 v{t+2*q+1}, v{t+6+q*4}, v{t+7+q*4}")
                    e("s_nop 1")
                    e(f"v_permlane16_swap_b32 v{t}, v{t+2}")
                    e(f"v_permlane16_swap_b32 v{t+1}, v{t+3}")
                    e(f"buffer_store_dwordx4 v[{t}:{t+3}], v6, s[{S_SRD_O}:{S_SRD_O+3}], s{S_T2} offen offset:{np_*64}")
        else:
            srd(e, S_SRD_O, 28, 29, 16 * MB, WS_P2)
            e(f"v_lshl_add_u32 v4, v3, 2, s{S_T1}")
            e("v_lshlrev_b32 v6, 12, v6")
            e("v_lshl_add_u32 v6, v4, 2, v6")
            e("s_lshl_b32 s33, s33, 23")
            for m in range(8):
                e(f"s_add_u32 s{S_T2}, s33, {m*16*4096}")
                for n in range(4):
                    a = G.acc(m, n)
                    e(f"buffer_store_dwordx4 a[{a}:{a+3}], v6, s[{S_SRD_O}:{S_SRD_O+3}], s{S_T2} offen offset:{n*64}")
        stamp_out(e, 1)
        e("s_endpgm")
        vt_max = max(vt_max, G.vtop)
    e.lab("g2_done")
    e("s_endpgm")
    acc0 = (vt_max + 3) // 4 * 4
    kdesc(e, name, acc0 + 128, acc0)
    return G.SS * S


def main():
    out = sys.argv[1]
    for a in sys.argv[2:]:
        k, v = a.split("=")
        OPT[k] = int(v) if v.lstrip('-').isdigit() else v
    e = E()
    if not OPT.get('fuse_ln'):
        gen_ln(e)
    l1 = gen_g1(e)
    l2 = gen_g2(e)
    gen_fin(e)
    e.lab("text_end")
    e("s_endpgm")
    hdr = open("cdna_kernels/%s.s.ref" % KN).read().split("; Override launch")[0]
    b1 = 512 if OPT['design1'] == 'B' else 256
    b2 = 512 if OPT['design2'] == 'B' else 256
    if not OPT.get('fuse_ln'):
        hdr += "; @launch kernel=ln_kernel grid=(512,1,1) block=(256,1,1) lds=0\n"
    hdr += f"; @launch kernel=g1_kernel grid=(256,1,1) block=({b1},1,1) lds={l1}\n"
    hdr += f"; @launch kernel=g2_kernel grid=(256,1,1) block=({b2},1,1) lds={l2}\n"
    hdr += "; @launch kernel=fin_kernel grid=(1024,1,1) block=(256,1,1) lds=0\n"
    hdr += '.amdgcn_target "amdgcn-amd-amdhsa--gfx950"\n.text\n'
    open(out, "w").write(hdr + "\n".join(e.L) + "\n")


if __name__ == "__main__":
    main()
```

```python
import sys, math

KN = "recurrent_scan__spectral_fnet__dense_activation_gelu__prompt"

MB = 1 << 20
WS_XN = 0
WS_AT = 5 * MB
WS_H = 14 * MB
XS, ATS, HS = 2176, 4224, 7296
WS_P0 = 32 * MB
WS_P1 = 36 * MB
WS_P2 = 40 * MB
WS_P3 = 48 * MB

OPT = dict(design1='B', design2='B', S1=2, S2=3, X=8)


class E:
    def __init__(s):
        s.L = []

    def __call__(s, x):
        s.L.append("    " + x)

    def lab(s, x):
        s.L.append(x + ":")

    def c(s, x):
        s.L.append("    ; " + x)

    def ext(s, lst):
        for x in lst:
            s(x)


def srd(e, d, lo, hi, nbytes, add=0):
    if add:
        e(f"s_add_u32 s{d}, s{lo}, {add}")
        e(f"s_addc_u32 s{d+1}, s{hi}, 0")
    else:
        e(f"s_mov_b32 s{d}, s{lo}")
        e(f"s_mov_b32 s{d+1}, s{hi}")
    e(f"s_mov_b32 s{d+2}, {nbytes}")
    e(f"s_mov_b32 s{d+3}, 0x20000")


def kdesc(e, name, vgpr, accoff, sgpr=102):
    e.L.append('.section .rodata,"a"')
    e.L.append(".p2align 6")
    e.L.append(f".amdhsa_kernel {name}")
    e.L.append(f"  .amdhsa_next_free_vgpr {vgpr}")
    e.L.append(f"  .amdhsa_next_free_sgpr {sgpr}")
    e.L.append(f"  .amdhsa_accum_offset {accoff}")
    e.L.append("  .amdhsa_group_segment_fixed_size 0")
    e.L.append("  .amdhsa_kernarg_size 104")
    e.L.append("  .amdhsa_user_sgpr_count 2")
    e.L.append("  .amdhsa_user_sgpr_kernarg_segment_ptr 1")
    e.L.append("  .amdhsa_system_sgpr_workgroup_id_x 1")
    e.L.append(".end_amdhsa_kernel")
    e.L.append(".text")


def khead(e, name):
    e.L.append(f".globl {name}")
    e.L.append(".p2align 8")
    e.L.append(f".type {name},@function")
    e.lab(name)


def gen_ln(e):
    name = "ln_kernel"
    khead(e, name)
    e("s_cmp_ge_u32 s2, 512")
    e("s_cbranch_scc1 ln_done")
    tl(e, 0, 0)
    e("s_load_dwordx2 s[4:5], s[0:1], 0")
    e("s_load_dwordx2 s[6:7], s[0:1], 96")
    e("v_lshrrev_b32 v1, 6, v0")
    e("v_and_b32 v2, 63, v0")
    e("s_lshl_b32 s3, s2, 2")
    e("v_add_u32 v1, s3, v1")
    e(f"s_mov_b32 s16, {XS}")
    e("v_mul_lo_u32 v50, v1, s16")
    e("v_lshl_add_u32 v50, v2, 4, v50")
    e("v_lshlrev_b32 v1, 11, v1")
    e("v_lshl_add_u32 v1, v2, 4, v1")
    e("s_waitcnt lgkmcnt(0)")
    srd(e, 8, 4, 5, 4 * MB)
    srd(e, 12, 6, 7, 2048 * XS, WS_XN)
    e("buffer_load_dwordx4 v[4:7], v1, s[8:11], 0 offen")
    e("buffer_load_dwordx4 v[8:11], v1, s[8:11], 0 offen offset:1024")
    npf = 0
    if OPT.get('pfln'):
        e("s_load_dwordx8 s[36:43], s[0:1], 8")
        e("s_load_dwordx2 s[44:45], s[0:1], 48")
        e("s_load_dwordx2 s[46:47], s[0:1], 64")
        e("v_lshrrev_b32 v70, 6, v0")
        e("v_add_u32 v70, s3, v70")
        e("v_lshlrev_b32 v71, 7, v2")
        e("s_waitcnt lgkmcnt(0)")
        items = [(40, 2 * MB), (42, 2 * MB), (44, 1024 * 7168)]
        if OPT['pfln'] >= 2:
            items += [(36, 8 * MB), (38, 8 * MB), (46, 3584 * 2048)]
        for k, (lo, nb) in enumerate(items):
            per = nb // 128 // 2048
            srd(e, 48, lo, lo + 1, nb)
            e(f"v_mul_u32_u24 v72, {per*128}, v70")
            e("v_add_u32 v72, v72, v71")
            e(f"v_cmp_gt_u32 vcc, {per}, v2")
            e("v_mov_b32 v73, 0x7ff00000")
            e("s_nop 0")
            e("v_cndmask_b32 v72, v73, v72, vcc")
            e(f"buffer_load_dword v{74+k}, v72, s[48:51], 0 offen")
            npf += 1
    if OPT.get('pfcode'):
        e("s_getpc_b64 s[52:53]")
        e.lab("ln_pc")
        e("s_lshr_b32 s54, s2, 3")
        e("s_lshl_b32 s54, s54, 8")
        e("v_add_u32 v72, s54, v0")
        e("v_lshlrev_b32 v72, 7, v72")
        e("v_min_u32 v72, text_end-ln_pc-4, v72")
        e("v_and_b32 v72, 0xfffffffc, v72")
        e("global_load_dword v69, v72, s[52:53]")
        npf += 1
    e(f"s_waitcnt vmcnt({npf})")
    for i in range(8):
        e(f"v_lshlrev_b32 v{16+2*i}, 16, v{4+i}")
        e(f"v_and_b32 v{17+2*i}, 0xffff0000, v{4+i}")

    def tree(dst, src):
        for i in range(8):
            e(f"v_add_f32 v{40+i}, v{src+2*i}, v{src+2*i+1}")
        for i in range(4):
            e(f"v_add_f32 v{40+i}, v{40+i}, v{44+i}")
        e("v_add_f32 v40, v40, v42")
        e("v_add_f32 v41, v41, v43")
        e(f"v_add_f32 v{dst}, v40, v41")

    def wred(v, sdst):
        for sh in (1, 2, 4, 8):
            e("s_nop 1")
            e(f"v_add_f32_dpp v{v}, v{v}, v{v} row_ror:{sh} row_mask:0xf bank_mask:0xf")
        e("s_nop 1")
        e(f"v_readlane_b32 s20, v{v}, 0")
        e(f"v_readlane_b32 s21, v{v}, 16")
        e(f"v_readlane_b32 s22, v{v}, 32")
        e(f"v_readlane_b32 s23, v{v}, 48")
        e("s_nop 1")
        e(f"v_mov_b32 v{v}, s20")
        e(f"v_add_f32 v{v}, s21, v{v}")
        e(f"v_mov_b32 v48, s22")
        e(f"v_add_f32 v48, s23, v48")
        e(f"v_add_f32 v{v}, v{v}, v48")

    tree(3, 16)
    wred(3, 24)
    e("v_mul_f32 v3, 0x3a800000, v3")
    for i in range(16):
        e(f"v_sub_f32 v{52+i}, v{16+i}, v3")
    for i in range(16):
        e(f"v_mul_f32 v{52+i}, v{52+i}, v{52+i}")
    tree(12, 52)
    wred(12, 25)
    e("v_mul_f32 v12, 0x3a800000, v12")
    e("v_cvt_pk_bf16_f32 v13, v3, v12")
    e("v_lshlrev_b32 v3, 16, v13")
    e("v_and_b32 v12, 0xffff0000, v13")
    e("v_add_f32 v12, 0x3727c5ac, v12")
    e("v_cvt_pk_bf16_f32 v13, v12, v12")
    e("v_lshlrev_b32 v12, 16, v13")
    e("v_sqrt_f32 v12, v12")
    e("s_nop 0")
    e("v_cvt_pk_bf16_f32 v13, v12, v12")
    e("v_lshlrev_b32 v12, 16, v13")
    e("v_rcp_f32 v14, v12")
    for i in range(8):
        e(f"v_sub_f32 v{16+2*i}, v{16+2*i}, v3")
        e(f"v_sub_f32 v{17+2*i}, v{17+2*i}, v3")
        e(f"v_cvt_pk_bf16_f32 v{4+i}, v{16+2*i}, v{17+2*i}")
        e(f"v_lshlrev_b32 v{16+2*i}, 16, v{4+i}")
        e(f"v_and_b32 v{17+2*i}, 0xffff0000, v{4+i}")
    for i in range(16):
        e(f"v_mul_f32 v{52+i}, v{16+i}, v14")
        e(f"v_fma_f32 v{16+i}, -v{52+i}, v12, v{16+i}")
        e(f"v_fma_f32 v{52+i}, v{16+i}, v14, v{52+i}")
    for i in range(8):
        e(f"v_cvt_pk_bf16_f32 v{4+i}, v{52+2*i}, v{53+2*i}")
    e("buffer_store_dwordx4 v[4:7], v50, s[12:15], 0 offen")
    e("buffer_store_dwordx4 v[8:11], v50, s[12:15], 0 offen offset:1024")
    tl(e, 0, 1)
    e.lab("ln_done")
    e("s_endpgm")
    kdesc(e, name, 80, 80, 102)


def gen_fin(e):
    name = "fin_kernel"
    khead(e, name)
    e("s_cmp_ge_u32 s2, 1024")
    e("s_cbranch_scc1 fin_done")
    tl(e, 3, 0, 50)
    e("s_load_dwordx2 s[4:5], s[0:1], 0")
    e("s_load_dwordx4 s[24:27], s[0:1], 72")
    e("s_load_dwordx2 s[6:7], s[0:1], 96")
    e("s_lshl_b32 s3, s2, 8")
    e("v_add_u32 v1, s3, v0")
    e("v_lshlrev_b32 v2, 4, v1")
    e("v_lshlrev_b32 v3, 5, v1")
    e("v_and_b32 v4, 0x7ff, v2")
    e("s_mov_b32 s28, 0xbfb8aa3b")
    e("s_waitcnt lgkmcnt(0)")
    srd(e, 8, 4, 5, 4 * MB)
    srd(e, 12, 6, 7, 8 * MB, WS_P0)
    srd(e, 16, 6, 7, 16 * MB, WS_P2)
    srd(e, 20, 24, 25, 2048)
    srd(e, 32, 26, 27, 4 * MB)
    e(f"s_mov_b32 s29, {4*MB}")
    e(f"s_mov_b32 s30, {8*MB}")
    e("buffer_load_dwordx4 v[8:11], v2, s[12:15], 0 offen")
    e("buffer_load_dwordx4 v[12:15], v2, s[12:15], s29 offen")
    e("buffer_load_dwordx4 v[16:19], v3, s[16:19], 0 offen")
    e("buffer_load_dwordx4 v[20:23], v3, s[16:19], 0 offen offset:16")
    e("buffer_load_dwordx4 v[24:27], v3, s[16:19], s30 offen")
    e("buffer_load_dwordx4 v[28:31], v3, s[16:19], s30 offen offset:16")
    e("buffer_load_dwordx4 v[32:35], v4, s[20:23], 0 offen")
    e("buffer_load_dwordx4 v[36:39], v2, s[8:11], 0 offen")
    e("s_waitcnt vmcnt(6)")
    for i in range(4):
        e(f"v_lshlrev_b32 v{40+2*i}, 16, v{8+i}")
        e(f"v_and_b32 v{41+2*i}, 0xffff0000, v{8+i}")
        e(f"v_lshlrev_b32 v{48+2*i}, 16, v{12+i}")
        e(f"v_and_b32 v{49+2*i}, 0xffff0000, v{12+i}")
    for i in range(8):
        e(f"v_add_f32 v{40+i}, v{40+i}, v{48+i}")
    for i in range(4):
        e(f"v_cvt_pk_bf16_f32 v{8+i}, v{40+2*i}, v{41+2*i}")
        e(f"v_lshlrev_b32 v{40+2*i}, 16, v{8+i}")
        e(f"v_and_b32 v{41+2*i}, 0xffff0000, v{8+i}")
    e("s_waitcnt vmcnt(1)")
    for i in range(8):
        e(f"v_add_f32 v{16+i}, v{16+i}, v{24+i}")
    for i in range(4):
        e(f"v_cvt_pk_bf16_f32 v{8+i}, v{16+2*i}, v{17+2*i}")
        e(f"v_lshlrev_b32 v{16+2*i}, 16, v{8+i}")
        e(f"v_and_b32 v{17+2*i}, 0xffff0000, v{8+i}")
        e(f"v_lshlrev_b32 v{24+2*i}, 16, v{32+i}")
        e(f"v_and_b32 v{25+2*i}, 0xffff0000, v{32+i}")
    for i in range(8):
        e(f"v_add_f32 v{16+i}, v{16+i}, v{24+i}")
    for i in range(4):
        e(f"v_cvt_pk_bf16_f32 v{8+i}, v{16+2*i}, v{17+2*i}")
        e(f"v_lshlrev_b32 v{16+2*i}, 16, v{8+i}")
        e(f"v_and_b32 v{17+2*i}, 0xffff0000, v{8+i}")
    for i in range(8):
        e(f"v_mul_f32 v{24+i}, s28, v{16+i}")
    for i in range(8):
        e(f"v_exp_f32 v{24+i}, v{24+i}")
    for i in range(8):
        e(f"v_add_f32 v{24+i}, 1.0, v{24+i}")
    for i in range(8):
        e(f"v_rcp_f32 v{24+i}, v{24+i}")
    for i in range(8):
        e(f"v_mul_f32 v{16+i}, v{16+i}, v{24+i}")
    for i in range(4):
        e(f"v_cvt_pk_bf16_f32 v{8+i}, v{16+2*i}, v{17+2*i}")
        e(f"v_lshlrev_b32 v{16+2*i}, 16, v{8+i}")
        e(f"v_and_b32 v{17+2*i}, 0xffff0000, v{8+i}")
    for i in range(8):
        e(f"v_mul_f32 v{16+i}, v{16+i}, v{40+i}")
    e("s_waitcnt vmcnt(0)")
    for i in range(4):
        e(f"v_cvt_pk_bf16_f32 v{8+i}, v{16+2*i}, v{17+2*i}")
        e(f"v_lshlrev_b32 v{16+2*i}, 16, v{8+i}")
        e(f"v_and_b32 v{17+2*i}, 0xffff0000, v{8+i}")
        e(f"v_lshlrev_b32 v{24+2*i}, 16, v{36+i}")
        e(f"v_and_b32 v{25+2*i}, 0xffff0000, v{36+i}")
    for i in range(8):
        e(f"v_add_f32 v{16+i}, v{16+i}, v{24+i}")
    for i in range(4):
        e(f"v_cvt_pk_bf16_f32 v{8+i}, v{16+2*i}, v{17+2*i}")
    e("buffer_store_dwordx4 v[8:11], v2, s[32:35], 0 offen")
    tl(e, 3, 1, 50)
    e.lab("fin_done")
    e("s_endpgm")
    kdesc(e, name, 56, 56, 102)


S_WAVE = 3
S_ROW0 = 40
S_COL0 = 41
S_KR = 42
S_KC = 43
S_KN = 44
S_CNT = 45
S_WR = 46
S_RD = 47
S_DL = 48
S_T0 = 49
S_T1 = 50
S_T2 = 51
S_M0 = 52
S_NS = 60
S_LEFT = 61
S_KI = 62
S_SRD_R = 8
S_SRD_O = 12
S_SRD_B = 16
S_SRD_C = 64
S_NREC = 88
RT = 32768


class Region:
    def __init__(s, typ, g0, ng, lds_off, gstride):
        s.typ, s.g0, s.ng, s.lds_off, s.gstride = typ, g0, ng, lds_off, gstride
        if typ == 'T':
            s.ninstr = ng * 2
        elif typ == 'Nadd':
            W = ng * 32
            s.RS = W if ng % 2 else W + 32
            s.BL = 8 * s.RS // 16 + 8
            s.ninstr = -(-8 * s.BL // 64)
        elif typ == 'Nxor':
            assert ng in (4, 8)
            s.RS = ng * 32
            s.ninstr = ng * 2
        s.DW = -(-s.ninstr // 4)
        s.bytes = s.DW * 4 * 1024


def magic(d, n):
    for sh in range(8, 24):
        m = -(-(1 << sh) // d)
        if m < (1 << 24) and all((x * m) >> sh == x // d for x in range(n)):
            return m, sh
    raise Exception


class Gemm:
    def __init__(s, e, pre, design, S, MT, NT, WM, WN, regions, rstride, outer, orient, nsteps_sgpr=False, nsteps=None):
        s.e, s.pre, s.design, s.S = e, pre, design, S
        s.MT, s.NT, s.WM, s.WN = MT, NT, WM, WN
        s.regions, s.rstride, s.outer, s.orient = regions, rstride, outer, orient
        s.CS = sum(r.bytes for r in regions)
        s.SS = RT + s.CS
        s.nsteps = nsteps
        s.rot = None
        s.pfstub = None
        s.st_off = 0
        s.D = 8 + sum(r.DW for r in regions)
        nacc = MT * NT * 4
        s.nacc = nacc
        v = 0
        s.vR = [0]
        v = 1
        s.vC = {}
        for ri, r in enumerate(regions):
            if r.typ == 'T':
                s.vC[ri] = [v]; v += 1
            elif r.typ == 'Nadd':
                s.vC[ri] = [v]; v += 1
            else:
                n = min(NT, r.ng)
                s.vC[ri] = list(range(v, v + n)); v += n
        s.naddr = v
        v = (v + 3) // 4 * 4
        if outer == 'C':
            s.fR = [[v + (st * MT + m) * 4 for m in range(MT)] for st in range(2)]
            v += 2 * MT * 4
            s.fC = [[v + n * 4 for n in range(NT)]] * 2
            v += NT * 4
        else:
            s.fR = [[v + m * 4 for m in range(MT)]] * 2
            v += MT * 4
            s.fC = [[v + (st * NT + n) * 4 for n in range(NT)] for st in range(2)]
            v += 2 * NT * 4
        s.vfrag0 = (s.naddr + 3) // 4 * 4
        s.vend = v
        if design == 'A':
            s.vL = v
            v += s.D
        else:
            s.vL = 8
        s.vtop = v

    def region_of(s, n):
        if s.WN > 1:
            return 0, n
        for ri, r in enumerate(s.regions):
            if r.g0 <= n < r.g0 + r.ng:
                return ri, n - r.g0
        raise Exception

    def rd_R(s, kk, m):
        d = s.fR[kk][m]
        return [(f"ds_read_b128 v[{d}:{d+3}], v{s.vR[0]} offset:{m*2048+kk*512}", d)]

    def rd_C(s, kk, n):
        d = s.fC[kk][n]
        ri, j = s.region_of(n)
        r = s.regions[ri]
        if r.typ == 'T':
            return [(f"ds_read_b128 v[{d}:{d+3}], v{s.vC[ri][0]} offset:{j*2048+kk*512}", d)]
        if r.typ == 'Nadd':
            o = kk * (32 * r.RS + 512) + j * 32
            return [(f"ds_read_b64_tr_b16 v[{d}:{d+1}], v{s.vC[ri][0]} offset:{o}", d),
                    (f"ds_read_b64_tr_b16 v[{d+2}:{d+3}], v{s.vC[ri][0]} offset:{o+4*r.RS}", d + 2)]
        o = kk * 32 * r.RS
        return [(f"ds_read_b64_tr_b16 v[{d}:{d+1}], v{s.vC[ri][j]} offset:{o}", d),
                (f"ds_read_b64_tr_b16 v[{d+2}:{d+3}], v{s.vC[ri][j]} offset:{o+4*r.RS}", d + 2)]

    def acc(s, m, n):
        return (m * s.NT + n) * 4

    def mfma(s, kk, m, n):
        a = s.acc(m, n)
        r, c = s.fR[kk][m], s.fC[kk][n]
        if s.orient[n] == 'RA':
            x, y = r, c
        else:
            x, y = c, r
        return (f"v_mfma_f32_16x16x32_bf16 a[{a}:{a+3}], v[{x}:{x+3}], v[{y}:{y+3}], a[{a}:{a+3}]", [r, c, c + 2])

    def loader_setup(s, vlane, vt, cset):
        e = s.e
        L = s.vL
        def tparts(stride):
            e(f"v_lshrrev_b32 v{vt}, 2, v{vlane}")
            e(f"v_and_b32 v{vt}, 7, v{vt}")
            e(f"s_mov_b32 s{S_T1}, {stride}")
            e(f"v_mul_lo_u32 v{vt}, v{vt}, s{S_T1}")
            e(f"v_lshrrev_b32 v{vt+1}, 5, v{vlane}")
            e(f"v_lshl_add_u32 v{vt}, v{vt+1}, 6, v{vt}")
            e(f"v_lshrrev_b32 v{vt+1}, 3, v{vlane}")
            e(f"v_and_b32 v{vt+1}, 2, v{vt+1}")
            e(f"v_and_b32 v{vt+2}, 3, v{vlane}")
            e(f"v_xor_b32 v{vt+1}, v{vt+1}, v{vt+2}")
            e(f"v_lshlrev_b32 v{vt+1}, 4, v{vt+1}")
            e(f"v_xor_b32 v{vt+2}, 48, v{vt+1}")
            e(f"v_add_u32 v{vt+1}, v{vt+1}, v{vt}")
            e(f"v_add_u32 v{vt+2}, v{vt+2}, v{vt}")
        tparts(s.rstride)
        e(f"s_lshl_b32 s{S_T0}, s{S_WAVE}, 6")
        e(f"s_add_u32 s{S_T0}, s{S_T0}, s{S_ROW0}")
        e(f"s_mul_i32 s{S_T0}, s{S_T0}, {s.rstride}")
        for j in range(8):
            e(f"s_add_u32 s{S_T1}, s{S_T0}, {j*8*s.rstride - (j&3)*1024}")
            e(f"v_add_u32 v{L+j}, s{S_T1}, v{vt+1+(j&1)}")
        e(f"s_lshl_b32 s{S_M0}, s{S_WAVE}, 13")
        e(f"s_add_u32 s{S_M0+1}, s{S_M0}, 4096")
        s.dma = []
        for j in range(8):
            s.dma.append((L + j, S_SRD_R, S_KR, S_M0 + (j >> 2) if (j & 3) == 0 else None, (j & 3) * 1024))
        vo = L + 8
        mo = S_M0 + 2
        so = S_SRD_C
        s.srds = [S_SRD_R]
        for ri, r in enumerate(s.regions):
            ng4 = -(-r.DW // 4)
            e(f"s_mul_i32 s{mo}, s{S_WAVE}, {r.DW*1024}")
            e(f"s_add_u32 s{mo}, s{mo}, {RT + r.lds_off}")
            for g in range(1, ng4):
                e(f"s_add_u32 s{mo+g}, s{mo}, {4096*g}")
            if r.typ == 'T':
                assert r.DW % 2 == 0
                tparts(r.gstride)
                for j in range(r.DW):
                    cset(ri, j, so)
                    if (j & 3):
                        e(f"s_sub_u32 s{S_T0}, s{S_T0}, {(j&3)*1024}")
                    e(f"v_add_u32 v{vo+j}, s{S_T0}, v{vt+1+(j&1)}")
                    s.dma.append((vo + j, so, S_KC, mo + (j >> 2) if (j & 3) == 0 else None, (j & 3) * 1024))
                    s.srds.append(so)
                    so += 4
            elif r.typ == 'Nadd':
                cset(ri, None, so)
                s.srds.append(so)
                m1, sh1 = magic(r.BL, 4 * r.DW * 64)
                rc = r.RS // 16
                m2, sh2 = magic(rc, r.BL)
                e(f"s_mul_i32 s{S_T1}, s{S_WAVE}, {r.DW*64}")
                for j in range(r.DW):
                    e(f"v_add_u32 v{vt}, s{S_T1}, v{vlane}")
                    if j:
                        e(f"v_add_u32 v{vt}, {64*j}, v{vt}")
                    e(f"v_mul_u32_u24 v{vt+1}, {m1}, v{vt}")
                    e(f"v_lshrrev_b32 v{vt+1}, {sh1}, v{vt+1}")
                    e(f"v_mul_u32_u24 v{vt+2}, {r.BL}, v{vt+1}")
                    e(f"v_sub_u32 v{vt}, v{vt}, v{vt+2}")
                    e(f"v_mul_u32_u24 v{vt+2}, {m2}, v{vt}")
                    e(f"v_lshrrev_b32 v{vt+2}, {sh2}, v{vt+2}")
                    e(f"v_mul_u32_u24 v{vt+3}, {rc}, v{vt+2}")
                    e(f"v_sub_u32 v{vt+3}, v{vt}, v{vt+3}")
                    e(f"v_lshl_add_u32 v{vt+1}, v{vt+1}, 3, v{vt+2}")
                    e(f"v_mul_u32_u24 v{vt+4}, {r.gstride}, v{vt+1}")
                    e(f"v_lshl_add_u32 v{vt+4}, v{vt+3}, 4, v{vt+4}")
                    e(f"v_add_u32 v{vt+4}, s{S_T0}, v{vt+4}")
                    if j & 3:
                        e(f"v_subrev_u32 v{vt+4}, {(j&3)*1024}, v{vt+4}")
                    e(f"v_cmp_gt_u32 vcc, 8, v{vt+2}")
                    e(f"v_mov_b32 v{vt+5}, 0x7ff00000")
                    e("s_nop 0")
                    e(f"v_cndmask_b32 v{vt+4}, v{vt+5}, v{vt+4}, vcc")
                    e(f"v_cmp_gt_u32 vcc, {r.ng*2}, v{vt+3}")
                    e("s_nop 1")
                    e(f"v_cndmask_b32 v{vt+4}, v{vt+5}, v{vt+4}, vcc")
                    e(f"v_cmp_gt_u32 vcc, 64, v{vt+1}")
                    e("s_nop 1")
                    e(f"v_cndmask_b32 v{vo+j}, v{vt+5}, v{vt+4}, vcc")
                    s.dma.append((vo + j, so, S_KN, mo + (j >> 2) if (j & 3) == 0 else None, (j & 3) * 1024))
                so += 4
            else:
                cset(ri, None, so)
                s.srds.append(so)
                if r.ng == 8:
                    assert r.DW == 4
                    e(f"v_lshrrev_b32 v{vt}, 4, v{vlane}")
                    e(f"v_mul_u32_u24 v{vt+1}, {r.gstride}, v{vt}")
                    e(f"v_lshlrev_b32 v{vt}, 5, v{vt}")
                    e(f"v_and_b32 v{vt+2}, 15, v{vlane}")
                    e(f"v_lshlrev_b32 v{vt+2}, 4, v{vt+2}")
                    e(f"v_xor_b32 v{vt+2}, v{vt+2}, v{vt}")
                    e(f"v_xor_b32 v{vt+3}, 128, v{vt+2}")
                    e(f"v_add_u32 v{vt+2}, v{vt+2}, v{vt+1}")
                    e(f"v_add_u32 v{vt+3}, v{vt+3}, v{vt+1}")
                    e(f"s_mul_i32 s{S_T1}, s{S_WAVE}, {16*r.gstride}")
                    e(f"s_add_u32 s{S_T0}, s{S_T0}, s{S_T1}")
                    for j in range(4):
                        e(f"s_add_u32 s{S_T1}, s{S_T0}, {j*4*r.gstride - (j&3)*1024}")
                        e(f"v_add_u32 v{vo+j}, s{S_T1}, v{vt+2+((j>>1)&1)}")
                        s.dma.append((vo + j, so, S_KN, mo if j == 0 else None, j * 1024))
                else:
                    assert r.DW == 2
                    e(f"v_lshrrev_b32 v{vt}, 3, v{vlane}")
                    e(f"v_mul_u32_u24 v{vt+1}, {r.gstride}, v{vt}")
                    e(f"v_lshrrev_b32 v{vt}, 4, v{vlane}")
                    e(f"v_and_b32 v{vt}, 1, v{vt}")
                    e(f"v_lshlrev_b32 v{vt}, 5, v{vt}")
                    e(f"v_and_b32 v{vt+2}, 7, v{vlane}")
                    e(f"v_lshlrev_b32 v{vt+2}, 4, v{vt+2}")
                    e(f"v_xor_b32 v{vt+2}, v{vt+2}, v{vt}")
                    e(f"v_xor_b32 v{vt+3}, 64, v{vt+2}")
                    e(f"v_add_u32 v{vt+2}, v{vt+2}, v{vt+1}")
                    e(f"v_add_u32 v{vt+3}, v{vt+3}, v{vt+1}")
                    e(f"s_mul_i32 s{S_T1}, s{S_WAVE}, {16*r.gstride}")
                    e(f"s_add_u32 s{S_T0}, s{S_T0}, s{S_T1}")
                    for j in range(2):
                        e(f"s_add_u32 s{S_T1}, s{S_T0}, {j*8*r.gstride - j*1024}")
                        e(f"v_add_u32 v{vo+j}, s{S_T1}, v{vt+2+j}")
                        s.dma.append((vo + j, so, S_KN, mo if j == 0 else None, j * 1024))
                so += 4
            vo += r.DW
            mo += ng4
        assert len(s.dma) == s.D
        assert mo <= S_NS and so <= S_NREC

    def dma_groups(s):
        out = []
        for (v, sr, so, m0, io) in s.dma:
            g = []
            if m0 is not None:
                g.append(f"s_add_u32 m0, s{S_WR}, s{m0}")
                g.append("s_nop 0")
            g.append(f"buffer_load_dwordx4 v{v}, s[{sr}:{sr+3}], s{so} offen offset:{io} lds" if io else
                     f"buffer_load_dwordx4 v{v}, s[{sr}:{sr+3}], s{so} offen lds")
            out.append(g)
        return out

    def dma_book(s):
        g = [f"s_add_u32 s{S_KR}, s{S_KR}, 128"]
        if any(r.typ == 'T' for r in s.regions):
            g.append(f"s_add_u32 s{S_KC}, s{S_KC}, 128")
        for r in s.regions:
            if r.typ != 'T':
                g.append(f"s_add_u32 s{S_KN}, s{S_KN}, {64*r.gstride}")
        if s.rot:
            g.append(f"s_add_u32 s{S_KI}, s{S_KI}, 1")
            g.append(f"s_cmp_ge_u32 s{S_KI}, s{S_NS}")
            g.append(f"s_cselect_b32 s{S_KI}, 0, s{S_KI}")
            g.append(f"s_cselect_b32 s{S_T0}, {128*s.nsteps}, 0")
            g.append(f"s_sub_u32 s{S_KR}, s{S_KR}, s{S_T0}")
            if any(r.typ == 'T' for r in s.regions):
                g.append(f"s_sub_u32 s{S_KC}, s{S_KC}, s{S_T0}")
            for r in s.regions:
                if r.typ != 'T':
                    g.append(f"s_mul_i32 s{S_T0}, s{S_KI}, 1")
                    g.append(f"s_cmp_eq_u32 s{S_KI}, 0")
                    g.append(f"s_cselect_b32 s{S_T0}, {64*r.gstride*s.nsteps}, 0")
                    g.append(f"s_sub_u32 s{S_KN}, s{S_KN}, s{S_T0}")
        g.append(f"s_add_u32 s{S_WR}, s{S_WR}, {s.SS}")
        g.append(f"s_cmp_ge_u32 s{S_WR}, {s.SS*s.S}")
        g.append(f"s_cselect_b32 s{S_WR}, 0, s{S_WR}")
        g.append(f"s_sub_u32 s{S_LEFT}, s{S_LEFT}, 1")
        g.append(f"s_cmp_lt_i32 s{S_LEFT}, 1")
        for sr in s.srds:
            g.append(f"s_cselect_b32 s{sr+2}, 0, s{sr+2}")
        return g

    def loader_init(s):
        e = s.e
        e(f"s_mov_b32 s{S_WR}, 0")
        e(f"s_mov_b32 s{S_LEFT}, s{S_NS}")
        if s.rot:
            W, mul = s.rot
            if W == 1:
                e(f"s_and_b32 s{S_KI}, s2, 7")
            elif W == 2:
                e(f"s_lshr_b32 s{S_KI}, s2, 3")
                e(f"s_and_b32 s{S_KI}, s{S_KI}, 3")
                e(f"s_and_b32 s{S_T0}, s2, 1")
                e(f"s_lshl_b32 s{S_T0}, s{S_T0}, 2")
                e(f"s_add_u32 s{S_KI}, s{S_KI}, s{S_T0}")
                e(f"s_and_b32 s{S_T0}, s2, 4")
                e(f"s_lshl_b32 s{S_T0}, s{S_T0}, 1")
                e(f"s_add_u32 s{S_KI}, s{S_KI}, s{S_T0}")
            elif W == 3:
                e(f"s_and_b32 s{S_KI}, s2, 1")
                e(f"s_and_b32 s{S_T0}, s2, 4")
                e(f"s_lshr_b32 s{S_T0}, s{S_T0}, 1")
                e(f"s_add_u32 s{S_KI}, s{S_KI}, s{S_T0}")
            elif W == 4:
                e(f"s_and_b32 s{S_KI}, s2, 7")
                e(f"s_lshl_b32 s{S_KI}, s{S_KI}, 1")
                e(f"s_lshr_b32 s{S_T0}, s2, 3")
                e(f"s_and_b32 s{S_T0}, s{S_T0}, 1")
                e(f"s_add_u32 s{S_KI}, s{S_KI}, s{S_T0}")
            elif W == 5:
                e(f"s_lshr_b32 s{S_KI}, s2, 5")
                e(f"s_and_b32 s{S_T0}, s2, 8")
                e(f"s_add_u32 s{S_KI}, s{S_KI}, s{S_T0}")
            elif W == 6:
                e(f"s_lshr_b32 s{S_KI}, s2, 5")
                e(f"s_and_b32 s{S_T0}, s2, 24")
                e(f"s_add_u32 s{S_KI}, s{S_KI}, s{S_T0}")
            elif W == 7:
                e(f"s_lshr_b32 s{S_KI}, s2, 3")
                e(f"s_and_b32 s{S_KI}, s{S_KI}, 15")
            elif W == 8:
                e(f"s_lshr_b32 s{S_KI}, s2, 5")
            elif W == 9:
                e(f"s_lshr_b32 s{S_KI}, s2, 5")
                e(f"s_and_b32 s{S_KI}, s{S_KI}, 3")
                e(f"s_and_b32 s{S_T0}, s2, 24")
                e(f"s_lshr_b32 s{S_T0}, s{S_T0}, 1")
                e(f"s_add_u32 s{S_KI}, s{S_KI}, s{S_T0}")
            e(f"s_mul_i32 s{S_KI}, s{S_KI}, {mul}")
            e(f"s_cmp_ge_u32 s{S_KI}, s{S_NS}")
            e(f"s_cselect_b32 s{S_T0}, s{S_NS}, 0")
            e(f"s_sub_u32 s{S_KI}, s{S_KI}, s{S_T0}")
            e(f"s_lshl_b32 s{S_T0}, s{S_KI}, 7")
            e(f"s_add_u32 s{S_KR}, s{S_KR}, s{S_T0}")
            e(f"s_add_u32 s{S_KC}, s{S_KC}, s{S_T0}")
            for r in s.regions:
                if r.typ != 'T':
                    e(f"s_mul_i32 s{S_T0}, s{S_KI}, {64*r.gstride}")
                    e(f"s_add_u32 s{S_KN}, s{S_KN}, s{S_T0}")

    def stats_step(s):
        e = s.e
        for kk in range(2):
            for m in range(4):
                e(f"ds_read_b128 v[{40+16*kk+4*m}:{43+16*kk+4*m}], v24 offset:{m*2048+kk*512}")
        for kk in range(2):
            for m in range(4):
                e(f"s_waitcnt lgkmcnt({7-4*kk-m})")
                for x in range(4):
                    r = 40 + 16 * kk + 4 * m + x
                    e(f"v_dot2_f32_bf16 v{28+m}, v{r}, v39, v{28+m}")
                    e(f"v_dot2_f32_bf16 v{32+m}, v{r}, v{r}, v{32+m}")
        t = 40
        lst = []
        for ri, r in enumerate(s.regions):
            for j in range(-(-r.ng // 4)):
                for kk in range(2):
                    if r.typ == 'T':
                        e(f"ds_read_b128 v[{t}:{t+3}], v{25+ri} offset:{4*j*2048+kk*512}")
                    else:
                        o = kk * (32 * r.RS + 512) + 4 * j * 32
                        e(f"ds_read_b64_tr_b16 v[{t}:{t+1}], v{25+ri} offset:{o}")
                        e(f"ds_read_b64_tr_b16 v[{t+2}:{t+3}], v{25+ri} offset:{o+4*r.RS}")
                    lst.append((t, len(lst) // 2))
                    t += 4
        e("s_waitcnt lgkmcnt(0)")
        for (t, a) in lst:
            for x in range(4):
                e(f"v_dot2_f32_bf16 v{36+a}, v{t+x}, v39, v{36+a}")
        sg, _ = s.adv_addr()
        e.ext(sg)
        for a in range(1 + len(s.regions)):
            e(f"v_add_u32 v{24+a}, s{S_DL}, v{24+a}")

    def stats_final(s):
        e = s.e
        regs = list(range(28, 39))
        for r in regs:
            e(f"v_mov_b32 v40, v{r}")
            e("s_nop 1")
            e(f"v_permlane32_swap_b32 v{r}, v40")
            e(f"v_add_f32 v{r}, v{r}, v40")
            e(f"v_mov_b32 v40, v{r}")
            e("s_nop 1")
            e(f"v_permlane16_swap_b32 v{r}, v40")
            e(f"v_add_f32 v{r}, v{r}, v40")
        e("v_and_b32 v2, 15, v1")
        e(f"s_lshl_b32 s{S_T0}, s{S_WAVE}, 8")
        e(f"s_add_u32 s{S_T0}, s{S_T0}, {s.st_off}")
        e(f"v_lshl_add_u32 v3, v2, 2, s{S_T0}")
        for m in range(4):
            a, q = 28 + m, 32 + m
            e(f"v_mul_f32 v{a}, 0x3a800000, v{a}")
            e(f"v_mul_f32 v{q}, 0x3a800000, v{q}")
            e(f"v_fma_f32 v{q}, -v{a}, v{a}, v{q}")
            e(f"v_max_f32 v{q}, 0, v{q}")
            e(f"v_cvt_pk_bf16_f32 v40, v{a}, v{q}")
            e(f"v_lshlrev_b32 v{a}, 16, v40")
            e(f"v_and_b32 v{q}, 0xffff0000, v40")
            e(f"v_add_f32 v{q}, 0x3727c5ac, v{q}")
            e(f"v_cvt_pk_bf16_f32 v40, v{q}, v{q}")
            e(f"v_lshlrev_b32 v{q}, 16, v40")
            e(f"v_sqrt_f32 v{q}, v{q}")
            e("s_nop 0")
            e(f"v_cvt_pk_bf16_f32 v40, v{q}, v{q}")
            e(f"v_lshlrev_b32 v{q}, 16, v40")
            e(f"v_rcp_f32 v41, v{q}")
            e("s_nop 0")
            e(f"v_fma_f32 v42, -v{q}, v41, 1.0")
            e(f"v_fma_f32 v41, v42, v41, v41")
            e(f"v_mul_f32 v{a}, v{a}, v41")
            e(f"ds_write_b32 v3, v41 offset:{64*m}")
            e(f"ds_write_b32 v3, v{a} offset:{1024+64*m}")
        k = 0
        for ri, r in enumerate(s.regions):
            for j in range(-(-r.ng // 4)):
                e(f"s_add_u32 s{S_T0}, s{S_WAVE}, {4*j}")
                e(f"s_cmp_lt_u32 s{S_T0}, {r.ng}")
                e(f"s_cselect_b32 s{S_T0}, s{S_T0}, {12 - r.g0}")
                e(f"s_lshl_b32 s{S_T0}, s{S_T0}, 6")
                e(f"s_add_u32 s{S_T0}, s{S_T0}, {s.st_off + 2048 + 64 * r.g0}")
                e(f"v_lshl_add_u32 v3, v2, 2, s{S_T0}")
                e(f"ds_write_b32 v3, v{36+k}")
                k += 1
        e("s_waitcnt lgkmcnt(0)")
        e("s_barrier")

    def loader_loop(s):
        e, p = s.e, s.pre
        s.loader_init()
        for st in range(s.S):
            for g in s.dma_groups():
                e.ext(g)
            e.ext(s.dma_book())
        if s.st_off:
            s.compute_setup(1, 40, ldst=24)
            for r in range(28, 39):
                e(f"v_mov_b32 v{r}, 0")
            e("v_mov_b32 v39, 0x3f803f80")
            e(f"s_mov_b32 s{S_RD}, 0")
            e(f"s_mov_b32 s{S_NREC}, {s.SS}")
        e(f"s_waitcnt vmcnt({(s.S-1)*s.D})")
        e("s_barrier")
        e(f"s_mov_b32 s{S_CNT}, s{S_NS}")
        e.lab(f"{p}_lloop")
        if s.st_off:
            s.stats_step()
        e(f"s_waitcnt vmcnt({(s.S-2)*s.D})")
        e("s_barrier")
        for g in s.dma_groups():
            e.ext(g)
        e.ext(s.dma_book())
        e(f"s_sub_u32 s{S_CNT}, s{S_CNT}, 1")
        e(f"s_cmp_lg_u32 s{S_CNT}, 0")
        e(f"s_cbranch_scc1 {p}_lloop")
        if s.st_off:
            s.stats_final()
        e("s_endpgm")

    def compute_setup(s, vlane, vt, ldst=None):
        e = s.e
        if s.WN == 1:
            e(f"s_mul_i32 s{S_T0}, s{S_WAVE}, {s.MT*16*128}")
            e(f"s_mov_b32 s{S_T1}, 0")
        else:
            e(f"s_lshr_b32 s{S_T0}, s{S_WAVE}, 1")
            e(f"s_mul_i32 s{S_T0}, s{S_T0}, {s.MT*16*128}")
            e(f"s_and_b32 s{S_T1}, s{S_WAVE}, 1")
        e(f"v_and_b32 v{vt}, 15, v{vlane}")
        e(f"v_lshrrev_b32 v{vt+1}, 4, v{vlane}")
        e(f"v_lshrrev_b32 v{vt+2}, 3, v{vt}")
        e(f"v_lshrrev_b32 v{vt+3}, 2, v{vt}")
        e(f"v_and_b32 v{vt+3}, 1, v{vt+3}")
        e(f"v_xor_b32 v{vt+3}, v{vt+3}, v{vt+2}")
        e(f"v_lshl_add_u32 v{vt+3}, v{vt+3}, 1, v{vt+2}")
        e(f"v_xor_b32 v{vt+3}, v{vt+3}, v{vt+1}")
        e(f"v_lshlrev_b32 v{vt+3}, 4, v{vt+3}")
        e(f"v_lshl_add_u32 v{vt+3}, v{vt+2}, 10, v{vt+3}")
        e(f"v_and_b32 v{vt+2}, 7, v{vt}")
        e(f"v_lshl_add_u32 v{vt+2}, v{vt+2}, 6, v{vt+3}")
        e(f"v_lshrrev_b32 v{vt+4}, 2, v{vlane}")
        e(f"v_and_b32 v{vt+4}, 3, v{vt+4}")
        e(f"v_and_b32 v{vt+5}, 3, v{vlane}")
        tmp = {}
        for ri, r in enumerate(s.regions):
            base = RT + r.lds_off
            if r.typ == 'T':
                e(f"s_mul_i32 s{S_T2}, s{S_T1}, {s.NT*16*128}")
                e(f"s_add_u32 s{S_T2}, s{S_T2}, {base}")
                e(f"v_add_u32 v{vt+6+2*ri}, s{S_T2}, v{vt+2}")
                tmp[ri] = [vt + 6 + 2 * ri]
            elif r.typ == 'Nadd':
                assert s.WN == 1
                d = vt + 6 + 2 * ri
                e(f"v_lshl_add_u32 v{d}, v{vt+1}, 3, v{vt+4}")
                e(f"v_mul_u32_u24 v{d}, {r.RS}, v{d}")
                e(f"v_lshl_add_u32 v{d}, v{vt+1}, 7, v{d}")
                e(f"v_lshl_add_u32 v{d}, v{vt+5}, 3, v{d}")
                e(f"v_add_u32 v{d}, {base}, v{d}")
                tmp[ri] = [d]
            else:
                d = vt + 6 + 2 * ri
                e(f"v_lshl_add_u32 v{d}, v{vt+1}, 3, v{vt+4}")
                e(f"v_mul_u32_u24 v{d}, {r.RS}, v{d}")
                e(f"v_lshl_add_u32 v{d}, v{vt+5}, 3, v{d}")
                e(f"v_add_u32 v{d}, {base}, v{d}")
                e(f"v_and_b32 v{d+1}, 1, v{vt+1}")
                if r.ng == 8:
                    e(f"v_lshl_add_u32 v{d+1}, v{d+1}, 2, v{vt+4}")
                    e(f"s_mul_i32 s{S_T2}, s{S_T1}, {s.NT}")
                    e(f"v_xor_b32 v{d+1}, s{S_T2}, v{d+1}")
                else:
                    e(f"v_lshrrev_b32 v{vt+10}, 1, v{vt+4}")
                    e(f"v_lshl_add_u32 v{d+1}, v{d+1}, 1, v{vt+10}")
                e(f"v_lshl_add_u32 v{d}, v{d+1}, 5, v{d}")
                tmp[ri] = [d]
        if ldst is not None:
            e(f"v_add_u32 v{ldst}, s{S_T0}, v{vt+2}")
            for ri, r in enumerate(s.regions):
                e(f"s_mul_i32 s{S_T2}, s{S_WAVE}, {2048 if r.typ == 'T' else 32}")
                e(f"v_add_u32 v{ldst+1+ri}, s{S_T2}, v{tmp[ri][0]}")
            return
        for ri, r in enumerate(s.regions):
            if r.typ == 'Nxor':
                for j, vv in enumerate(s.vC[ri]):
                    e(f"v_xor_b32 v{vv}, {32*j}, v{tmp[ri][0]}")
            else:
                for vv, t in zip(s.vC[ri], tmp[ri]):
                    e(f"v_mov_b32 v{vv}, v{t}")
        e(f"v_add_u32 v{s.vR[0]}, s{S_T0}, v{vt+2}")
        for a in range(s.nacc):
            e(f"v_accvgpr_write_b32 a{a}, 0")

    def adv_addr(s):
        g = [f"s_add_u32 s{S_RD}, s{S_RD}, {s.SS}",
             f"s_cmp_ge_u32 s{S_RD}, {s.SS*s.S}",
             f"s_cselect_b32 s{S_RD}, 0, s{S_RD}",
             f"s_cselect_b32 s{S_DL}, {-(s.S-1)*s.SS & 0xffffffff}, s{S_NREC}"]
        v = [f"v_add_u32 v{a}, s{S_DL}, v{a}" for a in range(s.naddr)]
        return g, v

    def compute_loop(s, X):
        e, p = s.e, s.pre
        MT, NT = s.MT, s.NT
        if s.outer == 'C':
            NO, NI = NT, MT
            order = [(m, n) for n in range(NT) for m in range(MT)]
        else:
            NO, NI = MT, NT
            order = [(m, n) for m in range(MT) for n in range(NT)]
        NM = MT * NT

        def rd_outer(kk, o):
            return s.rd_C(kk, o) if s.outer == 'C' else s.rd_R(kk, o)

        def rd_inner(kk, i):
            return s.rd_R(kk, i) if s.outer == 'C' else s.rd_C(kk, i)

        seq = [(1, t) for t in range(X, NM)] + [(0, t) for t in range(NM)] + [(1, t) for t in range(X)]
        P1 = NM - X
        NSEQ = len(seq)
        BR = OPT.get('BR', 6)
        sg, vg = s.adv_addr()
        fill = []
        fill.append([0, -10, [(x, None) for x in vg], 'x'])
        first_rd = 0 if len(vg) <= 1 else 1
        for i in range(NI):
            fill.append([first_rd, 0 + i * 0.01, rd_inner(0, i), 'lds'])
        for o in range(NO):
            last = (o + 1) * NI - 1
            fill.append([max(last - X, first_rd), 0.5 + o, rd_outer(0, o), 'lds'])
        for i in range(NI):
            fill.append([P1 - 1, 100 + i * 0.01, rd_inner(1, i), 'lds'])
        for o in range(NO):
            fill.append([P1 + (o + 1) * NI - 1, 100.5 + o, rd_outer(1, o), 'lds'])
        fill.append([P1 + 2, 200, [(x, None) for x in sg[:2]], 'x'])
        fill.append([P1 + 3, 201, [(x, None) for x in sg[2:]], 'x'])
        if s.pfstub:
            fill.append([P1 + 9, 202, [(f"s_cmp_eq_u32 s{S_CNT}, s80", None), (f"s_cbranch_scc1 {p}_pf", None), (f"@{p}_pfret", None)], 'x'])
        dg = []
        if s.design == 'A':
            dg = s.dma_groups()
            tot = NSEQ - 4
            for k, g in enumerate(dg):
                fill.append([int(k * tot / len(dg)) + 1, 50 + k, [(x, None) for x in g], 'dma'])
        body = []
        pend = sorted(fill, key=lambda f: f[1])
        n_dma_part1 = 0
        CAP = OPT.get('CAP', 2)

        def emit_gap(gi, cap):
            nonlocal pend, n_dma_part1
            used = 0
            rest = []
            for f in pend:
                n = len(f[2])
                if f[0] <= gi and (used == 0 or used + n <= cap):
                    for (x, d) in f[2]:
                        body.append(('lds', x, d) if f[3] == 'lds' else ('x', x, None))
                    used += n + (1 if f[3] == 'lds' and OPT.get('LDS1', 1) else 0)
                    if f[3] == 'dma' and gi < P1 - 1:
                        n_dma_part1 += 1
                else:
                    rest.append(f)
            pend = rest

        for gi, (kk, t) in enumerate(seq):
            m, n = order[t]
            x, srcs = s.mfma(kk, m, n)
            body.append(('mfma', x, srcs))
            if gi == P1 - 1:
                body.append(('lab', f"{p}_mid", None))
            if gi == BR - 2:
                body.append(('x', f"s_sub_u32 s{S_CNT}, s{S_CNT}, 1", None))
                body.append(('x', f"s_cmp_lg_u32 s{S_CNT}, 0", None))
                continue
            if gi == BR - 1:
                body.append(('br', None, None))
                continue
            if gi == NSEQ - 1:
                continue
            emit_gap(gi, CAP if gi < NSEQ - 2 else 99)
            if gi == NSEQ - 3 and s.design == 'A':
                assert not any(f[3] == 'dma' for f in pend)
                for x in s.dma_book():
                    body.append(('x', x, None))
        assert not pend, pend
        body.append(('w0', "s_waitcnt lgkmcnt(0)" + (f" vmcnt({(s.S-2)*s.D})" if s.design == 'A' else ""), None))
        body.append(('x', "s_barrier", None))
        issued = 0
        done = 0
        lastw = {}
        outb = None
        for ps in range(2):
            outb = []
            for (k, x, d) in body:
                if k == 'lds':
                    issued += 1
                    lastw[d] = issued
                    outb.append((k, x))
                elif k == 'w0':
                    done = issued
                    outb.append((k, x))
                elif k == 'mfma':
                    need = max([lastw.get(r, 0) for r in d])
                    if need > done:
                        outb.append(('x', f"s_waitcnt lgkmcnt({min(issued-need, 15)})"))
                        done = need
                    outb.append((k, x))
                else:
                    outb.append((k, x))
        e(f"s_mov_b32 s{S_RD}, 0")
        e(f"s_mov_b32 s{S_NREC}, {s.SS}")
        e(f"s_mov_b32 s{S_DL}, {s.SS}")
        if s.design == 'A':
            s.loader_init()
            for st in range(s.S - 1):
                for g in dg:
                    e.ext(g)
                e.ext(s.dma_book())
            for g in dg[:n_dma_part1]:
                e.ext(g)
            e(f"s_waitcnt vmcnt({(s.S-2)*s.D + n_dma_part1})")
        stamp(e, 1)
        e("s_barrier")
        stamp(e, 2)
        for i in range(NI):
            for (x, d) in rd_inner(0, i):
                e(x)
        for o in range(NO):
            for (x, d) in rd_outer(0, o):
                e(x)
        e(f"s_mov_b32 s{S_CNT}, s{S_NS}")
        e("s_waitcnt lgkmcnt(0)")
        e(f"s_branch {p}_mid")
        if s.pfstub:
            e.lab(f"{p}_pf")
            e(f"s_mov_b32 m0, {s.pfstub}")
            e("s_nop 0")
            for q in range(3):
                e(f"buffer_load_dword v3, s[{64+4*q}:{67+4*q}], s81 offen lds")
            e(f"s_branch {p}_pfret")
        e.L.append(".p2align 6")
        bi = [i for i, (k, x) in enumerate(outb) if k == 'br'][0]
        e.lab(f"{p}_top")
        for (k, x) in outb[bi + 1:] + outb[:bi]:
            if k == 'lab':
                e.lab(x)
            elif x.startswith('@'):
                e.lab(x[1:])
            else:
                e(x)
        e(f"s_cbranch_scc1 {p}_top")
        for (kk, t) in seq[BR:P1]:
            m, n = order[t]
            e(s.mfma(kk, m, n)[0])
        e("s_waitcnt lgkmcnt(0)")
        e("s_nop 7")
        e("s_nop 7")
        stamp(e, 3)


WS_ST = 64 * MB


def stamp(e, k):
    if OPT.get('stamp'):
        e(f"s_memtime s[{90+2*k}:{91+2*k}]")
        if k == 0:
            e("s_memrealtime s[34:35]")
        if k == 4:
            e("s_memrealtime s[36:37]")
        e("s_waitcnt lgkmcnt(0)")


def stamp_out(e, kid):
    if OPT.get('stamp'):
        e("s_waitcnt vmcnt(0)")
        stamp(e, 4)
        srd(e, S_SRD_O, 28, 29, 4 * MB, WS_ST + kid * MB)
        e("s_lshl_b32 s38, s2, 2")
        e(f"s_add_u32 s38, s38, s{S_WAVE}")
        e("s_lshl_b32 s38, s38, 5")
        e("v_mov_b32 v0, s38")
        for k in range(5):
            e(f"v_mov_b32 v{2+k}, s{90+2*k}")
        e("v_mov_b32 v7, s34")
        e("v_mov_b32 v8, s36")
        e("s_getreg_b32 s38, hwreg(HW_REG_XCC_ID)")
        e("v_mov_b32 v9, s38")
        e(f"buffer_store_dwordx4 v[2:5], v0, s[{S_SRD_O}:{S_SRD_O+3}], 0 offen")
        e(f"buffer_store_dwordx4 v[6:9], v0, s[{S_SRD_O}:{S_SRD_O+3}], 0 offen offset:16")


def tl(e, k, end, v=60):
    if not OPT.get('tl'):
        return
    lab = f"tl_{k}_{end}_{len(e.L)}"
    e("s_and_b32 s98, s2, 15")
    e("s_cmp_lg_u32 s98, 0")
    e(f"s_cbranch_scc1 {lab}")
    e("s_waitcnt vmcnt(0)")
    e("s_load_dwordx2 s[96:97], s[0:1], 88")
    e("s_memrealtime s[98:99]")
    e("s_waitcnt lgkmcnt(0)")
    e(f"s_add_u32 s96, s96, {512*(3-k)}")
    e("s_addc_u32 s97, s97, 0")
    if not end:
        e("s_not_b32 s98, s98")
    e(f"v_mov_b32 v{v}, s98")
    e(f"v_mov_b32 v{v+1}, {8*k+4*end}")
    e("s_mov_b64 s[100:101], exec")
    e("s_mov_b64 exec, 1")
    e(f"global_atomic_umax v{v+1}, v{v}, s[96:97]")
    e("s_waitcnt vmcnt(0)")
    e("s_mov_b64 exec, s[100:101]")
    e.lab(lab)


def prefetch(e, vtmp, items, lds_dummy):
    e(f"v_mbcnt_lo_u32_b32 v{vtmp}, -1, 0")
    e(f"v_mbcnt_hi_u32_b32 v{vtmp}, -1, v{vtmp}")
    e(f"s_lshl_b32 s{S_T0}, s2, 2")
    e(f"s_add_u32 s{S_T0}, s{S_T0}, s{S_WAVE}")
    e(f"s_mov_b32 m0, {lds_dummy}")
    for (lo, hi, nb) in items:
        per = -(-(nb // 128) // 1024)
        srd(e, 64, lo, hi, nb)
        e(f"s_mul_i32 s{S_T1}, s{S_T0}, {per*128}")
        e(f"v_lshlrev_b32 v{vtmp+1}, 7, v{vtmp}")
        if per < 64:
            e(f"v_cmp_gt_u32 vcc, {per}, v{vtmp}")
            e(f"v_mov_b32 v{vtmp+2}, 0x7ff00000")
            e("s_nop 0")
            e(f"v_cndmask_b32 v{vtmp+1}, v{vtmp+2}, v{vtmp+1}, vcc")
        for hh in range(OPT.get('pfhalves', 1)):
            e(f"buffer_load_dword v{vtmp+1}, s[64:67], s{S_T1} offen offset:{hh*64} lds" + (" nt" if OPT.get('pfnt') else ""))


def lane_wave(e, design):
    stamp(e, 0)
    e("v_lshrrev_b32 v1, 6, v0")
    e("s_nop 0")
    e(f"v_readfirstlane_b32 s{S_T2}, v1")
    e("v_and_b32 v1, 63, v0")
    e("s_nop 2")
    e(f"s_and_b32 s{S_WAVE}, s{S_T2}, 3")


def gen_g1(e):
    name = "g1_kernel"
    design, S, X = OPT['design1'], OPT['S1'], OPT['X']
    khead(e, name)
    e("s_cmp_ge_u32 s2, 256")
    e("s_cbranch_scc1 g1_done")
    tl(e, 1, 0)
    e("s_load_dwordx4 s[20:23], s[0:1], 24")
    e("s_load_dwordx4 s[24:27], s[0:1], 48")
    e("s_load_dwordx2 s[28:29], s[0:1], 96")
    e("s_load_dwordx2 s[32:33], s[0:1], 0")
    e("s_load_dwordx4 s[72:75], s[0:1], 8")
    e("s_load_dwordx2 s[76:77], s[0:1], 64")
    lane_wave(e, design)
    e("s_and_b32 s30, s2, 1")
    e("s_lshl_b32 s30, s30, 2")
    e("s_lshr_b32 s31, s2, 3")
    e(f"s_and_b32 s{S_ROW0}, s31, 3")
    e(f"s_add_u32 s{S_ROW0}, s{S_ROW0}, s30")
    e(f"s_lshl_b32 s{S_ROW0}, s{S_ROW0}, 8")
    e("s_and_b32 s30, s2, 6")
    e("s_lshl_b32 s30, s30, 2")
    e(f"s_lshr_b32 s{S_COL0}, s31, 2")
    e(f"s_add_u32 s{S_COL0}, s{S_COL0}, s30")
    e(f"s_mov_b32 s{S_NS}, 16")
    e(f"s_mov_b32 s{S_KR}, 0")
    e(f"s_mov_b32 s{S_KC}, 0")
    e(f"s_mov_b32 s{S_KN}, 0")
    e("s_waitcnt lgkmcnt(0)")
    FL = OPT.get('fuse_ln')
    if FL:
        srd(e, S_SRD_R, 32, 33, 4 * MB)
    else:
        srd(e, S_SRD_R, 28, 29, 2048 * XS, WS_XN)
    e(f"s_cmp_lt_u32 s{S_COL0}, 11")
    e("s_cbranch_scc1 g1d_start")
    e(f"s_cmp_eq_u32 s{S_COL0}, 11")
    e("s_cbranch_scc1 g1m_start")
    e("s_branch g1f_start")

    variants = {
        'g1d': [Region('T', 0, 11, 0, 2048)],
        'g1m': [Region('T', 0, 7, 0, 2048), Region('Nadd', 7, 4, 16384, 7168)],
        'g1f': [Region('Nadd', 0, 11, 0, 7168)],
    }
    vt_max = 0
    ss_max = 0
    for pre, regs in variants.items():
        orient = []
        for r in regs:
            orient += ['RA' if r.typ == 'T' else 'CA'] * r.ng
        G = Gemm(e, pre, design, S, 4, 11, 4, 1, regs, 2048 if FL else XS, 'C', orient, nsteps=16)
        if FL:
            G.st_off = 122880 + 1024
        if OPT.get('rot1'):
            G.rot = (OPT['rot1'], OPT.get('rotmul1', 1))
        e.lab(f"{pre}_start")

        def cset(ri, j, so, G=G, pre=pre):
            r = G.regions[ri]
            if r.typ == 'T':
                e(f"s_mul_i32 s{S_T0}, s{S_COL0}, 22")
                e(f"s_mul_i32 s{S_T1}, s{S_WAVE}, {r.DW}")
                e(f"s_add_u32 s{S_T1}, s{S_T1}, {j}")
                e(f"s_add_u32 s{S_T0}, s{S_T0}, s{S_T1}")
                e(f"s_cmp_lt_u32 s{S_T0}, 128")
                e(f"s_cselect_b32 s{so}, s20, s22")
                e(f"s_cselect_b32 s{so+1}, s21, s23")
                e(f"s_and_b32 s{S_T0}, s{S_T0}, 127")
                e(f"s_lshl_b32 s{S_T0}, s{S_T0}, 14")
                e(f"s_cmp_lt_u32 s{S_T1}, {r.ninstr}")
                e(f"s_cselect_b32 s{so+2}, {2*MB}, 0")
                e(f"s_mov_b32 s{so+3}, 0x20000")
                e(f"s_cselect_b32 s{S_T0}, s{S_T0}, 4096")
            else:
                srd(e, so, 24, 25, 1024 * 7168)
                e(f"s_mul_i32 s{S_T0}, s{S_COL0}, 352")
                e(f"s_sub_u32 s{S_T0}, s{S_T0}, {(128 - r.g0) * 32}")

        if design == 'B':
            e(f"s_cmp_ge_u32 s{S_T2}, 4")
            e(f"s_cbranch_scc0 {pre}_comp")
            G.loader_setup(1, 2, cset)
            G.loader_loop()
            e.lab(f"{pre}_comp")
        else:
            G.loader_setup(1, G.vfrag0, cset)
        e(f"v_mov_b32 v{G.vfrag0+16}, v1")
        if OPT.get('pf1'):
            prefetch(e, G.vfrag0 + 20, [(20, 21, 2 * MB), (22, 23, 2 * MB), (24, 25, 1024 * 7168)], 122880)
        if OPT.get('pf2') == 1:
            prefetch(e, G.vfrag0 + 20, [(72, 73, 8 * MB), (74, 75, 8 * MB), (76, 77, 3584 * 2048)], 122880)
        if OPT.get('pf2') == 3:
            G.pfstub = 122880
            e("s_mov_b64 s[82:83], s[72:73]")
            e("s_mov_b64 s[84:85], s[74:75]")
            e("s_mov_b64 s[86:87], s[76:77]")
            srd(e, 64, 82, 83, 8 * MB)
            srd(e, 68, 84, 85, 8 * MB)
            srd(e, 72, 86, 87, 3584 * 2048)
            e(f"s_lshl_b32 s81, s2, 2")
            e(f"s_add_u32 s81, s81, s{S_WAVE}")
            e(f"s_lshl_b32 s81, s81, 13")
            e(f"s_mul_i32 s80, s{S_WAVE}, {OPT.get('pfsp', 2)}")
            e(f"s_sub_u32 s80, {OPT.get('pfat', 12)}, s80")
            e("v_lshlrev_b32 v3, 7, v1")
        G.compute_setup(G.vfrag0 + 16, G.vfrag0)
        G.compute_loop(X)
        if OPT.get('pf2') == 2:
            prefetch(e, 8, [(72, 73, 8 * MB), (74, 75, 8 * MB), (76, 77, 3584 * 2048)], 122880)
        g1_epilogue(e, G, pre)
        stamp_out(e, 0)
        tl(e, 1, 1)
        e("s_endpgm")
        vt_max = max(vt_max, G.vtop)
        ss_max = max(ss_max, G.SS)
    e.lab("g1_done")
    e("s_endpgm")
    acc0 = (vt_max + 3) // 4 * 4
    kdesc(e, name, acc0 + 176, acc0)
    return ss_max * S + 1024 + 3072


def f2u(f):
    import struct
    return struct.unpack("<I", struct.pack("<f", f))[0]


def g1_epilogue(e, G, pre):
    FL = G.st_off
    if FL:
        e("s_barrier")
    e("v_mbcnt_lo_u32_b32 v1, -1, 0")
    e("v_mbcnt_hi_u32_b32 v1, -1, v1")
    e("v_and_b32 v2, 15, v1")
    e("v_lshrrev_b32 v3, 4, v1")
    e("v_and_b32 v4, 1, v3")
    e("v_lshlrev_b32 v4, 4, v4")
    e("v_lshrrev_b32 v5, 1, v3")
    e("v_lshl_add_u32 v4, v5, 3, v4")
    e(f"s_lshl_b32 s{S_T0}, s{S_WAVE}, 6")
    e(f"s_add_u32 s{S_T0}, s{S_T0}, s{S_ROW0}")
    T = 16
    for r in G.regions:
        if r.typ == 'T':
            srd(e, S_SRD_O, 28, 29, 2048 * ATS, WS_AT)
            if FL:
                e(f"s_lshl_b32 s{S_T1}, s{S_WAVE}, 8")
                e(f"s_add_u32 s{S_T1}, s{S_T1}, {FL}")
                e(f"v_lshl_add_u32 v7, v3, 4, s{S_T1}")
                for m in range(4):
                    e(f"ds_read_b128 v[{44+4*m}:{47+4*m}], v7 offset:{64*m}")
                    e(f"ds_read_b128 v[{60+4*m}:{63+4*m}], v7 offset:{1024+64*m}")
                e(f"v_lshlrev_b32 v7, 2, v2")
                e(f"v_add_u32 v7, {FL}, v7")
                for j in range(r.ng):
                    e(f"ds_read_b32 v{32+j}, v7 offset:{2048 + 64*(r.g0+j)}")
            e(f"s_mul_i32 s{S_T1}, s{S_COL0}, 176")
            e(f"v_add_u32 v6, s{S_T1}, v2")
            e(f"s_mov_b32 s{S_T2}, {ATS}")
            e(f"v_mul_lo_u32 v6, v6, s{S_T2}")
            e(f"v_add_u32 v7, s{S_T0}, v4")
            e("v_lshl_add_u32 v6, v7, 1, v6")
            e(f"s_mul_i32 s{S_T1}, s{S_COL0}, 11")
            e("s_waitcnt lgkmcnt(0)")
            for j in range(r.ng):
                n = r.g0 + j
                e(f"s_add_u32 s{S_T2}, s{S_T1}, {n}")
                e(f"s_cmp_lt_u32 s{S_T2}, 64")
                e(f"s_cselect_b32 s{S_DL}, 0, 0x80008000")
                e(f"s_mov_b32 s{S_T2}, {n*16*ATS}")
                for mp in range(2):
                    t = 8 + ((j * 2 + mp) % 2) * 12
                    for q in range(2):
                        a = G.acc(2 * mp + q, n)
                        for x in range(4):
                            e(f"v_accvgpr_read_b32 v{t+4+q*4+x}, a{a+x}")
                    if FL:
                        for q in range(2):
                            m = 2 * mp + q
                            for h in range(2):
                                d = t + 4 + q * 4 + 2 * h
                                e(f"v_pk_mul_f32 v[{d}:{d+1}], v[{d}:{d+1}], v[{44+4*m+2*h}:{45+4*m+2*h}]")
                        for q in range(2):
                            m = 2 * mp + q
                            for h in range(2):
                                d = t + 4 + q * 4 + 2 * h
                                c = 32 + j
                                ce = c & ~1
                                sel = "op_sel:[0,1,0] op_sel_hi:[1,1,1]" if c & 1 else "op_sel_hi:[1,0,1]"
                                e(f"v_pk_fma_f32 v[{d}:{d+1}], v[{60+4*m+2*h}:{61+4*m+2*h}], v[{ce}:{ce+1}], v[{d}:{d+1}] {sel} neg_lo:[1,0,0] neg_hi:[1,0,0]")
                    for q in range(2):
                        e(f"v_cvt_pk_bf16_f32 v{t+2*q}, v{t+4+q*4}, v{t+5+q*4}")
                        e(f"v_cvt_pk_bf16_f32 v{t+2*q+1}, v{t+6+q*4}, v{t+7+q*4}")
                    for x in range(4):
                        e(f"v_xor_b32 v{t+x}, s{S_DL}, v{t+x}")
                    e("s_nop 1")
                    e(f"v_permlane16_swap_b32 v{t}, v{t+2}")
                    e(f"v_permlane16_swap_b32 v{t+1}, v{t+3}")
                    e(f"buffer_store_dwordx4 v[{t}:{t+3}], v6, s[{S_SRD_O}:{S_SRD_O+3}], s{S_T2} offen offset:{mp*64}")
        else:
            srd(e, S_SRD_O, 28, 29, 2048 * HS, WS_H)
            srd(e, S_SRD_B, 26, 27, 7168)
            e(f"s_mul_i32 s{S_T1}, s{S_COL0}, 352")
            e(f"s_sub_u32 s{S_T1}, s{S_T1}, {(128 - r.g0) * 32}")
            e("v_lshlrev_b32 v7, 3, v3")
            e(f"v_add_u32 v7, s{S_T1}, v7")
            BB = 52
            for j in range(r.ng):
                e(f"buffer_load_dwordx2 v[{BB+2*j}:{BB+2*j+1}], v7, s[{S_SRD_B}:{S_SRD_B+3}], 0 offen offset:{32*j}")
            if FL:
                e(f"s_lshl_b32 s{S_T2}, s{S_WAVE}, 8")
                e(f"s_add_u32 s{S_T2}, s{S_T2}, {FL}")
                e(f"v_lshl_add_u32 v7, v2, 2, s{S_T2}")
                for m in range(4):
                    e(f"ds_read_b32 v{44+2*m}, v7 offset:{64*m}")
                    e(f"ds_read_b32 v{45+2*m}, v7 offset:{1024+64*m}")
                e("v_lshlrev_b32 v9, 4, v3")
                e(f"v_add_u32 v9, {FL}, v9")
            e(f"v_add_u32 v6, s{S_T0}, v2")
            e(f"s_mov_b32 s{S_T2}, {HS}")
            e(f"v_mul_lo_u32 v6, v6, s{S_T2}")
            e(f"v_add_u32 v6, s{S_T1}, v6")
            e("v_lshl_add_u32 v8, v3, 3, v6")
            e("v_lshl_add_u32 v6, v4, 1, v6")
            c1 = -2.0 * math.log2(math.e) * math.sqrt(2.0 / math.pi)
            c2 = c1 * 0.044715
            e(f"v_mov_b32 v10, {f2u(c1):#x}")
            e(f"v_mov_b32 v11, {f2u(c1):#x}")
            e(f"v_mov_b32 v12, {f2u(c2):#x}")
            e(f"v_mov_b32 v13, {f2u(c2):#x}")
            e("v_mov_b32 v14, 1.0")
            e("v_mov_b32 v15, 1.0")
            e("s_waitcnt vmcnt(0)")
            j = 0
            while j < r.ng:
                npair = 2 if j + 1 < r.ng else 1
                for q in range(npair):
                    b = BB + 2 * (j + q)
                    e(f"v_lshlrev_b32 v{32+4*q}, 16, v{b}")
                    e(f"v_and_b32 v{33+4*q}, 0xffff0000, v{b}")
                    e(f"v_lshlrev_b32 v{34+4*q}, 16, v{b+1}")
                    e(f"v_and_b32 v{35+4*q}, 0xffff0000, v{b+1}")
                if FL:
                    csr = [76, BB + 2 * j if npair == 2 else 76]
                    e(f"ds_read_b128 v[76:79], v9 offset:{2048 + 64*(r.g0+j)}")
                    if npair == 2:
                        e(f"ds_read_b128 v[{csr[1]}:{csr[1]+3}], v9 offset:{2048 + 64*(r.g0+j+1)}")
                    e("s_waitcnt lgkmcnt(0)")
                for m in range(4):
                    t = 16
                    for q in range(npair):
                        a = G.acc(m, r.g0 + j + q)
                        for x in range(4):
                            e(f"v_accvgpr_read_b32 v{t+4*q+x}, a{a+x}")
                    np_ = 2 * npair
                    if FL:
                        st = 44 + 2 * m
                        for h in range(np_):
                            c = csr[h >> 1] + 2 * (h & 1)
                            e(f"v_pk_fma_f32 v[{t+8+2*h}:{t+9+2*h}], v[{c}:{c+1}], v[{st}:{st+1}], v[{32+2*h}:{33+2*h}] op_sel:[0,1,0] op_sel_hi:[1,1,1] neg_lo:[1,0,0] neg_hi:[1,0,0]")
                        for h in range(np_):
                            e(f"v_pk_fma_f32 v[{t+2*h}:{t+2*h+1}], v[{t+2*h}:{t+2*h+1}], v[{st}:{st+1}], v[{t+8+2*h}:{t+9+2*h}] op_sel_hi:[1,0,1]")
                    else:
                        for h in range(np_):
                            e(f"v_pk_add_f32 v[{t+2*h}:{t+2*h+1}], v[{t+2*h}:{t+2*h+1}], v[{32+2*h}:{33+2*h}]")
                    for h in range(np_):
                        e(f"v_pk_mul_f32 v[{t+8+2*h}:{t+9+2*h}], v[{t+2*h}:{t+2*h+1}], v[{t+2*h}:{t+2*h+1}]")
                    for h in range(np_):
                        e(f"v_pk_fma_f32 v[{t+8+2*h}:{t+9+2*h}], v[{t+8+2*h}:{t+9+2*h}], v[12:13], v[10:11]")
                    for h in range(np_):
                        e(f"v_pk_mul_f32 v[{t+8+2*h}:{t+9+2*h}], v[{t+8+2*h}:{t+9+2*h}], v[{t+2*h}:{t+2*h+1}]")
                    for x in range(2 * np_):
                        e(f"v_exp_f32 v{t+8+x}, v{t+8+x}")
                    for h in range(np_):
                        e(f"v_pk_add_f32 v[{t+8+2*h}:{t+9+2*h}], v[{t+8+2*h}:{t+9+2*h}], v[14:15]")
                    for x in range(2 * np_):
                        e(f"v_rcp_f32 v{t+8+x}, v{t+8+x}")
                    for h in range(np_):
                        e(f"v_pk_mul_f32 v[{t+2*h}:{t+2*h+1}], v[{t+2*h}:{t+2*h+1}], v[{t+8+2*h}:{t+9+2*h}]")
                    o = 40
                    for h in range(np_):
                        e(f"v_cvt_pk_bf16_f32 v{o+h}, v{t+2*h}, v{t+2*h+1}")
                    e(f"s_mov_b32 s{S_T2}, {m*16*HS}")
                    if npair == 2:
                        e("s_nop 0")
                        e(f"v_permlane16_swap_b32 v{o}, v{o+2}")
                        e(f"v_permlane16_swap_b32 v{o+1}, v{o+3}")
                        e(f"buffer_store_dwordx4 v[{o}:{o+3}], v6, s[{S_SRD_O}:{S_SRD_O+3}], s{S_T2} offen offset:{j*32}")
                    else:
                        e(f"buffer_store_dwordx2 v[{o}:{o+1}], v8, s[{S_SRD_O}:{S_SRD_O+3}], s{S_T2} offen offset:{j*32}")
                j += npair


def gen_g2(e):
    name = "g2_kernel"
    design, S, X = OPT['design2'], OPT['S2'], OPT['X']
    khead(e, name)
    e("s_cmp_ge_u32 s2, 256")
    e("s_cbranch_scc1 g2_done")
    tl(e, 2, 0)
    e("s_load_dwordx4 s[20:23], s[0:1], 8")
    e("s_load_dwordx2 s[24:25], s[0:1], 64")
    e("s_load_dwordx2 s[28:29], s[0:1], 96")
    lane_wave(e, design)
    e("s_and_b32 s30, s2, 3")
    e("s_lshr_b32 s31, s2, 2")
    e("s_and_b32 s31, s31, 1")
    e("s_lshr_b32 s32, s2, 3")
    e(f"s_and_b32 s{S_ROW0}, s32, 3")
    e(f"s_lshl_b32 s31, s31, 2")
    e(f"s_add_u32 s{S_ROW0}, s{S_ROW0}, s31")
    e(f"s_lshl_b32 s{S_ROW0}, s{S_ROW0}, 8")
    e(f"s_lshr_b32 s{S_COL0}, s32, 2")
    e(f"s_lshl_b32 s{S_COL0}, s{S_COL0}, 7")
    e(f"s_mov_b32 s{S_KC}, 0")
    e("s_waitcnt lgkmcnt(0)")
    e("s_cmp_ge_u32 s30, 2")
    e("s_cbranch_scc1 g2o_start")
    variants = {
        'g2y': ([Region('T', 0, 8, 0, ATS)], 4096),
        'g2o': ([Region('Nxor', 0, 8, 0, 2048)], HS),
    }
    vt_max = 0
    for pre, (regs, rstride) in variants.items():
        G = Gemm(e, pre, design, S, 8, 4, 2, 2, regs, rstride, 'R', ['CA'] * 4, nsteps=32 if pre == 'g2y' else 28)
        if OPT.get('rot2') and (pre == 'g2y' or OPT.get('rot2o')):
            G.rot = (OPT['rot2'], OPT.get('rotmul2', 1))
        e.lab(f"{pre}_start")
        if pre == 'g2y':
            e(f"s_mov_b32 s{S_NS}, 32")
            e(f"s_mov_b32 s{S_KR}, 0")
            e("s_cmp_eq_u32 s30, 0")
            e(f"s_cselect_b32 s{S_SRD_R}, s20, s22")
            e(f"s_cselect_b32 s{S_SRD_R+1}, s21, s23")
            e(f"s_mov_b32 s{S_SRD_R+2}, {8*MB}")
            e(f"s_mov_b32 s{S_SRD_R+3}, 0x20000")
        else:
            e(f"s_mov_b32 s{S_NS}, 28")
            e("s_and_b32 s33, s30, 1")
            e(f"s_mul_i32 s{S_KR}, s33, {1792*2}")
            e(f"s_mul_i32 s{S_KN}, s33, {1792*2048}")
            srd(e, S_SRD_R, 28, 29, 2048 * HS, WS_H)

        def cset(ri, j, so, G=G, pre=pre):
            r = G.regions[ri]
            if r.typ == 'T':
                srd(e, so, 28, 29, 2048 * ATS, WS_AT)
                e(f"s_lshl_b32 s{S_T0}, s30, 10")
                e(f"s_add_u32 s{S_T0}, s{S_T0}, s{S_COL0}")
                e(f"s_lshl_b32 s{S_T1}, s{S_WAVE}, 5")
                e(f"s_add_u32 s{S_T0}, s{S_T0}, s{S_T1}")
                e(f"s_add_u32 s{S_T0}, s{S_T0}, {8*j}")
                e(f"s_mul_i32 s{S_T0}, s{S_T0}, {ATS}")
            else:
                srd(e, so, 24, 25, 3584 * 2048)
                e(f"s_lshl_b32 s{S_T0}, s{S_COL0}, 1")

        if design == 'B':
            e(f"s_cmp_ge_u32 s{S_T2}, 4")
            e(f"s_cbranch_scc0 {pre}_comp")
            G.loader_setup(1, 2, cset)
            G.loader_loop()
            e.lab(f"{pre}_comp")
        else:
            G.loader_setup(1, G.vfrag0, cset)
        e(f"v_mov_b32 v{G.vfrag0+16}, v1")
        G.compute_setup(G.vfrag0 + 16, G.vfrag0)
        G.compute_loop(X)
        e("v_mbcnt_lo_u32_b32 v1, -1, 0")
        e("v_mbcnt_hi_u32_b32 v1, -1, v1")
        e("v_and_b32 v2, 15, v1")
        e("v_lshrrev_b32 v3, 4, v1")
        e(f"s_lshr_b32 s{S_T0}, s{S_WAVE}, 1")
        e(f"s_lshl_b32 s{S_T0}, s{S_T0}, 7")
        e(f"s_add_u32 s{S_T0}, s{S_T0}, s{S_ROW0}")
        e(f"s_and_b32 s{S_T1}, s{S_WAVE}, 1")
        e(f"s_lshl_b32 s{S_T1}, s{S_T1}, 6")
        e(f"s_add_u32 s{S_T1}, s{S_T1}, s{S_COL0}")
        e(f"v_add_u32 v6, s{S_T0}, v2")
        if pre == 'g2y':
            srd(e, S_SRD_O, 28, 29, 8 * MB, WS_P0)
            e("v_and_b32 v4, 1, v3")
            e("v_lshlrev_b32 v4, 4, v4")
            e("v_lshrrev_b32 v5, 1, v3")
            e("v_lshl_add_u32 v4, v5, 3, v4")
            e(f"v_add_u32 v4, s{S_T1}, v4")
            e("v_lshlrev_b32 v6, 11, v6")
            e("v_lshl_add_u32 v6, v4, 1, v6")
            e("s_lshl_b32 s33, s30, 22")
            for m in range(8):
                e(f"s_add_u32 s{S_T2}, s33, {m*16*2048}")
                for np_ in range(2):
                    t = 16 + np_ * 12
                    for q in range(2):
                        a = G.acc(m, 2 * np_ + q)
                        for x in range(4):
                            e(f"v_accvgpr_read_b32 v{t+4+q*4+x}, a{a+x}")
                    for q in range(2):
                        e(f"v_cvt_pk_bf16_f32 v{t+2*q}, v{t+4+q*4}, v{t+5+q*4}")
                        e(f"v_cvt_pk_bf16_f32 v{t+2*q+1}, v{t+6+q*4}, v{t+7+q*4}")
                    e("s_nop 1")
                    e(f"v_permlane16_swap_b32 v{t}, v{t+2}")
                    e(f"v_permlane16_swap_b32 v{t+1}, v{t+3}")
                    e(f"buffer_store_dwordx4 v[{t}:{t+3}], v6, s[{S_SRD_O}:{S_SRD_O+3}], s{S_T2} offen offset:{np_*64}")
        else:
            srd(e, S_SRD_O, 28, 29, 16 * MB, WS_P2)
            e(f"v_lshl_add_u32 v4, v3, 2, s{S_T1}")
            e("v_lshlrev_b32 v6, 12, v6")
            e("v_lshl_add_u32 v6, v4, 2, v6")
            e("s_lshl_b32 s33, s33, 23")
            for m in range(8):
                e(f"s_add_u32 s{S_T2}, s33, {m*16*4096}")
                for n in range(4):
                    a = G.acc(m, n)
                    e(f"buffer_store_dwordx4 a[{a}:{a+3}], v6, s[{S_SRD_O}:{S_SRD_O+3}], s{S_T2} offen offset:{n*64}")
        stamp_out(e, 1)
        tl(e, 2, 1)
        e("s_endpgm")
        vt_max = max(vt_max, G.vtop)
    e.lab("g2_done")
    e("s_endpgm")
    acc0 = (vt_max + 3) // 4 * 4
    kdesc(e, name, acc0 + 128, acc0)
    return G.SS * S


def main():
    out = sys.argv[1]
    for a in sys.argv[2:]:
        k, v = a.split("=")
        OPT[k] = int(v) if v.lstrip('-').isdigit() else v
    e = E()
    if not OPT.get('fuse_ln'):
        gen_ln(e)
    l1 = gen_g1(e)
    l2 = gen_g2(e)
    gen_fin(e)
    e.lab("text_end")
    e("s_endpgm")
    hdr = open("cdna_kernels/%s.s.ref" % KN).read().split("; Override launch")[0]
    b1 = 512 if OPT['design1'] == 'B' else 256
    b2 = 512 if OPT['design2'] == 'B' else 256
    if not OPT.get('fuse_ln'):
        hdr += "; @launch kernel=ln_kernel grid=(512,1,1) block=(256,1,1) lds=0\n"
    hdr += f"; @launch kernel=g1_kernel grid=(256,1,1) block=({b1},1,1) lds={l1}\n"
    hdr += f"; @launch kernel=g2_kernel grid=(256,1,1) block=({b2},1,1) lds={l2}\n"
    hdr += "; @launch kernel=fin_kernel grid=(1024,1,1) block=(256,1,1) lds=0\n"
    hdr += '.amdgcn_target "amdgcn-amd-amdhsa--gfx950"\n.text\n'
    open(out, "w").write(hdr + "\n".join(e.L) + "\n")


if __name__ == "__main__":
    main()
```

```python
import sys, math

KN = "recurrent_scan__spectral_fnet__dense_activation_gelu__prompt"

MB = 1 << 20
WS_XN = 0
WS_AT = 5 * MB
WS_H = 14 * MB
XS, ATS, HS = 2176, 4224, 7296
WS_P0 = 32 * MB
WS_P1 = 36 * MB
WS_P2 = 40 * MB
WS_P3 = 48 * MB

OPT = dict(design1='B', design2='B', S1=2, S2=3, X=8)


class E:
    def __init__(s):
        s.L = []

    def __call__(s, x):
        s.L.append("    " + x)

    def lab(s, x):
        s.L.append(x + ":")

    def c(s, x):
        s.L.append("    ; " + x)

    def ext(s, lst):
        for x in lst:
            s(x)


def srd(e, d, lo, hi, nbytes, add=0):
    if add:
        e(f"s_add_u32 s{d}, s{lo}, {add}")
        e(f"s_addc_u32 s{d+1}, s{hi}, 0")
    else:
        e(f"s_mov_b32 s{d}, s{lo}")
        e(f"s_mov_b32 s{d+1}, s{hi}")
    e(f"s_mov_b32 s{d+2}, {nbytes}")
    e(f"s_mov_b32 s{d+3}, 0x20000")


def kdesc(e, name, vgpr, accoff, sgpr=102):
    e.L.append('.section .rodata,"a"')
    e.L.append(".p2align 6")
    e.L.append(f".amdhsa_kernel {name}")
    e.L.append(f"  .amdhsa_next_free_vgpr {vgpr}")
    e.L.append(f"  .amdhsa_next_free_sgpr {sgpr}")
    e.L.append(f"  .amdhsa_accum_offset {accoff}")
    e.L.append("  .amdhsa_group_segment_fixed_size 0")
    e.L.append("  .amdhsa_kernarg_size 104")
    e.L.append("  .amdhsa_user_sgpr_count 2")
    e.L.append("  .amdhsa_user_sgpr_kernarg_segment_ptr 1")
    e.L.append("  .amdhsa_system_sgpr_workgroup_id_x 1")
    e.L.append(".end_amdhsa_kernel")
    e.L.append(".text")


def khead(e, name):
    e.L.append(f".globl {name}")
    e.L.append(".p2align 8")
    e.L.append(f".type {name},@function")
    e.lab(name)


def gen_ln(e):
    name = "ln_kernel"
    khead(e, name)
    e("s_cmp_ge_u32 s2, 512")
    e("s_cbranch_scc1 ln_done")
    tl(e, 0, 0)
    e("s_load_dwordx2 s[4:5], s[0:1], 0")
    e("s_load_dwordx2 s[6:7], s[0:1], 96")
    e("v_lshrrev_b32 v1, 6, v0")
    e("v_and_b32 v2, 63, v0")
    e("s_lshl_b32 s3, s2, 2")
    e("v_add_u32 v1, s3, v1")
    e(f"s_mov_b32 s16, {XS}")
    e("v_mul_lo_u32 v50, v1, s16")
    e("v_lshl_add_u32 v50, v2, 4, v50")
    e("v_lshlrev_b32 v1, 11, v1")
    e("v_lshl_add_u32 v1, v2, 4, v1")
    e("s_waitcnt lgkmcnt(0)")
    srd(e, 8, 4, 5, 4 * MB)
    srd(e, 12, 6, 7, 2048 * XS, WS_XN)
    e("buffer_load_dwordx4 v[4:7], v1, s[8:11], 0 offen")
    e("buffer_load_dwordx4 v[8:11], v1, s[8:11], 0 offen offset:1024")
    npf = 0
    if OPT.get('pfln'):
        e("s_load_dwordx8 s[36:43], s[0:1], 8")
        e("s_load_dwordx2 s[44:45], s[0:1], 48")
        e("s_load_dwordx2 s[46:47], s[0:1], 64")
        e("v_lshrrev_b32 v70, 6, v0")
        e("v_add_u32 v70, s3, v70")
        e("v_lshlrev_b32 v71, 7, v2")
        e("s_waitcnt lgkmcnt(0)")
        items = [(40, 2 * MB), (42, 2 * MB), (44, 1024 * 7168)]
        if OPT['pfln'] >= 2:
            items += [(36, 8 * MB), (38, 8 * MB), (46, 3584 * 2048)]
        for k, (lo, nb) in enumerate(items):
            per = nb // 128 // 2048
            srd(e, 48, lo, lo + 1, nb)
            e(f"v_mul_u32_u24 v72, {per*128}, v70")
            e("v_add_u32 v72, v72, v71")
            e(f"v_cmp_gt_u32 vcc, {per}, v2")
            e("v_mov_b32 v73, 0x7ff00000")
            e("s_nop 0")
            e("v_cndmask_b32 v72, v73, v72, vcc")
            e(f"buffer_load_dword v{74+k}, v72, s[48:51], 0 offen")
            npf += 1
    if OPT.get('pfcode'):
        e("s_getpc_b64 s[52:53]")
        e.lab("ln_pc")
        e("s_lshr_b32 s54, s2, 3")
        e("s_lshl_b32 s54, s54, 8")
        e("v_add_u32 v72, s54, v0")
        e("v_lshlrev_b32 v72, 7, v72")
        e("v_min_u32 v72, text_end-ln_pc-4, v72")
        e("v_and_b32 v72, 0xfffffffc, v72")
        e("global_load_dword v69, v72, s[52:53]")
        npf += 1
    e(f"s_waitcnt vmcnt({npf})")
    for i in range(8):
        e(f"v_lshlrev_b32 v{16+2*i}, 16, v{4+i}")
        e(f"v_and_b32 v{17+2*i}, 0xffff0000, v{4+i}")

    def tree(dst, src):
        for i in range(8):
            e(f"v_add_f32 v{40+i}, v{src+2*i}, v{src+2*i+1}")
        for i in range(4):
            e(f"v_add_f32 v{40+i}, v{40+i}, v{44+i}")
        e("v_add_f32 v40, v40, v42")
        e("v_add_f32 v41, v41, v43")
        e(f"v_add_f32 v{dst}, v40, v41")

    def wred(v, sdst):
        for sh in (1, 2, 4, 8):
            e("s_nop 1")
            e(f"v_add_f32_dpp v{v}, v{v}, v{v} row_ror:{sh} row_mask:0xf bank_mask:0xf")
        e("s_nop 1")
        e(f"v_readlane_b32 s20, v{v}, 0")
        e(f"v_readlane_b32 s21, v{v}, 16")
        e(f"v_readlane_b32 s22, v{v}, 32")
        e(f"v_readlane_b32 s23, v{v}, 48")
        e("s_nop 1")
        e(f"v_mov_b32 v{v}, s20")
        e(f"v_add_f32 v{v}, s21, v{v}")
        e(f"v_mov_b32 v48, s22")
        e(f"v_add_f32 v48, s23, v48")
        e(f"v_add_f32 v{v}, v{v}, v48")

    tree(3, 16)
    wred(3, 24)
    e("v_mul_f32 v3, 0x3a800000, v3")
    for i in range(16):
        e(f"v_sub_f32 v{52+i}, v{16+i}, v3")
    for i in range(16):
        e(f"v_mul_f32 v{52+i}, v{52+i}, v{52+i}")
    tree(12, 52)
    wred(12, 25)
    e("v_mul_f32 v12, 0x3a800000, v12")
    e("v_cvt_pk_bf16_f32 v13, v3, v12")
    e("v_lshlrev_b32 v3, 16, v13")
    e("v_and_b32 v12, 0xffff0000, v13")
    e("v_add_f32 v12, 0x3727c5ac, v12")
    e("v_cvt_pk_bf16_f32 v13, v12, v12")
    e("v_lshlrev_b32 v12, 16, v13")
    e("v_sqrt_f32 v12, v12")
    e("s_nop 0")
    e("v_cvt_pk_bf16_f32 v13, v12, v12")
    e("v_lshlrev_b32 v12, 16, v13")
    e("v_rcp_f32 v14, v12")
    for i in range(8):
        e(f"v_sub_f32 v{16+2*i}, v{16+2*i}, v3")
        e(f"v_sub_f32 v{17+2*i}, v{17+2*i}, v3")
        e(f"v_cvt_pk_bf16_f32 v{4+i}, v{16+2*i}, v{17+2*i}")
        e(f"v_lshlrev_b32 v{16+2*i}, 16, v{4+i}")
        e(f"v_and_b32 v{17+2*i}, 0xffff0000, v{4+i}")
    for i in range(16):
        e(f"v_mul_f32 v{52+i}, v{16+i}, v14")
        e(f"v_fma_f32 v{16+i}, -v{52+i}, v12, v{16+i}")
        e(f"v_fma_f32 v{52+i}, v{16+i}, v14, v{52+i}")
    for i in range(8):
        e(f"v_cvt_pk_bf16_f32 v{4+i}, v{52+2*i}, v{53+2*i}")
    e("buffer_store_dwordx4 v[4:7], v50, s[12:15], 0 offen")
    e("buffer_store_dwordx4 v[8:11], v50, s[12:15], 0 offen offset:1024")
    tl(e, 0, 1)
    e.lab("ln_done")
    e("s_endpgm")
    kdesc(e, name, 80, 80, 102)


def gen_fin(e):
    name = "fin_kernel"
    khead(e, name)
    e("s_cmp_ge_u32 s2, 1024")
    e("s_cbranch_scc1 fin_done")
    tl(e, 3, 0, 50)
    e("s_load_dwordx2 s[4:5], s[0:1], 0")
    e("s_load_dwordx4 s[24:27], s[0:1], 72")
    e("s_load_dwordx2 s[6:7], s[0:1], 96")
    e("s_lshl_b32 s3, s2, 8")
    e("v_add_u32 v1, s3, v0")
    e("v_lshlrev_b32 v2, 4, v1")
    e("v_lshlrev_b32 v3, 5, v1")
    e("v_and_b32 v4, 0x7ff, v2")
    e("s_mov_b32 s28, 0xbfb8aa3b")
    e("s_waitcnt lgkmcnt(0)")
    srd(e, 8, 4, 5, 4 * MB)
    srd(e, 12, 6, 7, 8 * MB, WS_P0)
    srd(e, 16, 6, 7, 16 * MB, WS_P2)
    srd(e, 20, 24, 25, 2048)
    srd(e, 32, 26, 27, 4 * MB)
    e(f"s_mov_b32 s29, {4*MB}")
    e(f"s_mov_b32 s30, {8*MB}")
    e("buffer_load_dwordx4 v[8:11], v2, s[12:15], 0 offen")
    e("buffer_load_dwordx4 v[12:15], v2, s[12:15], s29 offen")
    e("buffer_load_dwordx4 v[16:19], v3, s[16:19], 0 offen")
    e("buffer_load_dwordx4 v[20:23], v3, s[16:19], 0 offen offset:16")
    e("buffer_load_dwordx4 v[24:27], v3, s[16:19], s30 offen")
    e("buffer_load_dwordx4 v[28:31], v3, s[16:19], s30 offen offset:16")
    e("buffer_load_dwordx4 v[32:35], v4, s[20:23], 0 offen")
    e("buffer_load_dwordx4 v[36:39], v2, s[8:11], 0 offen")
    e("s_waitcnt vmcnt(6)")
    for i in range(4):
        e(f"v_lshlrev_b32 v{40+2*i}, 16, v{8+i}")
        e(f"v_and_b32 v{41+2*i}, 0xffff0000, v{8+i}")
        e(f"v_lshlrev_b32 v{48+2*i}, 16, v{12+i}")
        e(f"v_and_b32 v{49+2*i}, 0xffff0000, v{12+i}")
    for i in range(8):
        e(f"v_add_f32 v{40+i}, v{40+i}, v{48+i}")
    for i in range(4):
        e(f"v_cvt_pk_bf16_f32 v{8+i}, v{40+2*i}, v{41+2*i}")
        e(f"v_lshlrev_b32 v{40+2*i}, 16, v{8+i}")
        e(f"v_and_b32 v{41+2*i}, 0xffff0000, v{8+i}")
    e("s_waitcnt vmcnt(1)")
    for i in range(8):
        e(f"v_add_f32 v{16+i}, v{16+i}, v{24+i}")
    for i in range(4):
        e(f"v_cvt_pk_bf16_f32 v{8+i}, v{16+2*i}, v{17+2*i}")
        e(f"v_lshlrev_b32 v{16+2*i}, 16, v{8+i}")
        e(f"v_and_b32 v{17+2*i}, 0xffff0000, v{8+i}")
        e(f"v_lshlrev_b32 v{24+2*i}, 16, v{32+i}")
        e(f"v_and_b32 v{25+2*i}, 0xffff0000, v{32+i}")
    for i in range(8):
        e(f"v_add_f32 v{16+i}, v{16+i}, v{24+i}")
    for i in range(4):
        e(f"v_cvt_pk_bf16_f32 v{8+i}, v{16+2*i}, v{17+2*i}")
        e(f"v_lshlrev_b32 v{16+2*i}, 16, v{8+i}")
        e(f"v_and_b32 v{17+2*i}, 0xffff0000, v{8+i}")
    for i in range(8):
        e(f"v_mul_f32 v{24+i}, s28, v{16+i}")
    for i in range(8):
        e(f"v_exp_f32 v{24+i}, v{24+i}")
    for i in range(8):
        e(f"v_add_f32 v{24+i}, 1.0, v{24+i}")
    for i in range(8):
        e(f"v_rcp_f32 v{24+i}, v{24+i}")
    for i in range(8):
        e(f"v_mul_f32 v{16+i}, v{16+i}, v{24+i}")
    for i in range(4):
        e(f"v_cvt_pk_bf16_f32 v{8+i}, v{16+2*i}, v{17+2*i}")
        e(f"v_lshlrev_b32 v{16+2*i}, 16, v{8+i}")
        e(f"v_and_b32 v{17+2*i}, 0xffff0000, v{8+i}")
    for i in range(8):
        e(f"v_mul_f32 v{16+i}, v{16+i}, v{40+i}")
    e("s_waitcnt vmcnt(0)")
    for i in range(4):
        e(f"v_cvt_pk_bf16_f32 v{8+i}, v{16+2*i}, v{17+2*i}")
        e(f"v_lshlrev_b32 v{16+2*i}, 16, v{8+i}")
        e(f"v_and_b32 v{17+2*i}, 0xffff0000, v{8+i}")
        e(f"v_lshlrev_b32 v{24+2*i}, 16, v{36+i}")
        e(f"v_and_b32 v{25+2*i}, 0xffff0000, v{36+i}")
    for i in range(8):
        e(f"v_add_f32 v{16+i}, v{16+i}, v{24+i}")
    for i in range(4):
        e(f"v_cvt_pk_bf16_f32 v{8+i}, v{16+2*i}, v{17+2*i}")
    e("buffer_store_dwordx4 v[8:11], v2, s[32:35], 0 offen")
    tl(e, 3, 1, 50)
    e.lab("fin_done")
    e("s_endpgm")
    kdesc(e, name, 56, 56, 102)


S_WAVE = 3
S_ROW0 = 40
S_COL0 = 41
S_KR = 42
S_KC = 43
S_KN = 44
S_CNT = 45
S_WR = 46
S_RD = 47
S_DL = 48
S_T0 = 49
S_T1 = 50
S_T2 = 51
S_M0 = 52
S_NS = 60
S_LEFT = 61
S_KI = 62
S_SRD_R = 8
S_SRD_O = 12
S_SRD_B = 16
S_SRD_C = 64
S_NREC = 88
RT = 32768


class Region:
    def __init__(s, typ, g0, ng, lds_off, gstride):
        s.typ, s.g0, s.ng, s.lds_off, s.gstride = typ, g0, ng, lds_off, gstride
        if typ == 'T':
            s.ninstr = ng * 2
        elif typ == 'Nadd':
            W = ng * 32
            s.RS = W if ng % 2 else W + 32
            s.BL = 8 * s.RS // 16 + 8
            s.ninstr = -(-8 * s.BL // 64)
        elif typ == 'Nxor':
            assert ng in (4, 8)
            s.RS = ng * 32
            s.ninstr = ng * 2
        s.DW = -(-s.ninstr // 4)
        s.bytes = s.DW * 4 * 1024


def magic(d, n):
    for sh in range(8, 24):
        m = -(-(1 << sh) // d)
        if m < (1 << 24) and all((x * m) >> sh == x // d for x in range(n)):
            return m, sh
    raise Exception


class Gemm:
    def __init__(s, e, pre, design, S, MT, NT, WM, WN, regions, rstride, outer, orient, nsteps_sgpr=False, nsteps=None):
        s.e, s.pre, s.design, s.S = e, pre, design, S
        s.MT, s.NT, s.WM, s.WN = MT, NT, WM, WN
        s.regions, s.rstride, s.outer, s.orient = regions, rstride, outer, orient
        s.CS = sum(r.bytes for r in regions)
        s.SS = RT + s.CS
        s.nsteps = nsteps
        s.rot = None
        s.pfstub = None
        s.st_off = 0
        s.sc1R = False
        s.sc1C = False
        s.pre_R = None
        s.D = 8 + sum(r.DW for r in regions)
        nacc = MT * NT * 4
        s.nacc = nacc
        v = 0
        s.vR = [0]
        v = 1
        s.vC = {}
        for ri, r in enumerate(regions):
            if r.typ == 'T':
                s.vC[ri] = [v]; v += 1
            elif r.typ == 'Nadd':
                s.vC[ri] = [v]; v += 1
            else:
                n = min(NT, r.ng)
                s.vC[ri] = list(range(v, v + n)); v += n
        s.naddr = v
        v = (v + 3) // 4 * 4
        if outer == 'C':
            s.fR = [[v + (st * MT + m) * 4 for m in range(MT)] for st in range(2)]
            v += 2 * MT * 4
            s.fC = [[v + n * 4 for n in range(NT)]] * 2
            v += NT * 4
        else:
            s.fR = [[v + m * 4 for m in range(MT)]] * 2
            v += MT * 4
            s.fC = [[v + (st * NT + n) * 4 for n in range(NT)] for st in range(2)]
            v += 2 * NT * 4
        s.vfrag0 = (s.naddr + 3) // 4 * 4
        s.vend = v
        if design == 'A':
            s.vL = v
            v += s.D
        else:
            s.vL = 8
        s.vtop = v

    def region_of(s, n):
        if s.WN > 1:
            return 0, n
        for ri, r in enumerate(s.regions):
            if r.g0 <= n < r.g0 + r.ng:
                return ri, n - r.g0
        raise Exception

    def rd_R(s, kk, m):
        d = s.fR[kk][m]
        return [(f"ds_read_b128 v[{d}:{d+3}], v{s.vR[0]} offset:{m*2048+kk*512}", d)]

    def rd_C(s, kk, n):
        d = s.fC[kk][n]
        ri, j = s.region_of(n)
        r = s.regions[ri]
        if r.typ == 'T':
            return [(f"ds_read_b128 v[{d}:{d+3}], v{s.vC[ri][0]} offset:{j*2048+kk*512}", d)]
        if r.typ == 'Nadd':
            o = kk * (32 * r.RS + 512) + j * 32
            return [(f"ds_read_b64_tr_b16 v[{d}:{d+1}], v{s.vC[ri][0]} offset:{o}", d),
                    (f"ds_read_b64_tr_b16 v[{d+2}:{d+3}], v{s.vC[ri][0]} offset:{o+4*r.RS}", d + 2)]
        o = kk * 32 * r.RS
        return [(f"ds_read_b64_tr_b16 v[{d}:{d+1}], v{s.vC[ri][j]} offset:{o}", d),
                (f"ds_read_b64_tr_b16 v[{d+2}:{d+3}], v{s.vC[ri][j]} offset:{o+4*r.RS}", d + 2)]

    def acc(s, m, n):
        return (m * s.NT + n) * 4

    def mfma(s, kk, m, n):
        a = s.acc(m, n)
        r, c = s.fR[kk][m], s.fC[kk][n]
        if s.orient[n] == 'RA':
            x, y = r, c
        else:
            x, y = c, r
        return (f"v_mfma_f32_16x16x32_bf16 a[{a}:{a+3}], v[{x}:{x+3}], v[{y}:{y+3}], a[{a}:{a+3}]", [r, c, c + 2])

    def loader_setup(s, vlane, vt, cset):
        e = s.e
        L = s.vL
        def tparts(stride):
            e(f"v_lshrrev_b32 v{vt}, 2, v{vlane}")
            e(f"v_and_b32 v{vt}, 7, v{vt}")
            e(f"s_mov_b32 s{S_T1}, {stride}")
            e(f"v_mul_lo_u32 v{vt}, v{vt}, s{S_T1}")
            e(f"v_lshrrev_b32 v{vt+1}, 5, v{vlane}")
            e(f"v_lshl_add_u32 v{vt}, v{vt+1}, 6, v{vt}")
            e(f"v_lshrrev_b32 v{vt+1}, 3, v{vlane}")
            e(f"v_and_b32 v{vt+1}, 2, v{vt+1}")
            e(f"v_and_b32 v{vt+2}, 3, v{vlane}")
            e(f"v_xor_b32 v{vt+1}, v{vt+1}, v{vt+2}")
            e(f"v_lshlrev_b32 v{vt+1}, 4, v{vt+1}")
            e(f"v_xor_b32 v{vt+2}, 48, v{vt+1}")
            e(f"v_add_u32 v{vt+1}, v{vt+1}, v{vt}")
            e(f"v_add_u32 v{vt+2}, v{vt+2}, v{vt}")
        tparts(s.rstride)
        e(f"s_lshl_b32 s{S_T0}, s{S_WAVE}, 6")
        e(f"s_add_u32 s{S_T0}, s{S_T0}, s{S_ROW0}")
        e(f"s_mul_i32 s{S_T0}, s{S_T0}, {s.rstride}")
        for j in range(8):
            e(f"s_add_u32 s{S_T1}, s{S_T0}, {j*8*s.rstride - (j&3)*1024}")
            e(f"v_add_u32 v{L+j}, s{S_T1}, v{vt+1+(j&1)}")
        e(f"s_lshl_b32 s{S_M0}, s{S_WAVE}, 13")
        e(f"s_add_u32 s{S_M0+1}, s{S_M0}, 4096")
        s.dma = []
        for j in range(8):
            s.dma.append((L + j, S_SRD_R, S_KR, S_M0 + (j >> 2) if (j & 3) == 0 else None, (j & 3) * 1024))
        vo = L + 8
        mo = S_M0 + 2
        so = S_SRD_C
        s.srds = [S_SRD_R]
        for ri, r in enumerate(s.regions):
            ng4 = -(-r.DW // 4)
            e(f"s_mul_i32 s{mo}, s{S_WAVE}, {r.DW*1024}")
            e(f"s_add_u32 s{mo}, s{mo}, {RT + r.lds_off}")
            for g in range(1, ng4):
                e(f"s_add_u32 s{mo+g}, s{mo}, {4096*g}")
            if r.typ == 'T':
                assert r.DW % 2 == 0
                tparts(r.gstride)
                for j in range(r.DW):
                    cset(ri, j, so)
                    if (j & 3):
                        e(f"s_sub_u32 s{S_T0}, s{S_T0}, {(j&3)*1024}")
                    e(f"v_add_u32 v{vo+j}, s{S_T0}, v{vt+1+(j&1)}")
                    s.dma.append((vo + j, so, S_KC, mo + (j >> 2) if (j & 3) == 0 else None, (j & 3) * 1024))
                    s.srds.append(so)
                    so += 4
            elif r.typ == 'Nadd':
                cset(ri, None, so)
                s.srds.append(so)
                m1, sh1 = magic(r.BL, 4 * r.DW * 64)
                rc = r.RS // 16
                m2, sh2 = magic(rc, r.BL)
                e(f"s_mul_i32 s{S_T1}, s{S_WAVE}, {r.DW*64}")
                for j in range(r.DW):
                    e(f"v_add_u32 v{vt}, s{S_T1}, v{vlane}")
                    if j:
                        e(f"v_add_u32 v{vt}, {64*j}, v{vt}")
                    e(f"v_mul_u32_u24 v{vt+1}, {m1}, v{vt}")
                    e(f"v_lshrrev_b32 v{vt+1}, {sh1}, v{vt+1}")
                    e(f"v_mul_u32_u24 v{vt+2}, {r.BL}, v{vt+1}")
                    e(f"v_sub_u32 v{vt}, v{vt}, v{vt+2}")
                    e(f"v_mul_u32_u24 v{vt+2}, {m2}, v{vt}")
                    e(f"v_lshrrev_b32 v{vt+2}, {sh2}, v{vt+2}")
                    e(f"v_mul_u32_u24 v{vt+3}, {rc}, v{vt+2}")
                    e(f"v_sub_u32 v{vt+3}, v{vt}, v{vt+3}")
                    e(f"v_lshl_add_u32 v{vt+1}, v{vt+1}, 3, v{vt+2}")
                    e(f"v_mul_u32_u24 v{vt+4}, {r.gstride}, v{vt+1}")
                    e(f"v_lshl_add_u32 v{vt+4}, v{vt+3}, 4, v{vt+4}")
                    e(f"v_add_u32 v{vt+4}, s{S_T0}, v{vt+4}")
                    if j & 3:
                        e(f"v_subrev_u32 v{vt+4}, {(j&3)*1024}, v{vt+4}")
                    e(f"v_cmp_gt_u32 vcc, 8, v{vt+2}")
                    e(f"v_mov_b32 v{vt+5}, 0x7ff00000")
                    e("s_nop 0")
                    e(f"v_cndmask_b32 v{vt+4}, v{vt+5}, v{vt+4}, vcc")
                    e(f"v_cmp_gt_u32 vcc, {r.ng*2}, v{vt+3}")
                    e("s_nop 1")
                    e(f"v_cndmask_b32 v{vt+4}, v{vt+5}, v{vt+4}, vcc")
                    e(f"v_cmp_gt_u32 vcc, 64, v{vt+1}")
                    e("s_nop 1")
                    e(f"v_cndmask_b32 v{vo+j}, v{vt+5}, v{vt+4}, vcc")
                    s.dma.append((vo + j, so, S_KN, mo + (j >> 2) if (j & 3) == 0 else None, (j & 3) * 1024))
                so += 4
            else:
                cset(ri, None, so)
                s.srds.append(so)
                if r.ng == 8:
                    assert r.DW == 4
                    e(f"v_lshrrev_b32 v{vt}, 4, v{vlane}")
                    e(f"v_mul_u32_u24 v{vt+1}, {r.gstride}, v{vt}")
                    e(f"v_lshlrev_b32 v{vt}, 5, v{vt}")
                    e(f"v_and_b32 v{vt+2}, 15, v{vlane}")
                    e(f"v_lshlrev_b32 v{vt+2}, 4, v{vt+2}")
                    e(f"v_xor_b32 v{vt+2}, v{vt+2}, v{vt}")
                    e(f"v_xor_b32 v{vt+3}, 128, v{vt+2}")
                    e(f"v_add_u32 v{vt+2}, v{vt+2}, v{vt+1}")
                    e(f"v_add_u32 v{vt+3}, v{vt+3}, v{vt+1}")
                    e(f"s_mul_i32 s{S_T1}, s{S_WAVE}, {16*r.gstride}")
                    e(f"s_add_u32 s{S_T0}, s{S_T0}, s{S_T1}")
                    for j in range(4):
                        e(f"s_add_u32 s{S_T1}, s{S_T0}, {j*4*r.gstride - (j&3)*1024}")
                        e(f"v_add_u32 v{vo+j}, s{S_T1}, v{vt+2+((j>>1)&1)}")
                        s.dma.append((vo + j, so, S_KN, mo if j == 0 else None, j * 1024))
                else:
                    assert r.DW == 2
                    e(f"v_lshrrev_b32 v{vt}, 3, v{vlane}")
                    e(f"v_mul_u32_u24 v{vt+1}, {r.gstride}, v{vt}")
                    e(f"v_lshrrev_b32 v{vt}, 4, v{vlane}")
                    e(f"v_and_b32 v{vt}, 1, v{vt}")
                    e(f"v_lshlrev_b32 v{vt}, 5, v{vt}")
                    e(f"v_and_b32 v{vt+2}, 7, v{vlane}")
                    e(f"v_lshlrev_b32 v{vt+2}, 4, v{vt+2}")
                    e(f"v_xor_b32 v{vt+2}, v{vt+2}, v{vt}")
                    e(f"v_xor_b32 v{vt+3}, 64, v{vt+2}")
                    e(f"v_add_u32 v{vt+2}, v{vt+2}, v{vt+1}")
                    e(f"v_add_u32 v{vt+3}, v{vt+3}, v{vt+1}")
                    e(f"s_mul_i32 s{S_T1}, s{S_WAVE}, {16*r.gstride}")
                    e(f"s_add_u32 s{S_T0}, s{S_T0}, s{S_T1}")
                    for j in range(2):
                        e(f"s_add_u32 s{S_T1}, s{S_T0}, {j*8*r.gstride - j*1024}")
                        e(f"v_add_u32 v{vo+j}, s{S_T1}, v{vt+2+j}")
                        s.dma.append((vo + j, so, S_KN, mo if j == 0 else None, j * 1024))
                so += 4
            vo += r.DW
            mo += ng4
        assert len(s.dma) == s.D
        assert mo <= S_NS and so <= S_NREC

    def dma_groups(s):
        out = []
        for k, (v, sr, so, m0, io) in enumerate(s.dma):
            g = []
            if m0 is not None:
                g.append(f"s_add_u32 m0, s{S_WR}, s{m0}")
                g.append("s_nop 0")
            sc = " sc1" if (s.sc1R if k < 8 else s.sc1C) else ""
            sof = "0" if (k < 8 and s.pre_R) else f"s{so}"
            g.append(f"buffer_load_dwordx4 v{v}, s[{sr}:{sr+3}], {sof} offen offset:{io}{sc} lds" if io else
                     f"buffer_load_dwordx4 v{v}, s[{sr}:{sr+3}], {sof} offen{sc} lds")
            out.append(g)
        return out

    def dma_book(s):
        g = [f"s_add_u32 s{S_KR}, s{S_KR}, 128"]
        if any(r.typ == 'T' for r in s.regions):
            g.append(f"s_add_u32 s{S_KC}, s{S_KC}, 128")
        for r in s.regions:
            if r.typ != 'T':
                g.append(f"s_add_u32 s{S_KN}, s{S_KN}, {64*r.gstride}")
        if s.rot:
            g.append(f"s_add_u32 s{S_KI}, s{S_KI}, 1")
            g.append(f"s_cmp_ge_u32 s{S_KI}, s{S_NS}")
            g.append(f"s_cselect_b32 s{S_KI}, 0, s{S_KI}")
            g.append(f"s_cselect_b32 s{S_T0}, {128*s.nsteps}, 0")
            g.append(f"s_sub_u32 s{S_KR}, s{S_KR}, s{S_T0}")
            if any(r.typ == 'T' for r in s.regions):
                g.append(f"s_sub_u32 s{S_KC}, s{S_KC}, s{S_T0}")
            for r in s.regions:
                if r.typ != 'T':
                    g.append(f"s_mul_i32 s{S_T0}, s{S_KI}, 1")
                    g.append(f"s_cmp_eq_u32 s{S_KI}, 0")
                    g.append(f"s_cselect_b32 s{S_T0}, {64*r.gstride*s.nsteps}, 0")
                    g.append(f"s_sub_u32 s{S_KN}, s{S_KN}, s{S_T0}")
        g.append(f"s_add_u32 s{S_WR}, s{S_WR}, {s.SS}")
        g.append(f"s_cmp_ge_u32 s{S_WR}, {s.SS*s.S}")
        g.append(f"s_cselect_b32 s{S_WR}, 0, s{S_WR}")
        g.append(f"s_sub_u32 s{S_LEFT}, s{S_LEFT}, 1")
        g.append(f"s_cmp_lt_i32 s{S_LEFT}, 1")
        for sr in s.srds:
            g.append(f"s_cselect_b32 s{sr+2}, 0, s{sr+2}")
        return g

    def loader_init(s):
        e = s.e
        e(f"s_mov_b32 s{S_WR}, 0")
        e(f"s_mov_b32 s{S_LEFT}, s{S_NS}")
        if s.rot:
            W, mul = s.rot
            if W == 1:
                e(f"s_and_b32 s{S_KI}, s2, 7")
            elif W == 2:
                e(f"s_lshr_b32 s{S_KI}, s2, 3")
                e(f"s_and_b32 s{S_KI}, s{S_KI}, 3")
                e(f"s_and_b32 s{S_T0}, s2, 1")
                e(f"s_lshl_b32 s{S_T0}, s{S_T0}, 2")
                e(f"s_add_u32 s{S_KI}, s{S_KI}, s{S_T0}")
                e(f"s_and_b32 s{S_T0}, s2, 4")
                e(f"s_lshl_b32 s{S_T0}, s{S_T0}, 1")
                e(f"s_add_u32 s{S_KI}, s{S_KI}, s{S_T0}")
            elif W == 3:
                e(f"s_and_b32 s{S_KI}, s2, 1")
                e(f"s_and_b32 s{S_T0}, s2, 4")
                e(f"s_lshr_b32 s{S_T0}, s{S_T0}, 1")
                e(f"s_add_u32 s{S_KI}, s{S_KI}, s{S_T0}")
            elif W == 4:
                e(f"s_and_b32 s{S_KI}, s2, 7")
                e(f"s_lshl_b32 s{S_KI}, s{S_KI}, 1")
                e(f"s_lshr_b32 s{S_T0}, s2, 3")
                e(f"s_and_b32 s{S_T0}, s{S_T0}, 1")
                e(f"s_add_u32 s{S_KI}, s{S_KI}, s{S_T0}")
            elif W == 5:
                e(f"s_lshr_b32 s{S_KI}, s2, 5")
                e(f"s_and_b32 s{S_T0}, s2, 8")
                e(f"s_add_u32 s{S_KI}, s{S_KI}, s{S_T0}")
            elif W == 6:
                e(f"s_lshr_b32 s{S_KI}, s2, 5")
                e(f"s_and_b32 s{S_T0}, s2, 24")
                e(f"s_add_u32 s{S_KI}, s{S_KI}, s{S_T0}")
            elif W == 7:
                e(f"s_lshr_b32 s{S_KI}, s2, 3")
                e(f"s_and_b32 s{S_KI}, s{S_KI}, 15")
            elif W == 8:
                e(f"s_lshr_b32 s{S_KI}, s2, 5")
            elif W == 9:
                e(f"s_lshr_b32 s{S_KI}, s2, 5")
                e(f"s_and_b32 s{S_KI}, s{S_KI}, 3")
                e(f"s_and_b32 s{S_T0}, s2, 24")
                e(f"s_lshr_b32 s{S_T0}, s{S_T0}, 1")
                e(f"s_add_u32 s{S_KI}, s{S_KI}, s{S_T0}")
            e(f"s_mul_i32 s{S_KI}, s{S_KI}, {mul}")
            e(f"s_cmp_ge_u32 s{S_KI}, s{S_NS}")
            e(f"s_cselect_b32 s{S_T0}, s{S_NS}, 0")
            e(f"s_sub_u32 s{S_KI}, s{S_KI}, s{S_T0}")
            e(f"s_lshl_b32 s{S_T0}, s{S_KI}, 7")
            e(f"s_add_u32 s{S_KR}, s{S_KR}, s{S_T0}")
            e(f"s_add_u32 s{S_KC}, s{S_KC}, s{S_T0}")
            for r in s.regions:
                if r.typ != 'T':
                    e(f"s_mul_i32 s{S_T0}, s{S_KI}, {64*r.gstride}")
                    e(f"s_add_u32 s{S_KN}, s{S_KN}, s{S_T0}")

    def stats_step(s):
        e = s.e
        for kk in range(2):
            for m in range(4):
                e(f"ds_read_b128 v[{40+16*kk+4*m}:{43+16*kk+4*m}], v24 offset:{m*2048+kk*512}")
        for kk in range(2):
            for m in range(4):
                e(f"s_waitcnt lgkmcnt({7-4*kk-m})")
                for x in range(4):
                    r = 40 + 16 * kk + 4 * m + x
                    e(f"v_dot2_f32_bf16 v{28+m}, v{r}, v39, v{28+m}")
                    e(f"v_dot2_f32_bf16 v{32+m}, v{r}, v{r}, v{32+m}")
        t = 40
        lst = []
        for ri, r in enumerate(s.regions):
            for j in range(-(-r.ng // 4)):
                for kk in range(2):
                    if r.typ == 'T':
                        e(f"ds_read_b128 v[{t}:{t+3}], v{25+ri} offset:{4*j*2048+kk*512}")
                    else:
                        o = kk * (32 * r.RS + 512) + 4 * j * 32
                        e(f"ds_read_b64_tr_b16 v[{t}:{t+1}], v{25+ri} offset:{o}")
                        e(f"ds_read_b64_tr_b16 v[{t+2}:{t+3}], v{25+ri} offset:{o+4*r.RS}")
                    lst.append((t, len(lst) // 2))
                    t += 4
        e("s_waitcnt lgkmcnt(0)")
        for (t, a) in lst:
            for x in range(4):
                e(f"v_dot2_f32_bf16 v{36+a}, v{t+x}, v39, v{36+a}")
        sg, _ = s.adv_addr()
        e.ext(sg)
        for a in range(1 + len(s.regions)):
            e(f"v_add_u32 v{24+a}, s{S_DL}, v{24+a}")

    def stats_final(s):
        e = s.e
        regs = list(range(28, 39))
        for r in regs:
            e(f"v_mov_b32 v40, v{r}")
            e("s_nop 1")
            e(f"v_permlane32_swap_b32 v{r}, v40")
            e(f"v_add_f32 v{r}, v{r}, v40")
            e(f"v_mov_b32 v40, v{r}")
            e("s_nop 1")
            e(f"v_permlane16_swap_b32 v{r}, v40")
            e(f"v_add_f32 v{r}, v{r}, v40")
        e("v_and_b32 v2, 15, v1")
        e(f"s_lshl_b32 s{S_T0}, s{S_WAVE}, 8")
        e(f"s_add_u32 s{S_T0}, s{S_T0}, {s.st_off}")
        e(f"v_lshl_add_u32 v3, v2, 2, s{S_T0}")
        for m in range(4):
            a, q = 28 + m, 32 + m
            e(f"v_mul_f32 v{a}, 0x3a800000, v{a}")
            e(f"v_mul_f32 v{q}, 0x3a800000, v{q}")
            e(f"v_fma_f32 v{q}, -v{a}, v{a}, v{q}")
            e(f"v_max_f32 v{q}, 0, v{q}")
            e(f"v_cvt_pk_bf16_f32 v40, v{a}, v{q}")
            e(f"v_lshlrev_b32 v{a}, 16, v40")
            e(f"v_and_b32 v{q}, 0xffff0000, v40")
            e(f"v_add_f32 v{q}, 0x3727c5ac, v{q}")
            e(f"v_cvt_pk_bf16_f32 v40, v{q}, v{q}")
            e(f"v_lshlrev_b32 v{q}, 16, v40")
            e(f"v_sqrt_f32 v{q}, v{q}")
            e("s_nop 0")
            e(f"v_cvt_pk_bf16_f32 v40, v{q}, v{q}")
            e(f"v_lshlrev_b32 v{q}, 16, v40")
            e(f"v_rcp_f32 v41, v{q}")
            e("s_nop 0")
            e(f"v_fma_f32 v42, -v{q}, v41, 1.0")
            e(f"v_fma_f32 v41, v42, v41, v41")
            e(f"v_mul_f32 v{a}, v{a}, v41")
            e(f"ds_write_b32 v3, v41 offset:{64*m}")
            e(f"ds_write_b32 v3, v{a} offset:{1024+64*m}")
        k = 0
        for ri, r in enumerate(s.regions):
            for j in range(-(-r.ng // 4)):
                e(f"s_add_u32 s{S_T0}, s{S_WAVE}, {4*j}")
                e(f"s_cmp_lt_u32 s{S_T0}, {r.ng}")
                e(f"s_cselect_b32 s{S_T0}, s{S_T0}, {12 - r.g0}")
                e(f"s_lshl_b32 s{S_T0}, s{S_T0}, 6")
                e(f"s_add_u32 s{S_T0}, s{S_T0}, {s.st_off + 2048 + 64 * r.g0}")
                e(f"v_lshl_add_u32 v3, v2, 2, s{S_T0}")
                e(f"ds_write_b32 v3, v{36+k}")
                k += 1
        e("s_waitcnt lgkmcnt(0)")
        e("s_barrier")

    def loader_loop(s):
        e, p = s.e, s.pre
        s.loader_init()
        for st in range(s.S):
            for g in s.dma_groups():
                e.ext(g)
            e.ext(s.dma_book())
        if s.st_off:
            s.compute_setup(1, 40, ldst=24)
            for r in range(28, 39):
                e(f"v_mov_b32 v{r}, 0")
            e("v_mov_b32 v39, 0x3f803f80")
            e(f"s_mov_b32 s{S_RD}, 0")
            e(f"s_mov_b32 s{S_NREC}, {s.SS}")
        e(f"s_waitcnt vmcnt({(s.S-1)*s.D})")
        e("s_barrier")
        e(f"s_mov_b32 s{S_CNT}, s{S_NS}")
        e.lab(f"{p}_lloop")
        if s.st_off:
            s.stats_step()
        e(f"s_waitcnt vmcnt({(s.S-2)*s.D})")
        e("s_barrier")
        for g in s.dma_groups():
            e.ext(g)
        e.ext(s.dma_book())
        e(f"s_sub_u32 s{S_CNT}, s{S_CNT}, 1")
        e(f"s_cmp_lg_u32 s{S_CNT}, 0")
        e(f"s_cbranch_scc1 {p}_lloop")
        if s.st_off:
            s.stats_final()
        e("s_endpgm")

    def compute_setup(s, vlane, vt, ldst=None):
        e = s.e
        if s.WN == 1:
            e(f"s_mul_i32 s{S_T0}, s{S_WAVE}, {s.MT*16*128}")
            e(f"s_mov_b32 s{S_T1}, 0")
        else:
            e(f"s_lshr_b32 s{S_T0}, s{S_WAVE}, 1")
            e(f"s_mul_i32 s{S_T0}, s{S_T0}, {s.MT*16*128}")
            e(f"s_and_b32 s{S_T1}, s{S_WAVE}, 1")
        e(f"v_and_b32 v{vt}, 15, v{vlane}")
        e(f"v_lshrrev_b32 v{vt+1}, 4, v{vlane}")
        e(f"v_lshrrev_b32 v{vt+2}, 3, v{vt}")
        e(f"v_lshrrev_b32 v{vt+3}, 2, v{vt}")
        e(f"v_and_b32 v{vt+3}, 1, v{vt+3}")
        e(f"v_xor_b32 v{vt+3}, v{vt+3}, v{vt+2}")
        e(f"v_lshl_add_u32 v{vt+3}, v{vt+3}, 1, v{vt+2}")
        e(f"v_xor_b32 v{vt+3}, v{vt+3}, v{vt+1}")
        e(f"v_lshlrev_b32 v{vt+3}, 4, v{vt+3}")
        e(f"v_lshl_add_u32 v{vt+3}, v{vt+2}, 10, v{vt+3}")
        e(f"v_and_b32 v{vt+2}, 7, v{vt}")
        e(f"v_lshl_add_u32 v{vt+2}, v{vt+2}, 6, v{vt+3}")
        e(f"v_lshrrev_b32 v{vt+4}, 2, v{vlane}")
        e(f"v_and_b32 v{vt+4}, 3, v{vt+4}")
        e(f"v_and_b32 v{vt+5}, 3, v{vlane}")
        tmp = {}
        for ri, r in enumerate(s.regions):
            base = RT + r.lds_off
            if r.typ == 'T':
                e(f"s_mul_i32 s{S_T2}, s{S_T1}, {s.NT*16*128}")
                e(f"s_add_u32 s{S_T2}, s{S_T2}, {base}")
                e(f"v_add_u32 v{vt+6+2*ri}, s{S_T2}, v{vt+2}")
                tmp[ri] = [vt + 6 + 2 * ri]
            elif r.typ == 'Nadd':
                assert s.WN == 1
                d = vt + 6 + 2 * ri
                e(f"v_lshl_add_u32 v{d}, v{vt+1}, 3, v{vt+4}")
                e(f"v_mul_u32_u24 v{d}, {r.RS}, v{d}")
                e(f"v_lshl_add_u32 v{d}, v{vt+1}, 7, v{d}")
                e(f"v_lshl_add_u32 v{d}, v{vt+5}, 3, v{d}")
                e(f"v_add_u32 v{d}, {base}, v{d}")
                tmp[ri] = [d]
            else:
                d = vt + 6 + 2 * ri
                e(f"v_lshl_add_u32 v{d}, v{vt+1}, 3, v{vt+4}")
                e(f"v_mul_u32_u24 v{d}, {r.RS}, v{d}")
                e(f"v_lshl_add_u32 v{d}, v{vt+5}, 3, v{d}")
                e(f"v_add_u32 v{d}, {base}, v{d}")
                e(f"v_and_b32 v{d+1}, 1, v{vt+1}")
                if r.ng == 8:
                    e(f"v_lshl_add_u32 v{d+1}, v{d+1}, 2, v{vt+4}")
                    e(f"s_mul_i32 s{S_T2}, s{S_T1}, {s.NT}")
                    e(f"v_xor_b32 v{d+1}, s{S_T2}, v{d+1}")
                else:
                    e(f"v_lshrrev_b32 v{vt+10}, 1, v{vt+4}")
                    e(f"v_lshl_add_u32 v{d+1}, v{d+1}, 1, v{vt+10}")
                e(f"v_lshl_add_u32 v{d}, v{d+1}, 5, v{d}")
                tmp[ri] = [d]
        if ldst is not None:
            e(f"v_add_u32 v{ldst}, s{S_T0}, v{vt+2}")
            for ri, r in enumerate(s.regions):
                e(f"s_mul_i32 s{S_T2}, s{S_WAVE}, {2048 if r.typ == 'T' else 32}")
                e(f"v_add_u32 v{ldst+1+ri}, s{S_T2}, v{tmp[ri][0]}")
            return
        for ri, r in enumerate(s.regions):
            if r.typ == 'Nxor':
                for j, vv in enumerate(s.vC[ri]):
                    e(f"v_xor_b32 v{vv}, {32*j}, v{tmp[ri][0]}")
            else:
                for vv, t in zip(s.vC[ri], tmp[ri]):
                    e(f"v_mov_b32 v{vv}, v{t}")
        e(f"v_add_u32 v{s.vR[0]}, s{S_T0}, v{vt+2}")
        for a in range(s.nacc):
            e(f"v_accvgpr_write_b32 a{a}, 0")

    def adv_addr(s):
        g = [f"s_add_u32 s{S_RD}, s{S_RD}, {s.SS}",
             f"s_cmp_ge_u32 s{S_RD}, {s.SS*s.S}",
             f"s_cselect_b32 s{S_RD}, 0, s{S_RD}",
             f"s_cselect_b32 s{S_DL}, {-(s.S-1)*s.SS & 0xffffffff}, s{S_NREC}"]
        v = [f"v_add_u32 v{a}, s{S_DL}, v{a}" for a in range(s.naddr)]
        return g, v

    def compute_loop(s, X):
        e, p = s.e, s.pre
        MT, NT = s.MT, s.NT
        if s.outer == 'C':
            NO, NI = NT, MT
            order = [(m, n) for n in range(NT) for m in range(MT)]
        else:
            NO, NI = MT, NT
            order = [(m, n) for m in range(MT) for n in range(NT)]
        NM = MT * NT

        def rd_outer(kk, o):
            return s.rd_C(kk, o) if s.outer == 'C' else s.rd_R(kk, o)

        def rd_inner(kk, i):
            return s.rd_R(kk, i) if s.outer == 'C' else s.rd_C(kk, i)

        seq = [(1, t) for t in range(X, NM)] + [(0, t) for t in range(NM)] + [(1, t) for t in range(X)]
        P1 = NM - X
        NSEQ = len(seq)
        BR = OPT.get('BR', 6)
        sg, vg = s.adv_addr()
        fill = []
        fill.append([0, -10, [(x, None) for x in vg], 'x'])
        first_rd = 0 if len(vg) <= 1 else 1
        for i in range(NI):
            fill.append([first_rd, 0 + i * 0.01, rd_inner(0, i), 'lds'])
        for o in range(NO):
            last = (o + 1) * NI - 1
            fill.append([max(last - X, first_rd), 0.5 + o, rd_outer(0, o), 'lds'])
        for i in range(NI):
            fill.append([P1 - 1, 100 + i * 0.01, rd_inner(1, i), 'lds'])
        for o in range(NO):
            fill.append([P1 + (o + 1) * NI - 1, 100.5 + o, rd_outer(1, o), 'lds'])
        fill.append([P1 + 2, 200, [(x, None) for x in sg[:2]], 'x'])
        fill.append([P1 + 3, 201, [(x, None) for x in sg[2:]], 'x'])
        if s.pfstub:
            fill.append([P1 + 9, 202, [(f"s_cmp_eq_u32 s{S_CNT}, s80", None), (f"s_cbranch_scc1 {p}_pf", None), (f"@{p}_pfret", None)], 'x'])
        dg = []
        if s.design == 'A':
            dg = s.dma_groups()
            tot = NSEQ - 4
            for k, g in enumerate(dg):
                fill.append([int(k * tot / len(dg)) + 1, 50 + k, [(x, None) for x in g], 'dma'])
        body = []
        pend = sorted(fill, key=lambda f: f[1])
        n_dma_part1 = 0
        CAP = OPT.get('CAP', 2)

        def emit_gap(gi, cap):
            nonlocal pend, n_dma_part1
            used = 0
            rest = []
            for f in pend:
                n = len(f[2])
                if f[0] <= gi and (used == 0 or used + n <= cap):
                    for (x, d) in f[2]:
                        body.append(('lds', x, d) if f[3] == 'lds' else ('x', x, None))
                    used += n + (1 if f[3] == 'lds' and OPT.get('LDS1', 1) else 0)
                    if f[3] == 'dma' and gi < P1 - 1:
                        n_dma_part1 += 1
                else:
                    rest.append(f)
            pend = rest

        for gi, (kk, t) in enumerate(seq):
            m, n = order[t]
            x, srcs = s.mfma(kk, m, n)
            body.append(('mfma', x, srcs))
            if gi == P1 - 1:
                body.append(('lab', f"{p}_mid", None))
            if gi == BR - 2:
                body.append(('x', f"s_sub_u32 s{S_CNT}, s{S_CNT}, 1", None))
                body.append(('x', f"s_cmp_lg_u32 s{S_CNT}, 0", None))
                continue
            if gi == BR - 1:
                body.append(('br', None, None))
                continue
            if gi == NSEQ - 1:
                continue
            emit_gap(gi, CAP if gi < NSEQ - 2 else 99)
            if gi == NSEQ - 3 and s.design == 'A':
                assert not any(f[3] == 'dma' for f in pend)
                for x in s.dma_book():
                    body.append(('x', x, None))
        assert not pend, pend
        body.append(('w0', "s_waitcnt lgkmcnt(0)" + (f" vmcnt({(s.S-2)*s.D})" if s.design == 'A' else ""), None))
        body.append(('x', "s_barrier", None))
        issued = 0
        done = 0
        lastw = {}
        outb = None
        for ps in range(2):
            outb = []
            for (k, x, d) in body:
                if k == 'lds':
                    issued += 1
                    lastw[d] = issued
                    outb.append((k, x))
                elif k == 'w0':
                    done = issued
                    outb.append((k, x))
                elif k == 'mfma':
                    need = max([lastw.get(r, 0) for r in d])
                    if need > done:
                        outb.append(('x', f"s_waitcnt lgkmcnt({min(issued-need, 15)})"))
                        done = need
                    outb.append((k, x))
                else:
                    outb.append((k, x))
        e(f"s_mov_b32 s{S_RD}, 0")
        e(f"s_mov_b32 s{S_NREC}, {s.SS}")
        e(f"s_mov_b32 s{S_DL}, {s.SS}")
        if s.design == 'A':
            s.loader_init()
            for st in range(s.S - 1):
                for g in dg:
                    e.ext(g)
                e.ext(s.dma_book())
            for g in dg[:n_dma_part1]:
                e.ext(g)
            e(f"s_waitcnt vmcnt({(s.S-2)*s.D + n_dma_part1})")
        stamp(e, 1)
        e("s_barrier")
        stamp(e, 2)
        for i in range(NI):
            for (x, d) in rd_inner(0, i):
                e(x)
        for o in range(NO):
            for (x, d) in rd_outer(0, o):
                e(x)
        e(f"s_mov_b32 s{S_CNT}, s{S_NS}")
        e("s_waitcnt lgkmcnt(0)")
        e(f"s_branch {p}_mid")
        if s.pfstub:
            e.lab(f"{p}_pf")
            e(f"s_mov_b32 m0, {s.pfstub}")
            e("s_nop 0")
            for q in range(3):
                e(f"buffer_load_dword v3, s[{64+4*q}:{67+4*q}], s81 offen lds")
            e(f"s_branch {p}_pfret")
        e.L.append(".p2align 6")
        bi = [i for i, (k, x) in enumerate(outb) if k == 'br'][0]
        e.lab(f"{p}_top")
        for (k, x) in outb[bi + 1:] + outb[:bi]:
            if k == 'lab':
                e.lab(x)
            elif x.startswith('@'):
                e.lab(x[1:])
            else:
                e(x)
        e(f"s_cbranch_scc1 {p}_top")
        for (kk, t) in seq[BR:P1]:
            m, n = order[t]
            e(s.mfma(kk, m, n)[0])
        e("s_waitcnt lgkmcnt(0)")
        e("s_nop 7")
        e("s_nop 7")
        stamp(e, 3)


WS_ST = 64 * MB


def stamp(e, k):
    if OPT.get('stamp'):
        e(f"s_memtime s[{90+2*k}:{91+2*k}]")
        if k == 0:
            e("s_memrealtime s[34:35]")
        if k == 4:
            e("s_memrealtime s[36:37]")
        e("s_waitcnt lgkmcnt(0)")


def stamp_out(e, kid):
    if OPT.get('stamp'):
        e("s_waitcnt vmcnt(0)")
        stamp(e, 4)
        srd(e, S_SRD_O, 28, 29, 4 * MB, WS_ST + kid * MB)
        e("s_lshl_b32 s38, s2, 2")
        e(f"s_add_u32 s38, s38, s{S_WAVE}")
        e("s_lshl_b32 s38, s38, 5")
        e("v_mov_b32 v0, s38")
        for k in range(5):
            e(f"v_mov_b32 v{2+k}, s{90+2*k}")
        e("v_mov_b32 v7, s34")
        e("v_mov_b32 v8, s36")
        e("s_getreg_b32 s38, hwreg(HW_REG_XCC_ID)")
        e("v_mov_b32 v9, s38")
        e(f"buffer_store_dwordx4 v[2:5], v0, s[{S_SRD_O}:{S_SRD_O+3}], 0 offen")
        e(f"buffer_store_dwordx4 v[6:9], v0, s[{S_SRD_O}:{S_SRD_O+3}], 0 offen offset:16")


def tl(e, k, end, v=60):
    if not OPT.get('tl'):
        return
    lab = f"tl_{k}_{end}_{len(e.L)}"
    e("s_and_b32 s98, s2, 15")
    e("s_cmp_lg_u32 s98, 0")
    e(f"s_cbranch_scc1 {lab}")
    e("s_waitcnt vmcnt(0)")
    e("s_load_dwordx2 s[96:97], s[0:1], 88")
    e("s_memrealtime s[98:99]")
    e("s_waitcnt lgkmcnt(0)")
    e(f"s_add_u32 s96, s96, {512*(3-k)}")
    e("s_addc_u32 s97, s97, 0")
    if not end:
        e("s_not_b32 s98, s98")
    e(f"v_mov_b32 v{v}, s98")
    e(f"v_mov_b32 v{v+1}, {8*k+4*end}")
    e("s_mov_b64 s[100:101], exec")
    e("s_mov_b64 exec, 1")
    e(f"global_atomic_umax v{v+1}, v{v}, s[96:97]")
    e("s_waitcnt vmcnt(0)")
    e("s_mov_b64 exec, s[100:101]")
    e.lab(lab)


def prefetch(e, vtmp, items, lds_dummy):
    e(f"v_mbcnt_lo_u32_b32 v{vtmp}, -1, 0")
    e(f"v_mbcnt_hi_u32_b32 v{vtmp}, -1, v{vtmp}")
    e(f"s_lshl_b32 s{S_T0}, s2, 2")
    e(f"s_add_u32 s{S_T0}, s{S_T0}, s{S_WAVE}")
    e(f"s_mov_b32 m0, {lds_dummy}")
    for (lo, hi, nb) in items:
        per = -(-(nb // 128) // 1024)
        srd(e, 64, lo, hi, nb)
        e(f"s_mul_i32 s{S_T1}, s{S_T0}, {per*128}")
        e(f"v_lshlrev_b32 v{vtmp+1}, 7, v{vtmp}")
        if per < 64:
            e(f"v_cmp_gt_u32 vcc, {per}, v{vtmp}")
            e(f"v_mov_b32 v{vtmp+2}, 0x7ff00000")
            e("s_nop 0")
            e(f"v_cndmask_b32 v{vtmp+1}, v{vtmp+2}, v{vtmp+1}, vcc")
        for hh in range(OPT.get('pfhalves', 1)):
            e(f"buffer_load_dword v{vtmp+1}, s[64:67], s{S_T1} offen offset:{hh*64} lds" + (" nt" if OPT.get('pfnt') else ""))


def lane_wave(e, design):
    stamp(e, 0)
    e("v_lshrrev_b32 v1, 6, v0")
    e("s_nop 0")
    e(f"v_readfirstlane_b32 s{S_T2}, v1")
    e("v_and_b32 v1, 63, v0")
    e("s_nop 2")
    e(f"s_and_b32 s{S_WAVE}, s{S_T2}, 3")


def gen_g1(e):
    name = "g1_kernel"
    design, S, X = OPT['design1'], OPT['S1'], OPT['X']
    khead(e, name)
    e("s_cmp_ge_u32 s2, 256")
    e("s_cbranch_scc1 g1_done")
    tl(e, 1, 0)
    e("s_load_dwordx4 s[20:23], s[0:1], 24")
    e("s_load_dwordx4 s[24:27], s[0:1], 48")
    e("s_load_dwordx2 s[28:29], s[0:1], 96")
    e("s_load_dwordx2 s[32:33], s[0:1], 0")
    e("s_load_dwordx4 s[72:75], s[0:1], 8")
    e("s_load_dwordx2 s[76:77], s[0:1], 64")
    lane_wave(e, design)
    e("s_and_b32 s30, s2, 1")
    e("s_lshl_b32 s30, s30, 2")
    e("s_lshr_b32 s31, s2, 3")
    e(f"s_and_b32 s{S_ROW0}, s31, 3")
    e(f"s_add_u32 s{S_ROW0}, s{S_ROW0}, s30")
    e(f"s_lshl_b32 s{S_ROW0}, s{S_ROW0}, 8")
    e("s_and_b32 s30, s2, 6")
    e("s_lshl_b32 s30, s30, 2")
    e(f"s_lshr_b32 s{S_COL0}, s31, 2")
    e(f"s_add_u32 s{S_COL0}, s{S_COL0}, s30")
    e(f"s_mov_b32 s{S_NS}, 16")
    e(f"s_mov_b32 s{S_KR}, 0")
    e(f"s_mov_b32 s{S_KC}, 0")
    e(f"s_mov_b32 s{S_KN}, 0")
    e("s_waitcnt lgkmcnt(0)")
    FL = OPT.get('fuse_ln')
    if FL:
        srd(e, S_SRD_R, 32, 33, 4 * MB)
    else:
        srd(e, S_SRD_R, 28, 29, 2048 * XS, WS_XN)
    e(f"s_cmp_lt_u32 s{S_COL0}, 11")
    e("s_cbranch_scc1 g1d_start")
    e(f"s_cmp_eq_u32 s{S_COL0}, 11")
    e("s_cbranch_scc1 g1m_start")
    e("s_branch g1f_start")

    variants = {
        'g1d': [Region('T', 0, 11, 0, 2048)],
        'g1m': [Region('T', 0, 7, 0, 2048), Region('Nadd', 7, 4, 16384, 7168)],
        'g1f': [Region('Nadd', 0, 11, 0, 7168)],
    }
    vt_max = 0
    ss_max = 0
    for pre, regs in variants.items():
        orient = []
        for r in regs:
            orient += ['RA' if r.typ == 'T' else 'CA'] * r.ng
        G = Gemm(e, pre, design, S, 4, 11, 4, 1, regs, 2048 if FL else XS, 'C', orient, nsteps=16)
        if FL:
            G.st_off = 122880 + 1024
        if OPT.get('rot1'):
            G.rot = (OPT['rot1'], OPT.get('rotmul1', 1))
        e.lab(f"{pre}_start")

        def cset(ri, j, so, G=G, pre=pre):
            r = G.regions[ri]
            if r.typ == 'T':
                e(f"s_mul_i32 s{S_T0}, s{S_COL0}, 22")
                e(f"s_mul_i32 s{S_T1}, s{S_WAVE}, {r.DW}")
                e(f"s_add_u32 s{S_T1}, s{S_T1}, {j}")
                e(f"s_add_u32 s{S_T0}, s{S_T0}, s{S_T1}")
                e(f"s_cmp_lt_u32 s{S_T0}, 128")
                e(f"s_cselect_b32 s{so}, s20, s22")
                e(f"s_cselect_b32 s{so+1}, s21, s23")
                e(f"s_and_b32 s{S_T0}, s{S_T0}, 127")
                e(f"s_lshl_b32 s{S_T0}, s{S_T0}, 14")
                e(f"s_cmp_lt_u32 s{S_T1}, {r.ninstr}")
                e(f"s_cselect_b32 s{so+2}, {2*MB}, 0")
                e(f"s_mov_b32 s{so+3}, 0x20000")
                e(f"s_cselect_b32 s{S_T0}, s{S_T0}, 4096")
            else:
                srd(e, so, 24, 25, 1024 * 7168)
                e(f"s_mul_i32 s{S_T0}, s{S_COL0}, 352")
                e(f"s_sub_u32 s{S_T0}, s{S_T0}, {(128 - r.g0) * 32}")

        if design == 'B':
            e(f"s_cmp_ge_u32 s{S_T2}, 4")
            e(f"s_cbranch_scc0 {pre}_comp")
            G.loader_setup(1, 2, cset)
            G.loader_loop()
            e.lab(f"{pre}_comp")
        else:
            G.loader_setup(1, G.vfrag0, cset)
        e(f"v_mov_b32 v{G.vfrag0+16}, v1")
        if OPT.get('pf1'):
            prefetch(e, G.vfrag0 + 20, [(20, 21, 2 * MB), (22, 23, 2 * MB), (24, 25, 1024 * 7168)], 122880)
        if OPT.get('pf2') == 1:
            prefetch(e, G.vfrag0 + 20, [(72, 73, 8 * MB), (74, 75, 8 * MB), (76, 77, 3584 * 2048)], 122880)
        if OPT.get('pf2') == 3:
            G.pfstub = 122880
            e("s_mov_b64 s[82:83], s[72:73]")
            e("s_mov_b64 s[84:85], s[74:75]")
            e("s_mov_b64 s[86:87], s[76:77]")
            srd(e, 64, 82, 83, 8 * MB)
            srd(e, 68, 84, 85, 8 * MB)
            srd(e, 72, 86, 87, 3584 * 2048)
            e(f"s_lshl_b32 s81, s2, 2")
            e(f"s_add_u32 s81, s81, s{S_WAVE}")
            e(f"s_lshl_b32 s81, s81, 13")
            e(f"s_mul_i32 s80, s{S_WAVE}, {OPT.get('pfsp', 2)}")
            e(f"s_sub_u32 s80, {OPT.get('pfat', 12)}, s80")
            e("v_lshlrev_b32 v3, 7, v1")
        G.compute_setup(G.vfrag0 + 16, G.vfrag0)
        G.compute_loop(X)
        if OPT.get('pf2') == 2:
            prefetch(e, 8, [(72, 73, 8 * MB), (74, 75, 8 * MB), (76, 77, 3584 * 2048)], 122880)
        g1_epilogue(e, G, pre)
        stamp_out(e, 0)
        tl(e, 1, 1)
        e("s_endpgm")
        vt_max = max(vt_max, G.vtop)
        ss_max = max(ss_max, G.SS)
    e.lab("g1_done")
    e("s_endpgm")
    acc0 = (vt_max + 3) // 4 * 4
    kdesc(e, name, acc0 + 176, acc0)
    return ss_max * S + 1024 + 3072


def f2u(f):
    import struct
    return struct.unpack("<I", struct.pack("<f", f))[0]


def g1_epilogue(e, G, pre):
    FL = G.st_off
    if FL:
        e("s_barrier")
    e("v_mbcnt_lo_u32_b32 v1, -1, 0")
    e("v_mbcnt_hi_u32_b32 v1, -1, v1")
    e("v_and_b32 v2, 15, v1")
    e("v_lshrrev_b32 v3, 4, v1")
    e("v_and_b32 v4, 1, v3")
    e("v_lshlrev_b32 v4, 4, v4")
    e("v_lshrrev_b32 v5, 1, v3")
    e("v_lshl_add_u32 v4, v5, 3, v4")
    e(f"s_lshl_b32 s{S_T0}, s{S_WAVE}, 6")
    e(f"s_add_u32 s{S_T0}, s{S_T0}, s{S_ROW0}")
    T = 16
    for r in G.regions:
        if r.typ == 'T':
            srd(e, S_SRD_O, 28, 29, 2048 * ATS, WS_AT)
            if FL:
                e(f"s_lshl_b32 s{S_T1}, s{S_WAVE}, 8")
                e(f"s_add_u32 s{S_T1}, s{S_T1}, {FL}")
                e(f"v_lshl_add_u32 v7, v3, 4, s{S_T1}")
                for m in range(4):
                    e(f"ds_read_b128 v[{44+4*m}:{47+4*m}], v7 offset:{64*m}")
                    e(f"ds_read_b128 v[{60+4*m}:{63+4*m}], v7 offset:{1024+64*m}")
                e(f"v_lshlrev_b32 v7, 2, v2")
                e(f"v_add_u32 v7, {FL}, v7")
                for j in range(r.ng):
                    e(f"ds_read_b32 v{32+j}, v7 offset:{2048 + 64*(r.g0+j)}")
            e(f"s_mul_i32 s{S_T1}, s{S_COL0}, 176")
            e(f"v_add_u32 v6, s{S_T1}, v2")
            e(f"s_mov_b32 s{S_T2}, {ATS}")
            e(f"v_mul_lo_u32 v6, v6, s{S_T2}")
            e(f"v_add_u32 v7, s{S_T0}, v4")
            e("v_lshl_add_u32 v6, v7, 1, v6")
            e(f"s_mul_i32 s{S_T1}, s{S_COL0}, 11")
            e("s_waitcnt lgkmcnt(0)")
            for j in range(r.ng):
                n = r.g0 + j
                e(f"s_add_u32 s{S_T2}, s{S_T1}, {n}")
                e(f"s_cmp_lt_u32 s{S_T2}, 64")
                e(f"s_cselect_b32 s{S_DL}, 0, 0x80008000")
                e(f"s_mov_b32 s{S_T2}, {n*16*ATS}")
                for mp in range(2):
                    t = 8 + ((j * 2 + mp) % 2) * 12
                    for q in range(2):
                        a = G.acc(2 * mp + q, n)
                        for x in range(4):
                            e(f"v_accvgpr_read_b32 v{t+4+q*4+x}, a{a+x}")
                    if FL:
                        for q in range(2):
                            m = 2 * mp + q
                            for h in range(2):
                                d = t + 4 + q * 4 + 2 * h
                                e(f"v_pk_mul_f32 v[{d}:{d+1}], v[{d}:{d+1}], v[{44+4*m+2*h}:{45+4*m+2*h}]")
                        for q in range(2):
                            m = 2 * mp + q
                            for h in range(2):
                                d = t + 4 + q * 4 + 2 * h
                                c = 32 + j
                                ce = c & ~1
                                sel = "op_sel:[0,1,0] op_sel_hi:[1,1,1]" if c & 1 else "op_sel_hi:[1,0,1]"
                                e(f"v_pk_fma_f32 v[{d}:{d+1}], v[{60+4*m+2*h}:{61+4*m+2*h}], v[{ce}:{ce+1}], v[{d}:{d+1}] {sel} neg_lo:[1,0,0] neg_hi:[1,0,0]")
                    for q in range(2):
                        e(f"v_cvt_pk_bf16_f32 v{t+2*q}, v{t+4+q*4}, v{t+5+q*4}")
                        e(f"v_cvt_pk_bf16_f32 v{t+2*q+1}, v{t+6+q*4}, v{t+7+q*4}")
                    for x in range(4):
                        e(f"v_xor_b32 v{t+x}, s{S_DL}, v{t+x}")
                    e("s_nop 1")
                    e(f"v_permlane16_swap_b32 v{t}, v{t+2}")
                    e(f"v_permlane16_swap_b32 v{t+1}, v{t+3}")
                    e(f"buffer_store_dwordx4 v[{t}:{t+3}], v6, s[{S_SRD_O}:{S_SRD_O+3}], s{S_T2} offen offset:{mp*64}" + (" sc1" if G.sc1R else ""))
        else:
            srd(e, S_SRD_O, 28, 29, 2048 * HS, WS_H)
            srd(e, S_SRD_B, 26, 27, 7168)
            e(f"s_mul_i32 s{S_T1}, s{S_COL0}, 352")
            e(f"s_sub_u32 s{S_T1}, s{S_T1}, {(128 - r.g0) * 32}")
            e("v_lshlrev_b32 v7, 3, v3")
            e(f"v_add_u32 v7, s{S_T1}, v7")
            BB = 52
            for j in range(r.ng):
                e(f"buffer_load_dwordx2 v[{BB+2*j}:{BB+2*j+1}], v7, s[{S_SRD_B}:{S_SRD_B+3}], 0 offen offset:{32*j}")
            if FL:
                e(f"s_lshl_b32 s{S_T2}, s{S_WAVE}, 8")
                e(f"s_add_u32 s{S_T2}, s{S_T2}, {FL}")
                e(f"v_lshl_add_u32 v7, v2, 2, s{S_T2}")
                for m in range(4):
                    e(f"ds_read_b32 v{44+2*m}, v7 offset:{64*m}")
                    e(f"ds_read_b32 v{45+2*m}, v7 offset:{1024+64*m}")
                e("v_lshlrev_b32 v9, 4, v3")
                e(f"v_add_u32 v9, {FL}, v9")
            e(f"v_add_u32 v6, s{S_T0}, v2")
            e(f"s_mov_b32 s{S_T2}, {HS}")
            e(f"v_mul_lo_u32 v6, v6, s{S_T2}")
            e(f"v_add_u32 v6, s{S_T1}, v6")
            e("v_lshl_add_u32 v8, v3, 3, v6")
            e("v_lshl_add_u32 v6, v4, 1, v6")
            c1 = -2.0 * math.log2(math.e) * math.sqrt(2.0 / math.pi)
            c2 = c1 * 0.044715
            e(f"v_mov_b32 v10, {f2u(c1):#x}")
            e(f"v_mov_b32 v11, {f2u(c1):#x}")
            e(f"v_mov_b32 v12, {f2u(c2):#x}")
            e(f"v_mov_b32 v13, {f2u(c2):#x}")
            e("v_mov_b32 v14, 1.0")
            e("v_mov_b32 v15, 1.0")
            e("s_waitcnt vmcnt(0)")
            j = 0
            while j < r.ng:
                npair = 2 if j + 1 < r.ng else 1
                for q in range(npair):
                    b = BB + 2 * (j + q)
                    e(f"v_lshlrev_b32 v{32+4*q}, 16, v{b}")
                    e(f"v_and_b32 v{33+4*q}, 0xffff0000, v{b}")
                    e(f"v_lshlrev_b32 v{34+4*q}, 16, v{b+1}")
                    e(f"v_and_b32 v{35+4*q}, 0xffff0000, v{b+1}")
                if FL:
                    csr = [76, BB + 2 * j if npair == 2 else 76]
                    e(f"ds_read_b128 v[76:79], v9 offset:{2048 + 64*(r.g0+j)}")
                    if npair == 2:
                        e(f"ds_read_b128 v[{csr[1]}:{csr[1]+3}], v9 offset:{2048 + 64*(r.g0+j+1)}")
                    e("s_waitcnt lgkmcnt(0)")
                for m in range(4):
                    t = 16
                    for q in range(npair):
                        a = G.acc(m, r.g0 + j + q)
                        for x in range(4):
                            e(f"v_accvgpr_read_b32 v{t+4*q+x}, a{a+x}")
                    np_ = 2 * npair
                    if FL:
                        st = 44 + 2 * m
                        for h in range(np_):
                            c = csr[h >> 1] + 2 * (h & 1)
                            e(f"v_pk_fma_f32 v[{t+8+2*h}:{t+9+2*h}], v[{c}:{c+1}], v[{st}:{st+1}], v[{32+2*h}:{33+2*h}] op_sel:[0,1,0] op_sel_hi:[1,1,1] neg_lo:[1,0,0] neg_hi:[1,0,0]")
                        for h in range(np_):
                            e(f"v_pk_fma_f32 v[{t+2*h}:{t+2*h+1}], v[{t+2*h}:{t+2*h+1}], v[{st}:{st+1}], v[{t+8+2*h}:{t+9+2*h}] op_sel_hi:[1,0,1]")
                    else:
                        for h in range(np_):
                            e(f"v_pk_add_f32 v[{t+2*h}:{t+2*h+1}], v[{t+2*h}:{t+2*h+1}], v[{32+2*h}:{33+2*h}]")
                    for h in range(np_):
                        e(f"v_pk_mul_f32 v[{t+8+2*h}:{t+9+2*h}], v[{t+2*h}:{t+2*h+1}], v[{t+2*h}:{t+2*h+1}]")
                    for h in range(np_):
                        e(f"v_pk_fma_f32 v[{t+8+2*h}:{t+9+2*h}], v[{t+8+2*h}:{t+9+2*h}], v[12:13], v[10:11]")
                    for h in range(np_):
                        e(f"v_pk_mul_f32 v[{t+8+2*h}:{t+9+2*h}], v[{t+8+2*h}:{t+9+2*h}], v[{t+2*h}:{t+2*h+1}]")
                    for x in range(2 * np_):
                        e(f"v_exp_f32 v{t+8+x}, v{t+8+x}")
                    for h in range(np_):
                        e(f"v_pk_add_f32 v[{t+8+2*h}:{t+9+2*h}], v[{t+8+2*h}:{t+9+2*h}], v[14:15]")
                    for x in range(2 * np_):
                        e(f"v_rcp_f32 v{t+8+x}, v{t+8+x}")
                    for h in range(np_):
                        e(f"v_pk_mul_f32 v[{t+2*h}:{t+2*h+1}], v[{t+2*h}:{t+2*h+1}], v[{t+8+2*h}:{t+9+2*h}]")
                    o = 40
                    for h in range(np_):
                        e(f"v_cvt_pk_bf16_f32 v{o+h}, v{t+2*h}, v{t+2*h+1}")
                    e(f"s_mov_b32 s{S_T2}, {m*16*HS}")
                    if npair == 2:
                        e("s_nop 0")
                        e(f"v_permlane16_swap_b32 v{o}, v{o+2}")
                        e(f"v_permlane16_swap_b32 v{o+1}, v{o+3}")
                        e(f"buffer_store_dwordx4 v[{o}:{o+3}], v6, s[{S_SRD_O}:{S_SRD_O+3}], s{S_T2} offen offset:{j*32}" + (" sc1" if G.sc1R else ""))
                    else:
                        e(f"buffer_store_dwordx2 v[{o}:{o+1}], v8, s[{S_SRD_O}:{S_SRD_O+3}], s{S_T2} offen offset:{j*32}" + (" sc1" if G.sc1R else ""))
                j += npair


def gen_g2(e):
    name = "g2_kernel"
    design, S, X = OPT['design2'], OPT['S2'], OPT['X']
    khead(e, name)
    e("s_cmp_ge_u32 s2, 256")
    e("s_cbranch_scc1 g2_done")
    tl(e, 2, 0)
    e("s_load_dwordx4 s[20:23], s[0:1], 8")
    e("s_load_dwordx2 s[24:25], s[0:1], 64")
    e("s_load_dwordx2 s[28:29], s[0:1], 96")
    lane_wave(e, design)
    e("s_and_b32 s30, s2, 3")
    e("s_lshr_b32 s31, s2, 2")
    e("s_and_b32 s31, s31, 1")
    e("s_lshr_b32 s32, s2, 3")
    e(f"s_and_b32 s{S_ROW0}, s32, 3")
    e(f"s_lshl_b32 s31, s31, 2")
    e(f"s_add_u32 s{S_ROW0}, s{S_ROW0}, s31")
    e(f"s_lshl_b32 s{S_ROW0}, s{S_ROW0}, 8")
    e(f"s_lshr_b32 s{S_COL0}, s32, 2")
    e(f"s_lshl_b32 s{S_COL0}, s{S_COL0}, 7")
    e(f"s_mov_b32 s{S_KC}, 0")
    e("s_waitcnt lgkmcnt(0)")
    e("s_cmp_ge_u32 s30, 2")
    e("s_cbranch_scc1 g2o_start")
    variants = {
        'g2y': ([Region('T', 0, 8, 0, ATS)], 4096),
        'g2o': ([Region('Nxor', 0, 8, 0, 2048)], HS),
    }
    vt_max = 0
    for pre, (regs, rstride) in variants.items():
        G = Gemm(e, pre, design, S, 8, 4, 2, 2, regs, rstride, 'R', ['CA'] * 4, nsteps=32 if pre == 'g2y' else 28)
        if OPT.get('rot2') and (pre == 'g2y' or OPT.get('rot2o')):
            G.rot = (OPT['rot2'], OPT.get('rotmul2', 1))
        e.lab(f"{pre}_start")
        if pre == 'g2y':
            e(f"s_mov_b32 s{S_NS}, 32")
            e(f"s_mov_b32 s{S_KR}, 0")
            e("s_cmp_eq_u32 s30, 0")
            e(f"s_cselect_b32 s{S_SRD_R}, s20, s22")
            e(f"s_cselect_b32 s{S_SRD_R+1}, s21, s23")
            e(f"s_mov_b32 s{S_SRD_R+2}, {8*MB}")
            e(f"s_mov_b32 s{S_SRD_R+3}, 0x20000")
        else:
            e(f"s_mov_b32 s{S_NS}, 28")
            e("s_and_b32 s33, s30, 1")
            e(f"s_mul_i32 s{S_KR}, s33, {1792*2}")
            e(f"s_mul_i32 s{S_KN}, s33, {1792*2048}")
            srd(e, S_SRD_R, 28, 29, 2048 * HS, WS_H)

        def cset(ri, j, so, G=G, pre=pre):
            r = G.regions[ri]
            if r.typ == 'T':
                srd(e, so, 28, 29, 2048 * ATS, WS_AT)
                e(f"s_lshl_b32 s{S_T0}, s30, 10")
                e(f"s_add_u32 s{S_T0}, s{S_T0}, s{S_COL0}")
                e(f"s_lshl_b32 s{S_T1}, s{S_WAVE}, 5")
                e(f"s_add_u32 s{S_T0}, s{S_T0}, s{S_T1}")
                e(f"s_add_u32 s{S_T0}, s{S_T0}, {8*j}")
                e(f"s_mul_i32 s{S_T0}, s{S_T0}, {ATS}")
            else:
                srd(e, so, 24, 25, 3584 * 2048)
                e(f"s_lshl_b32 s{S_T0}, s{S_COL0}, 1")

        if design == 'B':
            e(f"s_cmp_ge_u32 s{S_T2}, 4")
            e(f"s_cbranch_scc0 {pre}_comp")
            G.loader_setup(1, 2, cset)
            G.loader_loop()
            e.lab(f"{pre}_comp")
        else:
            G.loader_setup(1, G.vfrag0, cset)
        e(f"v_mov_b32 v{G.vfrag0+16}, v1")
        G.compute_setup(G.vfrag0 + 16, G.vfrag0)
        G.compute_loop(X)
        e("v_mbcnt_lo_u32_b32 v1, -1, 0")
        e("v_mbcnt_hi_u32_b32 v1, -1, v1")
        e("v_and_b32 v2, 15, v1")
        e("v_lshrrev_b32 v3, 4, v1")
        e(f"s_lshr_b32 s{S_T0}, s{S_WAVE}, 1")
        e(f"s_lshl_b32 s{S_T0}, s{S_T0}, 7")
        e(f"s_add_u32 s{S_T0}, s{S_T0}, s{S_ROW0}")
        e(f"s_and_b32 s{S_T1}, s{S_WAVE}, 1")
        e(f"s_lshl_b32 s{S_T1}, s{S_T1}, 6")
        e(f"s_add_u32 s{S_T1}, s{S_T1}, s{S_COL0}")
        e(f"v_add_u32 v6, s{S_T0}, v2")
        if pre == 'g2y':
            srd(e, S_SRD_O, 28, 29, 8 * MB, WS_P0)
            e("v_and_b32 v4, 1, v3")
            e("v_lshlrev_b32 v4, 4, v4")
            e("v_lshrrev_b32 v5, 1, v3")
            e("v_lshl_add_u32 v4, v5, 3, v4")
            e(f"v_add_u32 v4, s{S_T1}, v4")
            e("v_lshlrev_b32 v6, 11, v6")
            e("v_lshl_add_u32 v6, v4, 1, v6")
            e("s_lshl_b32 s33, s30, 22")
            for m in range(8):
                e(f"s_add_u32 s{S_T2}, s33, {m*16*2048}")
                for np_ in range(2):
                    t = 16 + np_ * 12
                    for q in range(2):
                        a = G.acc(m, 2 * np_ + q)
                        for x in range(4):
                            e(f"v_accvgpr_read_b32 v{t+4+q*4+x}, a{a+x}")
                    for q in range(2):
                        e(f"v_cvt_pk_bf16_f32 v{t+2*q}, v{t+4+q*4}, v{t+5+q*4}")
                        e(f"v_cvt_pk_bf16_f32 v{t+2*q+1}, v{t+6+q*4}, v{t+7+q*4}")
                    e("s_nop 1")
                    e(f"v_permlane16_swap_b32 v{t}, v{t+2}")
                    e(f"v_permlane16_swap_b32 v{t+1}, v{t+3}")
                    e(f"buffer_store_dwordx4 v[{t}:{t+3}], v6, s[{S_SRD_O}:{S_SRD_O+3}], s{S_T2} offen offset:{np_*64}")
        else:
            srd(e, S_SRD_O, 28, 29, 16 * MB, WS_P2)
            e(f"v_lshl_add_u32 v4, v3, 2, s{S_T1}")
            e("v_lshlrev_b32 v6, 12, v6")
            e("v_lshl_add_u32 v6, v4, 2, v6")
            e("s_lshl_b32 s33, s33, 23")
            for m in range(8):
                e(f"s_add_u32 s{S_T2}, s33, {m*16*4096}")
                for n in range(4):
                    a = G.acc(m, n)
                    e(f"buffer_store_dwordx4 a[{a}:{a+3}], v6, s[{S_SRD_O}:{S_SRD_O+3}], s{S_T2} offen offset:{n*64}")
        stamp_out(e, 1)
        tl(e, 2, 1)
        e("s_endpgm")
        vt_max = max(vt_max, G.vtop)
    e.lab("g2_done")
    e("s_endpgm")
    acc0 = (vt_max + 3) // 4 * 4
    kdesc(e, name, acc0 + 128, acc0)
    return G.SS * S


def main():
    out = sys.argv[1]
    for a in sys.argv[2:]:
        k, v = a.split("=")
        OPT[k] = int(v) if v.lstrip('-').isdigit() else v
    e = E()
    if not OPT.get('fuse_ln'):
        gen_ln(e)
    l1 = gen_g1(e)
    l2 = gen_g2(e)
    gen_fin(e)
    e.lab("text_end")
    e("s_endpgm")
    hdr = open("cdna_kernels/%s.s.ref" % KN).read().split("; Override launch")[0]
    b1 = 512 if OPT['design1'] == 'B' else 256
    b2 = 512 if OPT['design2'] == 'B' else 256
    if not OPT.get('fuse_ln'):
        hdr += "; @launch kernel=ln_kernel grid=(512,1,1) block=(256,1,1) lds=0\n"
    hdr += f"; @launch kernel=g1_kernel grid=(256,1,1) block=({b1},1,1) lds={l1}\n"
    hdr += f"; @launch kernel=g2_kernel grid=(256,1,1) block=({b2},1,1) lds={l2}\n"
    hdr += "; @launch kernel=fin_kernel grid=(1024,1,1) block=(256,1,1) lds=0\n"
    hdr += '.amdgcn_target "amdgcn-amd-amdhsa--gfx950"\n.text\n'
    open(out, "w").write(hdr + "\n".join(e.L) + "\n")


if __name__ == "__main__":
    main()
```

```python
import sys, math
import gen
from gen import *

KNAME = KN + "_kernel"
LDS_CNT = 147456
LDS_TOTAL = 147456 + 256
S_DBG = 96
WS_PB = 32 * MB
SPIN_MAX = 200000


def stamp3(e, k):
    if OPT.get('stamp'):
        k += OPT.get('sbase', 0)
        e("s_memtime s[100:101]")
        e("s_waitcnt lgkmcnt(0)")
        e(f"s_mov_b32 s{76+k}, s100")
        if k in (0, 10):
            e("s_memrealtime s[100:101]")
            e("s_waitcnt lgkmcnt(0)")
            e(f"s_mov_b32 s{89 + (k != 0)}, s100")


gen.stamp = stamp3


def stamp3_out(e):
    if OPT.get('stamp'):
        OPT['sbase'] = 0
        e("s_waitcnt vmcnt(0)")
        stamp3(e, 10)
        srd(e, S_SRD_O, 28, 29, 4 * MB, WS_ST)
        e("s_lshl_b32 s38, s2, 2")
        e(f"s_add_u32 s38, s38, s{S_WAVE}")
        e("s_lshl_b32 s38, s38, 6")
        e("v_mov_b32 v0, s38")
        for k in range(11):
            e(f"v_mov_b32 v{4+k}, s{76+k}")
        e("v_mov_b32 v15, s89")
        e("v_mov_b32 v16, s90")
        for k in range(4):
            e(f"buffer_store_dwordx4 v[{4+4*k}:{7+4*k}], v0, s[{S_SRD_O}:{S_SRD_O+3}], 0 offen offset:{16*k}")


WS_FL = 31 * MB
FL1, FLY, FLO, FLC = 0, 1024, 4096, 8192
S_NONCE = 95
LDS_NONCE = LDS_CNT + 16
LDS_GO = LDS_CNT + 32


def signal(e, phase, uid, offs):
    e("s_waitcnt vmcnt(0)")
    e(f"v_mov_b32 v0, {LDS_CNT + 4 * phase}")
    e("v_mov_b32 v1, 1")
    e("s_mov_b64 exec, 1")
    e("ds_add_rtn_u32 v1, v0, v1")
    e("s_waitcnt lgkmcnt(0)")
    e("v_cmp_eq_u32 vcc, 3, v1")
    e(f"s_cbranch_vccz sig_{uid}")
    e("v_mov_b32 v0, 0")
    e(f"v_mov_b32 v1, s{S_NONCE}")
    for o in offs:
        e(f"buffer_store_dword v1, v0, s[{S_DBG}:{S_DBG+3}], s{o} offen sc1")
    e.lab(f"sig_{uid}")
    e("s_mov_b64 exec, -1")


def poll(e, vaddr, vtmp, uid, sleep=2):
    e(f"s_mov_b32 s{S_T2}, {SPIN_MAX}")
    e.lab(f"poll_{uid}")
    e(f"buffer_load_dword v{vtmp}, v{vaddr}, s[{S_DBG}:{S_DBG+3}], 0 offen sc1")
    e("s_waitcnt vmcnt(0)")
    e(f"v_cmp_ne_u32 vcc, s{S_NONCE}, v{vtmp}")
    e(f"s_cbranch_vccz polld_{uid}")
    e(f"s_sleep {sleep}")
    e(f"s_sub_u32 s{S_T2}, s{S_T2}, 1")
    e(f"s_cmp_lg_u32 s{S_T2}, 0")
    e(f"s_cbranch_scc1 poll_{uid}")
    e.lab(f"polld_{uid}")


def lpoll(e, vaddr, vtmp, phase, uid, sleep=2):
    e(f"v_mov_b32 v{vtmp+1}, {LDS_GO + 4 * phase}")
    e(f"s_cmp_lg_u32 s{S_WAVE}, 0")
    e(f"s_cbranch_scc1 lw_{uid}")
    poll(e, vaddr, vtmp, uid, sleep)
    e(f"v_mov_b32 v{vtmp}, 1")
    e(f"ds_write_b32 v{vtmp+1}, v{vtmp}")
    e(f"s_branch lwd_{uid}")
    e.lab(f"lw_{uid}")
    e(f"s_mov_b32 s{S_T2}, {SPIN_MAX * 20}")
    e.lab(f"lwl_{uid}")
    e(f"ds_read_b32 v{vtmp}, v{vtmp+1}")
    e("s_waitcnt lgkmcnt(0)")
    e(f"v_cmp_ne_u32 vcc, 1, v{vtmp}")
    e(f"s_cbranch_vccz lwd_{uid}")
    e("s_sleep 1")
    e(f"s_sub_u32 s{S_T2}, s{S_T2}, 1")
    e(f"s_cmp_lg_u32 s{S_T2}, 0")
    e(f"s_cbranch_scc1 lwl_{uid}")
    e.lab(f"lwd_{uid}")


def get_nonce(e, v):
    e(f"v_mov_b32 v{v}, {LDS_NONCE}")
    e(f"ds_read_b32 v{v}, v{v}")
    e("s_waitcnt lgkmcnt(0)")
    e(f"v_readfirstlane_b32 s{S_NONCE}, v{v}")
    e("s_nop 3")


def split_dma(G):
    g = G.dma_groups()
    return g[:8], g[8:]


def book_part(G, which):
    out = []
    if which == 'R':
        out.append(f"s_add_u32 s{S_KR}, s{S_KR}, 128")
        wrap = [(S_KR, 128 * G.nsteps)]
    else:
        wrap = []
        if any(r.typ == 'T' for r in G.regions):
            out.append(f"s_add_u32 s{S_KC}, s{S_KC}, 128")
            wrap.append((S_KC, 128 * G.nsteps))
        for r in G.regions:
            if r.typ != 'T':
                out.append(f"s_add_u32 s{S_KN}, s{S_KN}, {64*r.gstride}")
                wrap.append((S_KN, 64 * r.gstride * G.nsteps))
    if G.rot:
        out.append(f"s_add_u32 s{S_KI}, s{S_KI}, 1")
        out.append(f"s_cmp_ge_u32 s{S_KI}, s{S_NS}")
        out.append(f"s_cselect_b32 s{S_KI}, 0, s{S_KI}")
        for (sr, amt) in wrap:
            out.append(f"s_cmp_eq_u32 s{S_KI}, 0")
            out.append(f"s_cselect_b32 s{S_T0}, {amt}, 0")
            out.append(f"s_sub_u32 s{sr}, s{sr}, s{S_T0}")
    out.append(f"s_add_u32 s{S_WR}, s{S_WR}, {G.SS}")
    return out


def loader_phase(e, G, first, mid, sc1_dep):
    p = G.pre
    gr, gc = split_dma(G)
    ind, dep = (gr, gc) if first == 'R' else (gc, gr)
    second = 'C' if first == 'R' else 'R'
    G.loader_init()
    if G.rot:
        e(f"s_mov_b32 s63, s{S_KI}")
    pre = G.pre_R or []
    for st in range(G.S):
        for g in ind:
            e.ext(g)
        e.ext(book_part(G, first))
    e(f"s_mov_b32 s{S_WR}, 0")
    if G.rot:
        e(f"s_mov_b32 s{S_KI}, s63")
    e.ext(pre)
    mid(len(ind) * G.S)
    for st in range(G.S):
        for g in dep:
            e.ext(g)
        e.ext(book_part(G, second))
        e.ext(pre)
    e(f"s_mov_b32 s{S_WR}, 0")
    e(f"s_sub_u32 s{S_LEFT}, s{S_NS}, {G.S}")
    e(f"s_waitcnt vmcnt({(G.S-1)*len(dep)})")
    e("s_barrier")
    e(f"s_mov_b32 s{S_CNT}, s{S_NS}")
    e(f"s_waitcnt vmcnt({(G.S-2)*len(dep)})")
    e(f"s_branch {p}_lmid")
    e.lab(f"{p}_lloop")
    e(f"s_waitcnt vmcnt({(G.S-2)*G.D})")
    e.lab(f"{p}_lmid")
    e("s_barrier")
    for g in G.dma_groups():
        e.ext(g)
    e.ext(G.dma_book())
    e.ext(pre)
    e(f"s_sub_u32 s{S_CNT}, s{S_CNT}, 1")
    e(f"s_cmp_lg_u32 s{S_CNT}, 0")
    e(f"s_cbranch_scc1 {p}_lloop")


def ln_body(e):
    for i in range(8):
        e(f"v_lshlrev_b32 v{16+2*i}, 16, v{4+i}")
        e(f"v_and_b32 v{17+2*i}, 0xffff0000, v{4+i}")

    def tree(dst, src):
        for i in range(8):
            e(f"v_add_f32 v{40+i}, v{src+2*i}, v{src+2*i+1}")
        for i in range(4):
            e(f"v_add_f32 v{40+i}, v{40+i}, v{44+i}")
        e("v_add_f32 v40, v40, v42")
        e("v_add_f32 v41, v41, v43")
        e(f"v_add_f32 v{dst}, v40, v41")

    def wred(v):
        for sh in (1, 2, 4, 8):
            e("s_nop 1")
            e(f"v_add_f32_dpp v{v}, v{v}, v{v} row_ror:{sh} row_mask:0xf bank_mask:0xf")
        e("v_mov_b32 v48, v%d" % v)
        e("s_nop 1")
        e(f"v_permlane32_swap_b32 v{v}, v48")
        e(f"v_add_f32 v{v}, v{v}, v48")
        e("v_mov_b32 v48, v%d" % v)
        e("s_nop 1")
        e(f"v_permlane16_swap_b32 v{v}, v48")
        e(f"v_add_f32 v{v}, v{v}, v48")

    tree(3, 16)
    wred(3)
    e("v_mul_f32 v3, 0x3a800000, v3")
    for i in range(16):
        e(f"v_sub_f32 v{52+i}, v{16+i}, v3")
    for i in range(16):
        e(f"v_mul_f32 v{52+i}, v{52+i}, v{52+i}")
    tree(12, 52)
    wred(12)
    e("v_mul_f32 v12, 0x3a800000, v12")
    e("v_cvt_pk_bf16_f32 v13, v3, v12")
    e("v_lshlrev_b32 v3, 16, v13")
    e("v_and_b32 v12, 0xffff0000, v13")
    e("v_add_f32 v12, 0x3727c5ac, v12")
    e("v_cvt_pk_bf16_f32 v13, v12, v12")
    e("v_lshlrev_b32 v12, 16, v13")
    e("v_sqrt_f32 v12, v12")
    e("s_nop 0")
    e("v_cvt_pk_bf16_f32 v13, v12, v12")
    e("v_lshlrev_b32 v12, 16, v13")
    e("v_rcp_f32 v14, v12")
    for i in range(8):
        e(f"v_sub_f32 v{16+2*i}, v{16+2*i}, v3")
        e(f"v_sub_f32 v{17+2*i}, v{17+2*i}, v3")
        e(f"v_cvt_pk_bf16_f32 v{4+i}, v{16+2*i}, v{17+2*i}")
        e(f"v_lshlrev_b32 v{16+2*i}, 16, v{4+i}")
        e(f"v_and_b32 v{17+2*i}, 0xffff0000, v{4+i}")
    for i in range(16):
        e(f"v_mul_f32 v{52+i}, v{16+i}, v14")
        e(f"v_fma_f32 v{16+i}, -v{52+i}, v12, v{16+i}")
        e(f"v_fma_f32 v{52+i}, v{16+i}, v14, v{52+i}")
    for i in range(8):
        e(f"v_cvt_pk_bf16_f32 v{4+i}, v{52+2*i}, v{53+2*i}")


HT = 8064


def xchg8(e, A, B, T):
    e("s_nop 1")
    for k in range(4):
        e(f"v_mov_b32 v{T+k}, v{A+k}")
    for k in range(4):
        e(f"v_mov_b32_dpp v{A+k}, v{B+k} row_ror:8 row_mask:0xf bank_mask:0xc")
    for k in range(4):
        e(f"v_mov_b32_dpp v{B+k}, v{T+k} row_ror:8 row_mask:0xf bank_mask:0x3")


def g1_epi3(e, G, pre):
    e("v_mbcnt_lo_u32_b32 v1, -1, 0")
    e("v_mbcnt_hi_u32_b32 v1, -1, v1")
    e("v_and_b32 v2, 7, v1")
    e("v_lshrrev_b32 v3, 4, v1")
    e("v_and_b32 v4, 1, v3")
    e("v_lshlrev_b32 v4, 5, v4")
    e("v_lshrrev_b32 v5, 1, v3")
    e("v_lshl_add_u32 v4, v5, 4, v4")
    e("v_and_b32 v5, 8, v1")
    e("v_lshl_add_u32 v4, v5, 3, v4")
    e(f"s_lshl_b32 s{S_T0}, s{S_WAVE}, 6")
    e(f"s_add_u32 s{S_T0}, s{S_T0}, s{S_ROW0}")
    for r in G.regions:
        if r.typ == 'T':
            srd(e, S_SRD_O, 28, 29, 2048 * ATS, WS_AT)
            e(f"s_mul_i32 s{S_T1}, s{S_COL0}, 176")
            e(f"v_add_u32 v6, s{S_T1}, v2")
            e(f"s_mov_b32 s{S_T2}, {ATS}")
            e(f"v_mul_lo_u32 v6, v6, s{S_T2}")
            e(f"s_lshl_b32 s{S_T2}, s{S_T0}, 1")
            e(f"v_add3_u32 v6, v6, v4, s{S_T2}")
            e(f"s_mul_i32 s{S_T1}, s{S_COL0}, 11")
            for j in range(r.ng):
                n = r.g0 + j
                b = 16 + (j & 1) * 32
                e(f"s_add_u32 s{S_T2}, s{S_T1}, {n}")
                e(f"s_cmp_lt_u32 s{S_T2}, 64")
                e(f"s_cselect_b32 s{S_DL}, 0, 0x80008000")
                e(f"s_mov_b32 s{S_T2}, {n*16*ATS}")
                e(f"s_mov_b32 s{S_RD}, {(n*16+8)*ATS}")
                for m in range(4):
                    a = G.acc(m, n)
                    for x in range(4):
                        e(f"v_accvgpr_read_b32 v{b+4*m+x}, a{a+x}")
                for k in range(8):
                    e(f"v_cvt_pk_bf16_f32 v{b+16+k}, v{b+2*k}, v{b+2*k+1}")
                for k in range(8):
                    e(f"v_xor_b32 v{b+16+k}, s{S_DL}, v{b+16+k}")
                e("s_nop 1")
                for h in range(2):
                    e(f"v_permlane16_swap_b32 v{b+16+4*h}, v{b+18+4*h}")
                    e(f"v_permlane16_swap_b32 v{b+17+4*h}, v{b+19+4*h}")
                xchg8(e, b + 16, b + 20, b + 24)
                e(f"buffer_store_dwordx4 v[{b+16}:{b+19}], v6, s[{S_SRD_O}:{S_SRD_O+3}], s{S_T2} offen sc1")
                e(f"buffer_store_dwordx4 v[{b+20}:{b+23}], v6, s[{S_SRD_O}:{S_SRD_O+3}], s{S_RD} offen sc1")
        else:
            srd(e, S_SRD_O, 28, 29, 2048 * HT, WS_H)
            srd(e, S_SRD_B, 26, 27, 7168)
            e(f"s_mul_i32 s{S_T1}, s{S_COL0}, 352")
            e(f"s_sub_u32 s{S_T1}, s{S_T1}, {(128 - r.g0) * 32}")
            e("v_lshlrev_b32 v7, 3, v3")
            e(f"v_add_u32 v7, s{S_T1}, v7")
            nq = -(-r.ng // 4)

            def ldb(Q):
                for j in range(4 * Q, min(4 * Q + 4, r.ng)):
                    d = 64 + 8 * (Q & 1) + 2 * (j - 4 * Q)
                    e(f"buffer_load_dwordx2 v[{d}:{d+1}], v7, s[{S_SRD_B}:{S_SRD_B+3}], 0 offen offset:{32*j}")
            ldb(0)
            if nq > 1:
                ldb(1)
            e(f"v_add_u32 v6, s{S_T0}, v2")
            e(f"s_mov_b32 s{S_T2}, {HT}")
            e(f"v_mul_lo_u32 v6, v6, s{S_T2}")
            e(f"s_sub_u32 s{S_T2}, s{S_COL0}, 11")
            e(f"s_mul_i32 s{S_T2}, s{S_T2}, 384")
            e(f"v_add3_u32 v6, v6, v4, s{S_T2}")
            c1 = -2.0 * math.log2(math.e) * math.sqrt(2.0 / math.pi)
            c2 = c1 * 0.044715
            e(f"v_mov_b32 v10, {f2u(c1):#x}")
            e(f"v_mov_b32 v11, {f2u(c1):#x}")
            e(f"v_mov_b32 v12, {f2u(c2):#x}")
            e(f"v_mov_b32 v13, {f2u(c2):#x}")
            e("v_mov_b32 v14, 1.0")
            e("v_mov_b32 v15, 1.0")
            for Q in range(nq):
                ng = min(4, r.ng - 4 * Q)
                if Q == 0:
                    e(f"s_waitcnt vmcnt({min(4, r.ng-4) if nq > 1 else 0})")
                elif Q == 1:
                    e("s_waitcnt vmcnt(11)")
                else:
                    e("s_waitcnt vmcnt(16)")
                for jj in range(ng):
                    bq = 64 + 8 * (Q & 1) + 2 * jj
                    e(f"v_lshlrev_b32 v{48+4*jj}, 16, v{bq}")
                    e(f"v_and_b32 v{49+4*jj}, 0xffff0000, v{bq}")
                    e(f"v_lshlrev_b32 v{50+4*jj}, 16, v{bq+1}")
                    e(f"v_and_b32 v{51+4*jj}, 0xffff0000, v{bq+1}")
                if Q + 2 < nq:
                    ldb(Q + 2)
                for m in range(4):
                    t, u = 16, 32
                    for jj in range(ng):
                        a = G.acc(m, r.g0 + 4 * Q + jj)
                        for x in range(4):
                            e(f"v_accvgpr_read_b32 v{t+4*jj+x}, a{a+x}")
                    np_ = 2 * ng
                    P = lambda b_, h: f"v[{b_+2*h}:{b_+2*h+1}]"
                    for h in range(np_):
                        e(f"v_pk_add_f32 {P(t,h)}, {P(t,h)}, {P(48,h)}")
                    for h in range(np_):
                        e(f"v_pk_mul_f32 {P(u,h)}, {P(t,h)}, {P(t,h)}")
                    for h in range(np_):
                        e(f"v_pk_fma_f32 {P(u,h)}, {P(u,h)}, v[12:13], v[10:11]")
                    for h in range(np_):
                        e(f"v_pk_mul_f32 {P(u,h)}, {P(u,h)}, {P(t,h)}")
                    for x in range(2 * np_):
                        e(f"v_exp_f32 v{u+x}, v{u+x}")
                    for h in range(np_):
                        e(f"v_pk_add_f32 {P(u,h)}, {P(u,h)}, v[14:15]")
                    for x in range(2 * np_):
                        e(f"v_rcp_f32 v{u+x}, v{u+x}")
                    for h in range(np_):
                        e(f"v_pk_mul_f32 {P(t,h)}, {P(t,h)}, {P(u,h)}")
                    for h in range(np_):
                        e(f"v_cvt_pk_bf16_f32 v{u+h}, v{t+2*h}, v{t+2*h+1}")
                    e(f"s_mov_b32 s{S_T2}, {m*16*HT}")
                    e(f"s_mov_b32 s{S_RD}, {(m*16+8)*HT}")
                    for h in range(2):
                        e(f"v_permlane16_swap_b32 v{u+4*h}, v{u+2+4*h}")
                        e(f"v_permlane16_swap_b32 v{u+1+4*h}, v{u+3+4*h}")
                    xchg8(e, u, u + 4, u + 8)
                    e(f"buffer_store_dwordx4 v[{u}:{u+3}], v6, s[{S_SRD_O}:{S_SRD_O+3}], s{S_T2} offen offset:{Q*128} sc1")
                    e(f"buffer_store_dwordx4 v[{u+4}:{u+7}], v6, s[{S_SRD_O}:{S_SRD_O+3}], s{S_RD} offen offset:{Q*128} sc1")


def tiled_R_setup(e, G):
    e("v_lshrrev_b32 v32, 5, v1")
    e("v_lshlrev_b32 v32, 2, v32")
    e("v_lshrrev_b32 v33, 3, v1")
    e("v_and_b32 v33, 2, v33")
    e("v_and_b32 v34, 3, v1")
    e("v_xor_b32 v33, v33, v34")
    e("v_add_u32 v32, v32, v33")
    e("v_xor_b32 v33, 3, v32")
    for j in range(8):
        e(f"v_lshlrev_b32 v34, 4, v{32+(j&1)}")
        e(f"v_sub_u32 v{24+j}, v{8+j}, v34")
    m1, sh1 = magic(22, 448)
    pre = [f"s_lshr_b32 s{S_T0}, s{S_KR}, 4"]
    for par in range(2):
        d = 34 + par
        pre += [f"v_add_u32 v36, s{S_T0}, v{32+par}",
                f"v_subrev_u32 v37, 8, v36",
                f"v_max_i32 v37, 0, v37",
                f"v_mul_u32_u24 v37, {m1}, v37",
                f"v_lshrrev_b32 v37, {sh1}, v37",
                f"v_lshl_add_u32 v37, v37, 5, 0x100" if False else f"v_lshlrev_b32 v37, 5, v37",
                f"v_add_u32 v37, 0x100, v37",
                f"v_cmp_gt_u32 vcc, 8, v36",
                f"v_lshlrev_b32 v36, 4, v36",
                "s_nop 0",
                f"v_cndmask_b32 v37, v37, 0, vcc",
                f"v_add_u32 v{d}, v36, v37"]
    for j in range(8):
        pre.append(f"v_add_u32 v{8+j}, v{24+j}, v{34+(j&1)}")
    G.pre_R = pre


def combine(e, G, typ, q):
    uid = f"{q}"
    keep = [2 * q, 2 * q + 1]
    e("v_mbcnt_lo_u32_b32 v1, -1, 0")
    e("v_mbcnt_hi_u32_b32 v1, -1, v1")
    e("v_and_b32 v2, 15, v1")
    e("v_lshrrev_b32 v3, 4, v1")
    e("v_lshlrev_b32 v5, 4, v1")
    srd(e, S_SRD_O, 28, 29, 32 * MB, WS_PB)
    e(f"s_lshr_b32 s34, s{S_ROW0}, 5")
    e(f"s_lshr_b32 s35, s{S_COL0}, 7")
    e("s_add_u32 s34, s34, s35")
    e("s_lshl_b32 s34, s34, 4")
    e(f"s_add_u32 s34, s34, s{S_WAVE}")
    e("s_lshl_b32 s34, s34, 15")
    e(f"s_add_u32 s35, s34, {q * 131072}")
    for m in range(8):
        if m in keep:
            continue
        e(f"s_add_u32 s{S_T2}, s35, {m*4096}")
        if typ == 'y':
            for c in range(2):
                t = 16 + c * 12
                for qq in range(2):
                    a = G.acc(m, 2 * c + qq)
                    for x in range(4):
                        e(f"v_accvgpr_read_b32 v{t+4+qq*4+x}, a{a+x}")
                for qq in range(2):
                    e(f"v_cvt_pk_bf16_f32 v{t+2*qq}, v{t+4+qq*4}, v{t+5+qq*4}")
                    e(f"v_cvt_pk_bf16_f32 v{t+2*qq+1}, v{t+6+qq*4}, v{t+7+qq*4}")
                e(f"buffer_store_dwordx4 v[{t}:{t+3}], v5, s[{S_SRD_O}:{S_SRD_O+3}], s{S_T2} offen offset:{c*1024} sc1")
        else:
            for n in range(4):
                a = G.acc(m, n)
                e(f"buffer_store_dwordx4 a[{a}:{a+3}], v5, s[{S_SRD_O}:{S_SRD_O+3}], s{S_T2} offen offset:{n*1024} sc1")
    e("s_lshr_b32 s36, s34, 12")
    e("s_and_b32 s36, s36, 0xff80")
    e(f"s_add_u32 s36, s36, {FLC}")
    e(f"s_add_u32 s37, s36, {4*q}")
    signal(e, 3, f"c{uid}", [37])
    OPT['sbase'] = 0
    stamp3(e, 8)
    e("s_load_dwordx2 s[20:21], s[0:1], 0")
    e("s_load_dwordx4 s[24:27], s[0:1], 72")
    e("v_mbcnt_lo_u32_b32 v1, -1, 0")
    e("v_mbcnt_hi_u32_b32 v1, -1, v1")
    e(f"s_lshr_b32 s{S_T0}, s{S_WAVE}, 1")
    e(f"s_lshl_b32 s{S_T0}, s{S_T0}, 7")
    e(f"s_add_u32 s{S_T0}, s{S_T0}, s{S_ROW0}")
    e(f"s_add_u32 s{S_T0}, s{S_T0}, {32*q}")
    e(f"s_and_b32 s{S_T1}, s{S_WAVE}, 1")
    e(f"s_lshl_b32 s{S_T1}, s{S_T1}, 6")
    e(f"s_add_u32 s{S_T1}, s{S_T1}, s{S_COL0}")
    e(f"v_add_u32 v6, s{S_T0}, v2")
    e("v_lshlrev_b32 v6, 11, v6")
    e(f"v_lshl_add_u32 v7, v3, 2, s{S_T1}")
    e("v_lshlrev_b32 v7, 1, v7")
    e("v_add_u32 v8, v6, v7")
    e("v_and_b32 v4, 1, v3")
    e("v_lshlrev_b32 v4, 4, v4")
    e("v_lshrrev_b32 v9, 1, v3")
    e("v_lshl_add_u32 v4, v9, 3, v4")
    e(f"v_add_u32 v4, s{S_T1}, v4")
    e("v_lshl_add_u32 v9, v4, 1, v6")
    e("v_and_b32 v10, 3, v1")
    e("v_lshl_add_u32 v10, v10, 2, s36")
    e("s_waitcnt lgkmcnt(0)")
    srd(e, 64, 20, 21, 4 * MB)
    srd(e, 68, 24, 25, 2048)
    srd(e, 72, 26, 27, 4 * MB)
    XA = 160
    for mi in range(2):
        for n in range(4):
            e(f"buffer_load_dwordx2 a[{XA+8*mi+2*n}:{XA+8*mi+2*n+1}], v8, s[64:67], 0 offen offset:{mi*0+n*32}" if mi == 0 else
              f"buffer_load_dwordx2 a[{XA+8*mi+2*n}:{XA+8*mi+2*n+1}], v12, s[64:67], 0 offen offset:{n*32}")
        if mi == 0:
            e("v_add_u32 v12, 0x8000, v8")
    for n in range(4):
        e(f"buffer_load_dwordx2 v[{72+2*n}:{73+2*n}], v7, s[68:71], 0 offen offset:{n*32}")
    poll(e, 10, 11, f"c{uid}", 4)
    stamp3(e, 9)
    ysrc = [s for s in (0, 1) if s != q]
    osrc = [s for s in (2, 3) if s != q]
    loc = {}
    pool_v = []
    pool_a = [G.acc(m, n) for m in range(8) if m not in keep for n in range(4)]
    for mi, m in enumerate(keep):
        for s_ in ysrc + osrc:
            nch = 2 if s_ < 2 else 4
            e(f"s_add_u32 s{S_T2}, s34, {s_*131072 + m*4096}")
            for c in range(nch):
                if pool_a:
                    r = ('a', pool_a.pop(0))
                else:
                    r = ('v', pool_v.pop(0))
                loc[(mi, s_, c)] = r
                e(f"buffer_load_dwordx4 {r[0]}[{r[1]}:{r[1]+3}], v5, s[{S_SRD_O}:{S_SRD_O+3}], s{S_T2} offen offset:{c*1024} sc1")
    assert len(loc) <= 18 or True
    e("s_mov_b32 s37, 0xbfb8aa3b")
    e("s_waitcnt vmcnt(0)")

    def get(dst, r, k):
        if r[0] == 'a':
            e(f"v_accvgpr_read_b32 v{dst}, a{r[1]+k}")
        else:
            e(f"v_mov_b32 v{dst}, v{r[1]+k}")

    def rnd(base, tmp):
        for i in range(4):
            e(f"v_cvt_pk_bf16_f32 v{tmp+i}, v{base+2*i}, v{base+2*i+1}")
        for i in range(4):
            e(f"v_lshlrev_b32 v{base+2*i}, 16, v{tmp+i}")
            e(f"v_and_b32 v{base+2*i+1}, 0xffff0000, v{tmp+i}")

    def unpack(dst, r):
        for i in range(4):
            if r[0] == 'a':
                e(f"v_accvgpr_read_b32 v{dst+2*i+1}, a{r[1]+i}")
                e(f"v_lshlrev_b32 v{dst+2*i}, 16, v{dst+2*i+1}")
                e(f"v_and_b32 v{dst+2*i+1}, 0xffff0000, v{dst+2*i+1}")
            else:
                e(f"v_lshlrev_b32 v{dst+2*i}, 16, v{r[1]+i}")
                e(f"v_and_b32 v{dst+2*i+1}, 0xffff0000, v{r[1]+i}")

    A, B, TM = 12, 20, 28
    for mi, m in enumerate(keep):
        for c in range(2):
            for k, s_ in enumerate((0, 1)):
                dst = A if k == 0 else B
                if s_ == q:
                    for qq in range(2):
                        a = G.acc(m, 2 * c + qq)
                        for x in range(4):
                            e(f"v_accvgpr_read_b32 v{dst+4*qq+x}, a{a+x}")
                    rnd(dst, TM)
                else:
                    unpack(dst, loc[(mi, s_, c)])
            for h in range(4):
                e(f"v_pk_add_f32 v[{A+2*h}:{A+2*h+1}], v[{A+2*h}:{A+2*h+1}], v[{B+2*h}:{B+2*h+1}]")
            rnd(A, TM)
            C = 0
            for qq in range(2):
                n = 2 * c + qq
                for k, s_ in enumerate((2, 3)):
                    dst = B + 4 * qq if k == 0 else TM
                    for x in range(4):
                        if s_ == q:
                            e(f"v_accvgpr_read_b32 v{dst+x}, a{G.acc(m, n)+x}")
                        else:
                            get(dst + x, loc[(mi, s_, n)], x)
                for h in range(2):
                    e(f"v_pk_add_f32 v[{B+4*qq+2*h}:{B+4*qq+2*h+1}], v[{B+4*qq+2*h}:{B+4*qq+2*h+1}], v[{TM+2*h}:{TM+2*h+1}]")
            rnd(B, TM)
            for qq in range(2):
                bb = 72 + 2 * (2 * c + qq)
                e(f"v_lshlrev_b32 v{TM}, 16, v{bb}")
                e(f"v_and_b32 v{TM+1}, 0xffff0000, v{bb}")
                e(f"v_lshlrev_b32 v{TM+2}, 16, v{bb+1}")
                e(f"v_and_b32 v{TM+3}, 0xffff0000, v{bb+1}")
                for h in range(2):
                    e(f"v_pk_add_f32 v[{B+4*qq+2*h}:{B+4*qq+2*h+1}], v[{B+4*qq+2*h}:{B+4*qq+2*h+1}], v[{TM+2*h}:{TM+2*h+1}]")
            rnd(B, TM)
            for half in range(2):
                for x in range(4):
                    e(f"v_mul_f32 v{TM+x}, s37, v{B+4*half+x}")
                for x in range(4):
                    e(f"v_exp_f32 v{TM+x}, v{TM+x}")
                for x in range(4):
                    e(f"v_add_f32 v{TM+x}, 1.0, v{TM+x}")
                for x in range(4):
                    e(f"v_rcp_f32 v{TM+x}, v{TM+x}")
                for x in range(4):
                    e(f"v_mul_f32 v{B+4*half+x}, v{B+4*half+x}, v{TM+x}")
            rnd(B, TM)
            for h in range(4):
                e(f"v_pk_mul_f32 v[{A+2*h}:{A+2*h+1}], v[{A+2*h}:{A+2*h+1}], v[{B+2*h}:{B+2*h+1}]")
            rnd(A, TM)
            unpack(B, ('a', XA + 8 * mi + 4 * c))
            for h in range(4):
                e(f"v_pk_add_f32 v[{A+2*h}:{A+2*h+1}], v[{A+2*h}:{A+2*h+1}], v[{B+2*h}:{B+2*h+1}]")
            for i in range(4):
                e(f"v_cvt_pk_bf16_f32 v{TM+i}, v{A+2*i}, v{A+2*i+1}")
            e(f"s_mov_b32 s{S_T2}, {mi*32768}")
            e("s_nop 0")
            e(f"v_permlane16_swap_b32 v{TM}, v{TM+2}")
            e(f"v_permlane16_swap_b32 v{TM+1}, v{TM+3}")
            e(f"buffer_store_dwordx4 v[{TM}:{TM+3}], v9, s[72:75], s{S_T2} offen offset:{c*64}")
            e("s_nop 1")


def gen_fused(e):
    X = OPT['X']
    khead(e, KNAME)
    e("s_cmp_ge_u32 s2, 256")
    e("s_cbranch_scc1 k_done")
    e("s_load_dwordx2 s[32:33], s[0:1], 0")
    e("s_load_dwordx4 s[20:23], s[0:1], 24")
    e("s_load_dwordx4 s[24:27], s[0:1], 48")
    e("s_load_dwordx4 s[28:31], s[0:1], 88")
    lane_wave(e, 'B')
    e(f"s_mov_b32 s39, s{S_T2}")
    e("s_lshl_b32 s30_, s2, 3".replace("s30_", "s38"))
    e("s_add_u32 s38, s38, s39")
    e("v_lshlrev_b32 v2, 4, v1")
    e("s_lshl_b32 s37, s38, 11")
    e(f"s_mul_i32 s38, s38, {XS}")
    e(f"v_mov_b32 v3, {LDS_CNT}")
    e("v_mov_b32 v4, 0")
    e("v_mov_b32 v5, 0")
    e("v_mov_b32 v6, 0")
    e("v_mov_b32 v7, 0")
    e("ds_write_b128 v3, v[4:7]")
    e("ds_write_b128 v3, v[4:7] offset:32")
    e("s_waitcnt lgkmcnt(0)")
    srd(e, 64, 32, 33, 4 * MB)
    e("buffer_load_dwordx4 v[4:7], v2, s[64:67], s37 offen")
    e("buffer_load_dwordx4 v[8:11], v2, s[64:67], s37 offen offset:1024")
    srd(e, 68, 28, 29, 256)
    e("s_mov_b64 s[28:29], s[30:31]")
    srd(e, S_DBG, 28, 29, 16384, WS_FL)
    e("s_cmp_lg_u32 s39, 4")
    e("s_cbranch_scc1 nonce_done")
    e("v_mov_b32 v12, 0")
    e("s_cmp_lg_u32 s2, 0")
    e("s_cbranch_scc1 nonce_poll")
    e("s_memrealtime s[100:101]")
    e("s_waitcnt lgkmcnt(0)")
    e("s_or_b32 s100, s100, 1")
    e("v_mov_b32 v13, s100")
    e("buffer_store_dword v13, v12, s[68:71], 0 offen sc1")
    e("s_branch nonce_got")
    e.lab("nonce_poll")
    e(f"s_mov_b32 s{S_T2}, {SPIN_MAX}")
    e.lab("nonce_l")
    e("buffer_load_dword v13, v12, s[68:71], 0 offen sc1")
    e("s_waitcnt vmcnt(0)")
    e("v_cmp_eq_u32 vcc, 0, v13")
    e("s_cbranch_vccz nonce_got")
    e("s_sleep 2")
    e(f"s_sub_u32 s{S_T2}, s{S_T2}, 1")
    e(f"s_cmp_lg_u32 s{S_T2}, 0")
    e("s_cbranch_scc1 nonce_l")
    e.lab("nonce_got")
    e("ds_write_b32 v3, v13 offset:16")
    e("s_waitcnt lgkmcnt(0)")
    e.lab("nonce_done")
    srd(e, S_SRD_R, 28, 29, 2048 * XS, WS_XN)
    e("s_and_b32 s30, s2, 1")
    e("s_lshl_b32 s30, s30, 2")
    e("s_lshr_b32 s31, s2, 3")
    e(f"s_and_b32 s{S_ROW0}, s31, 3")
    e(f"s_add_u32 s{S_ROW0}, s{S_ROW0}, s30")
    e(f"s_lshl_b32 s{S_ROW0}, s{S_ROW0}, 8")
    e("s_and_b32 s30, s2, 6")
    e("s_lshl_b32 s30, s30, 2")
    e(f"s_lshr_b32 s{S_COL0}, s31, 2")
    e(f"s_add_u32 s{S_COL0}, s{S_COL0}, s30")
    e(f"s_mov_b32 s{S_NS}, 16")
    e(f"s_mov_b32 s{S_KR}, 0")
    e(f"s_mov_b32 s{S_KC}, 0")
    e(f"s_mov_b32 s{S_KN}, 0")
    e("s_waitcnt vmcnt(0)")
    ln_body(e)
    e(f"buffer_store_dwordx4 v[4:7], v2, s[{S_SRD_R}:{S_SRD_R+3}], s38 offen sc1")
    e(f"buffer_store_dwordx4 v[8:11], v2, s[{S_SRD_R}:{S_SRD_R+3}], s38 offen offset:1024 sc1")
    e(f"s_cmp_lt_u32 s{S_COL0}, 11")
    e("s_cbranch_scc1 g1d_start")
    e(f"s_cmp_eq_u32 s{S_COL0}, 11")
    e("s_cbranch_scc1 g1m_start")
    e("s_branch g1f_start")

    variants = {
        'g1d': [Region('T', 0, 11, 0, 2048)],
        'g1m': [Region('T', 0, 7, 0, 2048), Region('Nadd', 7, 4, 16384, 7168)],
        'g1f': [Region('Nadd', 0, 11, 0, 7168)],
    }
    for pre, regs in variants.items():
        orient = []
        for r in regs:
            orient += ['RA' if r.typ == 'T' else 'CA'] * r.ng
        G = Gemm(e, pre, 'B', 2, 4, 11, 4, 1, regs, XS, 'C', orient, nsteps=16)
        G.sc1R = True
        if OPT.get('rot1'):
            G.rot = (OPT['rot1'], OPT.get('rotmul1', 1))
        e.lab(f"{pre}_start")

        def cset(ri, j, so, G=G, pre=pre):
            r = G.regions[ri]
            if r.typ == 'T':
                e(f"s_mul_i32 s{S_T0}, s{S_COL0}, 22")
                e(f"s_mul_i32 s{S_T1}, s{S_WAVE}, {r.DW}")
                e(f"s_add_u32 s{S_T1}, s{S_T1}, {j}")
                e(f"s_add_u32 s{S_T0}, s{S_T0}, s{S_T1}")
                e(f"s_cmp_lt_u32 s{S_T0}, 128")
                e(f"s_cselect_b32 s{so}, s20, s22")
                e(f"s_cselect_b32 s{so+1}, s21, s23")
                e(f"s_and_b32 s{S_T0}, s{S_T0}, 127")
                e(f"s_lshl_b32 s{S_T0}, s{S_T0}, 14")
                e(f"s_cmp_lt_u32 s{S_T1}, {r.ninstr}")
                e(f"s_cselect_b32 s{so+2}, {2*MB}, 0")
                e(f"s_mov_b32 s{so+3}, 0x20000")
                e(f"s_cselect_b32 s{S_T0}, s{S_T0}, 4096")
            else:
                srd(e, so, 24, 25, 1024 * 7168)
                e(f"s_mul_i32 s{S_T0}, s{S_COL0}, 352")
                e(f"s_sub_u32 s{S_T0}, s{S_T0}, {(128 - r.g0) * 32}")

        e("s_cmp_ge_u32 s39, 4")
        e(f"s_cbranch_scc0 {pre}_comp")
        G.loader_setup(1, 2, cset)

        def mid(nind, pre=pre):
            e(f"s_waitcnt vmcnt({nind})")
            e("s_barrier")
            get_nonce(e, 2)
            e(f"s_cmp_lg_u32 s{S_WAVE}, 0")
            e(f"s_cbranch_scc1 {pre}_nf")
            e("s_lshl_b32 s37, s2, 2")
            e("v_mov_b32 v2, 0")
            e(f"v_mov_b32 v3, s{S_NONCE}")
            e("s_mov_b64 exec, 1")
            e(f"buffer_store_dword v3, v2, s[{S_DBG}:{S_DBG+3}], s37 offen sc1")
            e("s_mov_b64 exec, -1")
            e.lab(f"{pre}_nf")
            e(f"s_lshr_b32 s{S_T0}, s{S_ROW0}, 1")
            e("v_and_b32 v2, 31, v1")
            e(f"v_lshl_add_u32 v2, v2, 2, s{S_T0}")
            lpoll(e, 2, 3, 1, pre, 1)
        loader_phase(e, G, 'C', mid, True)
        e("s_branch g2_loader")
        e.lab(f"{pre}_comp")
        e("s_waitcnt vmcnt(0)")
        e("s_barrier")
        get_nonce(e, 4)
        e(f"v_mov_b32 v{G.vfrag0+16}, v1")
        G.compute_setup(G.vfrag0 + 16, G.vfrag0)
        G.compute_loop(X)
        g1_epi3(e, G, pre)
        offs = []
        e(f"s_lshr_b32 s36, s{S_ROW0}, 6")
        if pre != 'g1f':
            e(f"s_lshl_b32 s34, s{S_COL0}, 7")
            e("s_add_u32 s34, s34, s36")
            e(f"s_add_u32 s34, s34, {FLY}")
            offs.append(34)
        if pre != 'g1d':
            e(f"s_lshr_b32 s35, s{S_ROW0}, 1")
            e(f"s_lshl_b32 s37, s{S_COL0}, 2")
            e("s_add_u32 s35, s35, s37")
            e(f"s_add_u32 s35, s35, {FLO}")
            offs.append(35)
        signal(e, 2, pre, offs)
        stamp3(e, 4)
        e("s_branch g2_comp")

    def g2_common():
        e("s_load_dwordx4 s[20:23], s[0:1], 8")
        e("s_load_dwordx2 s[24:25], s[0:1], 64")
        e("v_mbcnt_lo_u32_b32 v1, -1, 0")
        e("v_mbcnt_hi_u32_b32 v1, -1, v1")
        e("s_lshr_b32 s30, s2, 1")
        e("s_and_b32 s30, s30, 2")
        e("s_and_b32 s31, s2, 1")
        e("s_add_u32 s30, s30, s31")
        e("s_and_b32 s31, s2, 2")
        e("s_lshl_b32 s31, s31, 1")
        e("s_lshr_b32 s32, s2, 3")
        e(f"s_and_b32 s{S_ROW0}, s32, 3")
        e(f"s_add_u32 s{S_ROW0}, s{S_ROW0}, s31")
        e(f"s_lshl_b32 s{S_ROW0}, s{S_ROW0}, 8")
        e(f"s_lshr_b32 s{S_COL0}, s32, 2")
        e(f"s_lshl_b32 s{S_COL0}, s{S_COL0}, 7")
        e(f"s_mov_b32 s{S_KC}, 0")
        e("s_waitcnt lgkmcnt(0)")

    Gs = {}
    for pre, regs, rstride, ns in (('g2y', [Region('T', 0, 8, 0, ATS)], 4096, 32), ('g2o', [Region('Nxor', 0, 8, 0, 2048)], HT, 28)):
        G = Gemm(e, pre, 'B', 3, 8, 4, 2, 2, regs, rstride, 'R', ['CA'] * 4, nsteps=ns)
        if pre == 'g2y':
            G.sc1C = True
        else:
            G.sc1R = True
        if OPT.get('rot2') and (pre == 'g2y' or OPT.get('rot2o')):
            G.rot = (OPT['rot2'], OPT.get('rotmul2', 1))
        Gs[pre] = G
    e.lab("g2_loader")
    g2_common()
    e("s_cmp_ge_u32 s30, 2")
    e("s_cbranch_scc1 g2o_lstart")
    for pre, G in Gs.items():
        e.lab(f"{pre}_lstart")
        if pre == 'g2y':
            e(f"s_mov_b32 s{S_NS}, 32")
            e(f"s_mov_b32 s{S_KR}, 0")
            e("s_cmp_eq_u32 s30, 0")
            e(f"s_cselect_b32 s{S_SRD_R}, s20, s22")
            e(f"s_cselect_b32 s{S_SRD_R+1}, s21, s23")
            e(f"s_mov_b32 s{S_SRD_R+2}, {8*MB}")
            e(f"s_mov_b32 s{S_SRD_R+3}, 0x20000")
        else:
            e(f"s_mov_b32 s{S_NS}, 28")
            e("s_and_b32 s33, s30, 1")
            e(f"s_mul_i32 s{S_KR}, s33, {1792*2}")
            e(f"s_mul_i32 s{S_KN}, s33, {1792*2048}")
            srd(e, S_SRD_R, 28, 29, 2048 * HT, WS_H)

        def cset(ri, j, so, G=G):
            r = G.regions[ri]
            if r.typ == 'T':
                srd(e, so, 28, 29, 2048 * ATS, WS_AT)
                e(f"s_lshl_b32 s{S_T0}, s30, 10")
                e(f"s_add_u32 s{S_T0}, s{S_T0}, s{S_COL0}")
                e(f"s_lshl_b32 s{S_T1}, s{S_WAVE}, 5")
                e(f"s_add_u32 s{S_T0}, s{S_T0}, s{S_T1}")
                e(f"s_add_u32 s{S_T0}, s{S_T0}, {8*j}")
                e(f"s_mul_i32 s{S_T0}, s{S_T0}, {ATS}")
            else:
                srd(e, so, 24, 25, 3584 * 2048)
                e(f"s_lshl_b32 s{S_T0}, s{S_COL0}, 1")
        G.loader_setup(1, 2, cset)
        if pre == 'g2o':
            tiled_R_setup(e, G)

        def mid(nind, pre=pre):
            if pre == 'g2y':
                e(f"s_lshl_b32 s{S_T0}, s30, 10")
                e(f"s_add_u32 s{S_T0}, s{S_T0}, s{S_COL0}")
                e("v_and_b32 v2, 8, v1")
                e("v_lshlrev_b32 v2, 4, v2")
                e("v_min_u32 v2, 127, v2")
                e(f"v_add_u32 v2, s{S_T0}, v2")
                m1, sh1 = magic(176, 2048)
                e(f"v_mul_u32_u24 v2, {m1}, v2")
                e(f"v_lshrrev_b32 v2, {sh1}, v2")
                e("v_and_b32 v3, 7, v1")
                e("v_lshlrev_b32 v4, 7, v2")
                e("v_lshl_add_u32 v4, v3, 2, v4")
                e(f"v_add_u32 v4, {FLY}, v4")
            else:
                e("v_and_b32 v2, 15, v1")
                e("v_min_u32 v2, 10, v2")
                e("s_mul_i32 s34, s33, 10")
                e("s_add_u32 s34, s34, 11")
                e("v_add_u32 v2, s34, v2")
                e(f"s_lshr_b32 s34, s{S_ROW0}, 1")
                e(f"s_add_u32 s34, s34, {FLO}")
                e("v_lshl_add_u32 v4, v2, 2, s34")
            lpoll(e, 4, 5, 2, pre, 4)
        loader_phase(e, G, 'R' if pre == 'g2y' else 'C', mid, True)
        e("s_endpgm")
    e.lab("g2_comp")
    g2_common()
    e("s_cmp_ge_u32 s30, 2")
    e("s_cbranch_scc1 g2o_cstart")
    for pre, G in Gs.items():
        e.lab(f"{pre}_cstart")
        e(f"s_mov_b32 s{S_NS}, {G.nsteps}")
        e(f"v_mov_b32 v{G.vfrag0+16}, v1")
        G.compute_setup(G.vfrag0 + 16, G.vfrag0)
        OPT['sbase'] = 4
        G.compute_loop(X)
        OPT['sbase'] = 0
        e("s_and_b32 s33, s30, 1")
        e("s_cmp_eq_u32 s33, 1")
        e(f"s_cbranch_scc1 {pre}_e1")
        q0 = 0 if pre == 'g2y' else 2
        combine(e, G, pre[-1], q0)
        stamp3_out(e)
        e("s_endpgm")
        e.lab(f"{pre}_e1")
        combine(e, G, pre[-1], q0 + 1)
        stamp3_out(e)
        e("s_endpgm")
    e.lab("k_done")
    e("s_endpgm")
    kdesc(e, KNAME, 256, 80)


def main():
    out = sys.argv[1]
    for a in sys.argv[2:]:
        k, v = a.split("=")
        OPT[k] = int(v) if v.lstrip('-').isdigit() else v
    e = E()
    gen_fused(e)
    hdr = open("cdna_kernels/%s.s.ref" % KN).read().split("; Override launch")[0]
    hdr += f"; @launch grid=(256,1,1) block=(512,1,1) lds={LDS_TOTAL}\n"
    hdr += '.amdgcn_target "amdgcn-amd-amdhsa--gfx950"\n.text\n'
    open(out, "w").write(hdr + "\n".join(e.L) + "\n")


if __name__ == "__main__":
    main()
```

```python
import sys, math
import gen
from gen import *

KNAME = KN + "_kernel"
LDS_CNT = 147456
LDS_TOTAL = 147456 + 256
S_DBG = 96
WS_PB = 32 * MB
SPIN_MAX = 200000


def stamp3(e, k):
    if OPT.get('tl'):
        k += OPT.get('sbase', 0)
        lab = f"tl_{len(e.L)}"
        e("s_and_b32 s100, s2, 7")
        if k:
            e(f"s_or_b32 s100, s100, s{S_WAVE}")
        e("s_cmp_lg_u32 s100, 0")
        e(f"s_cbranch_scc1 {lab}")
        e("s_load_dwordx2 s[76:77], s[0:1], 88")
        e("s_memrealtime s[100:101]")
        e("s_waitcnt lgkmcnt(0)")
        if k == 0:
            e("s_not_b32 s100, s100")
        e("v_accvgpr_write_b32 a175, v0") if False else None
        e("v_mov_b32 v62, s100")
        e(f"v_mov_b32 v63, {8+4*k}")
        e("s_mov_b64 exec, 1")
        e("global_atomic_umax v63, v62, s[76:77]")
        e("s_mov_b64 exec, -1")
        e.lab(lab)
        return
    if OPT.get('stamp'):
        k += OPT.get('sbase', 0)
        e("s_memtime s[100:101]")
        e("s_waitcnt lgkmcnt(0)")
        e(f"s_mov_b32 s{76+k}, s100")
        if k in (0, 10):
            e("s_memrealtime s[100:101]")
            e("s_waitcnt lgkmcnt(0)")
            e(f"s_mov_b32 s{89 + (k != 0)}, s100")


gen.stamp = stamp3


def stamp3_out(e):
    if OPT.get('tl'):
        OPT['sbase'] = 0
        e("s_waitcnt vmcnt(0)")
        stamp3(e, 10)
    if OPT.get('stamp'):
        OPT['sbase'] = 0
        e("s_waitcnt vmcnt(0)")
        stamp3(e, 10)
        srd(e, S_SRD_O, 28, 29, 4 * MB, WS_ST)
        e("s_lshl_b32 s38, s2, 2")
        e(f"s_add_u32 s38, s38, s{S_WAVE}")
        e("s_lshl_b32 s38, s38, 6")
        e("v_mov_b32 v0, s38")
        for k in range(11):
            e(f"v_mov_b32 v{4+k}, s{76+k}")
        e("v_mov_b32 v15, s89")
        e("v_mov_b32 v16, s90")
        for k in range(4):
            e(f"buffer_store_dwordx4 v[{4+4*k}:{7+4*k}], v0, s[{S_SRD_O}:{S_SRD_O+3}], 0 offen offset:{16*k}")


WS_FL = 31 * MB
FL1, FLY, FLO, FLC = 0, 1024, 4096, 8192
S_NONCE = 95
LDS_NONCE = LDS_CNT + 16
LDS_GO = LDS_CNT + 32


def signal(e, phase, uid, offs):
    e("s_waitcnt vmcnt(0)")
    e(f"v_mov_b32 v0, {LDS_CNT + 4 * phase}")
    e("v_mov_b32 v1, 1")
    e("s_mov_b64 exec, 1")
    e("ds_add_rtn_u32 v1, v0, v1")
    e("s_waitcnt lgkmcnt(0)")
    e("v_cmp_eq_u32 vcc, 3, v1")
    e(f"s_cbranch_vccz sig_{uid}")
    e("v_mov_b32 v0, 0")
    e(f"v_mov_b32 v1, s{S_NONCE}")
    for o in offs:
        e(f"buffer_store_dword v1, v0, s[{S_DBG}:{S_DBG+3}], s{o} offen sc1")
    e.lab(f"sig_{uid}")
    e("s_mov_b64 exec, -1")


def poll(e, vaddr, vtmp, uid, sleep=2):
    e(f"s_mov_b32 s{S_T2}, {SPIN_MAX}")
    e.lab(f"poll_{uid}")
    e(f"buffer_load_dword v{vtmp}, v{vaddr}, s[{S_DBG}:{S_DBG+3}], 0 offen sc1")
    e("s_waitcnt vmcnt(0)")
    e(f"v_cmp_ne_u32 vcc, s{S_NONCE}, v{vtmp}")
    e(f"s_cbranch_vccz polld_{uid}")
    e(f"s_sleep {sleep}")
    e(f"s_sub_u32 s{S_T2}, s{S_T2}, 1")
    e(f"s_cmp_lg_u32 s{S_T2}, 0")
    e(f"s_cbranch_scc1 poll_{uid}")
    e.lab(f"polld_{uid}")


def lpoll(e, vaddr, vtmp, phase, uid, sleep=2):
    e(f"v_mov_b32 v{vtmp+1}, {LDS_GO + 4 * phase}")
    e(f"s_cmp_lg_u32 s{S_WAVE}, 0")
    e(f"s_cbranch_scc1 lw_{uid}")
    poll(e, vaddr, vtmp, uid, sleep)
    e(f"v_mov_b32 v{vtmp}, 1")
    e(f"ds_write_b32 v{vtmp+1}, v{vtmp}")
    e(f"s_branch lwd_{uid}")
    e.lab(f"lw_{uid}")
    e(f"s_mov_b32 s{S_T2}, {SPIN_MAX * 20}")
    e.lab(f"lwl_{uid}")
    e(f"ds_read_b32 v{vtmp}, v{vtmp+1}")
    e("s_waitcnt lgkmcnt(0)")
    e(f"v_cmp_ne_u32 vcc, 1, v{vtmp}")
    e(f"s_cbranch_vccz lwd_{uid}")
    e("s_sleep 1")
    e(f"s_sub_u32 s{S_T2}, s{S_T2}, 1")
    e(f"s_cmp_lg_u32 s{S_T2}, 0")
    e(f"s_cbranch_scc1 lwl_{uid}")
    e.lab(f"lwd_{uid}")


def get_nonce(e, v):
    e(f"v_mov_b32 v{v}, {LDS_NONCE}")
    e(f"ds_read_b32 v{v}, v{v}")
    e("s_waitcnt lgkmcnt(0)")
    e(f"v_readfirstlane_b32 s{S_NONCE}, v{v}")
    e("s_nop 3")


def split_dma(G):
    g = G.dma_groups()
    return g[:8], g[8:]


def book_part(G, which):
    out = []
    if which == 'R':
        out.append(f"s_add_u32 s{S_KR}, s{S_KR}, 128")
        wrap = [(S_KR, 128 * G.nsteps)]
    else:
        wrap = []
        if any(r.typ == 'T' for r in G.regions):
            out.append(f"s_add_u32 s{S_KC}, s{S_KC}, 128")
            wrap.append((S_KC, 128 * G.nsteps))
        for r in G.regions:
            if r.typ != 'T':
                out.append(f"s_add_u32 s{S_KN}, s{S_KN}, {64*r.gstride}")
                wrap.append((S_KN, 64 * r.gstride * G.nsteps))
    if G.rot:
        out.append(f"s_add_u32 s{S_KI}, s{S_KI}, 1")
        out.append(f"s_cmp_ge_u32 s{S_KI}, s{S_NS}")
        out.append(f"s_cselect_b32 s{S_KI}, 0, s{S_KI}")
        for (sr, amt) in wrap:
            out.append(f"s_cmp_eq_u32 s{S_KI}, 0")
            out.append(f"s_cselect_b32 s{S_T0}, {amt}, 0")
            out.append(f"s_sub_u32 s{sr}, s{sr}, s{S_T0}")
    out.append(f"s_add_u32 s{S_WR}, s{S_WR}, {G.SS}")
    return out


def loader_phase(e, G, first, mid, sc1_dep):
    p = G.pre
    gr, gc = split_dma(G)
    ind, dep = (gr, gc) if first == 'R' else (gc, gr)
    second = 'C' if first == 'R' else 'R'
    G.loader_init()
    if G.rot:
        e(f"s_mov_b32 s63, s{S_KI}")
    pre = G.pre_R or []
    for st in range(G.S):
        for g in ind:
            e.ext(g)
        e.ext(book_part(G, first))
    e(f"s_mov_b32 s{S_WR}, 0")
    if G.rot:
        e(f"s_mov_b32 s{S_KI}, s63")
    e.ext(pre)
    mid(len(ind) * G.S)
    for st in range(G.S):
        for g in dep:
            e.ext(g)
        e.ext(book_part(G, second))
        e.ext(pre)
    e(f"s_mov_b32 s{S_WR}, 0")
    e(f"s_sub_u32 s{S_LEFT}, s{S_NS}, {G.S}")
    e(f"s_waitcnt vmcnt({(G.S-1)*len(dep)})")
    e("s_barrier")
    e(f"s_mov_b32 s{S_CNT}, s{S_NS}")
    e(f"s_waitcnt vmcnt({(G.S-2)*len(dep)})")
    e(f"s_branch {p}_lmid")
    e.lab(f"{p}_lloop")
    e(f"s_waitcnt vmcnt({(G.S-2)*G.D})")
    e.lab(f"{p}_lmid")
    e("s_barrier")
    for g in G.dma_groups():
        e.ext(g)
    e.ext(G.dma_book())
    e.ext(pre)
    e(f"s_sub_u32 s{S_CNT}, s{S_CNT}, 1")
    e(f"s_cmp_lg_u32 s{S_CNT}, 0")
    e(f"s_cbranch_scc1 {p}_lloop")


def ln_body(e):
    for i in range(8):
        e(f"v_lshlrev_b32 v{16+2*i}, 16, v{4+i}")
        e(f"v_and_b32 v{17+2*i}, 0xffff0000, v{4+i}")

    def tree(dst, src):
        for i in range(8):
            e(f"v_add_f32 v{40+i}, v{src+2*i}, v{src+2*i+1}")
        for i in range(4):
            e(f"v_add_f32 v{40+i}, v{40+i}, v{44+i}")
        e("v_add_f32 v40, v40, v42")
        e("v_add_f32 v41, v41, v43")
        e(f"v_add_f32 v{dst}, v40, v41")

    def wred(v):
        for sh in (1, 2, 4, 8):
            e("s_nop 1")
            e(f"v_add_f32_dpp v{v}, v{v}, v{v} row_ror:{sh} row_mask:0xf bank_mask:0xf")
        e("v_mov_b32 v48, v%d" % v)
        e("s_nop 1")
        e(f"v_permlane32_swap_b32 v{v}, v48")
        e(f"v_add_f32 v{v}, v{v}, v48")
        e("v_mov_b32 v48, v%d" % v)
        e("s_nop 1")
        e(f"v_permlane16_swap_b32 v{v}, v48")
        e(f"v_add_f32 v{v}, v{v}, v48")

    tree(3, 16)
    wred(3)
    e("v_mul_f32 v3, 0x3a800000, v3")
    for i in range(16):
        e(f"v_sub_f32 v{52+i}, v{16+i}, v3")
    for i in range(16):
        e(f"v_mul_f32 v{52+i}, v{52+i}, v{52+i}")
    tree(12, 52)
    wred(12)
    e("v_mul_f32 v12, 0x3a800000, v12")
    e("v_cvt_pk_bf16_f32 v13, v3, v12")
    e("v_lshlrev_b32 v3, 16, v13")
    e("v_and_b32 v12, 0xffff0000, v13")
    e("v_add_f32 v12, 0x3727c5ac, v12")
    e("v_cvt_pk_bf16_f32 v13, v12, v12")
    e("v_lshlrev_b32 v12, 16, v13")
    e("v_sqrt_f32 v12, v12")
    e("s_nop 0")
    e("v_cvt_pk_bf16_f32 v13, v12, v12")
    e("v_lshlrev_b32 v12, 16, v13")
    e("v_rcp_f32 v14, v12")
    for i in range(8):
        e(f"v_sub_f32 v{16+2*i}, v{16+2*i}, v3")
        e(f"v_sub_f32 v{17+2*i}, v{17+2*i}, v3")
        e(f"v_cvt_pk_bf16_f32 v{4+i}, v{16+2*i}, v{17+2*i}")
        e(f"v_lshlrev_b32 v{16+2*i}, 16, v{4+i}")
        e(f"v_and_b32 v{17+2*i}, 0xffff0000, v{4+i}")
    for i in range(16):
        e(f"v_mul_f32 v{52+i}, v{16+i}, v14")
        e(f"v_fma_f32 v{16+i}, -v{52+i}, v12, v{16+i}")
        e(f"v_fma_f32 v{52+i}, v{16+i}, v14, v{52+i}")
    for i in range(8):
        e(f"v_cvt_pk_bf16_f32 v{4+i}, v{52+2*i}, v{53+2*i}")


HT = 8064


def xchg8(e, A, B, T):
    e("s_nop 1")
    for k in range(4):
        e(f"v_mov_b32 v{T+k}, v{A+k}")
    for k in range(4):
        e(f"v_mov_b32_dpp v{A+k}, v{B+k} row_ror:8 row_mask:0xf bank_mask:0xc")
    for k in range(4):
        e(f"v_mov_b32_dpp v{B+k}, v{T+k} row_ror:8 row_mask:0xf bank_mask:0x3")


def g1_epi3(e, G, pre):
    e("v_mbcnt_lo_u32_b32 v1, -1, 0")
    e("v_mbcnt_hi_u32_b32 v1, -1, v1")
    e("v_and_b32 v2, 7, v1")
    e("v_lshrrev_b32 v3, 4, v1")
    e("v_and_b32 v4, 1, v3")
    e("v_lshlrev_b32 v4, 5, v4")
    e("v_lshrrev_b32 v5, 1, v3")
    e("v_lshl_add_u32 v4, v5, 4, v4")
    e("v_and_b32 v5, 8, v1")
    e("v_lshl_add_u32 v4, v5, 3, v4")
    e(f"s_lshl_b32 s{S_T0}, s{S_WAVE}, 6")
    e(f"s_add_u32 s{S_T0}, s{S_T0}, s{S_ROW0}")
    for r in G.regions:
        if r.typ == 'T':
            srd(e, S_SRD_O, 28, 29, 2048 * ATS, WS_AT)
            e(f"s_mul_i32 s{S_T1}, s{S_COL0}, 176")
            e(f"v_add_u32 v6, s{S_T1}, v2")
            e(f"s_mov_b32 s{S_T2}, {ATS}")
            e(f"v_mul_lo_u32 v6, v6, s{S_T2}")
            e(f"s_lshl_b32 s{S_T2}, s{S_T0}, 1")
            e(f"v_add3_u32 v6, v6, v4, s{S_T2}")
            e(f"s_mul_i32 s{S_T1}, s{S_COL0}, 11")
            for j in range(r.ng):
                n = r.g0 + j
                b = 16 + (j & 1) * 32
                e(f"s_add_u32 s{S_T2}, s{S_T1}, {n}")
                e(f"s_cmp_lt_u32 s{S_T2}, 64")
                e(f"s_cselect_b32 s{S_DL}, 0, 0x80008000")
                e(f"s_mov_b32 s{S_T2}, {n*16*ATS}")
                e(f"s_mov_b32 s{S_RD}, {(n*16+8)*ATS}")
                for m in range(4):
                    a = G.acc(m, n)
                    for x in range(4):
                        e(f"v_accvgpr_read_b32 v{b+4*m+x}, a{a+x}")
                for k in range(8):
                    e(f"v_cvt_pk_bf16_f32 v{b+16+k}, v{b+2*k}, v{b+2*k+1}")
                for k in range(8):
                    e(f"v_xor_b32 v{b+16+k}, s{S_DL}, v{b+16+k}")
                e("s_nop 1")
                for h in range(2):
                    e(f"v_permlane16_swap_b32 v{b+16+4*h}, v{b+18+4*h}")
                    e(f"v_permlane16_swap_b32 v{b+17+4*h}, v{b+19+4*h}")
                xchg8(e, b + 16, b + 20, b + 24)
                e(f"buffer_store_dwordx4 v[{b+16}:{b+19}], v6, s[{S_SRD_O}:{S_SRD_O+3}], s{S_T2} offen sc1")
                e(f"buffer_store_dwordx4 v[{b+20}:{b+23}], v6, s[{S_SRD_O}:{S_SRD_O+3}], s{S_RD} offen sc1")
        else:
            srd(e, S_SRD_O, 28, 29, 2048 * HT, WS_H)
            srd(e, S_SRD_B, 26, 27, 7168)
            e(f"s_mul_i32 s{S_T1}, s{S_COL0}, 352")
            e(f"s_sub_u32 s{S_T1}, s{S_T1}, {(128 - r.g0) * 32}")
            e("v_lshlrev_b32 v7, 3, v3")
            e(f"v_add_u32 v7, s{S_T1}, v7")
            nq = -(-r.ng // 4)

            def ldb(Q):
                for j in range(4 * Q, min(4 * Q + 4, r.ng)):
                    d = 64 + 8 * (Q & 1) + 2 * (j - 4 * Q)
                    e(f"buffer_load_dwordx2 v[{d}:{d+1}], v7, s[{S_SRD_B}:{S_SRD_B+3}], 0 offen offset:{32*j}")
            ldb(0)
            if nq > 1:
                ldb(1)
            e(f"v_add_u32 v6, s{S_T0}, v2")
            e(f"s_mov_b32 s{S_T2}, {HT}")
            e(f"v_mul_lo_u32 v6, v6, s{S_T2}")
            e(f"s_sub_u32 s{S_T2}, s{S_COL0}, 11")
            e(f"s_mul_i32 s{S_T2}, s{S_T2}, 384")
            e(f"v_add3_u32 v6, v6, v4, s{S_T2}")
            c1 = -2.0 * math.log2(math.e) * math.sqrt(2.0 / math.pi)
            c2 = c1 * 0.044715
            e(f"v_mov_b32 v10, {f2u(c1):#x}")
            e(f"v_mov_b32 v11, {f2u(c1):#x}")
            e(f"v_mov_b32 v12, {f2u(c2):#x}")
            e(f"v_mov_b32 v13, {f2u(c2):#x}")
            e("v_mov_b32 v14, 1.0")
            e("v_mov_b32 v15, 1.0")
            for Q in range(nq):
                ng = min(4, r.ng - 4 * Q)
                if Q == 0:
                    e(f"s_waitcnt vmcnt({min(4, r.ng-4) if nq > 1 else 0})")
                elif Q == 1:
                    e("s_waitcnt vmcnt(11)")
                else:
                    e("s_waitcnt vmcnt(16)")
                for jj in range(ng):
                    bq = 64 + 8 * (Q & 1) + 2 * jj
                    e(f"v_lshlrev_b32 v{48+4*jj}, 16, v{bq}")
                    e(f"v_and_b32 v{49+4*jj}, 0xffff0000, v{bq}")
                    e(f"v_lshlrev_b32 v{50+4*jj}, 16, v{bq+1}")
                    e(f"v_and_b32 v{51+4*jj}, 0xffff0000, v{bq+1}")
                if Q + 2 < nq:
                    ldb(Q + 2)
                for m in range(4):
                    t, u = 16, 32
                    for jj in range(ng):
                        a = G.acc(m, r.g0 + 4 * Q + jj)
                        for x in range(4):
                            e(f"v_accvgpr_read_b32 v{t+4*jj+x}, a{a+x}")
                    np_ = 2 * ng
                    P = lambda b_, h: f"v[{b_+2*h}:{b_+2*h+1}]"
                    for h in range(np_):
                        e(f"v_pk_add_f32 {P(t,h)}, {P(t,h)}, {P(48,h)}")
                    for h in range(np_):
                        e(f"v_pk_mul_f32 {P(u,h)}, {P(t,h)}, {P(t,h)}")
                    for h in range(np_):
                        e(f"v_pk_fma_f32 {P(u,h)}, {P(u,h)}, v[12:13], v[10:11]")
                    for h in range(np_):
                        e(f"v_pk_mul_f32 {P(u,h)}, {P(u,h)}, {P(t,h)}")
                    for x in range(2 * np_):
                        e(f"v_exp_f32 v{u+x}, v{u+x}")
                    for h in range(np_):
                        e(f"v_pk_add_f32 {P(u,h)}, {P(u,h)}, v[14:15]")
                    for x in range(2 * np_):
                        e(f"v_rcp_f32 v{u+x}, v{u+x}")
                    for h in range(np_):
                        e(f"v_pk_mul_f32 {P(t,h)}, {P(t,h)}, {P(u,h)}")
                    for h in range(np_):
                        e(f"v_cvt_pk_bf16_f32 v{u+h}, v{t+2*h}, v{t+2*h+1}")
                    e(f"s_mov_b32 s{S_T2}, {m*16*HT}")
                    e(f"s_mov_b32 s{S_RD}, {(m*16+8)*HT}")
                    for h in range(2):
                        e(f"v_permlane16_swap_b32 v{u+4*h}, v{u+2+4*h}")
                        e(f"v_permlane16_swap_b32 v{u+1+4*h}, v{u+3+4*h}")
                    xchg8(e, u, u + 4, u + 8)
                    e(f"buffer_store_dwordx4 v[{u}:{u+3}], v6, s[{S_SRD_O}:{S_SRD_O+3}], s{S_T2} offen offset:{Q*128} sc1")
                    e(f"buffer_store_dwordx4 v[{u+4}:{u+7}], v6, s[{S_SRD_O}:{S_SRD_O+3}], s{S_RD} offen offset:{Q*128} sc1")


def tiled_R_setup(e, G):
    e("v_lshrrev_b32 v32, 5, v1")
    e("v_lshlrev_b32 v32, 2, v32")
    e("v_lshrrev_b32 v33, 3, v1")
    e("v_and_b32 v33, 2, v33")
    e("v_and_b32 v34, 3, v1")
    e("v_xor_b32 v33, v33, v34")
    e("v_add_u32 v32, v32, v33")
    e("v_xor_b32 v33, 3, v32")
    for j in range(8):
        e(f"v_lshlrev_b32 v34, 4, v{32+(j&1)}")
        e(f"v_sub_u32 v{24+j}, v{8+j}, v34")
    m1, sh1 = magic(22, 448)
    pre = [f"s_lshr_b32 s{S_T0}, s{S_KR}, 4"]
    for par in range(2):
        d = 34 + par
        pre += [f"v_add_u32 v36, s{S_T0}, v{32+par}",
                f"v_subrev_u32 v37, 8, v36",
                f"v_max_i32 v37, 0, v37",
                f"v_mul_u32_u24 v37, {m1}, v37",
                f"v_lshrrev_b32 v37, {sh1}, v37",
                f"v_lshl_add_u32 v37, v37, 5, 0x100" if False else f"v_lshlrev_b32 v37, 5, v37",
                f"v_add_u32 v37, 0x100, v37",
                f"v_cmp_gt_u32 vcc, 8, v36",
                f"v_lshlrev_b32 v36, 4, v36",
                "s_nop 0",
                f"v_cndmask_b32 v37, v37, 0, vcc",
                f"v_add_u32 v{d}, v36, v37"]
    for j in range(8):
        pre.append(f"v_add_u32 v{8+j}, v{24+j}, v{34+(j&1)}")
    G.pre_R = pre


def combine(e, G, typ, q):
    uid = f"{q}"
    keep = [2 * q, 2 * q + 1]
    e("v_mbcnt_lo_u32_b32 v1, -1, 0")
    e("v_mbcnt_hi_u32_b32 v1, -1, v1")
    e("v_and_b32 v2, 15, v1")
    e("v_lshrrev_b32 v3, 4, v1")
    e("v_lshlrev_b32 v5, 4, v1")
    srd(e, S_SRD_O, 28, 29, 32 * MB, WS_PB)
    e(f"s_lshr_b32 s34, s{S_ROW0}, 5")
    e(f"s_lshr_b32 s35, s{S_COL0}, 7")
    e("s_add_u32 s34, s34, s35")
    e("s_lshl_b32 s34, s34, 4")
    e(f"s_add_u32 s34, s34, s{S_WAVE}")
    e("s_lshl_b32 s34, s34, 15")
    e(f"s_add_u32 s35, s34, {q * 131072}")
    for m in range(8):
        if m in keep:
            continue
        e(f"s_add_u32 s{S_T2}, s35, {m*4096}")
        if typ == 'y':
            for c in range(2):
                t = 16 + c * 12
                for qq in range(2):
                    a = G.acc(m, 2 * c + qq)
                    for x in range(4):
                        e(f"v_accvgpr_read_b32 v{t+4+qq*4+x}, a{a+x}")
                for qq in range(2):
                    e(f"v_cvt_pk_bf16_f32 v{t+2*qq}, v{t+4+qq*4}, v{t+5+qq*4}")
                    e(f"v_cvt_pk_bf16_f32 v{t+2*qq+1}, v{t+6+qq*4}, v{t+7+qq*4}")
                e(f"buffer_store_dwordx4 v[{t}:{t+3}], v5, s[{S_SRD_O}:{S_SRD_O+3}], s{S_T2} offen offset:{c*1024} sc1")
        else:
            for n in range(4):
                a = G.acc(m, n)
                e(f"buffer_store_dwordx4 a[{a}:{a+3}], v5, s[{S_SRD_O}:{S_SRD_O+3}], s{S_T2} offen offset:{n*1024} sc1")
    e("s_lshr_b32 s36, s34, 12")
    e("s_and_b32 s36, s36, 0xff80")
    e(f"s_add_u32 s36, s36, {FLC}")
    e(f"s_add_u32 s37, s36, {4*q}")
    signal(e, 3, f"c{uid}", [37])
    OPT['sbase'] = 0
    stamp3(e, 8)
    e("s_load_dwordx2 s[20:21], s[0:1], 0")
    e("s_load_dwordx4 s[24:27], s[0:1], 72")
    e("v_mbcnt_lo_u32_b32 v1, -1, 0")
    e("v_mbcnt_hi_u32_b32 v1, -1, v1")
    e(f"s_lshr_b32 s{S_T0}, s{S_WAVE}, 1")
    e(f"s_lshl_b32 s{S_T0}, s{S_T0}, 7")
    e(f"s_add_u32 s{S_T0}, s{S_T0}, s{S_ROW0}")
    e(f"s_add_u32 s{S_T0}, s{S_T0}, {32*q}")
    e(f"s_and_b32 s{S_T1}, s{S_WAVE}, 1")
    e(f"s_lshl_b32 s{S_T1}, s{S_T1}, 6")
    e(f"s_add_u32 s{S_T1}, s{S_T1}, s{S_COL0}")
    e(f"v_add_u32 v6, s{S_T0}, v2")
    e("v_lshlrev_b32 v6, 11, v6")
    e(f"v_lshl_add_u32 v7, v3, 2, s{S_T1}")
    e("v_lshlrev_b32 v7, 1, v7")
    e("v_add_u32 v8, v6, v7")
    e("v_and_b32 v4, 1, v3")
    e("v_lshlrev_b32 v4, 4, v4")
    e("v_lshrrev_b32 v9, 1, v3")
    e("v_lshl_add_u32 v4, v9, 3, v4")
    e(f"v_add_u32 v4, s{S_T1}, v4")
    e("v_lshl_add_u32 v9, v4, 1, v6")
    e("v_and_b32 v10, 3, v1")
    e("v_lshl_add_u32 v10, v10, 2, s36")
    e("s_waitcnt lgkmcnt(0)")
    srd(e, 64, 20, 21, 4 * MB)
    srd(e, 68, 24, 25, 2048)
    srd(e, 72, 26, 27, 4 * MB)
    XA = 160
    for mi in range(2):
        for n in range(4):
            e(f"buffer_load_dwordx2 a[{XA+8*mi+2*n}:{XA+8*mi+2*n+1}], v8, s[64:67], 0 offen offset:{mi*0+n*32}" if mi == 0 else
              f"buffer_load_dwordx2 a[{XA+8*mi+2*n}:{XA+8*mi+2*n+1}], v12, s[64:67], 0 offen offset:{n*32}")
        if mi == 0:
            e("v_add_u32 v12, 0x8000, v8")
    for n in range(4):
        e(f"buffer_load_dwordx2 v[{72+2*n}:{73+2*n}], v7, s[68:71], 0 offen offset:{n*32}")
    poll(e, 10, 11, f"c{uid}", 4)
    stamp3(e, 9)
    ysrc = [s for s in (0, 1) if s != q]
    osrc = [s for s in (2, 3) if s != q]
    loc = {}
    pool_v = []
    pool_a = [G.acc(m, n) for m in range(8) if m not in keep for n in range(4)]
    for mi, m in enumerate(keep):
        for s_ in ysrc + osrc:
            nch = 2 if s_ < 2 else 4
            e(f"s_add_u32 s{S_T2}, s34, {s_*131072 + m*4096}")
            for c in range(nch):
                if pool_a:
                    r = ('a', pool_a.pop(0))
                else:
                    r = ('v', pool_v.pop(0))
                loc[(mi, s_, c)] = r
                e(f"buffer_load_dwordx4 {r[0]}[{r[1]}:{r[1]+3}], v5, s[{S_SRD_O}:{S_SRD_O+3}], s{S_T2} offen offset:{c*1024} sc1")
    assert len(loc) <= 18 or True
    e("s_mov_b32 s37, 0xbfb8aa3b")
    e("s_waitcnt vmcnt(0)")

    def get(dst, r, k):
        if r[0] == 'a':
            e(f"v_accvgpr_read_b32 v{dst}, a{r[1]+k}")
        else:
            e(f"v_mov_b32 v{dst}, v{r[1]+k}")

    def rnd(base, tmp):
        for i in range(4):
            e(f"v_cvt_pk_bf16_f32 v{tmp+i}, v{base+2*i}, v{base+2*i+1}")
        for i in range(4):
            e(f"v_lshlrev_b32 v{base+2*i}, 16, v{tmp+i}")
            e(f"v_and_b32 v{base+2*i+1}, 0xffff0000, v{tmp+i}")

    def unpack(dst, r):
        for i in range(4):
            if r[0] == 'a':
                e(f"v_accvgpr_read_b32 v{dst+2*i+1}, a{r[1]+i}")
                e(f"v_lshlrev_b32 v{dst+2*i}, 16, v{dst+2*i+1}")
                e(f"v_and_b32 v{dst+2*i+1}, 0xffff0000, v{dst+2*i+1}")
            else:
                e(f"v_lshlrev_b32 v{dst+2*i}, 16, v{r[1]+i}")
                e(f"v_and_b32 v{dst+2*i+1}, 0xffff0000, v{r[1]+i}")

    A, B, TM = 12, 20, 28
    for mi, m in enumerate(keep):
        for c in range(2):
            for k, s_ in enumerate((0, 1)):
                dst = A if k == 0 else B
                if s_ == q:
                    for qq in range(2):
                        a = G.acc(m, 2 * c + qq)
                        for x in range(4):
                            e(f"v_accvgpr_read_b32 v{dst+4*qq+x}, a{a+x}")
                    rnd(dst, TM)
                else:
                    unpack(dst, loc[(mi, s_, c)])
            for h in range(4):
                e(f"v_pk_add_f32 v[{A+2*h}:{A+2*h+1}], v[{A+2*h}:{A+2*h+1}], v[{B+2*h}:{B+2*h+1}]")
            rnd(A, TM)
            C = 0
            for qq in range(2):
                n = 2 * c + qq
                for k, s_ in enumerate((2, 3)):
                    dst = B + 4 * qq if k == 0 else TM
                    for x in range(4):
                        if s_ == q:
                            e(f"v_accvgpr_read_b32 v{dst+x}, a{G.acc(m, n)+x}")
                        else:
                            get(dst + x, loc[(mi, s_, n)], x)
                for h in range(2):
                    e(f"v_pk_add_f32 v[{B+4*qq+2*h}:{B+4*qq+2*h+1}], v[{B+4*qq+2*h}:{B+4*qq+2*h+1}], v[{TM+2*h}:{TM+2*h+1}]")
            rnd(B, TM)
            for qq in range(2):
                bb = 72 + 2 * (2 * c + qq)
                e(f"v_lshlrev_b32 v{TM}, 16, v{bb}")
                e(f"v_and_b32 v{TM+1}, 0xffff0000, v{bb}")
                e(f"v_lshlrev_b32 v{TM+2}, 16, v{bb+1}")
                e(f"v_and_b32 v{TM+3}, 0xffff0000, v{bb+1}")
                for h in range(2):
                    e(f"v_pk_add_f32 v[{B+4*qq+2*h}:{B+4*qq+2*h+1}], v[{B+4*qq+2*h}:{B+4*qq+2*h+1}], v[{TM+2*h}:{TM+2*h+1}]")
            rnd(B, TM)
            for half in range(2):
                for x in range(4):
                    e(f"v_mul_f32 v{TM+x}, s37, v{B+4*half+x}")
                for x in range(4):
                    e(f"v_exp_f32 v{TM+x}, v{TM+x}")
                for x in range(4):
                    e(f"v_add_f32 v{TM+x}, 1.0, v{TM+x}")
                for x in range(4):
                    e(f"v_rcp_f32 v{TM+x}, v{TM+x}")
                for x in range(4):
                    e(f"v_mul_f32 v{B+4*half+x}, v{B+4*half+x}, v{TM+x}")
            rnd(B, TM)
            for h in range(4):
                e(f"v_pk_mul_f32 v[{A+2*h}:{A+2*h+1}], v[{A+2*h}:{A+2*h+1}], v[{B+2*h}:{B+2*h+1}]")
            rnd(A, TM)
            unpack(B, ('a', XA + 8 * mi + 4 * c))
            for h in range(4):
                e(f"v_pk_add_f32 v[{A+2*h}:{A+2*h+1}], v[{A+2*h}:{A+2*h+1}], v[{B+2*h}:{B+2*h+1}]")
            for i in range(4):
                e(f"v_cvt_pk_bf16_f32 v{TM+i}, v{A+2*i}, v{A+2*i+1}")
            e(f"s_mov_b32 s{S_T2}, {mi*32768}")
            e("s_nop 0")
            e(f"v_permlane16_swap_b32 v{TM}, v{TM+2}")
            e(f"v_permlane16_swap_b32 v{TM+1}, v{TM+3}")
            e(f"buffer_store_dwordx4 v[{TM}:{TM+3}], v9, s[72:75], s{S_T2} offen offset:{c*64}")
            e("s_nop 1")


def gen_fused(e):
    X = OPT['X']
    khead(e, KNAME)
    e("s_cmp_ge_u32 s2, 256")
    e("s_cbranch_scc1 k_done")
    e("s_load_dwordx2 s[32:33], s[0:1], 0")
    e("s_load_dwordx4 s[20:23], s[0:1], 24")
    e("s_load_dwordx4 s[24:27], s[0:1], 48")
    e("s_load_dwordx4 s[28:31], s[0:1], 88")
    lane_wave(e, 'B')
    e(f"s_mov_b32 s39, s{S_T2}")
    e("s_lshl_b32 s30_, s2, 3".replace("s30_", "s38"))
    e("s_add_u32 s38, s38, s39")
    e("v_lshlrev_b32 v2, 4, v1")
    e("s_lshl_b32 s37, s38, 11")
    e(f"s_mul_i32 s38, s38, {XS}")
    e(f"v_mov_b32 v3, {LDS_CNT}")
    e("v_mov_b32 v4, 0")
    e("v_mov_b32 v5, 0")
    e("v_mov_b32 v6, 0")
    e("v_mov_b32 v7, 0")
    e("ds_write_b128 v3, v[4:7]")
    e("ds_write_b128 v3, v[4:7] offset:32")
    e("s_waitcnt lgkmcnt(0)")
    srd(e, 64, 32, 33, 4 * MB)
    e("buffer_load_dwordx4 v[4:7], v2, s[64:67], s37 offen")
    e("buffer_load_dwordx4 v[8:11], v2, s[64:67], s37 offen offset:1024")
    srd(e, 68, 28, 29, 256)
    e("s_mov_b64 s[28:29], s[30:31]")
    srd(e, S_DBG, 28, 29, 16384, WS_FL)
    e("s_cmp_lg_u32 s39, 4")
    e("s_cbranch_scc1 nonce_done")
    e("v_mov_b32 v12, 0")
    e("s_cmp_lg_u32 s2, 0")
    e("s_cbranch_scc1 nonce_poll")
    e("s_memrealtime s[100:101]")
    e("s_waitcnt lgkmcnt(0)")
    e("s_or_b32 s100, s100, 1")
    e("v_mov_b32 v13, s100")
    e("buffer_store_dword v13, v12, s[68:71], 0 offen sc1")
    e("s_branch nonce_got")
    e.lab("nonce_poll")
    e(f"s_mov_b32 s{S_T2}, {SPIN_MAX}")
    e.lab("nonce_l")
    e("buffer_load_dword v13, v12, s[68:71], 0 offen sc1")
    e("s_waitcnt vmcnt(0)")
    e("v_cmp_eq_u32 vcc, 0, v13")
    e("s_cbranch_vccz nonce_got")
    e("s_sleep 2")
    e(f"s_sub_u32 s{S_T2}, s{S_T2}, 1")
    e(f"s_cmp_lg_u32 s{S_T2}, 0")
    e("s_cbranch_scc1 nonce_l")
    e.lab("nonce_got")
    e("ds_write_b32 v3, v13 offset:16")
    e("s_waitcnt lgkmcnt(0)")
    e.lab("nonce_done")
    srd(e, S_SRD_R, 28, 29, 2048 * XS, WS_XN)
    e("s_and_b32 s30, s2, 1")
    e("s_lshl_b32 s30, s30, 2")
    e("s_lshr_b32 s31, s2, 3")
    e(f"s_and_b32 s{S_ROW0}, s31, 3")
    e(f"s_add_u32 s{S_ROW0}, s{S_ROW0}, s30")
    e(f"s_lshl_b32 s{S_ROW0}, s{S_ROW0}, 8")
    e("s_and_b32 s30, s2, 6")
    e("s_lshl_b32 s30, s30, 2")
    e(f"s_lshr_b32 s{S_COL0}, s31, 2")
    e(f"s_add_u32 s{S_COL0}, s{S_COL0}, s30")
    e(f"s_mov_b32 s{S_NS}, 16")
    e(f"s_mov_b32 s{S_KR}, 0")
    e(f"s_mov_b32 s{S_KC}, 0")
    e(f"s_mov_b32 s{S_KN}, 0")
    e("s_waitcnt vmcnt(0)")
    ln_body(e)
    e(f"buffer_store_dwordx4 v[4:7], v2, s[{S_SRD_R}:{S_SRD_R+3}], s38 offen sc1")
    e(f"buffer_store_dwordx4 v[8:11], v2, s[{S_SRD_R}:{S_SRD_R+3}], s38 offen offset:1024 sc1")
    e(f"s_cmp_lt_u32 s{S_COL0}, 11")
    e("s_cbranch_scc1 g1d_start")
    e(f"s_cmp_eq_u32 s{S_COL0}, 11")
    e("s_cbranch_scc1 g1m_start")
    e("s_branch g1f_start")

    variants = {
        'g1d': [Region('T', 0, 11, 0, 2048)],
        'g1m': [Region('T', 0, 7, 0, 2048), Region('Nadd', 7, 4, 16384, 7168)],
        'g1f': [Region('Nadd', 0, 11, 0, 7168)],
    }
    for pre, regs in variants.items():
        orient = []
        for r in regs:
            orient += ['RA' if r.typ == 'T' else 'CA'] * r.ng
        G = Gemm(e, pre, 'B', 2, 4, 11, 4, 1, regs, XS, 'C', orient, nsteps=16)
        G.sc1R = True
        if OPT.get('rot1'):
            G.rot = (OPT['rot1'], OPT.get('rotmul1', 1))
        e.lab(f"{pre}_start")

        def cset(ri, j, so, G=G, pre=pre):
            r = G.regions[ri]
            if r.typ == 'T':
                e(f"s_mul_i32 s{S_T0}, s{S_COL0}, 22")
                e(f"s_mul_i32 s{S_T1}, s{S_WAVE}, {r.DW}")
                e(f"s_add_u32 s{S_T1}, s{S_T1}, {j}")
                e(f"s_add_u32 s{S_T0}, s{S_T0}, s{S_T1}")
                e(f"s_cmp_lt_u32 s{S_T0}, 128")
                e(f"s_cselect_b32 s{so}, s20, s22")
                e(f"s_cselect_b32 s{so+1}, s21, s23")
                e(f"s_and_b32 s{S_T0}, s{S_T0}, 127")
                e(f"s_lshl_b32 s{S_T0}, s{S_T0}, 14")
                e(f"s_cmp_lt_u32 s{S_T1}, {r.ninstr}")
                e(f"s_cselect_b32 s{so+2}, {2*MB}, 0")
                e(f"s_mov_b32 s{so+3}, 0x20000")
                e(f"s_cselect_b32 s{S_T0}, s{S_T0}, 4096")
            else:
                srd(e, so, 24, 25, 1024 * 7168)
                e(f"s_mul_i32 s{S_T0}, s{S_COL0}, 352")
                e(f"s_sub_u32 s{S_T0}, s{S_T0}, {(128 - r.g0) * 32}")

        e("s_cmp_ge_u32 s39, 4")
        e(f"s_cbranch_scc0 {pre}_comp")
        G.loader_setup(1, 2, cset)

        def mid(nind, pre=pre):
            e(f"s_waitcnt vmcnt({nind})")
            e("s_barrier")
            get_nonce(e, 2)
            e(f"s_cmp_lg_u32 s{S_WAVE}, 0")
            e(f"s_cbranch_scc1 {pre}_nf")
            e("s_lshl_b32 s37, s2, 2")
            e("v_mov_b32 v2, 0")
            e(f"v_mov_b32 v3, s{S_NONCE}")
            e("s_mov_b64 exec, 1")
            e(f"buffer_store_dword v3, v2, s[{S_DBG}:{S_DBG+3}], s37 offen sc1")
            e("s_mov_b64 exec, -1")
            e.lab(f"{pre}_nf")
            e(f"s_lshr_b32 s{S_T0}, s{S_ROW0}, 1")
            e("v_and_b32 v2, 31, v1")
            e(f"v_lshl_add_u32 v2, v2, 2, s{S_T0}")
            lpoll(e, 2, 3, 1, pre, 1)
        loader_phase(e, G, 'C', mid, True)
        e("s_branch g2_loader")
        e.lab(f"{pre}_comp")
        e("s_waitcnt vmcnt(0)")
        e("s_barrier")
        get_nonce(e, 4)
        e(f"v_mov_b32 v{G.vfrag0+16}, v1")
        G.compute_setup(G.vfrag0 + 16, G.vfrag0)
        G.compute_loop(X)
        g1_epi3(e, G, pre)
        offs = []
        e(f"s_lshr_b32 s36, s{S_ROW0}, 6")
        if pre != 'g1f':
            e(f"s_lshl_b32 s34, s{S_COL0}, 7")
            e("s_add_u32 s34, s34, s36")
            e(f"s_add_u32 s34, s34, {FLY}")
            offs.append(34)
        if pre != 'g1d':
            e(f"s_lshr_b32 s35, s{S_ROW0}, 1")
            e(f"s_lshl_b32 s37, s{S_COL0}, 2")
            e("s_add_u32 s35, s35, s37")
            e(f"s_add_u32 s35, s35, {FLO}")
            offs.append(35)
        signal(e, 2, pre, offs)
        stamp3(e, 4)
        e("s_branch g2_comp")

    def g2_common():
        e("s_load_dwordx4 s[20:23], s[0:1], 8")
        e("s_load_dwordx2 s[24:25], s[0:1], 64")
        e("v_mbcnt_lo_u32_b32 v1, -1, 0")
        e("v_mbcnt_hi_u32_b32 v1, -1, v1")
        e("s_lshr_b32 s30, s2, 1")
        e("s_and_b32 s30, s30, 2")
        e("s_and_b32 s31, s2, 1")
        e("s_add_u32 s30, s30, s31")
        e("s_and_b32 s31, s2, 2")
        e("s_lshl_b32 s31, s31, 1")
        e("s_lshr_b32 s32, s2, 3")
        e(f"s_and_b32 s{S_ROW0}, s32, 3")
        e(f"s_add_u32 s{S_ROW0}, s{S_ROW0}, s31")
        e(f"s_lshl_b32 s{S_ROW0}, s{S_ROW0}, 8")
        e(f"s_lshr_b32 s{S_COL0}, s32, 2")
        e(f"s_lshl_b32 s{S_COL0}, s{S_COL0}, 7")
        e(f"s_mov_b32 s{S_KC}, 0")
        e("s_waitcnt lgkmcnt(0)")

    Gs = {}
    for pre, regs, rstride, ns in (('g2y', [Region('T', 0, 8, 0, ATS)], 4096, 32), ('g2o', [Region('Nxor', 0, 8, 0, 2048)], HT, 28)):
        G = Gemm(e, pre, 'B', 3, 8, 4, 2, 2, regs, rstride, 'R', ['CA'] * 4, nsteps=ns)
        if pre == 'g2y':
            G.sc1C = True
        else:
            G.sc1R = True
        if OPT.get('rot2') and (pre == 'g2y' or OPT.get('rot2o')):
            G.rot = (OPT['rot2'], OPT.get('rotmul2', 1))
        Gs[pre] = G
    e.lab("g2_loader")
    g2_common()
    e("s_cmp_ge_u32 s30, 2")
    e("s_cbranch_scc1 g2o_lstart")
    for pre, G in Gs.items():
        e.lab(f"{pre}_lstart")
        if pre == 'g2y':
            e(f"s_mov_b32 s{S_NS}, 32")
            e(f"s_mov_b32 s{S_KR}, 0")
            e("s_cmp_eq_u32 s30, 0")
            e(f"s_cselect_b32 s{S_SRD_R}, s20, s22")
            e(f"s_cselect_b32 s{S_SRD_R+1}, s21, s23")
            e(f"s_mov_b32 s{S_SRD_R+2}, {8*MB}")
            e(f"s_mov_b32 s{S_SRD_R+3}, 0x20000")
        else:
            e(f"s_mov_b32 s{S_NS}, 28")
            e("s_and_b32 s33, s30, 1")
            e(f"s_mul_i32 s{S_KR}, s33, {1792*2}")
            e(f"s_mul_i32 s{S_KN}, s33, {1792*2048}")
            srd(e, S_SRD_R, 28, 29, 2048 * HT, WS_H)

        def cset(ri, j, so, G=G):
            r = G.regions[ri]
            if r.typ == 'T':
                srd(e, so, 28, 29, 2048 * ATS, WS_AT)
                e(f"s_lshl_b32 s{S_T0}, s30, 10")
                e(f"s_add_u32 s{S_T0}, s{S_T0}, s{S_COL0}")
                e(f"s_lshl_b32 s{S_T1}, s{S_WAVE}, 5")
                e(f"s_add_u32 s{S_T0}, s{S_T0}, s{S_T1}")
                e(f"s_add_u32 s{S_T0}, s{S_T0}, {8*j}")
                e(f"s_mul_i32 s{S_T0}, s{S_T0}, {ATS}")
            else:
                srd(e, so, 24, 25, 3584 * 2048)
                e(f"s_lshl_b32 s{S_T0}, s{S_COL0}, 1")
        G.loader_setup(1, 2, cset)
        if pre == 'g2o':
            tiled_R_setup(e, G)

        def mid(nind, pre=pre):
            if pre == 'g2y':
                e(f"s_lshl_b32 s{S_T0}, s30, 10")
                e(f"s_add_u32 s{S_T0}, s{S_T0}, s{S_COL0}")
                e("v_and_b32 v2, 8, v1")
                e("v_lshlrev_b32 v2, 4, v2")
                e("v_min_u32 v2, 127, v2")
                e(f"v_add_u32 v2, s{S_T0}, v2")
                m1, sh1 = magic(176, 2048)
                e(f"v_mul_u32_u24 v2, {m1}, v2")
                e(f"v_lshrrev_b32 v2, {sh1}, v2")
                e("v_and_b32 v3, 7, v1")
                e("v_lshlrev_b32 v4, 7, v2")
                e("v_lshl_add_u32 v4, v3, 2, v4")
                e(f"v_add_u32 v4, {FLY}, v4")
            else:
                e("v_and_b32 v2, 15, v1")
                e("v_min_u32 v2, 10, v2")
                e("s_mul_i32 s34, s33, 10")
                e("s_add_u32 s34, s34, 11")
                e("v_add_u32 v2, s34, v2")
                e(f"s_lshr_b32 s34, s{S_ROW0}, 1")
                e(f"s_add_u32 s34, s34, {FLO}")
                e("v_lshl_add_u32 v4, v2, 2, s34")
            lpoll(e, 4, 5, 2, pre, 4)
        loader_phase(e, G, 'R' if pre == 'g2y' else 'C', mid, True)
        e("s_endpgm")
    e.lab("g2_comp")
    g2_common()
    e("s_cmp_ge_u32 s30, 2")
    e("s_cbranch_scc1 g2o_cstart")
    for pre, G in Gs.items():
        e.lab(f"{pre}_cstart")
        e(f"s_mov_b32 s{S_NS}, {G.nsteps}")
        e(f"v_mov_b32 v{G.vfrag0+16}, v1")
        G.compute_setup(G.vfrag0 + 16, G.vfrag0)
        OPT['sbase'] = 4
        G.compute_loop(X)
        OPT['sbase'] = 0
        e("s_and_b32 s33, s30, 1")
        e("s_cmp_eq_u32 s33, 1")
        e(f"s_cbranch_scc1 {pre}_e1")
        q0 = 0 if pre == 'g2y' else 2
        combine(e, G, pre[-1], q0)
        stamp3_out(e)
        e("s_endpgm")
        e.lab(f"{pre}_e1")
        combine(e, G, pre[-1], q0 + 1)
        stamp3_out(e)
        e("s_endpgm")
    e.lab("k_done")
    e("s_endpgm")
    kdesc(e, KNAME, 256, 80)


def main():
    out = sys.argv[1]
    for a in sys.argv[2:]:
        k, v = a.split("=")
        OPT[k] = int(v) if v.lstrip('-').isdigit() else v
    e = E()
    gen_fused(e)
    hdr = open("cdna_kernels/%s.s.ref" % KN).read().split("; Override launch")[0]
    hdr += f"; @launch grid=(256,1,1) block=(512,1,1) lds={LDS_TOTAL}\n"
    hdr += '.amdgcn_target "amdgcn-amd-amdhsa--gfx950"\n.text\n'
    open(out, "w").write(hdr + "\n".join(e.L) + "\n")


if __name__ == "__main__":
    main()
```

```python
import sys, math

KN = "recurrent_scan__spectral_fnet__dense_activation_gelu__prompt"

MB = 1 << 20
WS_XN = 0
WS_AT = 5 * MB
WS_H = 14 * MB
XS, ATS, HS = 2176, 4224, 7296
WS_P0 = 32 * MB
WS_P1 = 36 * MB
WS_P2 = 40 * MB
WS_P3 = 48 * MB

OPT = dict(design1='B', design2='B', S1=2, S2=3, X=8)


class E:
    def __init__(s):
        s.L = []

    def __call__(s, x):
        s.L.append("    " + x)

    def lab(s, x):
        s.L.append(x + ":")

    def c(s, x):
        s.L.append("    ; " + x)

    def ext(s, lst):
        for x in lst:
            s(x)


def srd(e, d, lo, hi, nbytes, add=0):
    if add:
        e(f"s_add_u32 s{d}, s{lo}, {add}")
        e(f"s_addc_u32 s{d+1}, s{hi}, 0")
    else:
        e(f"s_mov_b32 s{d}, s{lo}")
        e(f"s_mov_b32 s{d+1}, s{hi}")
    e(f"s_mov_b32 s{d+2}, {nbytes}")
    e(f"s_mov_b32 s{d+3}, 0x20000")


def kdesc(e, name, vgpr, accoff, sgpr=102):
    e.L.append('.section .rodata,"a"')
    e.L.append(".p2align 6")
    e.L.append(f".amdhsa_kernel {name}")
    e.L.append(f"  .amdhsa_next_free_vgpr {vgpr}")
    e.L.append(f"  .amdhsa_next_free_sgpr {sgpr}")
    e.L.append(f"  .amdhsa_accum_offset {accoff}")
    e.L.append("  .amdhsa_group_segment_fixed_size 0")
    e.L.append("  .amdhsa_kernarg_size 104")
    e.L.append("  .amdhsa_user_sgpr_count 2")
    e.L.append("  .amdhsa_user_sgpr_kernarg_segment_ptr 1")
    e.L.append("  .amdhsa_system_sgpr_workgroup_id_x 1")
    e.L.append(".end_amdhsa_kernel")
    e.L.append(".text")


def khead(e, name):
    e.L.append(f".globl {name}")
    e.L.append(".p2align 8")
    e.L.append(f".type {name},@function")
    e.lab(name)


def gen_ln(e):
    name = "ln_kernel"
    khead(e, name)
    e("s_cmp_ge_u32 s2, 512")
    e("s_cbranch_scc1 ln_done")
    tl(e, 0, 0)
    e("s_load_dwordx2 s[4:5], s[0:1], 0")
    e("s_load_dwordx2 s[6:7], s[0:1], 96")
    e("v_lshrrev_b32 v1, 6, v0")
    e("v_and_b32 v2, 63, v0")
    e("s_lshl_b32 s3, s2, 2")
    e("v_add_u32 v1, s3, v1")
    e(f"s_mov_b32 s16, {XS}")
    e("v_mul_lo_u32 v50, v1, s16")
    e("v_lshl_add_u32 v50, v2, 4, v50")
    e("v_lshlrev_b32 v1, 11, v1")
    e("v_lshl_add_u32 v1, v2, 4, v1")
    e("s_waitcnt lgkmcnt(0)")
    srd(e, 8, 4, 5, 4 * MB)
    srd(e, 12, 6, 7, 2048 * XS, WS_XN)
    e("buffer_load_dwordx4 v[4:7], v1, s[8:11], 0 offen")
    e("buffer_load_dwordx4 v[8:11], v1, s[8:11], 0 offen offset:1024")
    npf = 0
    if OPT.get('pfln'):
        e("s_load_dwordx8 s[36:43], s[0:1], 8")
        e("s_load_dwordx2 s[44:45], s[0:1], 48")
        e("s_load_dwordx2 s[46:47], s[0:1], 64")
        e("v_lshrrev_b32 v70, 6, v0")
        e("v_add_u32 v70, s3, v70")
        e("v_lshlrev_b32 v71, 7, v2")
        e("s_waitcnt lgkmcnt(0)")
        items = [(40, 2 * MB), (42, 2 * MB), (44, 1024 * 7168)]
        if OPT['pfln'] >= 2:
            items += [(36, 8 * MB), (38, 8 * MB), (46, 3584 * 2048)]
        for k, (lo, nb) in enumerate(items):
            per = nb // 128 // 2048
            srd(e, 48, lo, lo + 1, nb)
            e(f"v_mul_u32_u24 v72, {per*128}, v70")
            e("v_add_u32 v72, v72, v71")
            e(f"v_cmp_gt_u32 vcc, {per}, v2")
            e("v_mov_b32 v73, 0x7ff00000")
            e("s_nop 0")
            e("v_cndmask_b32 v72, v73, v72, vcc")
            e(f"buffer_load_dword v{74+k}, v72, s[48:51], 0 offen")
            npf += 1
    if OPT.get('pfcode'):
        e("s_getpc_b64 s[52:53]")
        e.lab("ln_pc")
        e("s_lshr_b32 s54, s2, 3")
        e("s_lshl_b32 s54, s54, 8")
        e("v_add_u32 v72, s54, v0")
        e("v_lshlrev_b32 v72, 7, v72")
        e("v_min_u32 v72, text_end-ln_pc-4, v72")
        e("v_and_b32 v72, 0xfffffffc, v72")
        e("global_load_dword v69, v72, s[52:53]")
        npf += 1
    e(f"s_waitcnt vmcnt({npf})")
    for i in range(8):
        e(f"v_lshlrev_b32 v{16+2*i}, 16, v{4+i}")
        e(f"v_and_b32 v{17+2*i}, 0xffff0000, v{4+i}")

    def tree(dst, src):
        for i in range(8):
            e(f"v_add_f32 v{40+i}, v{src+2*i}, v{src+2*i+1}")
        for i in range(4):
            e(f"v_add_f32 v{40+i}, v{40+i}, v{44+i}")
        e("v_add_f32 v40, v40, v42")
        e("v_add_f32 v41, v41, v43")
        e(f"v_add_f32 v{dst}, v40, v41")

    def wred(v, sdst):
        for sh in (1, 2, 4, 8):
            e("s_nop 1")
            e(f"v_add_f32_dpp v{v}, v{v}, v{v} row_ror:{sh} row_mask:0xf bank_mask:0xf")
        e("s_nop 1")
        e(f"v_readlane_b32 s20, v{v}, 0")
        e(f"v_readlane_b32 s21, v{v}, 16")
        e(f"v_readlane_b32 s22, v{v}, 32")
        e(f"v_readlane_b32 s23, v{v}, 48")
        e("s_nop 1")
        e(f"v_mov_b32 v{v}, s20")
        e(f"v_add_f32 v{v}, s21, v{v}")
        e(f"v_mov_b32 v48, s22")
        e(f"v_add_f32 v48, s23, v48")
        e(f"v_add_f32 v{v}, v{v}, v48")

    tree(3, 16)
    wred(3, 24)
    e("v_mul_f32 v3, 0x3a800000, v3")
    for i in range(16):
        e(f"v_sub_f32 v{52+i}, v{16+i}, v3")
    for i in range(16):
        e(f"v_mul_f32 v{52+i}, v{52+i}, v{52+i}")
    tree(12, 52)
    wred(12, 25)
    e("v_mul_f32 v12, 0x3a800000, v12")
    e("v_cvt_pk_bf16_f32 v13, v3, v12")
    e("v_lshlrev_b32 v3, 16, v13")
    e("v_and_b32 v12, 0xffff0000, v13")
    e("v_add_f32 v12, 0x3727c5ac, v12")
    e("v_cvt_pk_bf16_f32 v13, v12, v12")
    e("v_lshlrev_b32 v12, 16, v13")
    e("v_sqrt_f32 v12, v12")
    e("s_nop 0")
    e("v_cvt_pk_bf16_f32 v13, v12, v12")
    e("v_lshlrev_b32 v12, 16, v13")
    e("v_rcp_f32 v14, v12")
    for i in range(8):
        e(f"v_sub_f32 v{16+2*i}, v{16+2*i}, v3")
        e(f"v_sub_f32 v{17+2*i}, v{17+2*i}, v3")
        e(f"v_cvt_pk_bf16_f32 v{4+i}, v{16+2*i}, v{17+2*i}")
        e(f"v_lshlrev_b32 v{16+2*i}, 16, v{4+i}")
        e(f"v_and_b32 v{17+2*i}, 0xffff0000, v{4+i}")
    for i in range(16):
        e(f"v_mul_f32 v{52+i}, v{16+i}, v14")
        e(f"v_fma_f32 v{16+i}, -v{52+i}, v12, v{16+i}")
        e(f"v_fma_f32 v{52+i}, v{16+i}, v14, v{52+i}")
    for i in range(8):
        e(f"v_cvt_pk_bf16_f32 v{4+i}, v{52+2*i}, v{53+2*i}")
    e("buffer_store_dwordx4 v[4:7], v50, s[12:15], 0 offen")
    e("buffer_store_dwordx4 v[8:11], v50, s[12:15], 0 offen offset:1024")
    tl(e, 0, 1)
    e.lab("ln_done")
    e("s_endpgm")
    kdesc(e, name, 80, 80, 102)


def gen_fin(e):
    name = "fin_kernel"
    khead(e, name)
    e("s_cmp_ge_u32 s2, 1024")
    e("s_cbranch_scc1 fin_done")
    tl(e, 3, 0, 50)
    e("s_load_dwordx2 s[4:5], s[0:1], 0")
    e("s_load_dwordx4 s[24:27], s[0:1], 72")
    e("s_load_dwordx2 s[6:7], s[0:1], 96")
    e("s_lshl_b32 s3, s2, 8")
    e("v_add_u32 v1, s3, v0")
    e("v_lshlrev_b32 v2, 4, v1")
    e("v_lshlrev_b32 v3, 5, v1")
    e("v_and_b32 v4, 0x7ff, v2")
    e("s_mov_b32 s28, 0xbfb8aa3b")
    e("s_waitcnt lgkmcnt(0)")
    srd(e, 8, 4, 5, 4 * MB)
    srd(e, 12, 6, 7, 8 * MB, WS_P0)
    srd(e, 16, 6, 7, 16 * MB, WS_P2)
    srd(e, 20, 24, 25, 2048)
    srd(e, 32, 26, 27, 4 * MB)
    e(f"s_mov_b32 s29, {4*MB}")
    e(f"s_mov_b32 s30, {8*MB}")
    e("buffer_load_dwordx4 v[8:11], v2, s[12:15], 0 offen")
    e("buffer_load_dwordx4 v[12:15], v2, s[12:15], s29 offen")
    e("buffer_load_dwordx4 v[16:19], v3, s[16:19], 0 offen")
    e("buffer_load_dwordx4 v[20:23], v3, s[16:19], 0 offen offset:16")
    e("buffer_load_dwordx4 v[24:27], v3, s[16:19], s30 offen")
    e("buffer_load_dwordx4 v[28:31], v3, s[16:19], s30 offen offset:16")
    e("buffer_load_dwordx4 v[32:35], v4, s[20:23], 0 offen")
    e("buffer_load_dwordx4 v[36:39], v2, s[8:11], 0 offen")
    e("s_waitcnt vmcnt(6)")
    for i in range(4):
        e(f"v_lshlrev_b32 v{40+2*i}, 16, v{8+i}")
        e(f"v_and_b32 v{41+2*i}, 0xffff0000, v{8+i}")
        e(f"v_lshlrev_b32 v{48+2*i}, 16, v{12+i}")
        e(f"v_and_b32 v{49+2*i}, 0xffff0000, v{12+i}")
    for i in range(8):
        e(f"v_add_f32 v{40+i}, v{40+i}, v{48+i}")
    for i in range(4):
        e(f"v_cvt_pk_bf16_f32 v{8+i}, v{40+2*i}, v{41+2*i}")
        e(f"v_lshlrev_b32 v{40+2*i}, 16, v{8+i}")
        e(f"v_and_b32 v{41+2*i}, 0xffff0000, v{8+i}")
    e("s_waitcnt vmcnt(1)")
    for i in range(8):
        e(f"v_add_f32 v{16+i}, v{16+i}, v{24+i}")
    for i in range(4):
        e(f"v_cvt_pk_bf16_f32 v{8+i}, v{16+2*i}, v{17+2*i}")
        e(f"v_lshlrev_b32 v{16+2*i}, 16, v{8+i}")
        e(f"v_and_b32 v{17+2*i}, 0xffff0000, v{8+i}")
        e(f"v_lshlrev_b32 v{24+2*i}, 16, v{32+i}")
        e(f"v_and_b32 v{25+2*i}, 0xffff0000, v{32+i}")
    for i in range(8):
        e(f"v_add_f32 v{16+i}, v{16+i}, v{24+i}")
    for i in range(4):
        e(f"v_cvt_pk_bf16_f32 v{8+i}, v{16+2*i}, v{17+2*i}")
        e(f"v_lshlrev_b32 v{16+2*i}, 16, v{8+i}")
        e(f"v_and_b32 v{17+2*i}, 0xffff0000, v{8+i}")
    for i in range(8):
        e(f"v_mul_f32 v{24+i}, s28, v{16+i}")
    for i in range(8):
        e(f"v_exp_f32 v{24+i}, v{24+i}")
    for i in range(8):
        e(f"v_add_f32 v{24+i}, 1.0, v{24+i}")
    for i in range(8):
        e(f"v_rcp_f32 v{24+i}, v{24+i}")
    for i in range(8):
        e(f"v_mul_f32 v{16+i}, v{16+i}, v{24+i}")
    for i in range(4):
        e(f"v_cvt_pk_bf16_f32 v{8+i}, v{16+2*i}, v{17+2*i}")
        e(f"v_lshlrev_b32 v{16+2*i}, 16, v{8+i}")
        e(f"v_and_b32 v{17+2*i}, 0xffff0000, v{8+i}")
    for i in range(8):
        e(f"v_mul_f32 v{16+i}, v{16+i}, v{40+i}")
    e("s_waitcnt vmcnt(0)")
    for i in range(4):
        e(f"v_cvt_pk_bf16_f32 v{8+i}, v{16+2*i}, v{17+2*i}")
        e(f"v_lshlrev_b32 v{16+2*i}, 16, v{8+i}")
        e(f"v_and_b32 v{17+2*i}, 0xffff0000, v{8+i}")
        e(f"v_lshlrev_b32 v{24+2*i}, 16, v{36+i}")
        e(f"v_and_b32 v{25+2*i}, 0xffff0000, v{36+i}")
    for i in range(8):
        e(f"v_add_f32 v{16+i}, v{16+i}, v{24+i}")
    for i in range(4):
        e(f"v_cvt_pk_bf16_f32 v{8+i}, v{16+2*i}, v{17+2*i}")
    e("buffer_store_dwordx4 v[8:11], v2, s[32:35], 0 offen")
    tl(e, 3, 1, 50)
    e.lab("fin_done")
    e("s_endpgm")
    kdesc(e, name, 56, 56, 102)


S_WAVE = 3
S_ROW0 = 40
S_COL0 = 41
S_KR = 42
S_KC = 43
S_KN = 44
S_CNT = 45
S_WR = 46
S_RD = 47
S_DL = 48
S_T0 = 49
S_T1 = 50
S_T2 = 51
S_M0 = 52
S_NS = 60
S_LEFT = 61
S_KI = 62
S_SRD_R = 8
S_SRD_O = 12
S_SRD_B = 16
S_SRD_C = 64
S_NREC = 88
RT = 32768


class Region:
    def __init__(s, typ, g0, ng, lds_off, gstride):
        s.typ, s.g0, s.ng, s.lds_off, s.gstride = typ, g0, ng, lds_off, gstride
        if typ == 'T':
            s.ninstr = ng * 2
        elif typ == 'Nadd':
            W = ng * 32
            s.RS = W if ng % 2 else W + 32
            s.BL = 8 * s.RS // 16 + 8
            s.ninstr = -(-8 * s.BL // 64)
        elif typ == 'Nxor':
            assert ng in (4, 8)
            s.RS = ng * 32
            s.ninstr = ng * 2
        s.DW = -(-s.ninstr // 4)
        s.bytes = s.DW * 4 * 1024


def magic(d, n):
    for sh in range(8, 24):
        m = -(-(1 << sh) // d)
        if m < (1 << 24) and all((x * m) >> sh == x // d for x in range(n)):
            return m, sh
    raise Exception


class Gemm:
    def __init__(s, e, pre, design, S, MT, NT, WM, WN, regions, rstride, outer, orient, nsteps_sgpr=False, nsteps=None):
        s.e, s.pre, s.design, s.S = e, pre, design, S
        s.MT, s.NT, s.WM, s.WN = MT, NT, WM, WN
        s.regions, s.rstride, s.outer, s.orient = regions, rstride, outer, orient
        s.CS = sum(r.bytes for r in regions)
        s.SS = RT + s.CS
        s.nsteps = nsteps
        s.rot = None
        s.pfstub = None
        s.st_off = 0
        s.sc1R = False
        s.sc1C = False
        s.pre_R = None
        s.kn_step = None
        s.D = 8 + sum(r.DW for r in regions)
        nacc = MT * NT * 4
        s.nacc = nacc
        v = 0
        s.vR = [0]
        v = 1
        s.vC = {}
        for ri, r in enumerate(regions):
            if r.typ == 'T':
                s.vC[ri] = [v]; v += 1
            elif r.typ == 'Nadd':
                s.vC[ri] = [v]; v += 1
            else:
                n = min(NT, r.ng)
                s.vC[ri] = list(range(v, v + n)); v += n
        s.naddr = v
        v = (v + 3) // 4 * 4
        if outer == 'C':
            s.fR = [[v + (st * MT + m) * 4 for m in range(MT)] for st in range(2)]
            v += 2 * MT * 4
            s.fC = [[v + n * 4 for n in range(NT)]] * 2
            v += NT * 4
        else:
            s.fR = [[v + m * 4 for m in range(MT)]] * 2
            v += MT * 4
            s.fC = [[v + (st * NT + n) * 4 for n in range(NT)] for st in range(2)]
            v += 2 * NT * 4
        s.vfrag0 = (s.naddr + 3) // 4 * 4
        s.vend = v
        if design == 'A':
            s.vL = v
            v += s.D
        else:
            s.vL = 8
        s.vtop = v

    def region_of(s, n):
        if s.WN > 1:
            return 0, n
        for ri, r in enumerate(s.regions):
            if r.g0 <= n < r.g0 + r.ng:
                return ri, n - r.g0
        raise Exception

    def rd_R(s, kk, m):
        d = s.fR[kk][m]
        return [(f"ds_read_b128 v[{d}:{d+3}], v{s.vR[0]} offset:{m*2048+kk*512}", d)]

    def rd_C(s, kk, n):
        d = s.fC[kk][n]
        ri, j = s.region_of(n)
        r = s.regions[ri]
        if r.typ == 'T':
            return [(f"ds_read_b128 v[{d}:{d+3}], v{s.vC[ri][0]} offset:{j*2048+kk*512}", d)]
        if r.typ == 'Nadd':
            o = kk * (32 * r.RS + 512) + j * 32
            return [(f"ds_read_b64_tr_b16 v[{d}:{d+1}], v{s.vC[ri][0]} offset:{o}", d),
                    (f"ds_read_b64_tr_b16 v[{d+2}:{d+3}], v{s.vC[ri][0]} offset:{o+4*r.RS}", d + 2)]
        o = kk * 32 * r.RS
        return [(f"ds_read_b64_tr_b16 v[{d}:{d+1}], v{s.vC[ri][j]} offset:{o}", d),
                (f"ds_read_b64_tr_b16 v[{d+2}:{d+3}], v{s.vC[ri][j]} offset:{o+4*r.RS}", d + 2)]

    def acc(s, m, n):
        return (m * s.NT + n) * 4

    def mfma(s, kk, m, n):
        a = s.acc(m, n)
        r, c = s.fR[kk][m], s.fC[kk][n]
        if s.orient[n] == 'RA':
            x, y = r, c
        else:
            x, y = c, r
        return (f"v_mfma_f32_16x16x32_bf16 a[{a}:{a+3}], v[{x}:{x+3}], v[{y}:{y+3}], a[{a}:{a+3}]", [r, c, c + 2])

    def loader_setup(s, vlane, vt, cset):
        e = s.e
        L = s.vL
        def tparts(stride):
            e(f"v_lshrrev_b32 v{vt}, 2, v{vlane}")
            e(f"v_and_b32 v{vt}, 7, v{vt}")
            e(f"s_mov_b32 s{S_T1}, {stride}")
            e(f"v_mul_lo_u32 v{vt}, v{vt}, s{S_T1}")
            e(f"v_lshrrev_b32 v{vt+1}, 5, v{vlane}")
            e(f"v_lshl_add_u32 v{vt}, v{vt+1}, 6, v{vt}")
            e(f"v_lshrrev_b32 v{vt+1}, 3, v{vlane}")
            e(f"v_and_b32 v{vt+1}, 2, v{vt+1}")
            e(f"v_and_b32 v{vt+2}, 3, v{vlane}")
            e(f"v_xor_b32 v{vt+1}, v{vt+1}, v{vt+2}")
            e(f"v_lshlrev_b32 v{vt+1}, 4, v{vt+1}")
            e(f"v_xor_b32 v{vt+2}, 48, v{vt+1}")
            e(f"v_add_u32 v{vt+1}, v{vt+1}, v{vt}")
            e(f"v_add_u32 v{vt+2}, v{vt+2}, v{vt}")
        tparts(s.rstride)
        e(f"s_lshl_b32 s{S_T0}, s{S_WAVE}, 6")
        e(f"s_add_u32 s{S_T0}, s{S_T0}, s{S_ROW0}")
        e(f"s_mul_i32 s{S_T0}, s{S_T0}, {s.rstride}")
        for j in range(8):
            e(f"s_add_u32 s{S_T1}, s{S_T0}, {j*8*s.rstride - (j&3)*1024}")
            e(f"v_add_u32 v{L+j}, s{S_T1}, v{vt+1+(j&1)}")
        e(f"s_lshl_b32 s{S_M0}, s{S_WAVE}, 13")
        e(f"s_add_u32 s{S_M0+1}, s{S_M0}, 4096")
        s.dma = []
        for j in range(8):
            s.dma.append((L + j, S_SRD_R, S_KR, S_M0 + (j >> 2) if (j & 3) == 0 else None, (j & 3) * 1024))
        vo = L + 8
        mo = S_M0 + 2
        so = S_SRD_C
        s.srds = [S_SRD_R]
        for ri, r in enumerate(s.regions):
            ng4 = -(-r.DW // 4)
            e(f"s_mul_i32 s{mo}, s{S_WAVE}, {r.DW*1024}")
            e(f"s_add_u32 s{mo}, s{mo}, {RT + r.lds_off}")
            for g in range(1, ng4):
                e(f"s_add_u32 s{mo+g}, s{mo}, {4096*g}")
            if r.typ == 'T':
                assert r.DW % 2 == 0
                tparts(r.gstride)
                for j in range(r.DW):
                    cset(ri, j, so)
                    if (j & 3):
                        e(f"s_sub_u32 s{S_T0}, s{S_T0}, {(j&3)*1024}")
                    e(f"v_add_u32 v{vo+j}, s{S_T0}, v{vt+1+(j&1)}")
                    s.dma.append((vo + j, so, S_KC, mo + (j >> 2) if (j & 3) == 0 else None, (j & 3) * 1024))
                    s.srds.append(so)
                    so += 4
            elif r.typ == 'Nadd':
                cset(ri, None, so)
                s.srds.append(so)
                m1, sh1 = magic(r.BL, 4 * r.DW * 64)
                rc = r.RS // 16
                m2, sh2 = magic(rc, r.BL)
                e(f"s_mul_i32 s{S_T1}, s{S_WAVE}, {r.DW*64}")
                for j in range(r.DW):
                    e(f"v_add_u32 v{vt}, s{S_T1}, v{vlane}")
                    if j:
                        e(f"v_add_u32 v{vt}, {64*j}, v{vt}")
                    e(f"v_mul_u32_u24 v{vt+1}, {m1}, v{vt}")
                    e(f"v_lshrrev_b32 v{vt+1}, {sh1}, v{vt+1}")
                    e(f"v_mul_u32_u24 v{vt+2}, {r.BL}, v{vt+1}")
                    e(f"v_sub_u32 v{vt}, v{vt}, v{vt+2}")
                    e(f"v_mul_u32_u24 v{vt+2}, {m2}, v{vt}")
                    e(f"v_lshrrev_b32 v{vt+2}, {sh2}, v{vt+2}")
                    e(f"v_mul_u32_u24 v{vt+3}, {rc}, v{vt+2}")
                    e(f"v_sub_u32 v{vt+3}, v{vt}, v{vt+3}")
                    e(f"v_lshl_add_u32 v{vt+1}, v{vt+1}, 3, v{vt+2}")
                    e(f"v_mul_u32_u24 v{vt+4}, {r.gstride}, v{vt+1}")
                    e(f"v_lshl_add_u32 v{vt+4}, v{vt+3}, 4, v{vt+4}")
                    e(f"v_add_u32 v{vt+4}, s{S_T0}, v{vt+4}")
                    if j & 3:
                        e(f"v_subrev_u32 v{vt+4}, {(j&3)*1024}, v{vt+4}")
                    e(f"v_cmp_gt_u32 vcc, 8, v{vt+2}")
                    e(f"v_mov_b32 v{vt+5}, 0x7ff00000")
                    e("s_nop 0")
                    e(f"v_cndmask_b32 v{vt+4}, v{vt+5}, v{vt+4}, vcc")
                    e(f"v_cmp_gt_u32 vcc, {r.ng*2}, v{vt+3}")
                    e("s_nop 1")
                    e(f"v_cndmask_b32 v{vt+4}, v{vt+5}, v{vt+4}, vcc")
                    e(f"v_cmp_gt_u32 vcc, 64, v{vt+1}")
                    e("s_nop 1")
                    e(f"v_cndmask_b32 v{vo+j}, v{vt+5}, v{vt+4}, vcc")
                    s.dma.append((vo + j, so, S_KN, mo + (j >> 2) if (j & 3) == 0 else None, (j & 3) * 1024))
                so += 4
            else:
                cset(ri, None, so)
                s.srds.append(so)
                if r.ng == 8:
                    assert r.DW == 4
                    e(f"v_lshrrev_b32 v{vt}, 4, v{vlane}")
                    e(f"v_mul_u32_u24 v{vt+1}, {r.gstride}, v{vt}")
                    e(f"v_lshlrev_b32 v{vt}, 5, v{vt}")
                    e(f"v_and_b32 v{vt+2}, 15, v{vlane}")
                    e(f"v_lshlrev_b32 v{vt+2}, 4, v{vt+2}")
                    e(f"v_xor_b32 v{vt+2}, v{vt+2}, v{vt}")
                    e(f"v_xor_b32 v{vt+3}, 128, v{vt+2}")
                    e(f"v_add_u32 v{vt+2}, v{vt+2}, v{vt+1}")
                    e(f"v_add_u32 v{vt+3}, v{vt+3}, v{vt+1}")
                    e(f"s_mul_i32 s{S_T1}, s{S_WAVE}, {16*r.gstride}")
                    e(f"s_add_u32 s{S_T0}, s{S_T0}, s{S_T1}")
                    for j in range(4):
                        e(f"s_add_u32 s{S_T1}, s{S_T0}, {j*4*r.gstride - (j&3)*1024}")
                        e(f"v_add_u32 v{vo+j}, s{S_T1}, v{vt+2+((j>>1)&1)}")
                        s.dma.append((vo + j, so, S_KN, mo if j == 0 else None, j * 1024))
                else:
                    assert r.DW == 2
                    e(f"v_lshrrev_b32 v{vt}, 3, v{vlane}")
                    e(f"v_mul_u32_u24 v{vt+1}, {r.gstride}, v{vt}")
                    e(f"v_lshrrev_b32 v{vt}, 4, v{vlane}")
                    e(f"v_and_b32 v{vt}, 1, v{vt}")
                    e(f"v_lshlrev_b32 v{vt}, 5, v{vt}")
                    e(f"v_and_b32 v{vt+2}, 7, v{vlane}")
                    e(f"v_lshlrev_b32 v{vt+2}, 4, v{vt+2}")
                    e(f"v_xor_b32 v{vt+2}, v{vt+2}, v{vt}")
                    e(f"v_xor_b32 v{vt+3}, 64, v{vt+2}")
                    e(f"v_add_u32 v{vt+2}, v{vt+2}, v{vt+1}")
                    e(f"v_add_u32 v{vt+3}, v{vt+3}, v{vt+1}")
                    e(f"s_mul_i32 s{S_T1}, s{S_WAVE}, {16*r.gstride}")
                    e(f"s_add_u32 s{S_T0}, s{S_T0}, s{S_T1}")
                    for j in range(2):
                        e(f"s_add_u32 s{S_T1}, s{S_T0}, {j*8*r.gstride - j*1024}")
                        e(f"v_add_u32 v{vo+j}, s{S_T1}, v{vt+2+j}")
                        s.dma.append((vo + j, so, S_KN, mo if j == 0 else None, j * 1024))
                so += 4
            vo += r.DW
            mo += ng4
        assert len(s.dma) == s.D
        assert mo <= S_NS and so <= S_NREC

    def dma_groups(s):
        out = []
        for k, (v, sr, so, m0, io) in enumerate(s.dma):
            g = []
            if m0 is not None:
                g.append(f"s_add_u32 m0, s{S_WR}, s{m0}")
                g.append("s_nop 0")
            sc = " sc1" if (s.sc1R if k < 8 else s.sc1C) else ""
            sof = "0" if (k < 8 and s.pre_R) else f"s{so}"
            g.append(f"buffer_load_dwordx4 v{v}, s[{sr}:{sr+3}], {sof} offen offset:{io}{sc} lds" if io else
                     f"buffer_load_dwordx4 v{v}, s[{sr}:{sr+3}], {sof} offen{sc} lds")
            out.append(g)
        return out

    def dma_book(s):
        g = [f"s_add_u32 s{S_KR}, s{S_KR}, 128"]
        if any(r.typ == 'T' for r in s.regions):
            g.append(f"s_add_u32 s{S_KC}, s{S_KC}, 128")
        for r in s.regions:
            if r.typ != 'T':
                if s.kn_step:
                    g += s.kn_step
                else:
                    g.append(f"s_add_u32 s{S_KN}, s{S_KN}, {64*r.gstride}")
        if s.rot:
            g.append(f"s_add_u32 s{S_KI}, s{S_KI}, 1")
            g.append(f"s_cmp_ge_u32 s{S_KI}, s{S_NS}")
            g.append(f"s_cselect_b32 s{S_KI}, 0, s{S_KI}")
            g.append(f"s_cselect_b32 s{S_T0}, {128*s.nsteps}, 0")
            g.append(f"s_sub_u32 s{S_KR}, s{S_KR}, s{S_T0}")
            if any(r.typ == 'T' for r in s.regions):
                g.append(f"s_sub_u32 s{S_KC}, s{S_KC}, s{S_T0}")
            for r in s.regions:
                if r.typ != 'T':
                    g.append(f"s_mul_i32 s{S_T0}, s{S_KI}, 1")
                    g.append(f"s_cmp_eq_u32 s{S_KI}, 0")
                    g.append(f"s_cselect_b32 s{S_T0}, {64*r.gstride*s.nsteps}, 0")
                    g.append(f"s_sub_u32 s{S_KN}, s{S_KN}, s{S_T0}")
        g.append(f"s_add_u32 s{S_WR}, s{S_WR}, {s.SS}")
        g.append(f"s_cmp_ge_u32 s{S_WR}, {s.SS*s.S}")
        g.append(f"s_cselect_b32 s{S_WR}, 0, s{S_WR}")
        g.append(f"s_sub_u32 s{S_LEFT}, s{S_LEFT}, 1")
        g.append(f"s_cmp_lt_i32 s{S_LEFT}, 1")
        for sr in s.srds:
            g.append(f"s_cselect_b32 s{sr+2}, 0, s{sr+2}")
        return g

    def loader_init(s):
        e = s.e
        e(f"s_mov_b32 s{S_WR}, 0")
        e(f"s_mov_b32 s{S_LEFT}, s{S_NS}")
        if s.rot:
            W, mul = s.rot
            if W == 1:
                e(f"s_and_b32 s{S_KI}, s2, 7")
            elif W == 2:
                e(f"s_lshr_b32 s{S_KI}, s2, 3")
                e(f"s_and_b32 s{S_KI}, s{S_KI}, 3")
                e(f"s_and_b32 s{S_T0}, s2, 1")
                e(f"s_lshl_b32 s{S_T0}, s{S_T0}, 2")
                e(f"s_add_u32 s{S_KI}, s{S_KI}, s{S_T0}")
                e(f"s_and_b32 s{S_T0}, s2, 4")
                e(f"s_lshl_b32 s{S_T0}, s{S_T0}, 1")
                e(f"s_add_u32 s{S_KI}, s{S_KI}, s{S_T0}")
            elif W == 3:
                e(f"s_and_b32 s{S_KI}, s2, 1")
                e(f"s_and_b32 s{S_T0}, s2, 4")
                e(f"s_lshr_b32 s{S_T0}, s{S_T0}, 1")
                e(f"s_add_u32 s{S_KI}, s{S_KI}, s{S_T0}")
            elif W == 4:
                e(f"s_and_b32 s{S_KI}, s2, 7")
                e(f"s_lshl_b32 s{S_KI}, s{S_KI}, 1")
                e(f"s_lshr_b32 s{S_T0}, s2, 3")
                e(f"s_and_b32 s{S_T0}, s{S_T0}, 1")
                e(f"s_add_u32 s{S_KI}, s{S_KI}, s{S_T0}")
            elif W == 5:
                e(f"s_lshr_b32 s{S_KI}, s2, 5")
                e(f"s_and_b32 s{S_T0}, s2, 8")
                e(f"s_add_u32 s{S_KI}, s{S_KI}, s{S_T0}")
            elif W == 6:
                e(f"s_lshr_b32 s{S_KI}, s2, 5")
                e(f"s_and_b32 s{S_T0}, s2, 24")
                e(f"s_add_u32 s{S_KI}, s{S_KI}, s{S_T0}")
            elif W == 7:
                e(f"s_lshr_b32 s{S_KI}, s2, 3")
                e(f"s_and_b32 s{S_KI}, s{S_KI}, 15")
            elif W == 8:
                e(f"s_lshr_b32 s{S_KI}, s2, 5")
            elif W == 9:
                e(f"s_lshr_b32 s{S_KI}, s2, 5")
                e(f"s_and_b32 s{S_KI}, s{S_KI}, 3")
                e(f"s_and_b32 s{S_T0}, s2, 24")
                e(f"s_lshr_b32 s{S_T0}, s{S_T0}, 1")
                e(f"s_add_u32 s{S_KI}, s{S_KI}, s{S_T0}")
            e(f"s_mul_i32 s{S_KI}, s{S_KI}, {mul}")
            e(f"s_cmp_ge_u32 s{S_KI}, s{S_NS}")
            e(f"s_cselect_b32 s{S_T0}, s{S_NS}, 0")
            e(f"s_sub_u32 s{S_KI}, s{S_KI}, s{S_T0}")
            e(f"s_lshl_b32 s{S_T0}, s{S_KI}, 7")
            e(f"s_add_u32 s{S_KR}, s{S_KR}, s{S_T0}")
            e(f"s_add_u32 s{S_KC}, s{S_KC}, s{S_T0}")
            for r in s.regions:
                if r.typ != 'T':
                    e(f"s_mul_i32 s{S_T0}, s{S_KI}, {64*r.gstride}")
                    e(f"s_add_u32 s{S_KN}, s{S_KN}, s{S_T0}")

    def stats_step(s):
        e = s.e
        for kk in range(2):
            for m in range(4):
                e(f"ds_read_b128 v[{40+16*kk+4*m}:{43+16*kk+4*m}], v24 offset:{m*2048+kk*512}")
        for kk in range(2):
            for m in range(4):
                e(f"s_waitcnt lgkmcnt({7-4*kk-m})")
                for x in range(4):
                    r = 40 + 16 * kk + 4 * m + x
                    e(f"v_dot2_f32_bf16 v{28+m}, v{r}, v39, v{28+m}")
                    e(f"v_dot2_f32_bf16 v{32+m}, v{r}, v{r}, v{32+m}")
        t = 40
        lst = []
        for ri, r in enumerate(s.regions):
            for j in range(-(-r.ng // 4)):
                for kk in range(2):
                    if r.typ == 'T':
                        e(f"ds_read_b128 v[{t}:{t+3}], v{25+ri} offset:{4*j*2048+kk*512}")
                    else:
                        o = kk * (32 * r.RS + 512) + 4 * j * 32
                        e(f"ds_read_b64_tr_b16 v[{t}:{t+1}], v{25+ri} offset:{o}")
                        e(f"ds_read_b64_tr_b16 v[{t+2}:{t+3}], v{25+ri} offset:{o+4*r.RS}")
                    lst.append((t, len(lst) // 2))
                    t += 4
        e("s_waitcnt lgkmcnt(0)")
        for (t, a) in lst:
            for x in range(4):
                e(f"v_dot2_f32_bf16 v{36+a}, v{t+x}, v39, v{36+a}")
        sg, _ = s.adv_addr()
        e.ext(sg)
        for a in range(1 + len(s.regions)):
            e(f"v_add_u32 v{24+a}, s{S_DL}, v{24+a}")

    def stats_final(s):
        e = s.e
        regs = list(range(28, 39))
        for r in regs:
            e(f"v_mov_b32 v40, v{r}")
            e("s_nop 1")
            e(f"v_permlane32_swap_b32 v{r}, v40")
            e(f"v_add_f32 v{r}, v{r}, v40")
            e(f"v_mov_b32 v40, v{r}")
            e("s_nop 1")
            e(f"v_permlane16_swap_b32 v{r}, v40")
            e(f"v_add_f32 v{r}, v{r}, v40")
        e("v_and_b32 v2, 15, v1")
        e(f"s_lshl_b32 s{S_T0}, s{S_WAVE}, 8")
        e(f"s_add_u32 s{S_T0}, s{S_T0}, {s.st_off}")
        e(f"v_lshl_add_u32 v3, v2, 2, s{S_T0}")
        for m in range(4):
            a, q = 28 + m, 32 + m
            e(f"v_mul_f32 v{a}, 0x3a800000, v{a}")
            e(f"v_mul_f32 v{q}, 0x3a800000, v{q}")
            e(f"v_fma_f32 v{q}, -v{a}, v{a}, v{q}")
            e(f"v_max_f32 v{q}, 0, v{q}")
            e(f"v_cvt_pk_bf16_f32 v40, v{a}, v{q}")
            e(f"v_lshlrev_b32 v{a}, 16, v40")
            e(f"v_and_b32 v{q}, 0xffff0000, v40")
            e(f"v_add_f32 v{q}, 0x3727c5ac, v{q}")
            e(f"v_cvt_pk_bf16_f32 v40, v{q}, v{q}")
            e(f"v_lshlrev_b32 v{q}, 16, v40")
            e(f"v_sqrt_f32 v{q}, v{q}")
            e("s_nop 0")
            e(f"v_cvt_pk_bf16_f32 v40, v{q}, v{q}")
            e(f"v_lshlrev_b32 v{q}, 16, v40")
            e(f"v_rcp_f32 v41, v{q}")
            e("s_nop 0")
            e(f"v_fma_f32 v42, -v{q}, v41, 1.0")
            e(f"v_fma_f32 v41, v42, v41, v41")
            e(f"v_mul_f32 v{a}, v{a}, v41")
            e(f"ds_write_b32 v3, v41 offset:{64*m}")
            e(f"ds_write_b32 v3, v{a} offset:{1024+64*m}")
        k = 0
        for ri, r in enumerate(s.regions):
            for j in range(-(-r.ng // 4)):
                e(f"s_add_u32 s{S_T0}, s{S_WAVE}, {4*j}")
                e(f"s_cmp_lt_u32 s{S_T0}, {r.ng}")
                e(f"s_cselect_b32 s{S_T0}, s{S_T0}, {12 - r.g0}")
                e(f"s_lshl_b32 s{S_T0}, s{S_T0}, 6")
                e(f"s_add_u32 s{S_T0}, s{S_T0}, {s.st_off + 2048 + 64 * r.g0}")
                e(f"v_lshl_add_u32 v3, v2, 2, s{S_T0}")
                e(f"ds_write_b32 v3, v{36+k}")
                k += 1
        e("s_waitcnt lgkmcnt(0)")
        e("s_barrier")

    def loader_loop(s):
        e, p = s.e, s.pre
        s.loader_init()
        for st in range(s.S):
            for g in s.dma_groups():
                e.ext(g)
            e.ext(s.dma_book())
        if s.st_off:
            s.compute_setup(1, 40, ldst=24)
            for r in range(28, 39):
                e(f"v_mov_b32 v{r}, 0")
            e("v_mov_b32 v39, 0x3f803f80")
            e(f"s_mov_b32 s{S_RD}, 0")
            e(f"s_mov_b32 s{S_NREC}, {s.SS}")
        e(f"s_waitcnt vmcnt({(s.S-1)*s.D})")
        e("s_barrier")
        e(f"s_mov_b32 s{S_CNT}, s{S_NS}")
        e.lab(f"{p}_lloop")
        if s.st_off:
            s.stats_step()
        e(f"s_waitcnt vmcnt({(s.S-2)*s.D})")
        e("s_barrier")
        for g in s.dma_groups():
            e.ext(g)
        e.ext(s.dma_book())
        e(f"s_sub_u32 s{S_CNT}, s{S_CNT}, 1")
        e(f"s_cmp_lg_u32 s{S_CNT}, 0")
        e(f"s_cbranch_scc1 {p}_lloop")
        if s.st_off:
            s.stats_final()
        e("s_endpgm")

    def compute_setup(s, vlane, vt, ldst=None):
        e = s.e
        if s.WN == 1:
            e(f"s_mul_i32 s{S_T0}, s{S_WAVE}, {s.MT*16*128}")
            e(f"s_mov_b32 s{S_T1}, 0")
        else:
            e(f"s_lshr_b32 s{S_T0}, s{S_WAVE}, 1")
            e(f"s_mul_i32 s{S_T0}, s{S_T0}, {s.MT*16*128}")
            e(f"s_and_b32 s{S_T1}, s{S_WAVE}, 1")
        e(f"v_and_b32 v{vt}, 15, v{vlane}")
        e(f"v_lshrrev_b32 v{vt+1}, 4, v{vlane}")
        e(f"v_lshrrev_b32 v{vt+2}, 3, v{vt}")
        e(f"v_lshrrev_b32 v{vt+3}, 2, v{vt}")
        e(f"v_and_b32 v{vt+3}, 1, v{vt+3}")
        e(f"v_xor_b32 v{vt+3}, v{vt+3}, v{vt+2}")
        e(f"v_lshl_add_u32 v{vt+3}, v{vt+3}, 1, v{vt+2}")
        e(f"v_xor_b32 v{vt+3}, v{vt+3}, v{vt+1}")
        e(f"v_lshlrev_b32 v{vt+3}, 4, v{vt+3}")
        e(f"v_lshl_add_u32 v{vt+3}, v{vt+2}, 10, v{vt+3}")
        e(f"v_and_b32 v{vt+2}, 7, v{vt}")
        e(f"v_lshl_add_u32 v{vt+2}, v{vt+2}, 6, v{vt+3}")
        e(f"v_lshrrev_b32 v{vt+4}, 2, v{vlane}")
        e(f"v_and_b32 v{vt+4}, 3, v{vt+4}")
        e(f"v_and_b32 v{vt+5}, 3, v{vlane}")
        tmp = {}
        for ri, r in enumerate(s.regions):
            base = RT + r.lds_off
            if r.typ == 'T':
                e(f"s_mul_i32 s{S_T2}, s{S_T1}, {s.NT*16*128}")
                e(f"s_add_u32 s{S_T2}, s{S_T2}, {base}")
                e(f"v_add_u32 v{vt+6+2*ri}, s{S_T2}, v{vt+2}")
                tmp[ri] = [vt + 6 + 2 * ri]
            elif r.typ == 'Nadd':
                assert s.WN == 1
                d = vt + 6 + 2 * ri
                e(f"v_lshl_add_u32 v{d}, v{vt+1}, 3, v{vt+4}")
                e(f"v_mul_u32_u24 v{d}, {r.RS}, v{d}")
                e(f"v_lshl_add_u32 v{d}, v{vt+1}, 7, v{d}")
                e(f"v_lshl_add_u32 v{d}, v{vt+5}, 3, v{d}")
                e(f"v_add_u32 v{d}, {base}, v{d}")
                tmp[ri] = [d]
            else:
                d = vt + 6 + 2 * ri
                e(f"v_lshl_add_u32 v{d}, v{vt+1}, 3, v{vt+4}")
                e(f"v_mul_u32_u24 v{d}, {r.RS}, v{d}")
                e(f"v_lshl_add_u32 v{d}, v{vt+5}, 3, v{d}")
                e(f"v_add_u32 v{d}, {base}, v{d}")
                e(f"v_and_b32 v{d+1}, 1, v{vt+1}")
                if r.ng == 8:
                    e(f"v_lshl_add_u32 v{d+1}, v{d+1}, 2, v{vt+4}")
                    e(f"s_mul_i32 s{S_T2}, s{S_T1}, {s.NT}")
                    e(f"v_xor_b32 v{d+1}, s{S_T2}, v{d+1}")
                else:
                    e(f"v_lshrrev_b32 v{vt+10}, 1, v{vt+4}")
                    e(f"v_lshl_add_u32 v{d+1}, v{d+1}, 1, v{vt+10}")
                e(f"v_lshl_add_u32 v{d}, v{d+1}, 5, v{d}")
                tmp[ri] = [d]
        if ldst is not None:
            e(f"v_add_u32 v{ldst}, s{S_T0}, v{vt+2}")
            for ri, r in enumerate(s.regions):
                e(f"s_mul_i32 s{S_T2}, s{S_WAVE}, {2048 if r.typ == 'T' else 32}")
                e(f"v_add_u32 v{ldst+1+ri}, s{S_T2}, v{tmp[ri][0]}")
            return
        for ri, r in enumerate(s.regions):
            if r.typ == 'Nxor':
                for j, vv in enumerate(s.vC[ri]):
                    e(f"v_xor_b32 v{vv}, {32*j}, v{tmp[ri][0]}")
            else:
                for vv, t in zip(s.vC[ri], tmp[ri]):
                    e(f"v_mov_b32 v{vv}, v{t}")
        e(f"v_add_u32 v{s.vR[0]}, s{S_T0}, v{vt+2}")
        for a in range(s.nacc):
            e(f"v_accvgpr_write_b32 a{a}, 0")

    def adv_addr(s):
        g = [f"s_add_u32 s{S_RD}, s{S_RD}, {s.SS}",
             f"s_cmp_ge_u32 s{S_RD}, {s.SS*s.S}",
             f"s_cselect_b32 s{S_RD}, 0, s{S_RD}",
             f"s_cselect_b32 s{S_DL}, {-(s.S-1)*s.SS & 0xffffffff}, s{S_NREC}"]
        v = [f"v_add_u32 v{a}, s{S_DL}, v{a}" for a in range(s.naddr)]
        return g, v

    def compute_loop(s, X):
        e, p = s.e, s.pre
        MT, NT = s.MT, s.NT
        if s.outer == 'C':
            NO, NI = NT, MT
            order = [(m, n) for n in range(NT) for m in range(MT)]
        else:
            NO, NI = MT, NT
            order = [(m, n) for m in range(MT) for n in range(NT)]
        NM = MT * NT

        def rd_outer(kk, o):
            return s.rd_C(kk, o) if s.outer == 'C' else s.rd_R(kk, o)

        def rd_inner(kk, i):
            return s.rd_R(kk, i) if s.outer == 'C' else s.rd_C(kk, i)

        seq = [(1, t) for t in range(X, NM)] + [(0, t) for t in range(NM)] + [(1, t) for t in range(X)]
        P1 = NM - X
        NSEQ = len(seq)
        BR = OPT.get('BR', 6)
        sg, vg = s.adv_addr()
        fill = []
        fill.append([0, -10, [(x, None) for x in vg], 'x'])
        first_rd = 0 if len(vg) <= 1 else 1
        for i in range(NI):
            fill.append([first_rd, 0 + i * 0.01, rd_inner(0, i), 'lds'])
        for o in range(NO):
            last = (o + 1) * NI - 1
            fill.append([max(last - X, first_rd), 0.5 + o, rd_outer(0, o), 'lds'])
        for i in range(NI):
            fill.append([P1 - 1, 100 + i * 0.01, rd_inner(1, i), 'lds'])
        for o in range(NO):
            fill.append([P1 + (o + 1) * NI - 1, 100.5 + o, rd_outer(1, o), 'lds'])
        fill.append([P1 + 2, 200, [(x, None) for x in sg[:2]], 'x'])
        fill.append([P1 + 3, 201, [(x, None) for x in sg[2:]], 'x'])
        if s.pfstub:
            fill.append([P1 + 9, 202, [(f"s_cmp_eq_u32 s{S_CNT}, s80", None), (f"s_cbranch_scc1 {p}_pf", None), (f"@{p}_pfret", None)], 'x'])
        dg = []
        if s.design == 'A':
            dg = s.dma_groups()
            tot = NSEQ - 4
            for k, g in enumerate(dg):
                fill.append([int(k * tot / len(dg)) + 1, 50 + k, [(x, None) for x in g], 'dma'])
        body = []
        pend = sorted(fill, key=lambda f: f[1])
        n_dma_part1 = 0
        CAP = OPT.get('CAP', 2)

        def emit_gap(gi, cap):
            nonlocal pend, n_dma_part1
            used = 0
            rest = []
            for f in pend:
                n = len(f[2])
                if f[0] <= gi and (used == 0 or used + n <= cap):
                    for (x, d) in f[2]:
                        body.append(('lds', x, d) if f[3] == 'lds' else ('x', x, None))
                    used += n + (1 if f[3] == 'lds' and OPT.get('LDS1', 1) else 0)
                    if f[3] == 'dma' and gi < P1 - 1:
                        n_dma_part1 += 1
                else:
                    rest.append(f)
            pend = rest

        for gi, (kk, t) in enumerate(seq):
            m, n = order[t]
            x, srcs = s.mfma(kk, m, n)
            body.append(('mfma', x, srcs))
            if gi == P1 - 1:
                body.append(('lab', f"{p}_mid", None))
            if gi == BR - 2:
                body.append(('x', f"s_sub_u32 s{S_CNT}, s{S_CNT}, 1", None))
                body.append(('x', f"s_cmp_lg_u32 s{S_CNT}, 0", None))
                continue
            if gi == BR - 1:
                body.append(('br', None, None))
                continue
            if gi == NSEQ - 1:
                continue
            emit_gap(gi, CAP if gi < NSEQ - 2 else 99)
            if gi == NSEQ - 3 and s.design == 'A':
                assert not any(f[3] == 'dma' for f in pend)
                for x in s.dma_book():
                    body.append(('x', x, None))
        assert not pend, pend
        body.append(('w0', "s_waitcnt lgkmcnt(0)" + (f" vmcnt({(s.S-2)*s.D})" if s.design == 'A' else ""), None))
        body.append(('x', "s_barrier", None))
        issued = 0
        done = 0
        lastw = {}
        outb = None
        for ps in range(2):
            outb = []
            for (k, x, d) in body:
                if k == 'lds':
                    issued += 1
                    lastw[d] = issued
                    outb.append((k, x))
                elif k == 'w0':
                    done = issued
                    outb.append((k, x))
                elif k == 'mfma':
                    need = max([lastw.get(r, 0) for r in d])
                    if need > done:
                        outb.append(('x', f"s_waitcnt lgkmcnt({min(issued-need, 15)})"))
                        done = need
                    outb.append((k, x))
                else:
                    outb.append((k, x))
        e(f"s_mov_b32 s{S_RD}, 0")
        e(f"s_mov_b32 s{S_NREC}, {s.SS}")
        e(f"s_mov_b32 s{S_DL}, {s.SS}")
        if s.design == 'A':
            s.loader_init()
            for st in range(s.S - 1):
                for g in dg:
                    e.ext(g)
                e.ext(s.dma_book())
            for g in dg[:n_dma_part1]:
                e.ext(g)
            e(f"s_waitcnt vmcnt({(s.S-2)*s.D + n_dma_part1})")
        stamp(e, 1)
        e("s_barrier")
        stamp(e, 2)
        for i in range(NI):
            for (x, d) in rd_inner(0, i):
                e(x)
        for o in range(NO):
            for (x, d) in rd_outer(0, o):
                e(x)
        e(f"s_mov_b32 s{S_CNT}, s{S_NS}")
        e("s_waitcnt lgkmcnt(0)")
        e(f"s_branch {p}_mid")
        if s.pfstub:
            e.lab(f"{p}_pf")
            e(f"s_mov_b32 m0, {s.pfstub}")
            e("s_nop 0")
            for q in range(3):
                e(f"buffer_load_dword v3, s[{64+4*q}:{67+4*q}], s81 offen lds")
            e(f"s_branch {p}_pfret")
        e.L.append(".p2align 6")
        bi = [i for i, (k, x) in enumerate(outb) if k == 'br'][0]
        e.lab(f"{p}_top")
        for (k, x) in outb[bi + 1:] + outb[:bi]:
            if k == 'lab':
                e.lab(x)
            elif x.startswith('@'):
                e.lab(x[1:])
            else:
                e(x)
        e(f"s_cbranch_scc1 {p}_top")
        for (kk, t) in seq[BR:P1]:
            m, n = order[t]
            e(s.mfma(kk, m, n)[0])
        e("s_waitcnt lgkmcnt(0)")
        e("s_nop 7")
        e("s_nop 7")
        stamp(e, 3)


WS_ST = 64 * MB


def stamp(e, k):
    if OPT.get('stamp'):
        e(f"s_memtime s[{90+2*k}:{91+2*k}]")
        if k == 0:
            e("s_memrealtime s[34:35]")
        if k == 4:
            e("s_memrealtime s[36:37]")
        e("s_waitcnt lgkmcnt(0)")


def stamp_out(e, kid):
    if OPT.get('stamp'):
        e("s_waitcnt vmcnt(0)")
        stamp(e, 4)
        srd(e, S_SRD_O, 28, 29, 4 * MB, WS_ST + kid * MB)
        e("s_lshl_b32 s38, s2, 2")
        e(f"s_add_u32 s38, s38, s{S_WAVE}")
        e("s_lshl_b32 s38, s38, 5")
        e("v_mov_b32 v0, s38")
        for k in range(5):
            e(f"v_mov_b32 v{2+k}, s{90+2*k}")
        e("v_mov_b32 v7, s34")
        e("v_mov_b32 v8, s36")
        e("s_getreg_b32 s38, hwreg(HW_REG_XCC_ID)")
        e("v_mov_b32 v9, s38")
        e(f"buffer_store_dwordx4 v[2:5], v0, s[{S_SRD_O}:{S_SRD_O+3}], 0 offen")
        e(f"buffer_store_dwordx4 v[6:9], v0, s[{S_SRD_O}:{S_SRD_O+3}], 0 offen offset:16")


def tl(e, k, end, v=60):
    if not OPT.get('tl'):
        return
    lab = f"tl_{k}_{end}_{len(e.L)}"
    e("s_and_b32 s98, s2, 15")
    e("s_cmp_lg_u32 s98, 0")
    e(f"s_cbranch_scc1 {lab}")
    e("s_waitcnt vmcnt(0)")
    e("s_load_dwordx2 s[96:97], s[0:1], 88")
    e("s_memrealtime s[98:99]")
    e("s_waitcnt lgkmcnt(0)")
    e(f"s_add_u32 s96, s96, {512*(3-k)}")
    e("s_addc_u32 s97, s97, 0")
    if not end:
        e("s_not_b32 s98, s98")
    e(f"v_mov_b32 v{v}, s98")
    e(f"v_mov_b32 v{v+1}, {8*k+4*end}")
    e("s_mov_b64 s[100:101], exec")
    e("s_mov_b64 exec, 1")
    e(f"global_atomic_umax v{v+1}, v{v}, s[96:97]")
    e("s_waitcnt vmcnt(0)")
    e("s_mov_b64 exec, s[100:101]")
    e.lab(lab)


def prefetch(e, vtmp, items, lds_dummy):
    e(f"v_mbcnt_lo_u32_b32 v{vtmp}, -1, 0")
    e(f"v_mbcnt_hi_u32_b32 v{vtmp}, -1, v{vtmp}")
    e(f"s_lshl_b32 s{S_T0}, s2, 2")
    e(f"s_add_u32 s{S_T0}, s{S_T0}, s{S_WAVE}")
    e(f"s_mov_b32 m0, {lds_dummy}")
    for (lo, hi, nb) in items:
        per = -(-(nb // 128) // 1024)
        srd(e, 64, lo, hi, nb)
        e(f"s_mul_i32 s{S_T1}, s{S_T0}, {per*128}")
        e(f"v_lshlrev_b32 v{vtmp+1}, 7, v{vtmp}")
        if per < 64:
            e(f"v_cmp_gt_u32 vcc, {per}, v{vtmp}")
            e(f"v_mov_b32 v{vtmp+2}, 0x7ff00000")
            e("s_nop 0")
            e(f"v_cndmask_b32 v{vtmp+1}, v{vtmp+2}, v{vtmp+1}, vcc")
        for hh in range(OPT.get('pfhalves', 1)):
            e(f"buffer_load_dword v{vtmp+1}, s[64:67], s{S_T1} offen offset:{hh*64} lds" + (" nt" if OPT.get('pfnt') else ""))


def lane_wave(e, design):
    stamp(e, 0)
    e("v_lshrrev_b32 v1, 6, v0")
    e("s_nop 0")
    e(f"v_readfirstlane_b32 s{S_T2}, v1")
    e("v_and_b32 v1, 63, v0")
    e("s_nop 2")
    e(f"s_and_b32 s{S_WAVE}, s{S_T2}, 3")


def gen_g1(e):
    name = "g1_kernel"
    design, S, X = OPT['design1'], OPT['S1'], OPT['X']
    khead(e, name)
    e("s_cmp_ge_u32 s2, 256")
    e("s_cbranch_scc1 g1_done")
    tl(e, 1, 0)
    e("s_load_dwordx4 s[20:23], s[0:1], 24")
    e("s_load_dwordx4 s[24:27], s[0:1], 48")
    e("s_load_dwordx2 s[28:29], s[0:1], 96")
    e("s_load_dwordx2 s[32:33], s[0:1], 0")
    e("s_load_dwordx4 s[72:75], s[0:1], 8")
    e("s_load_dwordx2 s[76:77], s[0:1], 64")
    lane_wave(e, design)
    e("s_and_b32 s30, s2, 1")
    e("s_lshl_b32 s30, s30, 2")
    e("s_lshr_b32 s31, s2, 3")
    e(f"s_and_b32 s{S_ROW0}, s31, 3")
    e(f"s_add_u32 s{S_ROW0}, s{S_ROW0}, s30")
    e(f"s_lshl_b32 s{S_ROW0}, s{S_ROW0}, 8")
    e("s_and_b32 s30, s2, 6")
    e("s_lshl_b32 s30, s30, 2")
    e(f"s_lshr_b32 s{S_COL0}, s31, 2")
    e(f"s_add_u32 s{S_COL0}, s{S_COL0}, s30")
    e(f"s_mov_b32 s{S_NS}, 16")
    e(f"s_mov_b32 s{S_KR}, 0")
    e(f"s_mov_b32 s{S_KC}, 0")
    e(f"s_mov_b32 s{S_KN}, 0")
    e("s_waitcnt lgkmcnt(0)")
    FL = OPT.get('fuse_ln')
    if FL:
        srd(e, S_SRD_R, 32, 33, 4 * MB)
    else:
        srd(e, S_SRD_R, 28, 29, 2048 * XS, WS_XN)
    e(f"s_cmp_lt_u32 s{S_COL0}, 11")
    e("s_cbranch_scc1 g1d_start")
    e(f"s_cmp_eq_u32 s{S_COL0}, 11")
    e("s_cbranch_scc1 g1m_start")
    e("s_branch g1f_start")

    variants = {
        'g1d': [Region('T', 0, 11, 0, 2048)],
        'g1m': [Region('T', 0, 7, 0, 2048), Region('Nadd', 7, 4, 16384, 7168)],
        'g1f': [Region('Nadd', 0, 11, 0, 7168)],
    }
    vt_max = 0
    ss_max = 0
    for pre, regs in variants.items():
        orient = []
        for r in regs:
            orient += ['RA' if r.typ == 'T' else 'CA'] * r.ng
        G = Gemm(e, pre, design, S, 4, 11, 4, 1, regs, 2048 if FL else XS, 'C', orient, nsteps=16)
        if FL:
            G.st_off = 122880 + 1024
        if OPT.get('rot1'):
            G.rot = (OPT['rot1'], OPT.get('rotmul1', 1))
        e.lab(f"{pre}_start")

        def cset(ri, j, so, G=G, pre=pre):
            r = G.regions[ri]
            if r.typ == 'T':
                e(f"s_mul_i32 s{S_T0}, s{S_COL0}, 22")
                e(f"s_mul_i32 s{S_T1}, s{S_WAVE}, {r.DW}")
                e(f"s_add_u32 s{S_T1}, s{S_T1}, {j}")
                e(f"s_add_u32 s{S_T0}, s{S_T0}, s{S_T1}")
                e(f"s_cmp_lt_u32 s{S_T0}, 128")
                e(f"s_cselect_b32 s{so}, s20, s22")
                e(f"s_cselect_b32 s{so+1}, s21, s23")
                e(f"s_and_b32 s{S_T0}, s{S_T0}, 127")
                e(f"s_lshl_b32 s{S_T0}, s{S_T0}, 14")
                e(f"s_cmp_lt_u32 s{S_T1}, {r.ninstr}")
                e(f"s_cselect_b32 s{so+2}, {2*MB}, 0")
                e(f"s_mov_b32 s{so+3}, 0x20000")
                e(f"s_cselect_b32 s{S_T0}, s{S_T0}, 4096")
            else:
                srd(e, so, 24, 25, 1024 * 7168)
                e(f"s_mul_i32 s{S_T0}, s{S_COL0}, 352")
                e(f"s_sub_u32 s{S_T0}, s{S_T0}, {(128 - r.g0) * 32}")

        if design == 'B':
            e(f"s_cmp_ge_u32 s{S_T2}, 4")
            e(f"s_cbranch_scc0 {pre}_comp")
            G.loader_setup(1, 2, cset)
            G.loader_loop()
            e.lab(f"{pre}_comp")
        else:
            G.loader_setup(1, G.vfrag0, cset)
        e(f"v_mov_b32 v{G.vfrag0+16}, v1")
        if OPT.get('pf1'):
            prefetch(e, G.vfrag0 + 20, [(20, 21, 2 * MB), (22, 23, 2 * MB), (24, 25, 1024 * 7168)], 122880)
        if OPT.get('pf2') == 1:
            prefetch(e, G.vfrag0 + 20, [(72, 73, 8 * MB), (74, 75, 8 * MB), (76, 77, 3584 * 2048)], 122880)
        if OPT.get('pf2') == 3:
            G.pfstub = 122880
            e("s_mov_b64 s[82:83], s[72:73]")
            e("s_mov_b64 s[84:85], s[74:75]")
            e("s_mov_b64 s[86:87], s[76:77]")
            srd(e, 64, 82, 83, 8 * MB)
            srd(e, 68, 84, 85, 8 * MB)
            srd(e, 72, 86, 87, 3584 * 2048)
            e(f"s_lshl_b32 s81, s2, 2")
            e(f"s_add_u32 s81, s81, s{S_WAVE}")
            e(f"s_lshl_b32 s81, s81, 13")
            e(f"s_mul_i32 s80, s{S_WAVE}, {OPT.get('pfsp', 2)}")
            e(f"s_sub_u32 s80, {OPT.get('pfat', 12)}, s80")
            e("v_lshlrev_b32 v3, 7, v1")
        G.compute_setup(G.vfrag0 + 16, G.vfrag0)
        G.compute_loop(X)
        if OPT.get('pf2') == 2:
            prefetch(e, 8, [(72, 73, 8 * MB), (74, 75, 8 * MB), (76, 77, 3584 * 2048)], 122880)
        g1_epilogue(e, G, pre)
        stamp_out(e, 0)
        tl(e, 1, 1)
        e("s_endpgm")
        vt_max = max(vt_max, G.vtop)
        ss_max = max(ss_max, G.SS)
    e.lab("g1_done")
    e("s_endpgm")
    acc0 = (vt_max + 3) // 4 * 4
    kdesc(e, name, acc0 + 176, acc0)
    return ss_max * S + 1024 + 3072


def f2u(f):
    import struct
    return struct.unpack("<I", struct.pack("<f", f))[0]


def g1_epilogue(e, G, pre):
    FL = G.st_off
    if FL:
        e("s_barrier")
    e("v_mbcnt_lo_u32_b32 v1, -1, 0")
    e("v_mbcnt_hi_u32_b32 v1, -1, v1")
    e("v_and_b32 v2, 15, v1")
    e("v_lshrrev_b32 v3, 4, v1")
    e("v_and_b32 v4, 1, v3")
    e("v_lshlrev_b32 v4, 4, v4")
    e("v_lshrrev_b32 v5, 1, v3")
    e("v_lshl_add_u32 v4, v5, 3, v4")
    e(f"s_lshl_b32 s{S_T0}, s{S_WAVE}, 6")
    e(f"s_add_u32 s{S_T0}, s{S_T0}, s{S_ROW0}")
    T = 16
    for r in G.regions:
        if r.typ == 'T':
            srd(e, S_SRD_O, 28, 29, 2048 * ATS, WS_AT)
            if FL:
                e(f"s_lshl_b32 s{S_T1}, s{S_WAVE}, 8")
                e(f"s_add_u32 s{S_T1}, s{S_T1}, {FL}")
                e(f"v_lshl_add_u32 v7, v3, 4, s{S_T1}")
                for m in range(4):
                    e(f"ds_read_b128 v[{44+4*m}:{47+4*m}], v7 offset:{64*m}")
                    e(f"ds_read_b128 v[{60+4*m}:{63+4*m}], v7 offset:{1024+64*m}")
                e(f"v_lshlrev_b32 v7, 2, v2")
                e(f"v_add_u32 v7, {FL}, v7")
                for j in range(r.ng):
                    e(f"ds_read_b32 v{32+j}, v7 offset:{2048 + 64*(r.g0+j)}")
            e(f"s_mul_i32 s{S_T1}, s{S_COL0}, 176")
            e(f"v_add_u32 v6, s{S_T1}, v2")
            e(f"s_mov_b32 s{S_T2}, {ATS}")
            e(f"v_mul_lo_u32 v6, v6, s{S_T2}")
            e(f"v_add_u32 v7, s{S_T0}, v4")
            e("v_lshl_add_u32 v6, v7, 1, v6")
            e(f"s_mul_i32 s{S_T1}, s{S_COL0}, 11")
            e("s_waitcnt lgkmcnt(0)")
            for j in range(r.ng):
                n = r.g0 + j
                e(f"s_add_u32 s{S_T2}, s{S_T1}, {n}")
                e(f"s_cmp_lt_u32 s{S_T2}, 64")
                e(f"s_cselect_b32 s{S_DL}, 0, 0x80008000")
                e(f"s_mov_b32 s{S_T2}, {n*16*ATS}")
                for mp in range(2):
                    t = 8 + ((j * 2 + mp) % 2) * 12
                    for q in range(2):
                        a = G.acc(2 * mp + q, n)
                        for x in range(4):
                            e(f"v_accvgpr_read_b32 v{t+4+q*4+x}, a{a+x}")
                    if FL:
                        for q in range(2):
                            m = 2 * mp + q
                            for h in range(2):
                                d = t + 4 + q * 4 + 2 * h
                                e(f"v_pk_mul_f32 v[{d}:{d+1}], v[{d}:{d+1}], v[{44+4*m+2*h}:{45+4*m+2*h}]")
                        for q in range(2):
                            m = 2 * mp + q
                            for h in range(2):
                                d = t + 4 + q * 4 + 2 * h
                                c = 32 + j
                                ce = c & ~1
                                sel = "op_sel:[0,1,0] op_sel_hi:[1,1,1]" if c & 1 else "op_sel_hi:[1,0,1]"
                                e(f"v_pk_fma_f32 v[{d}:{d+1}], v[{60+4*m+2*h}:{61+4*m+2*h}], v[{ce}:{ce+1}], v[{d}:{d+1}] {sel} neg_lo:[1,0,0] neg_hi:[1,0,0]")
                    for q in range(2):
                        e(f"v_cvt_pk_bf16_f32 v{t+2*q}, v{t+4+q*4}, v{t+5+q*4}")
                        e(f"v_cvt_pk_bf16_f32 v{t+2*q+1}, v{t+6+q*4}, v{t+7+q*4}")
                    for x in range(4):
                        e(f"v_xor_b32 v{t+x}, s{S_DL}, v{t+x}")
                    e("s_nop 1")
                    e(f"v_permlane16_swap_b32 v{t}, v{t+2}")
                    e(f"v_permlane16_swap_b32 v{t+1}, v{t+3}")
                    e(f"buffer_store_dwordx4 v[{t}:{t+3}], v6, s[{S_SRD_O}:{S_SRD_O+3}], s{S_T2} offen offset:{mp*64}" + (" sc1" if G.sc1R else ""))
        else:
            srd(e, S_SRD_O, 28, 29, 2048 * HS, WS_H)
            srd(e, S_SRD_B, 26, 27, 7168)
            e(f"s_mul_i32 s{S_T1}, s{S_COL0}, 352")
            e(f"s_sub_u32 s{S_T1}, s{S_T1}, {(128 - r.g0) * 32}")
            e("v_lshlrev_b32 v7, 3, v3")
            e(f"v_add_u32 v7, s{S_T1}, v7")
            BB = 52
            for j in range(r.ng):
                e(f"buffer_load_dwordx2 v[{BB+2*j}:{BB+2*j+1}], v7, s[{S_SRD_B}:{S_SRD_B+3}], 0 offen offset:{32*j}")
            if FL:
                e(f"s_lshl_b32 s{S_T2}, s{S_WAVE}, 8")
                e(f"s_add_u32 s{S_T2}, s{S_T2}, {FL}")
                e(f"v_lshl_add_u32 v7, v2, 2, s{S_T2}")
                for m in range(4):
                    e(f"ds_read_b32 v{44+2*m}, v7 offset:{64*m}")
                    e(f"ds_read_b32 v{45+2*m}, v7 offset:{1024+64*m}")
                e("v_lshlrev_b32 v9, 4, v3")
                e(f"v_add_u32 v9, {FL}, v9")
            e(f"v_add_u32 v6, s{S_T0}, v2")
            e(f"s_mov_b32 s{S_T2}, {HS}")
            e(f"v_mul_lo_u32 v6, v6, s{S_T2}")
            e(f"v_add_u32 v6, s{S_T1}, v6")
            e("v_lshl_add_u32 v8, v3, 3, v6")
            e("v_lshl_add_u32 v6, v4, 1, v6")
            c1 = -2.0 * math.log2(math.e) * math.sqrt(2.0 / math.pi)
            c2 = c1 * 0.044715
            e(f"v_mov_b32 v10, {f2u(c1):#x}")
            e(f"v_mov_b32 v11, {f2u(c1):#x}")
            e(f"v_mov_b32 v12, {f2u(c2):#x}")
            e(f"v_mov_b32 v13, {f2u(c2):#x}")
            e("v_mov_b32 v14, 1.0")
            e("v_mov_b32 v15, 1.0")
            e("s_waitcnt vmcnt(0)")
            j = 0
            while j < r.ng:
                npair = 2 if j + 1 < r.ng else 1
                for q in range(npair):
                    b = BB + 2 * (j + q)
                    e(f"v_lshlrev_b32 v{32+4*q}, 16, v{b}")
                    e(f"v_and_b32 v{33+4*q}, 0xffff0000, v{b}")
                    e(f"v_lshlrev_b32 v{34+4*q}, 16, v{b+1}")
                    e(f"v_and_b32 v{35+4*q}, 0xffff0000, v{b+1}")
                if FL:
                    csr = [76, BB + 2 * j if npair == 2 else 76]
                    e(f"ds_read_b128 v[76:79], v9 offset:{2048 + 64*(r.g0+j)}")
                    if npair == 2:
                        e(f"ds_read_b128 v[{csr[1]}:{csr[1]+3}], v9 offset:{2048 + 64*(r.g0+j+1)}")
                    e("s_waitcnt lgkmcnt(0)")
                for m in range(4):
                    t = 16
                    for q in range(npair):
                        a = G.acc(m, r.g0 + j + q)
                        for x in range(4):
                            e(f"v_accvgpr_read_b32 v{t+4*q+x}, a{a+x}")
                    np_ = 2 * npair
                    if FL:
                        st = 44 + 2 * m
                        for h in range(np_):
                            c = csr[h >> 1] + 2 * (h & 1)
                            e(f"v_pk_fma_f32 v[{t+8+2*h}:{t+9+2*h}], v[{c}:{c+1}], v[{st}:{st+1}], v[{32+2*h}:{33+2*h}] op_sel:[0,1,0] op_sel_hi:[1,1,1] neg_lo:[1,0,0] neg_hi:[1,0,0]")
                        for h in range(np_):
                            e(f"v_pk_fma_f32 v[{t+2*h}:{t+2*h+1}], v[{t+2*h}:{t+2*h+1}], v[{st}:{st+1}], v[{t+8+2*h}:{t+9+2*h}] op_sel_hi:[1,0,1]")
                    else:
                        for h in range(np_):
                            e(f"v_pk_add_f32 v[{t+2*h}:{t+2*h+1}], v[{t+2*h}:{t+2*h+1}], v[{32+2*h}:{33+2*h}]")
                    for h in range(np_):
                        e(f"v_pk_mul_f32 v[{t+8+2*h}:{t+9+2*h}], v[{t+2*h}:{t+2*h+1}], v[{t+2*h}:{t+2*h+1}]")
                    for h in range(np_):
                        e(f"v_pk_fma_f32 v[{t+8+2*h}:{t+9+2*h}], v[{t+8+2*h}:{t+9+2*h}], v[12:13], v[10:11]")
                    for h in range(np_):
                        e(f"v_pk_mul_f32 v[{t+8+2*h}:{t+9+2*h}], v[{t+8+2*h}:{t+9+2*h}], v[{t+2*h}:{t+2*h+1}]")
                    for x in range(2 * np_):
                        e(f"v_exp_f32 v{t+8+x}, v{t+8+x}")
                    for h in range(np_):
                        e(f"v_pk_add_f32 v[{t+8+2*h}:{t+9+2*h}], v[{t+8+2*h}:{t+9+2*h}], v[14:15]")
                    for x in range(2 * np_):
                        e(f"v_rcp_f32 v{t+8+x}, v{t+8+x}")
                    for h in range(np_):
                        e(f"v_pk_mul_f32 v[{t+2*h}:{t+2*h+1}], v[{t+2*h}:{t+2*h+1}], v[{t+8+2*h}:{t+9+2*h}]")
                    o = 40
                    for h in range(np_):
                        e(f"v_cvt_pk_bf16_f32 v{o+h}, v{t+2*h}, v{t+2*h+1}")
                    e(f"s_mov_b32 s{S_T2}, {m*16*HS}")
                    if npair == 2:
                        e("s_nop 0")
                        e(f"v_permlane16_swap_b32 v{o}, v{o+2}")
                        e(f"v_permlane16_swap_b32 v{o+1}, v{o+3}")
                        e(f"buffer_store_dwordx4 v[{o}:{o+3}], v6, s[{S_SRD_O}:{S_SRD_O+3}], s{S_T2} offen offset:{j*32}" + (" sc1" if G.sc1R else ""))
                    else:
                        e(f"buffer_store_dwordx2 v[{o}:{o+1}], v8, s[{S_SRD_O}:{S_SRD_O+3}], s{S_T2} offen offset:{j*32}" + (" sc1" if G.sc1R else ""))
                j += npair


def gen_g2(e):
    name = "g2_kernel"
    design, S, X = OPT['design2'], OPT['S2'], OPT['X']
    khead(e, name)
    e("s_cmp_ge_u32 s2, 256")
    e("s_cbranch_scc1 g2_done")
    tl(e, 2, 0)
    e("s_load_dwordx4 s[20:23], s[0:1], 8")
    e("s_load_dwordx2 s[24:25], s[0:1], 64")
    e("s_load_dwordx2 s[28:29], s[0:1], 96")
    lane_wave(e, design)
    e("s_and_b32 s30, s2, 3")
    e("s_lshr_b32 s31, s2, 2")
    e("s_and_b32 s31, s31, 1")
    e("s_lshr_b32 s32, s2, 3")
    e(f"s_and_b32 s{S_ROW0}, s32, 3")
    e(f"s_lshl_b32 s31, s31, 2")
    e(f"s_add_u32 s{S_ROW0}, s{S_ROW0}, s31")
    e(f"s_lshl_b32 s{S_ROW0}, s{S_ROW0}, 8")
    e(f"s_lshr_b32 s{S_COL0}, s32, 2")
    e(f"s_lshl_b32 s{S_COL0}, s{S_COL0}, 7")
    e(f"s_mov_b32 s{S_KC}, 0")
    e("s_waitcnt lgkmcnt(0)")
    e("s_cmp_ge_u32 s30, 2")
    e("s_cbranch_scc1 g2o_start")
    variants = {
        'g2y': ([Region('T', 0, 8, 0, ATS)], 4096),
        'g2o': ([Region('Nxor', 0, 8, 0, 2048)], HS),
    }
    vt_max = 0
    for pre, (regs, rstride) in variants.items():
        G = Gemm(e, pre, design, S, 8, 4, 2, 2, regs, rstride, 'R', ['CA'] * 4, nsteps=32 if pre == 'g2y' else 28)
        if OPT.get('rot2') and (pre == 'g2y' or OPT.get('rot2o')):
            G.rot = (OPT['rot2'], OPT.get('rotmul2', 1))
        e.lab(f"{pre}_start")
        if pre == 'g2y':
            e(f"s_mov_b32 s{S_NS}, 32")
            e(f"s_mov_b32 s{S_KR}, 0")
            e("s_cmp_eq_u32 s30, 0")
            e(f"s_cselect_b32 s{S_SRD_R}, s20, s22")
            e(f"s_cselect_b32 s{S_SRD_R+1}, s21, s23")
            e(f"s_mov_b32 s{S_SRD_R+2}, {8*MB}")
            e(f"s_mov_b32 s{S_SRD_R+3}, 0x20000")
        else:
            e(f"s_mov_b32 s{S_NS}, 28")
            e("s_and_b32 s33, s30, 1")
            e(f"s_mul_i32 s{S_KR}, s33, {1792*2}")
            e(f"s_mul_i32 s{S_KN}, s33, {1792*2048}")
            srd(e, S_SRD_R, 28, 29, 2048 * HS, WS_H)

        def cset(ri, j, so, G=G, pre=pre):
            r = G.regions[ri]
            if r.typ == 'T':
                srd(e, so, 28, 29, 2048 * ATS, WS_AT)
                e(f"s_lshl_b32 s{S_T0}, s30, 10")
                e(f"s_add_u32 s{S_T0}, s{S_T0}, s{S_COL0}")
                e(f"s_lshl_b32 s{S_T1}, s{S_WAVE}, 5")
                e(f"s_add_u32 s{S_T0}, s{S_T0}, s{S_T1}")
                e(f"s_add_u32 s{S_T0}, s{S_T0}, {8*j}")
                e(f"s_mul_i32 s{S_T0}, s{S_T0}, {ATS}")
            else:
                srd(e, so, 24, 25, 3584 * 2048)
                e(f"s_lshl_b32 s{S_T0}, s{S_COL0}, 1")

        if design == 'B':
            e(f"s_cmp_ge_u32 s{S_T2}, 4")
            e(f"s_cbranch_scc0 {pre}_comp")
            G.loader_setup(1, 2, cset)
            G.loader_loop()
            e.lab(f"{pre}_comp")
        else:
            G.loader_setup(1, G.vfrag0, cset)
        e(f"v_mov_b32 v{G.vfrag0+16}, v1")
        G.compute_setup(G.vfrag0 + 16, G.vfrag0)
        G.compute_loop(X)
        e("v_mbcnt_lo_u32_b32 v1, -1, 0")
        e("v_mbcnt_hi_u32_b32 v1, -1, v1")
        e("v_and_b32 v2, 15, v1")
        e("v_lshrrev_b32 v3, 4, v1")
        e(f"s_lshr_b32 s{S_T0}, s{S_WAVE}, 1")
        e(f"s_lshl_b32 s{S_T0}, s{S_T0}, 7")
        e(f"s_add_u32 s{S_T0}, s{S_T0}, s{S_ROW0}")
        e(f"s_and_b32 s{S_T1}, s{S_WAVE}, 1")
        e(f"s_lshl_b32 s{S_T1}, s{S_T1}, 6")
        e(f"s_add_u32 s{S_T1}, s{S_T1}, s{S_COL0}")
        e(f"v_add_u32 v6, s{S_T0}, v2")
        if pre == 'g2y':
            srd(e, S_SRD_O, 28, 29, 8 * MB, WS_P0)
            e("v_and_b32 v4, 1, v3")
            e("v_lshlrev_b32 v4, 4, v4")
            e("v_lshrrev_b32 v5, 1, v3")
            e("v_lshl_add_u32 v4, v5, 3, v4")
            e(f"v_add_u32 v4, s{S_T1}, v4")
            e("v_lshlrev_b32 v6, 11, v6")
            e("v_lshl_add_u32 v6, v4, 1, v6")
            e("s_lshl_b32 s33, s30, 22")
            for m in range(8):
                e(f"s_add_u32 s{S_T2}, s33, {m*16*2048}")
                for np_ in range(2):
                    t = 16 + np_ * 12
                    for q in range(2):
                        a = G.acc(m, 2 * np_ + q)
                        for x in range(4):
                            e(f"v_accvgpr_read_b32 v{t+4+q*4+x}, a{a+x}")
                    for q in range(2):
                        e(f"v_cvt_pk_bf16_f32 v{t+2*q}, v{t+4+q*4}, v{t+5+q*4}")
                        e(f"v_cvt_pk_bf16_f32 v{t+2*q+1}, v{t+6+q*4}, v{t+7+q*4}")
                    e("s_nop 1")
                    e(f"v_permlane16_swap_b32 v{t}, v{t+2}")
                    e(f"v_permlane16_swap_b32 v{t+1}, v{t+3}")
                    e(f"buffer_store_dwordx4 v[{t}:{t+3}], v6, s[{S_SRD_O}:{S_SRD_O+3}], s{S_T2} offen offset:{np_*64}")
        else:
            srd(e, S_SRD_O, 28, 29, 16 * MB, WS_P2)
            e(f"v_lshl_add_u32 v4, v3, 2, s{S_T1}")
            e("v_lshlrev_b32 v6, 12, v6")
            e("v_lshl_add_u32 v6, v4, 2, v6")
            e("s_lshl_b32 s33, s33, 23")
            for m in range(8):
                e(f"s_add_u32 s{S_T2}, s33, {m*16*4096}")
                for n in range(4):
                    a = G.acc(m, n)
                    e(f"buffer_store_dwordx4 a[{a}:{a+3}], v6, s[{S_SRD_O}:{S_SRD_O+3}], s{S_T2} offen offset:{n*64}")
        stamp_out(e, 1)
        tl(e, 2, 1)
        e("s_endpgm")
        vt_max = max(vt_max, G.vtop)
    e.lab("g2_done")
    e("s_endpgm")
    acc0 = (vt_max + 3) // 4 * 4
    kdesc(e, name, acc0 + 128, acc0)
    return G.SS * S


def main():
    out = sys.argv[1]
    for a in sys.argv[2:]:
        k, v = a.split("=")
        OPT[k] = int(v) if v.lstrip('-').isdigit() else v
    e = E()
    if not OPT.get('fuse_ln'):
        gen_ln(e)
    l1 = gen_g1(e)
    l2 = gen_g2(e)
    gen_fin(e)
    e.lab("text_end")
    e("s_endpgm")
    hdr = open("cdna_kernels/%s.s.ref" % KN).read().split("; Override launch")[0]
    b1 = 512 if OPT['design1'] == 'B' else 256
    b2 = 512 if OPT['design2'] == 'B' else 256
    if not OPT.get('fuse_ln'):
        hdr += "; @launch kernel=ln_kernel grid=(512,1,1) block=(256,1,1) lds=0\n"
    hdr += f"; @launch kernel=g1_kernel grid=(256,1,1) block=({b1},1,1) lds={l1}\n"
    hdr += f"; @launch kernel=g2_kernel grid=(256,1,1) block=({b2},1,1) lds={l2}\n"
    hdr += "; @launch kernel=fin_kernel grid=(1024,1,1) block=(256,1,1) lds=0\n"
    hdr += '.amdgcn_target "amdgcn-amd-amdhsa--gfx950"\n.text\n'
    open(out, "w").write(hdr + "\n".join(e.L) + "\n")


if __name__ == "__main__":
    main()
```

```python
import sys, math
import gen
from gen import *

KNAME = KN + "_kernel"
LDS_CNT = 147456
LDS_TOTAL = 147456 + 512
S_DBG = 96
WS_PB = 32 * MB
SPIN_MAX = 200000


def stamp3(e, k):
    if OPT.get('tl'):
        k += OPT.get('sbase', 0)
        lab = f"tl_{len(e.L)}"
        e("s_and_b32 s100, s2, 7")
        if k:
            e(f"s_or_b32 s100, s100, s{S_WAVE}")
        e("s_cmp_lg_u32 s100, 0")
        e(f"s_cbranch_scc1 {lab}")
        e("s_load_dwordx2 s[76:77], s[0:1], 88")
        e("s_memrealtime s[100:101]")
        e("s_waitcnt lgkmcnt(0)")
        if k == 0:
            e("s_not_b32 s100, s100")
        e("v_accvgpr_write_b32 a175, v0") if False else None
        e("v_mov_b32 v62, s100")
        e(f"v_mov_b32 v63, {8+4*k}")
        e("s_mov_b64 exec, 1")
        e("global_atomic_umax v63, v62, s[76:77]")
        e("s_mov_b64 exec, -1")
        e.lab(lab)
        return
    if OPT.get('stamp'):
        k += OPT.get('sbase', 0)
        e("s_memtime s[100:101]")
        e("s_waitcnt lgkmcnt(0)")
        e(f"s_mov_b32 s{76+k}, s100")
        if k in (0, 10):
            e("s_memrealtime s[100:101]")
            e("s_waitcnt lgkmcnt(0)")
            e(f"s_mov_b32 s{89 + (k != 0)}, s100")


gen.stamp = stamp3


def stamp3_out(e):
    if OPT.get('tl'):
        OPT['sbase'] = 0
        e("s_waitcnt vmcnt(0)")
        stamp3(e, 10)
    if OPT.get('stamp'):
        OPT['sbase'] = 0
        e("s_waitcnt vmcnt(0)")
        stamp3(e, 10)
        srd(e, S_SRD_O, 28, 29, 4 * MB, WS_ST)
        e("s_lshl_b32 s38, s2, 2")
        e(f"s_add_u32 s38, s38, s{S_WAVE}")
        e("s_lshl_b32 s38, s38, 6")
        e("v_mov_b32 v0, s38")
        for k in range(11):
            e(f"v_mov_b32 v{4+k}, s{76+k}")
        e("v_mov_b32 v15, s89")
        e("v_mov_b32 v16, s90")
        for k in range(4):
            e(f"buffer_store_dwordx4 v[{4+4*k}:{7+4*k}], v0, s[{S_SRD_O}:{S_SRD_O+3}], 0 offen offset:{16*k}")


WS_FL = 31 * MB
FL1, FLY, FLO, FLC = 0, 1024, 4096, 8192
S_NONCE = 95
LDS_NONCE = LDS_CNT + 16
LDS_GO = LDS_CNT + 32


def signal(e, phase, uid, offs):
    e("s_waitcnt vmcnt(0)")
    e(f"v_mov_b32 v0, {LDS_CNT + 4 * phase}")
    e("v_mov_b32 v1, 1")
    e("s_mov_b64 exec, 1")
    e("ds_add_rtn_u32 v1, v0, v1")
    e("s_waitcnt lgkmcnt(0)")
    e("v_cmp_eq_u32 vcc, 3, v1")
    e(f"s_cbranch_vccz sig_{uid}")
    e("v_mov_b32 v0, 0")
    e(f"v_mov_b32 v1, s{S_NONCE}")
    for o in offs:
        e(f"buffer_store_dword v1, v0, s[{S_DBG}:{S_DBG+3}], s{o} offen sc1")
    e.lab(f"sig_{uid}")
    e("s_mov_b64 exec, -1")


def poll(e, vaddr, vtmp, uid, sleep=2):
    e(f"s_mov_b32 s{S_T2}, {SPIN_MAX}")
    e.lab(f"poll_{uid}")
    e(f"buffer_load_dword v{vtmp}, v{vaddr}, s[{S_DBG}:{S_DBG+3}], 0 offen sc1")
    e("s_waitcnt vmcnt(0)")
    e(f"v_cmp_ne_u32 vcc, s{S_NONCE}, v{vtmp}")
    e(f"s_cbranch_vccz polld_{uid}")
    e(f"s_sleep {sleep}")
    e(f"s_sub_u32 s{S_T2}, s{S_T2}, 1")
    e(f"s_cmp_lg_u32 s{S_T2}, 0")
    e(f"s_cbranch_scc1 poll_{uid}")
    e.lab(f"polld_{uid}")


def lpoll(e, vaddr, vtmp, phase, uid, sleep=2):
    e(f"v_mov_b32 v{vtmp+1}, {LDS_GO + 4 * phase}")
    e(f"s_cmp_lg_u32 s{S_WAVE}, 0")
    e(f"s_cbranch_scc1 lw_{uid}")
    poll(e, vaddr, vtmp, uid, sleep)
    e(f"v_mov_b32 v{vtmp}, 1")
    e(f"ds_write_b32 v{vtmp+1}, v{vtmp}")
    e(f"s_branch lwd_{uid}")
    e.lab(f"lw_{uid}")
    e(f"s_mov_b32 s{S_T2}, {SPIN_MAX * 20}")
    e.lab(f"lwl_{uid}")
    e(f"ds_read_b32 v{vtmp}, v{vtmp+1}")
    e("s_waitcnt lgkmcnt(0)")
    e(f"v_cmp_ne_u32 vcc, 1, v{vtmp}")
    e(f"s_cbranch_vccz lwd_{uid}")
    e("s_sleep 1")
    e(f"s_sub_u32 s{S_T2}, s{S_T2}, 1")
    e(f"s_cmp_lg_u32 s{S_T2}, 0")
    e(f"s_cbranch_scc1 lwl_{uid}")
    e.lab(f"lwd_{uid}")


def get_nonce(e, v):
    e(f"v_mov_b32 v{v}, {LDS_NONCE}")
    e(f"ds_read_b32 v{v}, v{v}")
    e("s_waitcnt lgkmcnt(0)")
    e(f"v_readfirstlane_b32 s{S_NONCE}, v{v}")
    e("s_nop 3")


def split_dma(G):
    g = G.dma_groups()
    return g[:8], g[8:]


def book_part(G, which):
    out = []
    if which == 'R':
        out.append(f"s_add_u32 s{S_KR}, s{S_KR}, 128")
        wrap = [(S_KR, 128 * G.nsteps)]
    else:
        wrap = []
        if any(r.typ == 'T' for r in G.regions):
            out.append(f"s_add_u32 s{S_KC}, s{S_KC}, 128")
            wrap.append((S_KC, 128 * G.nsteps))
        for r in G.regions:
            if r.typ != 'T':
                if G.kn_step:
                    out += G.kn_step
                else:
                    out.append(f"s_add_u32 s{S_KN}, s{S_KN}, {64*r.gstride}")
                wrap.append((S_KN, 64 * r.gstride * G.nsteps))
    if G.rot:
        out.append(f"s_add_u32 s{S_KI}, s{S_KI}, 1")
        out.append(f"s_cmp_ge_u32 s{S_KI}, s{S_NS}")
        out.append(f"s_cselect_b32 s{S_KI}, 0, s{S_KI}")
        for (sr, amt) in wrap:
            out.append(f"s_cmp_eq_u32 s{S_KI}, 0")
            out.append(f"s_cselect_b32 s{S_T0}, {amt}, 0")
            out.append(f"s_sub_u32 s{sr}, s{sr}, s{S_T0}")
    out.append(f"s_add_u32 s{S_WR}, s{S_WR}, {G.SS}")
    return out


def loader_phase(e, G, first, mid, sc1_dep):
    p = G.pre
    gr, gc = split_dma(G)
    ind, dep = (gr, gc) if first == 'R' else (gc, gr)
    second = 'C' if first == 'R' else 'R'
    G.loader_init()
    if G.rot:
        e(f"s_mov_b32 s63, s{S_KI}")
    pre = G.pre_R or []
    for st in range(G.S):
        for g in ind:
            e.ext(g)
        e.ext(book_part(G, first))
    e(f"s_mov_b32 s{S_WR}, 0")
    if G.rot:
        e(f"s_mov_b32 s{S_KI}, s63")
    e.ext(pre)
    mid(len(ind) * G.S)
    for st in range(G.S):
        for g in dep:
            e.ext(g)
        e.ext(book_part(G, second))
        e.ext(pre)
    e(f"s_mov_b32 s{S_WR}, 0")
    e(f"s_sub_u32 s{S_LEFT}, s{S_NS}, {G.S}")
    e(f"s_waitcnt vmcnt({(G.S-1)*len(dep)})")
    e("s_barrier")
    e(f"s_mov_b32 s{S_CNT}, s{S_NS}")
    e(f"s_waitcnt vmcnt({(G.S-2)*len(dep)})")
    e(f"s_branch {p}_lmid")
    e.lab(f"{p}_lloop")
    e(f"s_waitcnt vmcnt({(G.S-2)*G.D})")
    e.lab(f"{p}_lmid")
    e("s_barrier")
    for g in G.dma_groups():
        e.ext(g)
    e.ext(G.dma_book())
    e.ext(pre)
    e(f"s_sub_u32 s{S_CNT}, s{S_CNT}, 1")
    e(f"s_cmp_lg_u32 s{S_CNT}, 0")
    e(f"s_cbranch_scc1 {p}_lloop")


def ln_body(e):
    for i in range(8):
        e(f"v_lshlrev_b32 v{16+2*i}, 16, v{4+i}")
        e(f"v_and_b32 v{17+2*i}, 0xffff0000, v{4+i}")

    def tree(dst, src):
        for i in range(8):
            e(f"v_add_f32 v{40+i}, v{src+2*i}, v{src+2*i+1}")
        for i in range(4):
            e(f"v_add_f32 v{40+i}, v{40+i}, v{44+i}")
        e("v_add_f32 v40, v40, v42")
        e("v_add_f32 v41, v41, v43")
        e(f"v_add_f32 v{dst}, v40, v41")

    def wred(v):
        for sh in (1, 2, 4, 8):
            e("s_nop 1")
            e(f"v_add_f32_dpp v{v}, v{v}, v{v} row_ror:{sh} row_mask:0xf bank_mask:0xf")
        e("v_mov_b32 v48, v%d" % v)
        e("s_nop 1")
        e(f"v_permlane32_swap_b32 v{v}, v48")
        e(f"v_add_f32 v{v}, v{v}, v48")
        e("v_mov_b32 v48, v%d" % v)
        e("s_nop 1")
        e(f"v_permlane16_swap_b32 v{v}, v48")
        e(f"v_add_f32 v{v}, v{v}, v48")

    tree(3, 16)
    wred(3)
    e("v_mul_f32 v3, 0x3a800000, v3")
    for i in range(16):
        e(f"v_sub_f32 v{52+i}, v{16+i}, v3")
    for i in range(16):
        e(f"v_mul_f32 v{52+i}, v{52+i}, v{52+i}")
    tree(12, 52)
    wred(12)
    e("v_mul_f32 v12, 0x3a800000, v12")
    e("v_cvt_pk_bf16_f32 v13, v3, v12")
    e("v_lshlrev_b32 v3, 16, v13")
    e("v_and_b32 v12, 0xffff0000, v13")
    e("v_add_f32 v12, 0x3727c5ac, v12")
    e("v_cvt_pk_bf16_f32 v13, v12, v12")
    e("v_lshlrev_b32 v12, 16, v13")
    e("v_sqrt_f32 v12, v12")
    e("s_nop 0")
    e("v_cvt_pk_bf16_f32 v13, v12, v12")
    e("v_lshlrev_b32 v12, 16, v13")
    e("v_rcp_f32 v14, v12")
    for i in range(8):
        e(f"v_sub_f32 v{16+2*i}, v{16+2*i}, v3")
        e(f"v_sub_f32 v{17+2*i}, v{17+2*i}, v3")
        e(f"v_cvt_pk_bf16_f32 v{4+i}, v{16+2*i}, v{17+2*i}")
        e(f"v_lshlrev_b32 v{16+2*i}, 16, v{4+i}")
        e(f"v_and_b32 v{17+2*i}, 0xffff0000, v{4+i}")
    for i in range(16):
        e(f"v_mul_f32 v{52+i}, v{16+i}, v14")
        e(f"v_fma_f32 v{16+i}, -v{52+i}, v12, v{16+i}")
        e(f"v_fma_f32 v{52+i}, v{16+i}, v14, v{52+i}")
    for i in range(8):
        e(f"v_cvt_pk_bf16_f32 v{4+i}, v{52+2*i}, v{53+2*i}")


HT = 7808


def xchg8(e, A, B, T):
    e("s_nop 1")
    for k in range(4):
        e(f"v_mov_b32 v{T+k}, v{A+k}")
    for k in range(4):
        e(f"v_mov_b32_dpp v{A+k}, v{B+k} row_ror:8 row_mask:0xf bank_mask:0xc")
    for k in range(4):
        e(f"v_mov_b32_dpp v{B+k}, v{T+k} row_ror:8 row_mask:0xf bank_mask:0x3")


def g1_epi3(e, G, pre):
    e("v_mbcnt_lo_u32_b32 v1, -1, 0")
    e("v_mbcnt_hi_u32_b32 v1, -1, v1")
    e("v_and_b32 v2, 7, v1")
    e("v_lshrrev_b32 v3, 4, v1")
    e("v_and_b32 v4, 1, v3")
    e("v_lshlrev_b32 v4, 5, v4")
    e("v_lshrrev_b32 v5, 1, v3")
    e("v_lshl_add_u32 v4, v5, 4, v4")
    e("v_and_b32 v5, 8, v1")
    e("v_lshl_add_u32 v4, v5, 3, v4")
    e(f"s_lshl_b32 s{S_T0}, s{S_WAVE}, 6")
    e(f"s_add_u32 s{S_T0}, s{S_T0}, s{S_ROW0}")
    for r in G.regions:
        if r.typ == 'T':
            srd(e, S_SRD_O, 28, 29, 2048 * ATS, WS_AT)
            e(f"s_mul_i32 s{S_T1}, s{S_COL0}, 176")
            e(f"v_add_u32 v6, s{S_T1}, v2")
            e(f"s_mov_b32 s{S_T2}, {ATS}")
            e(f"v_mul_lo_u32 v6, v6, s{S_T2}")
            e(f"s_lshl_b32 s{S_T2}, s{S_T0}, 1")
            e(f"v_add3_u32 v6, v6, v4, s{S_T2}")
            e(f"s_mul_i32 s{S_T1}, s{S_COL0}, 11")
            for j in range(r.ng):
                n = r.g0 + j
                b = 16 + (j & 1) * 32
                e(f"s_add_u32 s{S_T2}, s{S_T1}, {n}")
                e(f"s_cmp_lt_u32 s{S_T2}, 64")
                e(f"s_cselect_b32 s{S_DL}, 0, 0x80008000")
                e(f"s_mov_b32 s{S_T2}, {n*16*ATS}")
                e(f"s_mov_b32 s{S_RD}, {(n*16+8)*ATS}")
                for m in range(4):
                    a = G.acc(m, n)
                    for x in range(4):
                        e(f"v_accvgpr_read_b32 v{b+4*m+x}, a{a+x}")
                for k in range(8):
                    e(f"v_cvt_pk_bf16_f32 v{b+16+k}, v{b+2*k}, v{b+2*k+1}")
                for k in range(8):
                    e(f"v_xor_b32 v{b+16+k}, s{S_DL}, v{b+16+k}")
                e("s_nop 1")
                for h in range(2):
                    e(f"v_permlane16_swap_b32 v{b+16+4*h}, v{b+18+4*h}")
                    e(f"v_permlane16_swap_b32 v{b+17+4*h}, v{b+19+4*h}")
                xchg8(e, b + 16, b + 20, b + 24)
                e(f"buffer_store_dwordx4 v[{b+16}:{b+19}], v6, s[{S_SRD_O}:{S_SRD_O+3}], s{S_T2} offen sc1")
                e(f"buffer_store_dwordx4 v[{b+20}:{b+23}], v6, s[{S_SRD_O}:{S_SRD_O+3}], s{S_RD} offen sc1")
        else:
            srd(e, S_SRD_O, 28, 29, 2048 * HT, WS_H)
            srd(e, S_SRD_B, 26, 27, 7168)
            e(f"s_mul_i32 s{S_T1}, s{S_COL0}, 352")
            e(f"s_sub_u32 s{S_T1}, s{S_T1}, {(128 - r.g0) * 32}")
            e("v_lshlrev_b32 v7, 3, v3")
            e(f"v_add_u32 v7, s{S_T1}, v7")
            nq = -(-r.ng // 4)

            def ldb(Q):
                for j in range(4 * Q, min(4 * Q + 4, r.ng)):
                    d = 64 + 8 * (Q & 1) + 2 * (j - 4 * Q)
                    e(f"buffer_load_dwordx2 v[{d}:{d+1}], v7, s[{S_SRD_B}:{S_SRD_B+3}], 0 offen offset:{32*j}")
            ldb(0)
            if nq > 1:
                ldb(1)
            e(f"v_add_u32 v6, s{S_T0}, v2")
            e(f"s_mov_b32 s{S_T2}, {HT}")
            e(f"v_mul_lo_u32 v6, v6, s{S_T2}")
            if pre == 'g1m':
                e(f"s_mov_b32 s{S_T2}, 0")
            else:
                e(f"s_mul_i32 s{S_T2}, s{S_COL0}, 384")
                e(f"s_sub_u32 s{S_T2}, s{S_T2}, {12*384-128}")
            e(f"v_add3_u32 v6, v6, v4, s{S_T2}")
            c1 = -2.0 * math.log2(math.e) * math.sqrt(2.0 / math.pi)
            c2 = c1 * 0.044715
            e(f"v_mov_b32 v10, {f2u(c1):#x}")
            e(f"v_mov_b32 v11, {f2u(c1):#x}")
            e(f"v_mov_b32 v12, {f2u(c2):#x}")
            e(f"v_mov_b32 v13, {f2u(c2):#x}")
            e("v_mov_b32 v14, 1.0")
            e("v_mov_b32 v15, 1.0")
            for Q in range(nq):
                ng = min(4, r.ng - 4 * Q)
                if Q == 0:
                    e(f"s_waitcnt vmcnt({min(4, r.ng-4) if nq > 1 else 0})")
                elif Q == 1:
                    e("s_waitcnt vmcnt(11)")
                else:
                    e("s_waitcnt vmcnt(16)")
                for jj in range(ng):
                    bq = 64 + 8 * (Q & 1) + 2 * jj
                    e(f"v_lshlrev_b32 v{48+4*jj}, 16, v{bq}")
                    e(f"v_and_b32 v{49+4*jj}, 0xffff0000, v{bq}")
                    e(f"v_lshlrev_b32 v{50+4*jj}, 16, v{bq+1}")
                    e(f"v_and_b32 v{51+4*jj}, 0xffff0000, v{bq+1}")
                if Q + 2 < nq:
                    ldb(Q + 2)
                for m in range(4):
                    t, u = 16, 32
                    for jj in range(ng):
                        a = G.acc(m, r.g0 + 4 * Q + jj)
                        for x in range(4):
                            e(f"v_accvgpr_read_b32 v{t+4*jj+x}, a{a+x}")
                    np_ = 2 * ng
                    P = lambda b_, h: f"v[{b_+2*h}:{b_+2*h+1}]"
                    for h in range(np_):
                        e(f"v_pk_add_f32 {P(t,h)}, {P(t,h)}, {P(48,h)}")
                    for h in range(np_):
                        e(f"v_pk_mul_f32 {P(u,h)}, {P(t,h)}, {P(t,h)}")
                    for h in range(np_):
                        e(f"v_pk_fma_f32 {P(u,h)}, {P(u,h)}, v[12:13], v[10:11]")
                    for h in range(np_):
                        e(f"v_pk_mul_f32 {P(u,h)}, {P(u,h)}, {P(t,h)}")
                    for x in range(2 * np_):
                        e(f"v_exp_f32 v{u+x}, v{u+x}")
                    for h in range(np_):
                        e(f"v_pk_add_f32 {P(u,h)}, {P(u,h)}, v[14:15]")
                    for x in range(2 * np_):
                        e(f"v_rcp_f32 v{u+x}, v{u+x}")
                    for h in range(np_):
                        e(f"v_pk_mul_f32 {P(t,h)}, {P(t,h)}, {P(u,h)}")
                    for h in range(np_):
                        e(f"v_cvt_pk_bf16_f32 v{u+h}, v{t+2*h}, v{t+2*h+1}")
                    if ng == 3:
                        e(f"v_mov_b32 v{u+6}, 0")
                        e(f"v_mov_b32 v{u+7}, 0")
                    e(f"s_mov_b32 s{S_T2}, {m*16*HT}")
                    e(f"s_mov_b32 s{S_RD}, {(m*16+8)*HT}")
                    for h in range(2):
                        e(f"v_permlane16_swap_b32 v{u+4*h}, v{u+2+4*h}")
                        e(f"v_permlane16_swap_b32 v{u+1+4*h}, v{u+3+4*h}")
                    xchg8(e, u, u + 4, u + 8)
                    e(f"buffer_store_dwordx4 v[{u}:{u+3}], v6, s[{S_SRD_O}:{S_SRD_O+3}], s{S_T2} offen offset:{Q*128} sc1")
                    e(f"buffer_store_dwordx4 v[{u+4}:{u+7}], v6, s[{S_SRD_O}:{S_SRD_O+3}], s{S_RD} offen offset:{Q*128} sc1")


def tiled_R_setup(e, G):
    e("v_lshrrev_b32 v32, 5, v1")
    e("v_lshlrev_b32 v32, 2, v32")
    e("v_lshrrev_b32 v33, 3, v1")
    e("v_and_b32 v33, 2, v33")
    e("v_and_b32 v34, 3, v1")
    e("v_xor_b32 v33, v33, v34")
    e("v_add_u32 v32, v32, v33")
    e("v_xor_b32 v33, 3, v32")
    for j in range(8):
        e(f"v_lshlrev_b32 v34, 4, v{32+(j&1)}")
        e(f"v_sub_u32 v{24+j}, v{8+j}, v34")
    m1, sh1 = magic(22, 448)
    pre = [f"s_lshr_b32 s{S_T0}, s{S_KR}, 4"]
    for par in range(2):
        d = 34 + par
        pre += [f"v_add_u32 v36, s{S_T0}, v{32+par}",
                f"v_subrev_u32 v37, 8, v36",
                f"v_max_i32 v37, 0, v37",
                f"v_mul_u32_u24 v37, {m1}, v37",
                f"v_lshrrev_b32 v37, {sh1}, v37",
                f"v_lshl_add_u32 v37, v37, 5, 0x100" if False else f"v_lshlrev_b32 v37, 5, v37",
                f"v_add_u32 v37, 0x100, v37",
                f"v_cmp_gt_u32 vcc, 8, v36",
                f"v_lshlrev_b32 v36, 4, v36",
                "s_nop 0",
                f"v_cndmask_b32 v37, v37, 0, vcc",
                f"v_add_u32 v{d}, v36, v37"]
    for j in range(8):
        pre.append(f"v_add_u32 v{8+j}, v{24+j}, v{34+(j&1)}")
    G.pre_R = pre


def warm(e, pre):
    if not OPT.get('warm'):
        return
    e(f"s_mov_b32 m0, {LDS_CNT + 256}")
    e("s_lshr_b32 s34, s2, 3")
    e("s_cmp_ge_u32 s34, 3")
    e(f"s_cbranch_scc1 {pre}_w1")
    e("s_lshl_b32 s34, s34, 2")
    e(f"s_add_u32 s34, s34, s{S_WAVE}")
    e("s_lshl_b32 s34, s34, 13")
    e("v_lshlrev_b32 v4, 7, v1")
    e("v_add_u32 v4, s34, v4")
    e(f"v_min_u32 v4, k_done-{KNAME}, v4")
    e("s_getpc_b64 s[34:35]")
    e.lab(f"{pre}_pc")
    e(f"s_sub_u32 s34, s34, {pre}_pc-{KNAME}")
    e("s_subb_u32 s35, s35, 0")
    e("global_load_lds_dword v4, s[34:35]")
    e.lab(f"{pre}_w1")
    if OPT['warm'] >= 2:
        e("s_load_dwordx4 s[64:67], s[0:1], 8")
        e("s_load_dwordx2 s[68:69], s[0:1], 64")
        e("s_load_dwordx2 s[70:71], s[0:1], 80")
        e("v_lshlrev_b32 v4, 21, v1")
        e("s_waitcnt lgkmcnt(0)")
        e(f"s_cmp_eq_u32 s{S_WAVE}, 0")
        e("s_cselect_b32 s72, s28, s64")
        e("s_cselect_b32 s73, s29, s65")
        e(f"s_cselect_b32 s74, {64*MB}, s{S_NREC}") if False else None
        e(f"s_mov_b32 s74, {8*MB}")
        e(f"s_cselect_b32 s74, {64*MB}, s74")
        e(f"s_cmp_eq_u32 s{S_WAVE}, 2")
        e("s_cselect_b32 s72, s66, s72")
        e("s_cselect_b32 s73, s67, s73")
        e(f"s_cmp_eq_u32 s{S_WAVE}, 3")
        e("s_cselect_b32 s72, s68, s72")
        e("s_cselect_b32 s73, s69, s73")
        e(f"s_cselect_b32 s74, {3584*2048}, s74")
        e("s_mov_b32 s75, 0x20000")
        e("buffer_load_dword v4, s[72:75], 0 offen lds")
        srd(e, 72, 70, 71, 4 * MB)
        e("buffer_load_dword v4, s[72:75], 0 offen lds")


def combine(e, G, typ, q):
    uid = f"{q}"
    keep = [2 * q, 2 * q + 1]
    e("v_mbcnt_lo_u32_b32 v1, -1, 0")
    e("v_mbcnt_hi_u32_b32 v1, -1, v1")
    e("v_and_b32 v2, 15, v1")
    e("v_lshrrev_b32 v3, 4, v1")
    e("v_lshlrev_b32 v5, 4, v1")
    srd(e, S_SRD_O, 28, 29, 32 * MB, WS_PB)
    e(f"s_lshr_b32 s34, s{S_ROW0}, 5")
    e(f"s_lshr_b32 s35, s{S_COL0}, 7")
    e("s_add_u32 s34, s34, s35")
    e("s_lshl_b32 s34, s34, 4")
    e(f"s_add_u32 s34, s34, s{S_WAVE}")
    e("s_lshl_b32 s34, s34, 15")
    e(f"s_add_u32 s35, s34, {q * 131072}")
    for m in range(8):
        if m in keep:
            continue
        e(f"s_add_u32 s{S_T2}, s35, {m*4096}")
        if typ == 'y':
            for c in range(2):
                t = 16 + c * 12
                for qq in range(2):
                    a = G.acc(m, 2 * c + qq)
                    for x in range(4):
                        e(f"v_accvgpr_read_b32 v{t+4+qq*4+x}, a{a+x}")
                for qq in range(2):
                    e(f"v_cvt_pk_bf16_f32 v{t+2*qq}, v{t+4+qq*4}, v{t+5+qq*4}")
                    e(f"v_cvt_pk_bf16_f32 v{t+2*qq+1}, v{t+6+qq*4}, v{t+7+qq*4}")
                e(f"buffer_store_dwordx4 v[{t}:{t+3}], v5, s[{S_SRD_O}:{S_SRD_O+3}], s{S_T2} offen offset:{c*1024} sc1")
        else:
            for n in range(4):
                a = G.acc(m, n)
                e(f"buffer_store_dwordx4 a[{a}:{a+3}], v5, s[{S_SRD_O}:{S_SRD_O+3}], s{S_T2} offen offset:{n*1024} sc1")
    e("s_lshr_b32 s36, s34, 12")
    e("s_and_b32 s36, s36, 0xff80")
    e(f"s_add_u32 s36, s36, {FLC}")
    e(f"s_add_u32 s37, s36, {4*q}")
    signal(e, 3, f"c{uid}", [37])
    OPT['sbase'] = 0
    stamp3(e, 8)
    e("s_load_dwordx2 s[20:21], s[0:1], 0")
    e("s_load_dwordx4 s[24:27], s[0:1], 72")
    e("v_mbcnt_lo_u32_b32 v1, -1, 0")
    e("v_mbcnt_hi_u32_b32 v1, -1, v1")
    e(f"s_lshr_b32 s{S_T0}, s{S_WAVE}, 1")
    e(f"s_lshl_b32 s{S_T0}, s{S_T0}, 7")
    e(f"s_add_u32 s{S_T0}, s{S_T0}, s{S_ROW0}")
    e(f"s_add_u32 s{S_T0}, s{S_T0}, {32*q}")
    e(f"s_and_b32 s{S_T1}, s{S_WAVE}, 1")
    e(f"s_lshl_b32 s{S_T1}, s{S_T1}, 6")
    e(f"s_add_u32 s{S_T1}, s{S_T1}, s{S_COL0}")
    e(f"v_add_u32 v6, s{S_T0}, v2")
    e("v_lshlrev_b32 v6, 11, v6")
    e(f"v_lshl_add_u32 v7, v3, 2, s{S_T1}")
    e("v_lshlrev_b32 v7, 1, v7")
    e("v_add_u32 v8, v6, v7")
    e("v_and_b32 v4, 1, v3")
    e("v_lshlrev_b32 v4, 4, v4")
    e("v_lshrrev_b32 v9, 1, v3")
    e("v_lshl_add_u32 v4, v9, 3, v4")
    e(f"v_add_u32 v4, s{S_T1}, v4")
    e("v_lshl_add_u32 v9, v4, 1, v6")
    e("v_and_b32 v10, 3, v1")
    e("v_lshl_add_u32 v10, v10, 2, s36")
    e("s_waitcnt lgkmcnt(0)")
    srd(e, 64, 20, 21, 4 * MB)
    srd(e, 68, 24, 25, 2048)
    srd(e, 72, 26, 27, 4 * MB)
    XA = 160
    for mi in range(2):
        for n in range(4):
            e(f"buffer_load_dwordx2 a[{XA+8*mi+2*n}:{XA+8*mi+2*n+1}], v8, s[64:67], 0 offen offset:{mi*0+n*32}" if mi == 0 else
              f"buffer_load_dwordx2 a[{XA+8*mi+2*n}:{XA+8*mi+2*n+1}], v12, s[64:67], 0 offen offset:{n*32}")
        if mi == 0:
            e("v_add_u32 v12, 0x8000, v8")
    for n in range(4):
        e(f"buffer_load_dwordx2 v[{72+2*n}:{73+2*n}], v7, s[68:71], 0 offen offset:{n*32}")
    poll(e, 10, 11, f"c{uid}", 4)
    stamp3(e, 9)
    ysrc = [s for s in (0, 1) if s != q]
    osrc = [s for s in (2, 3) if s != q]
    loc = {}
    pool_v = []
    pool_a = [G.acc(m, n) for m in range(8) if m not in keep for n in range(4)]
    for mi, m in enumerate(keep):
        for s_ in ysrc + osrc:
            nch = 2 if s_ < 2 else 4
            e(f"s_add_u32 s{S_T2}, s34, {s_*131072 + m*4096}")
            for c in range(nch):
                if pool_a:
                    r = ('a', pool_a.pop(0))
                else:
                    r = ('v', pool_v.pop(0))
                loc[(mi, s_, c)] = r
                e(f"buffer_load_dwordx4 {r[0]}[{r[1]}:{r[1]+3}], v5, s[{S_SRD_O}:{S_SRD_O+3}], s{S_T2} offen offset:{c*1024} sc1")
    assert len(loc) <= 18 or True
    e("s_mov_b32 s37, 0xbfb8aa3b")
    e("s_waitcnt vmcnt(0)")

    def get(dst, r, k):
        if r[0] == 'a':
            e(f"v_accvgpr_read_b32 v{dst}, a{r[1]+k}")
        else:
            e(f"v_mov_b32 v{dst}, v{r[1]+k}")

    def rnd(base, tmp):
        for i in range(4):
            e(f"v_cvt_pk_bf16_f32 v{tmp+i}, v{base+2*i}, v{base+2*i+1}")
        for i in range(4):
            e(f"v_lshlrev_b32 v{base+2*i}, 16, v{tmp+i}")
            e(f"v_and_b32 v{base+2*i+1}, 0xffff0000, v{tmp+i}")

    def unpack(dst, r):
        for i in range(4):
            if r[0] == 'a':
                e(f"v_accvgpr_read_b32 v{dst+2*i+1}, a{r[1]+i}")
                e(f"v_lshlrev_b32 v{dst+2*i}, 16, v{dst+2*i+1}")
                e(f"v_and_b32 v{dst+2*i+1}, 0xffff0000, v{dst+2*i+1}")
            else:
                e(f"v_lshlrev_b32 v{dst+2*i}, 16, v{r[1]+i}")
                e(f"v_and_b32 v{dst+2*i+1}, 0xffff0000, v{r[1]+i}")

    A, B, TM = 12, 20, 28
    for mi, m in enumerate(keep):
        for c in range(2):
            for k, s_ in enumerate((0, 1)):
                dst = A if k == 0 else B
                if s_ == q:
                    for qq in range(2):
                        a = G.acc(m, 2 * c + qq)
                        for x in range(4):
                            e(f"v_accvgpr_read_b32 v{dst+4*qq+x}, a{a+x}")
                    rnd(dst, TM)
                else:
                    unpack(dst, loc[(mi, s_, c)])
            for h in range(4):
                e(f"v_pk_add_f32 v[{A+2*h}:{A+2*h+1}], v[{A+2*h}:{A+2*h+1}], v[{B+2*h}:{B+2*h+1}]")
            rnd(A, TM)
            C = 0
            for qq in range(2):
                n = 2 * c + qq
                for k, s_ in enumerate((2, 3)):
                    dst = B + 4 * qq if k == 0 else TM
                    for x in range(4):
                        if s_ == q:
                            e(f"v_accvgpr_read_b32 v{dst+x}, a{G.acc(m, n)+x}")
                        else:
                            get(dst + x, loc[(mi, s_, n)], x)
                for h in range(2):
                    e(f"v_pk_add_f32 v[{B+4*qq+2*h}:{B+4*qq+2*h+1}], v[{B+4*qq+2*h}:{B+4*qq+2*h+1}], v[{TM+2*h}:{TM+2*h+1}]")
            rnd(B, TM)
            for qq in range(2):
                bb = 72 + 2 * (2 * c + qq)
                e(f"v_lshlrev_b32 v{TM}, 16, v{bb}")
                e(f"v_and_b32 v{TM+1}, 0xffff0000, v{bb}")
                e(f"v_lshlrev_b32 v{TM+2}, 16, v{bb+1}")
                e(f"v_and_b32 v{TM+3}, 0xffff0000, v{bb+1}")
                for h in range(2):
                    e(f"v_pk_add_f32 v[{B+4*qq+2*h}:{B+4*qq+2*h+1}], v[{B+4*qq+2*h}:{B+4*qq+2*h+1}], v[{TM+2*h}:{TM+2*h+1}]")
            rnd(B, TM)
            for half in range(2):
                for x in range(4):
                    e(f"v_mul_f32 v{TM+x}, s37, v{B+4*half+x}")
                for x in range(4):
                    e(f"v_exp_f32 v{TM+x}, v{TM+x}")
                for x in range(4):
                    e(f"v_add_f32 v{TM+x}, 1.0, v{TM+x}")
                for x in range(4):
                    e(f"v_rcp_f32 v{TM+x}, v{TM+x}")
                for x in range(4):
                    e(f"v_mul_f32 v{B+4*half+x}, v{B+4*half+x}, v{TM+x}")
            rnd(B, TM)
            for h in range(4):
                e(f"v_pk_mul_f32 v[{A+2*h}:{A+2*h+1}], v[{A+2*h}:{A+2*h+1}], v[{B+2*h}:{B+2*h+1}]")
            rnd(A, TM)
            unpack(B, ('a', XA + 8 * mi + 4 * c))
            for h in range(4):
                e(f"v_pk_add_f32 v[{A+2*h}:{A+2*h+1}], v[{A+2*h}:{A+2*h+1}], v[{B+2*h}:{B+2*h+1}]")
            for i in range(4):
                e(f"v_cvt_pk_bf16_f32 v{TM+i}, v{A+2*i}, v{A+2*i+1}")
            e(f"s_mov_b32 s{S_T2}, {mi*32768}")
            e("s_nop 0")
            e(f"v_permlane16_swap_b32 v{TM}, v{TM+2}")
            e(f"v_permlane16_swap_b32 v{TM+1}, v{TM+3}")
            e(f"buffer_store_dwordx4 v[{TM}:{TM+3}], v9, s[72:75], s{S_T2} offen offset:{c*64}")
            e("s_nop 1")


def gen_fused(e):
    X = OPT['X']
    khead(e, KNAME)
    e("s_cmp_ge_u32 s2, 256")
    e("s_cbranch_scc1 k_done")
    e("s_load_dwordx2 s[32:33], s[0:1], 0")
    e("s_load_dwordx4 s[20:23], s[0:1], 24")
    e("s_load_dwordx4 s[24:27], s[0:1], 48")
    e("s_load_dwordx4 s[28:31], s[0:1], 88")
    lane_wave(e, 'B')
    e(f"s_mov_b32 s39, s{S_T2}")
    e("s_lshl_b32 s30_, s2, 3".replace("s30_", "s38"))
    e("s_add_u32 s38, s38, s39")
    e("v_lshlrev_b32 v2, 4, v1")
    e("s_lshl_b32 s37, s38, 11")
    e(f"s_mul_i32 s38, s38, {XS}")
    e(f"v_mov_b32 v3, {LDS_CNT}")
    e("v_mov_b32 v4, 0")
    e("v_mov_b32 v5, 0")
    e("v_mov_b32 v6, 0")
    e("v_mov_b32 v7, 0")
    e("ds_write_b128 v3, v[4:7]")
    e("ds_write_b128 v3, v[4:7] offset:32")
    e("s_waitcnt lgkmcnt(0)")
    srd(e, 64, 32, 33, 4 * MB)
    e("buffer_load_dwordx4 v[4:7], v2, s[64:67], s37 offen")
    e("buffer_load_dwordx4 v[8:11], v2, s[64:67], s37 offen offset:1024")
    srd(e, 68, 28, 29, 256)
    e("s_mov_b64 s[28:29], s[30:31]")
    srd(e, S_DBG, 28, 29, 16384, WS_FL)
    e("s_cmp_lg_u32 s39, 4")
    e("s_cbranch_scc1 nonce_done")
    e("v_mov_b32 v12, 0")
    e("s_cmp_lg_u32 s2, 0")
    e("s_cbranch_scc1 nonce_poll")
    e("s_memrealtime s[100:101]")
    e("s_waitcnt lgkmcnt(0)")
    e("s_or_b32 s100, s100, 1")
    e("v_mov_b32 v13, s100")
    e("buffer_store_dword v13, v12, s[68:71], 0 offen sc1")
    e("s_branch nonce_got")
    e.lab("nonce_poll")
    e(f"s_mov_b32 s{S_T2}, {SPIN_MAX}")
    e.lab("nonce_l")
    e("buffer_load_dword v13, v12, s[68:71], 0 offen sc1")
    e("s_waitcnt vmcnt(0)")
    e("v_cmp_eq_u32 vcc, 0, v13")
    e("s_cbranch_vccz nonce_got")
    e("s_sleep 2")
    e(f"s_sub_u32 s{S_T2}, s{S_T2}, 1")
    e(f"s_cmp_lg_u32 s{S_T2}, 0")
    e("s_cbranch_scc1 nonce_l")
    e.lab("nonce_got")
    e("ds_write_b32 v3, v13 offset:16")
    e("s_waitcnt lgkmcnt(0)")
    e.lab("nonce_done")
    srd(e, S_SRD_R, 28, 29, 2048 * XS, WS_XN)
    e("s_and_b32 s30, s2, 1")
    e("s_lshl_b32 s30, s30, 2")
    e("s_lshr_b32 s31, s2, 3")
    e(f"s_and_b32 s{S_ROW0}, s31, 3")
    e(f"s_add_u32 s{S_ROW0}, s{S_ROW0}, s30")
    e(f"s_lshl_b32 s{S_ROW0}, s{S_ROW0}, 8")
    e("s_and_b32 s30, s2, 6")
    e("s_lshl_b32 s30, s30, 2")
    e(f"s_lshr_b32 s{S_COL0}, s31, 2")
    e(f"s_add_u32 s{S_COL0}, s{S_COL0}, s30")
    e(f"s_mov_b32 s{S_NS}, 16")
    e(f"s_mov_b32 s{S_KR}, 0")
    e(f"s_mov_b32 s{S_KC}, 0")
    e(f"s_mov_b32 s{S_KN}, 0")
    e("s_waitcnt vmcnt(0)")
    ln_body(e)
    e(f"buffer_store_dwordx4 v[4:7], v2, s[{S_SRD_R}:{S_SRD_R+3}], s38 offen sc1")
    e(f"buffer_store_dwordx4 v[8:11], v2, s[{S_SRD_R}:{S_SRD_R+3}], s38 offen offset:1024 sc1")
    e(f"s_cmp_lt_u32 s{S_COL0}, 11")
    e("s_cbranch_scc1 g1d_start")
    e(f"s_cmp_eq_u32 s{S_COL0}, 11")
    e("s_cbranch_scc1 g1m_start")
    e("s_branch g1f_start")

    variants = {
        'g1d': [Region('T', 0, 11, 0, 2048)],
        'g1m': [Region('T', 0, 7, 0, 2048), Region('Nadd', 7, 4, 16384, 7168)],
        'g1f': [Region('Nadd', 0, 11, 0, 7168)],
    }
    for pre, regs in variants.items():
        orient = []
        for r in regs:
            orient += ['RA' if r.typ == 'T' else 'CA'] * r.ng
        G = Gemm(e, pre, 'B', 2, 4, 11, 4, 1, regs, XS, 'C', orient, nsteps=16)
        G.sc1R = True
        if OPT.get('rot1'):
            G.rot = (OPT['rot1'], OPT.get('rotmul1', 1))
        e.lab(f"{pre}_start")

        def cset(ri, j, so, G=G, pre=pre):
            r = G.regions[ri]
            if r.typ == 'T':
                e(f"s_mul_i32 s{S_T0}, s{S_COL0}, 22")
                e(f"s_mul_i32 s{S_T1}, s{S_WAVE}, {r.DW}")
                e(f"s_add_u32 s{S_T1}, s{S_T1}, {j}")
                e(f"s_add_u32 s{S_T0}, s{S_T0}, s{S_T1}")
                e(f"s_cmp_lt_u32 s{S_T0}, 128")
                e(f"s_cselect_b32 s{so}, s20, s22")
                e(f"s_cselect_b32 s{so+1}, s21, s23")
                e(f"s_and_b32 s{S_T0}, s{S_T0}, 127")
                e(f"s_lshl_b32 s{S_T0}, s{S_T0}, 14")
                e(f"s_cmp_lt_u32 s{S_T1}, {r.ninstr}")
                e(f"s_cselect_b32 s{so+2}, {2*MB}, 0")
                e(f"s_mov_b32 s{so+3}, 0x20000")
                e(f"s_cselect_b32 s{S_T0}, s{S_T0}, 4096")
            else:
                srd(e, so, 24, 25, 1024 * 7168)
                e(f"s_mul_i32 s{S_T0}, s{S_COL0}, 352")
                e(f"s_sub_u32 s{S_T0}, s{S_T0}, {(128 - r.g0) * 32}")

        e("s_cmp_ge_u32 s39, 4")
        e(f"s_cbranch_scc0 {pre}_comp")
        G.loader_setup(1, 2, cset)

        def mid(nind, pre=pre):
            e(f"s_waitcnt vmcnt({nind})")
            e("s_barrier")
            get_nonce(e, 2)
            e(f"s_cmp_lg_u32 s{S_WAVE}, 0")
            e(f"s_cbranch_scc1 {pre}_nf")
            e("s_lshl_b32 s37, s2, 2")
            e("v_mov_b32 v2, 0")
            e(f"v_mov_b32 v3, s{S_NONCE}")
            e("s_mov_b64 exec, 1")
            e(f"buffer_store_dword v3, v2, s[{S_DBG}:{S_DBG+3}], s37 offen sc1")
            e("s_mov_b64 exec, -1")
            e.lab(f"{pre}_nf")
            e(f"s_lshr_b32 s{S_T0}, s{S_ROW0}, 1")
            e("v_and_b32 v2, 31, v1")
            e(f"v_lshl_add_u32 v2, v2, 2, s{S_T0}")
            lpoll(e, 2, 3, 1, pre, 1)
        loader_phase(e, G, 'C', mid, True)
        e("s_branch g2_loader")
        e.lab(f"{pre}_comp")
        e("s_waitcnt vmcnt(0)")
        e("s_barrier")
        get_nonce(e, 4)
        warm(e, pre)
        e(f"v_mov_b32 v{G.vfrag0+16}, v1")
        G.compute_setup(G.vfrag0 + 16, G.vfrag0)
        G.compute_loop(X)
        g1_epi3(e, G, pre)
        offs = []
        e(f"s_lshr_b32 s36, s{S_ROW0}, 6")
        if pre != 'g1f':
            e(f"s_lshl_b32 s34, s{S_COL0}, 7")
            e("s_add_u32 s34, s34, s36")
            e(f"s_add_u32 s34, s34, {FLY}")
            offs.append(34)
        if pre != 'g1d':
            e(f"s_lshr_b32 s35, s{S_ROW0}, 1")
            e(f"s_lshl_b32 s37, s{S_COL0}, 2")
            e("s_add_u32 s35, s35, s37")
            e(f"s_add_u32 s35, s35, {FLO}")
            offs.append(35)
        signal(e, 2, pre, offs)
        stamp3(e, 4)
        e("s_branch g2_comp")

    def g2_common():
        e("s_load_dwordx4 s[20:23], s[0:1], 8")
        e("s_load_dwordx2 s[24:25], s[0:1], 64")
        e("v_mbcnt_lo_u32_b32 v1, -1, 0")
        e("v_mbcnt_hi_u32_b32 v1, -1, v1")
        e("s_lshr_b32 s30, s2, 1")
        e("s_and_b32 s30, s30, 2")
        e("s_and_b32 s31, s2, 1")
        e("s_add_u32 s30, s30, s31")
        e("s_and_b32 s31, s2, 2")
        e("s_lshl_b32 s31, s31, 1")
        e("s_lshr_b32 s32, s2, 3")
        e(f"s_and_b32 s{S_ROW0}, s32, 3")
        e(f"s_add_u32 s{S_ROW0}, s{S_ROW0}, s31")
        e(f"s_lshl_b32 s{S_ROW0}, s{S_ROW0}, 8")
        e(f"s_lshr_b32 s{S_COL0}, s32, 2")
        e(f"s_lshl_b32 s{S_COL0}, s{S_COL0}, 7")
        e(f"s_mov_b32 s{S_KC}, 0")
        e("s_waitcnt lgkmcnt(0)")

    Gs = {}
    for pre, regs, rstride, ns in (('g2y', [Region('T', 0, 8, 0, ATS)], 4096, 32), ('g2o', [Region('Nxor', 0, 8, 0, 2048)], HT, 28)):
        G = Gemm(e, pre, 'B', 3, 8, 4, 2, 2, regs, rstride, 'R', ['CA'] * 4, nsteps=ns)
        if pre == 'g2y':
            G.sc1C = True
        else:
            G.sc1R = True
        if OPT.get('rot2') and (pre == 'g2y' or OPT.get('rot2o')):
            G.rot = (OPT['rot2'], OPT.get('rotmul2', 1))
        Gs[pre] = G
    e.lab("g2_loader")
    g2_common()
    e("s_cmp_ge_u32 s30, 2")
    e("s_cbranch_scc1 g2o_lstart")
    for pre, G in Gs.items():
        e.lab(f"{pre}_lstart")
        if pre == 'g2y':
            e(f"s_mov_b32 s{S_NS}, 32")
            e(f"s_mov_b32 s{S_KR}, 0")
            e("s_cmp_eq_u32 s30, 0")
            e(f"s_cselect_b32 s{S_SRD_R}, s20, s22")
            e(f"s_cselect_b32 s{S_SRD_R+1}, s21, s23")
            e(f"s_mov_b32 s{S_SRD_R+2}, {8*MB}")
            e(f"s_mov_b32 s{S_SRD_R+3}, 0x20000")
        else:
            e("s_and_b32 s33, s30, 1")
            e(f"s_sub_u32 s{S_NS}, 31, s33")
            e(f"s_mul_i32 s{S_KR}, s33, {31*128}")
            e(f"s_mul_i32 s{S_KN}, s33, {1824*2048}")
            e("s_sub_u32 s89, s33, 1")
            G.kn_step = ["s_cmp_eq_u32 s89, 2",
                         f"s_cselect_b32 s{S_T0}, {48*2048}, s90",
                         f"s_add_u32 s{S_KN}, s{S_KN}, s{S_T0}",
                         "s_add_u32 s89, s89, 1",
                         "s_cmp_eq_u32 s89, 3",
                         "s_cselect_b32 s89, 0, s89"]
            e(f"s_mov_b32 s90, {64*2048}")
            srd(e, S_SRD_R, 28, 29, 2048 * HT, WS_H)

        def cset(ri, j, so, G=G):
            r = G.regions[ri]
            if r.typ == 'T':
                srd(e, so, 28, 29, 2048 * ATS, WS_AT)
                e(f"s_lshl_b32 s{S_T0}, s30, 10")
                e(f"s_add_u32 s{S_T0}, s{S_T0}, s{S_COL0}")
                e(f"s_lshl_b32 s{S_T1}, s{S_WAVE}, 5")
                e(f"s_add_u32 s{S_T0}, s{S_T0}, s{S_T1}")
                e(f"s_add_u32 s{S_T0}, s{S_T0}, {8*j}")
                e(f"s_mul_i32 s{S_T0}, s{S_T0}, {ATS}")
            else:
                srd(e, so, 24, 25, 3584 * 2048)
                e(f"s_lshl_b32 s{S_T0}, s{S_COL0}, 1")
        G.loader_setup(1, 2, cset)

        def mid(nind, pre=pre):
            if pre == 'g2y':
                e(f"s_lshl_b32 s{S_T0}, s30, 10")
                e(f"s_add_u32 s{S_T0}, s{S_T0}, s{S_COL0}")
                e("v_and_b32 v2, 8, v1")
                e("v_lshlrev_b32 v2, 4, v2")
                e("v_min_u32 v2, 127, v2")
                e(f"v_add_u32 v2, s{S_T0}, v2")
                m1, sh1 = magic(176, 2048)
                e(f"v_mul_u32_u24 v2, {m1}, v2")
                e(f"v_lshrrev_b32 v2, {sh1}, v2")
                e("v_and_b32 v3, 7, v1")
                e("v_lshlrev_b32 v4, 7, v2")
                e("v_lshl_add_u32 v4, v3, 2, v4")
                e(f"v_add_u32 v4, {FLY}, v4")
            else:
                e("v_and_b32 v2, 15, v1")
                e("s_sub_u32 s34, 10, s33")
                e("v_min_u32 v2, s34, v2")
                e("s_mul_i32 s34, s33, 11")
                e("s_add_u32 s34, s34, 11")
                e("v_add_u32 v2, s34, v2")
                e(f"s_lshr_b32 s34, s{S_ROW0}, 1")
                e(f"s_add_u32 s34, s34, {FLO}")
                e("v_lshl_add_u32 v4, v2, 2, s34")
            lpoll(e, 4, 5, 2, pre, 4)
        loader_phase(e, G, 'R' if pre == 'g2y' else 'C', mid, True)
        e("s_endpgm")
    e.lab("g2_comp")
    g2_common()
    e("s_cmp_ge_u32 s30, 2")
    e("s_cbranch_scc1 g2o_cstart")
    for pre, G in Gs.items():
        e.lab(f"{pre}_cstart")
        if pre == 'g2y':
            e(f"s_mov_b32 s{S_NS}, 32")
        else:
            e("s_and_b32 s33, s30, 1")
            e(f"s_sub_u32 s{S_NS}, 31, s33")
        e(f"v_mov_b32 v{G.vfrag0+16}, v1")
        G.compute_setup(G.vfrag0 + 16, G.vfrag0)
        OPT['sbase'] = 4
        G.compute_loop(X)
        OPT['sbase'] = 0
        e("s_and_b32 s33, s30, 1")
        e("s_cmp_eq_u32 s33, 1")
        e(f"s_cbranch_scc1 {pre}_e1")
        q0 = 0 if pre == 'g2y' else 2
        combine(e, G, pre[-1], q0)
        stamp3_out(e)
        e("s_endpgm")
        e.lab(f"{pre}_e1")
        combine(e, G, pre[-1], q0 + 1)
        stamp3_out(e)
        e("s_endpgm")
    e.lab("k_done")
    e("s_endpgm")
    kdesc(e, KNAME, 256, 80)


def main():
    out = sys.argv[1]
    for a in sys.argv[2:]:
        k, v = a.split("=")
        OPT[k] = int(v) if v.lstrip('-').isdigit() else v
    e = E()
    gen_fused(e)
    hdr = open("cdna_kernels/%s.s.ref" % KN).read().split("; Override launch")[0]
    hdr += f"; @launch grid=(256,1,1) block=(512,1,1) lds={LDS_TOTAL}\n"
    hdr += '.amdgcn_target "amdgcn-amd-amdhsa--gfx950"\n.text\n'
    open(out, "w").write(hdr + "\n".join(e.L) + "\n")


if __name__ == "__main__":
    main()
```

```python
import sys, math

KN = "recurrent_scan__spectral_fnet__dense_activation_gelu__prompt"

MB = 1 << 20
WS_XN = 0
WS_AT = 5 * MB
WS_H = 14 * MB
XS, ATS, HS = 2176, 4224, 7296
WS_P0 = 32 * MB
WS_P1 = 36 * MB
WS_P2 = 40 * MB
WS_P3 = 48 * MB

OPT = dict(design1='B', design2='B', S1=2, S2=3, X=8)


class E:
    def __init__(s):
        s.L = []

    def __call__(s, x):
        s.L.append("    " + x)

    def lab(s, x):
        s.L.append(x + ":")

    def c(s, x):
        s.L.append("    ; " + x)

    def ext(s, lst):
        for x in lst:
            s(x)


def srd(e, d, lo, hi, nbytes, add=0):
    if add:
        e(f"s_add_u32 s{d}, s{lo}, {add}")
        e(f"s_addc_u32 s{d+1}, s{hi}, 0")
    else:
        e(f"s_mov_b32 s{d}, s{lo}")
        e(f"s_mov_b32 s{d+1}, s{hi}")
    e(f"s_mov_b32 s{d+2}, {nbytes}")
    e(f"s_mov_b32 s{d+3}, 0x20000")


def kdesc(e, name, vgpr, accoff, sgpr=102):
    e.L.append('.section .rodata,"a"')
    e.L.append(".p2align 6")
    e.L.append(f".amdhsa_kernel {name}")
    e.L.append(f"  .amdhsa_next_free_vgpr {vgpr}")
    e.L.append(f"  .amdhsa_next_free_sgpr {sgpr}")
    e.L.append(f"  .amdhsa_accum_offset {accoff}")
    e.L.append("  .amdhsa_group_segment_fixed_size 0")
    e.L.append("  .amdhsa_kernarg_size 104")
    e.L.append("  .amdhsa_user_sgpr_count 2")
    e.L.append("  .amdhsa_user_sgpr_kernarg_segment_ptr 1")
    e.L.append("  .amdhsa_system_sgpr_workgroup_id_x 1")
    e.L.append(".end_amdhsa_kernel")
    e.L.append(".text")


def khead(e, name):
    e.L.append(f".globl {name}")
    e.L.append(".p2align 8")
    e.L.append(f".type {name},@function")
    e.lab(name)


def gen_ln(e):
    name = "ln_kernel"
    khead(e, name)
    e("s_cmp_ge_u32 s2, 512")
    e("s_cbranch_scc1 ln_done")
    tl(e, 0, 0)
    e("s_load_dwordx2 s[4:5], s[0:1], 0")
    e("s_load_dwordx2 s[6:7], s[0:1], 96")
    e("v_lshrrev_b32 v1, 6, v0")
    e("v_and_b32 v2, 63, v0")
    e("s_lshl_b32 s3, s2, 2")
    e("v_add_u32 v1, s3, v1")
    e(f"s_mov_b32 s16, {XS}")
    e("v_mul_lo_u32 v50, v1, s16")
    e("v_lshl_add_u32 v50, v2, 4, v50")
    e("v_lshlrev_b32 v1, 11, v1")
    e("v_lshl_add_u32 v1, v2, 4, v1")
    e("s_waitcnt lgkmcnt(0)")
    srd(e, 8, 4, 5, 4 * MB)
    srd(e, 12, 6, 7, 2048 * XS, WS_XN)
    e("buffer_load_dwordx4 v[4:7], v1, s[8:11], 0 offen")
    e("buffer_load_dwordx4 v[8:11], v1, s[8:11], 0 offen offset:1024")
    npf = 0
    if OPT.get('pfln'):
        e("s_load_dwordx8 s[36:43], s[0:1], 8")
        e("s_load_dwordx2 s[44:45], s[0:1], 48")
        e("s_load_dwordx2 s[46:47], s[0:1], 64")
        e("v_lshrrev_b32 v70, 6, v0")
        e("v_add_u32 v70, s3, v70")
        e("v_lshlrev_b32 v71, 7, v2")
        e("s_waitcnt lgkmcnt(0)")
        items = [(40, 2 * MB), (42, 2 * MB), (44, 1024 * 7168)]
        if OPT['pfln'] >= 2:
            items += [(36, 8 * MB), (38, 8 * MB), (46, 3584 * 2048)]
        for k, (lo, nb) in enumerate(items):
            per = nb // 128 // 2048
            srd(e, 48, lo, lo + 1, nb)
            e(f"v_mul_u32_u24 v72, {per*128}, v70")
            e("v_add_u32 v72, v72, v71")
            e(f"v_cmp_gt_u32 vcc, {per}, v2")
            e("v_mov_b32 v73, 0x7ff00000")
            e("s_nop 0")
            e("v_cndmask_b32 v72, v73, v72, vcc")
            e(f"buffer_load_dword v{74+k}, v72, s[48:51], 0 offen")
            npf += 1
    if OPT.get('pfcode'):
        e("s_getpc_b64 s[52:53]")
        e.lab("ln_pc")
        e("s_lshr_b32 s54, s2, 3")
        e("s_lshl_b32 s54, s54, 8")
        e("v_add_u32 v72, s54, v0")
        e("v_lshlrev_b32 v72, 7, v72")
        e("v_min_u32 v72, text_end-ln_pc-4, v72")
        e("v_and_b32 v72, 0xfffffffc, v72")
        e("global_load_dword v69, v72, s[52:53]")
        npf += 1
    e(f"s_waitcnt vmcnt({npf})")
    for i in range(8):
        e(f"v_lshlrev_b32 v{16+2*i}, 16, v{4+i}")
        e(f"v_and_b32 v{17+2*i}, 0xffff0000, v{4+i}")

    def tree(dst, src):
        for i in range(8):
            e(f"v_add_f32 v{40+i}, v{src+2*i}, v{src+2*i+1}")
        for i in range(4):
            e(f"v_add_f32 v{40+i}, v{40+i}, v{44+i}")
        e("v_add_f32 v40, v40, v42")
        e("v_add_f32 v41, v41, v43")
        e(f"v_add_f32 v{dst}, v40, v41")

    def wred(v, sdst):
        for sh in (1, 2, 4, 8):
            e("s_nop 1")
            e(f"v_add_f32_dpp v{v}, v{v}, v{v} row_ror:{sh} row_mask:0xf bank_mask:0xf")
        e("s_nop 1")
        e(f"v_readlane_b32 s20, v{v}, 0")
        e(f"v_readlane_b32 s21, v{v}, 16")
        e(f"v_readlane_b32 s22, v{v}, 32")
        e(f"v_readlane_b32 s23, v{v}, 48")
        e("s_nop 1")
        e(f"v_mov_b32 v{v}, s20")
        e(f"v_add_f32 v{v}, s21, v{v}")
        e(f"v_mov_b32 v48, s22")
        e(f"v_add_f32 v48, s23, v48")
        e(f"v_add_f32 v{v}, v{v}, v48")

    tree(3, 16)
    wred(3, 24)
    e("v_mul_f32 v3, 0x3a800000, v3")
    for i in range(16):
        e(f"v_sub_f32 v{52+i}, v{16+i}, v3")
    for i in range(16):
        e(f"v_mul_f32 v{52+i}, v{52+i}, v{52+i}")
    tree(12, 52)
    wred(12, 25)
    e("v_mul_f32 v12, 0x3a800000, v12")
    e("v_cvt_pk_bf16_f32 v13, v3, v12")
    e("v_lshlrev_b32 v3, 16, v13")
    e("v_and_b32 v12, 0xffff0000, v13")
    e("v_add_f32 v12, 0x3727c5ac, v12")
    e("v_cvt_pk_bf16_f32 v13, v12, v12")
    e("v_lshlrev_b32 v12, 16, v13")
    e("v_sqrt_f32 v12, v12")
    e("s_nop 0")
    e("v_cvt_pk_bf16_f32 v13, v12, v12")
    e("v_lshlrev_b32 v12, 16, v13")
    e("v_rcp_f32 v14, v12")
    for i in range(8):
        e(f"v_sub_f32 v{16+2*i}, v{16+2*i}, v3")
        e(f"v_sub_f32 v{17+2*i}, v{17+2*i}, v3")
        e(f"v_cvt_pk_bf16_f32 v{4+i}, v{16+2*i}, v{17+2*i}")
        e(f"v_lshlrev_b32 v{16+2*i}, 16, v{4+i}")
        e(f"v_and_b32 v{17+2*i}, 0xffff0000, v{4+i}")
    for i in range(16):
        e(f"v_mul_f32 v{52+i}, v{16+i}, v14")
        e(f"v_fma_f32 v{16+i}, -v{52+i}, v12, v{16+i}")
        e(f"v_fma_f32 v{52+i}, v{16+i}, v14, v{52+i}")
    for i in range(8):
        e(f"v_cvt_pk_bf16_f32 v{4+i}, v{52+2*i}, v{53+2*i}")
    e("buffer_store_dwordx4 v[4:7], v50, s[12:15], 0 offen")
    e("buffer_store_dwordx4 v[8:11], v50, s[12:15], 0 offen offset:1024")
    tl(e, 0, 1)
    e.lab("ln_done")
    e("s_endpgm")
    kdesc(e, name, 80, 80, 102)


def gen_fin(e):
    name = "fin_kernel"
    khead(e, name)
    e("s_cmp_ge_u32 s2, 1024")
    e("s_cbranch_scc1 fin_done")
    tl(e, 3, 0, 50)
    e("s_load_dwordx2 s[4:5], s[0:1], 0")
    e("s_load_dwordx4 s[24:27], s[0:1], 72")
    e("s_load_dwordx2 s[6:7], s[0:1], 96")
    e("s_lshl_b32 s3, s2, 8")
    e("v_add_u32 v1, s3, v0")
    e("v_lshlrev_b32 v2, 4, v1")
    e("v_lshlrev_b32 v3, 5, v1")
    e("v_and_b32 v4, 0x7ff, v2")
    e("s_mov_b32 s28, 0xbfb8aa3b")
    e("s_waitcnt lgkmcnt(0)")
    srd(e, 8, 4, 5, 4 * MB)
    srd(e, 12, 6, 7, 8 * MB, WS_P0)
    srd(e, 16, 6, 7, 16 * MB, WS_P2)
    srd(e, 20, 24, 25, 2048)
    srd(e, 32, 26, 27, 4 * MB)
    e(f"s_mov_b32 s29, {4*MB}")
    e(f"s_mov_b32 s30, {8*MB}")
    e("buffer_load_dwordx4 v[8:11], v2, s[12:15], 0 offen")
    e("buffer_load_dwordx4 v[12:15], v2, s[12:15], s29 offen")
    e("buffer_load_dwordx4 v[16:19], v3, s[16:19], 0 offen")
    e("buffer_load_dwordx4 v[20:23], v3, s[16:19], 0 offen offset:16")
    e("buffer_load_dwordx4 v[24:27], v3, s[16:19], s30 offen")
    e("buffer_load_dwordx4 v[28:31], v3, s[16:19], s30 offen offset:16")
    e("buffer_load_dwordx4 v[32:35], v4, s[20:23], 0 offen")
    e("buffer_load_dwordx4 v[36:39], v2, s[8:11], 0 offen")
    e("s_waitcnt vmcnt(6)")
    for i in range(4):
        e(f"v_lshlrev_b32 v{40+2*i}, 16, v{8+i}")
        e(f"v_and_b32 v{41+2*i}, 0xffff0000, v{8+i}")
        e(f"v_lshlrev_b32 v{48+2*i}, 16, v{12+i}")
        e(f"v_and_b32 v{49+2*i}, 0xffff0000, v{12+i}")
    for i in range(8):
        e(f"v_add_f32 v{40+i}, v{40+i}, v{48+i}")
    for i in range(4):
        e(f"v_cvt_pk_bf16_f32 v{8+i}, v{40+2*i}, v{41+2*i}")
        e(f"v_lshlrev_b32 v{40+2*i}, 16, v{8+i}")
        e(f"v_and_b32 v{41+2*i}, 0xffff0000, v{8+i}")
    e("s_waitcnt vmcnt(1)")
    for i in range(8):
        e(f"v_add_f32 v{16+i}, v{16+i}, v{24+i}")
    for i in range(4):
        e(f"v_cvt_pk_bf16_f32 v{8+i}, v{16+2*i}, v{17+2*i}")
        e(f"v_lshlrev_b32 v{16+2*i}, 16, v{8+i}")
        e(f"v_and_b32 v{17+2*i}, 0xffff0000, v{8+i}")
        e(f"v_lshlrev_b32 v{24+2*i}, 16, v{32+i}")
        e(f"v_and_b32 v{25+2*i}, 0xffff0000, v{32+i}")
    for i in range(8):
        e(f"v_add_f32 v{16+i}, v{16+i}, v{24+i}")
    for i in range(4):
        e(f"v_cvt_pk_bf16_f32 v{8+i}, v{16+2*i}, v{17+2*i}")
        e(f"v_lshlrev_b32 v{16+2*i}, 16, v{8+i}")
        e(f"v_and_b32 v{17+2*i}, 0xffff0000, v{8+i}")
    for i in range(8):
        e(f"v_mul_f32 v{24+i}, s28, v{16+i}")
    for i in range(8):
        e(f"v_exp_f32 v{24+i}, v{24+i}")
    for i in range(8):
        e(f"v_add_f32 v{24+i}, 1.0, v{24+i}")
    for i in range(8):
        e(f"v_rcp_f32 v{24+i}, v{24+i}")
    for i in range(8):
        e(f"v_mul_f32 v{16+i}, v{16+i}, v{24+i}")
    for i in range(4):
        e(f"v_cvt_pk_bf16_f32 v{8+i}, v{16+2*i}, v{17+2*i}")
        e(f"v_lshlrev_b32 v{16+2*i}, 16, v{8+i}")
        e(f"v_and_b32 v{17+2*i}, 0xffff0000, v{8+i}")
    for i in range(8):
        e(f"v_mul_f32 v{16+i}, v{16+i}, v{40+i}")
    e("s_waitcnt vmcnt(0)")
    for i in range(4):
        e(f"v_cvt_pk_bf16_f32 v{8+i}, v{16+2*i}, v{17+2*i}")
        e(f"v_lshlrev_b32 v{16+2*i}, 16, v{8+i}")
        e(f"v_and_b32 v{17+2*i}, 0xffff0000, v{8+i}")
        e(f"v_lshlrev_b32 v{24+2*i}, 16, v{36+i}")
        e(f"v_and_b32 v{25+2*i}, 0xffff0000, v{36+i}")
    for i in range(8):
        e(f"v_add_f32 v{16+i}, v{16+i}, v{24+i}")
    for i in range(4):
        e(f"v_cvt_pk_bf16_f32 v{8+i}, v{16+2*i}, v{17+2*i}")
    e("buffer_store_dwordx4 v[8:11], v2, s[32:35], 0 offen")
    tl(e, 3, 1, 50)
    e.lab("fin_done")
    e("s_endpgm")
    kdesc(e, name, 56, 56, 102)


S_WAVE = 3
S_ROW0 = 40
S_COL0 = 41
S_KR = 42
S_KC = 43
S_KN = 44
S_CNT = 45
S_WR = 46
S_RD = 47
S_DL = 48
S_T0 = 49
S_T1 = 50
S_T2 = 51
S_M0 = 52
S_NS = 60
S_LEFT = 61
S_KI = 62
S_SRD_R = 8
S_SRD_O = 12
S_SRD_B = 16
S_SRD_C = 64
S_NREC = 88
RT = 32768


class Region:
    def __init__(s, typ, g0, ng, lds_off, gstride):
        s.typ, s.g0, s.ng, s.lds_off, s.gstride = typ, g0, ng, lds_off, gstride
        if typ == 'T':
            s.ninstr = ng * 2
        elif typ == 'Nadd':
            W = ng * 32
            s.RS = W if ng % 2 else W + 32
            s.BL = 8 * s.RS // 16 + 8
            s.ninstr = -(-8 * s.BL // 64)
        elif typ == 'Nxor':
            assert ng in (4, 8)
            s.RS = ng * 32
            s.ninstr = ng * 2
        s.DW = -(-s.ninstr // 4)
        s.bytes = s.DW * 4 * 1024


def magic(d, n):
    for sh in range(8, 24):
        m = -(-(1 << sh) // d)
        if m < (1 << 24) and all((x * m) >> sh == x // d for x in range(n)):
            return m, sh
    raise Exception


class Gemm:
    def __init__(s, e, pre, design, S, MT, NT, WM, WN, regions, rstride, outer, orient, nsteps_sgpr=False, nsteps=None):
        s.e, s.pre, s.design, s.S = e, pre, design, S
        s.MT, s.NT, s.WM, s.WN = MT, NT, WM, WN
        s.regions, s.rstride, s.outer, s.orient = regions, rstride, outer, orient
        s.CS = sum(r.bytes for r in regions)
        s.SS = RT + s.CS
        s.nsteps = nsteps
        s.rot = None
        s.pfstub = None
        s.st_off = 0
        s.sc1R = False
        s.sc1C = False
        s.pre_R = None
        s.kn_step = None
        s.kr_step = None
        s.rblk = None
        s.cblk = None
        s.CB = RT
        s.splitring = False
        s.SR, s.SC = 2, 3
        s.wc = None
        s.accv = 0
        s.D = 8 + sum(r.DW for r in regions)
        nacc = MT * NT * 4
        s.nacc = nacc
        v = 0
        s.vR = [0]
        v = 1
        s.vC = {}
        for ri, r in enumerate(regions):
            if r.typ == 'T':
                s.vC[ri] = [v]; v += 1
            elif r.typ == 'Nadd':
                s.vC[ri] = [v]; v += 1
            else:
                n = min(NT, r.ng)
                s.vC[ri] = list(range(v, v + n)); v += n
        s.naddr = v
        v = (v + 3) // 4 * 4
        if outer == 'C':
            s.fR = [[v + (st * MT + m) * 4 for m in range(MT)] for st in range(2)]
            v += 2 * MT * 4
            s.fC = [[v + n * 4 for n in range(NT)]] * 2
            v += NT * 4
        else:
            s.fR = [[v + m * 4 for m in range(MT)]] * 2
            v += MT * 4
            s.fC = [[v + (st * NT + n) * 4 for n in range(NT)] for st in range(2)]
            v += 2 * NT * 4
        s.vfrag0 = (s.naddr + 3) // 4 * 4
        s.vend = v
        if design == 'A':
            s.vL = v
            v += s.D
        else:
            s.vL = 8
        s.vtop = v

    def region_of(s, n):
        if s.WN > 1:
            return 0, n
        for ri, r in enumerate(s.regions):
            if r.g0 <= n < r.g0 + r.ng:
                return ri, n - r.g0
        raise Exception

    def rd_R(s, kk, m):
        d = s.fR[kk][m]
        return [(f"ds_read_b128 v[{d}:{d+3}], v{s.vR[0]} offset:{m*2048+kk*(1024 if s.rblk else 512)}", d)]

    def rd_C(s, kk, n):
        d = s.fC[kk][n]
        ri, j = s.region_of(n)
        r = s.regions[ri]
        if r.typ == 'T':
            return [(f"ds_read_b128 v[{d}:{d+3}], v{s.vC[ri][0]} offset:{j*2048+kk*(1024 if s.cblk else 512)}", d)]
        if r.typ == 'Nadd':
            o = kk * (32 * r.RS + 512) + j * 32
            return [(f"ds_read_b64_tr_b16 v[{d}:{d+1}], v{s.vC[ri][0]} offset:{o}", d),
                    (f"ds_read_b64_tr_b16 v[{d+2}:{d+3}], v{s.vC[ri][0]} offset:{o+4*r.RS}", d + 2)]
        o = kk * 32 * r.RS
        return [(f"ds_read_b64_tr_b16 v[{d}:{d+1}], v{s.vC[ri][j]} offset:{o}", d),
                (f"ds_read_b64_tr_b16 v[{d+2}:{d+3}], v{s.vC[ri][j]} offset:{o+4*r.RS}", d + 2)]

    def acc(s, m, n):
        return (m * s.NT + n) * 4 + s.accv

    def mfma(s, kk, m, n):
        a = s.acc(m, n)
        r, c = s.fR[kk][m], s.fC[kk][n]
        if s.orient[n] == 'RA':
            x, y = r, c
        else:
            x, y = c, r
        t = 'v' if s.accv else 'a'
        return (f"v_mfma_f32_16x16x32_bf16 {t}[{a}:{a+3}], v[{x}:{x+3}], v[{y}:{y+3}], {t}[{a}:{a+3}]", [r, c, c + 2])

    def loader_setup(s, vlane, vt, cset, part='both', mult=1, sw=S_WAVE, quads=None):
        e = s.e
        L = s.vL
        s.lw, s.mult = sw, mult
        quads = list(quads) if quads else list(range(S_SRD_C, S_NREC, 4))
        def tparts(stride):
            e(f"v_lshrrev_b32 v{vt}, 2, v{vlane}")
            e(f"v_and_b32 v{vt}, 7, v{vt}")
            e(f"s_mov_b32 s{S_T1}, {stride}")
            e(f"v_mul_lo_u32 v{vt}, v{vt}, s{S_T1}")
            e(f"v_lshrrev_b32 v{vt+1}, 5, v{vlane}")
            e(f"v_lshl_add_u32 v{vt}, v{vt+1}, 6, v{vt}")
            e(f"v_lshrrev_b32 v{vt+1}, 3, v{vlane}")
            e(f"v_and_b32 v{vt+1}, 2, v{vt+1}")
            e(f"v_and_b32 v{vt+2}, 3, v{vlane}")
            e(f"v_xor_b32 v{vt+1}, v{vt+1}, v{vt+2}")
            e(f"v_lshlrev_b32 v{vt+1}, 4, v{vt+1}")
            e(f"v_xor_b32 v{vt+2}, 48, v{vt+1}")
            e(f"v_add_u32 v{vt+1}, v{vt+1}, v{vt}")
            e(f"v_add_u32 v{vt+2}, v{vt+2}, v{vt}")
        def bparts():
            e(f"v_lshrrev_b32 v{vt}, 5, v{vlane}")
            e(f"v_lshrrev_b32 v{vt+1}, 4, v{vlane}")
            e(f"v_and_b32 v{vt+1}, 1, v{vt+1}")
            e(f"v_xor_b32 v{vt+1}, v{vt+1}, v{vt}")
            e(f"v_lshl_add_u32 v{vt+1}, v{vt+1}, 1, v{vt}")
            e(f"v_xor_b32 v{vt+1}, v{vt+1}, v{vlane}")
            e(f"v_lshlrev_b32 v{vt+1}, 4, v{vt+1}")
            e(f"v_mov_b32 v{vt+2}, v{vt+1}")
        s.dma = []
        s.srds = []
        s.nR = 0
        NR = 8 * mult
        vo = L
        mo = S_M0
        if part != 'C':
            e(f"s_lshl_b32 s{S_T0}, s{sw}, {5 + mult}")
            e(f"s_add_u32 s{S_T0}, s{S_T0}, s{S_ROW0}")
            if s.rblk:
                bparts()
                e(f"s_lshr_b32 s{S_T0}, s{S_T0}, 4")
                e(f"s_mul_i32 s{S_T0}, s{S_T0}, {s.rblk}")
            else:
                tparts(s.rstride)
                e(f"s_mul_i32 s{S_T0}, s{S_T0}, {s.rstride}")
            for j in range(NR):
                off = (j >> 1) * s.rblk + (j & 1) * 1024 if s.rblk else j * 8 * s.rstride
                e(f"s_add_u32 s{S_T1}, s{S_T0}, {off - (j&3)*1024}")
                e(f"v_add_u32 v{L+j}, s{S_T1}, v{vt+1+(j&1)}")
            e(f"s_lshl_b32 s{S_M0}, s{sw}, {12 + mult}")
            for g in range(1, NR // 4):
                e(f"s_add_u32 s{S_M0+g}, s{S_M0}, {4096*g}")
            for j in range(NR):
                s.dma.append((L + j, S_SRD_R, S_KR, S_M0 + (j >> 2) if (j & 3) == 0 else None, (j & 3) * 1024))
            vo = L + NR
            mo = S_M0 + NR // 4
            s.srds = [S_SRD_R]
            s.nR = NR
        so = quads.pop(0)
        for ri, r in enumerate(s.regions if part != 'R' else []):
            DW = r.DW * mult
            ng4 = -(-DW // 4)
            e(f"s_mul_i32 s{mo}, s{sw}, {DW*1024}")
            e(f"s_add_u32 s{mo}, s{mo}, {s.CB + r.lds_off}")
            for g in range(1, ng4):
                e(f"s_add_u32 s{mo+g}, s{mo}, {4096*g}")
            if r.typ == 'T':
                assert r.DW % 2 == 0
                bparts() if s.cblk else tparts(r.gstride)
                for j in range(DW):
                    cset(ri, j, so)
                    if (j & 3):
                        e(f"s_sub_u32 s{S_T0}, s{S_T0}, {(j&3)*1024}")
                    e(f"v_add_u32 v{vo+j}, s{S_T0}, v{vt+1+(j&1)}")
                    s.dma.append((vo + j, so, S_KC, mo + (j >> 2) if (j & 3) == 0 else None, (j & 3) * 1024))
                    s.srds.append(so)
                    so = quads.pop(0) if quads else None
            elif r.typ == 'Nadd':
                cset(ri, None, so)
                s.srds.append(so)
                m1, sh1 = magic(r.BL, 4 * r.DW * 64)
                rc = r.RS // 16
                m2, sh2 = magic(rc, r.BL)
                e(f"s_mul_i32 s{S_T1}, s{sw}, {DW*64}")
                for j in range(DW):
                    e(f"v_add_u32 v{vt}, s{S_T1}, v{vlane}")
                    if j:
                        e(f"v_add_u32 v{vt}, {64*j}, v{vt}")
                    e(f"v_mul_u32_u24 v{vt+1}, {m1}, v{vt}")
                    e(f"v_lshrrev_b32 v{vt+1}, {sh1}, v{vt+1}")
                    e(f"v_mul_u32_u24 v{vt+2}, {r.BL}, v{vt+1}")
                    e(f"v_sub_u32 v{vt}, v{vt}, v{vt+2}")
                    e(f"v_mul_u32_u24 v{vt+2}, {m2}, v{vt}")
                    e(f"v_lshrrev_b32 v{vt+2}, {sh2}, v{vt+2}")
                    e(f"v_mul_u32_u24 v{vt+3}, {rc}, v{vt+2}")
                    e(f"v_sub_u32 v{vt+3}, v{vt}, v{vt+3}")
                    e(f"v_lshl_add_u32 v{vt+1}, v{vt+1}, 3, v{vt+2}")
                    e(f"v_mul_u32_u24 v{vt+4}, {r.gstride}, v{vt+1}")
                    e(f"v_lshl_add_u32 v{vt+4}, v{vt+3}, 4, v{vt+4}")
                    e(f"v_add_u32 v{vt+4}, s{S_T0}, v{vt+4}")
                    if j & 3:
                        e(f"v_subrev_u32 v{vt+4}, {(j&3)*1024}, v{vt+4}")
                    e(f"v_cmp_gt_u32 vcc, 8, v{vt+2}")
                    e(f"v_mov_b32 v{vt+5}, 0x7ff00000")
                    e("s_nop 0")
                    e(f"v_cndmask_b32 v{vt+4}, v{vt+5}, v{vt+4}, vcc")
                    e(f"v_cmp_gt_u32 vcc, {r.ng*2}, v{vt+3}")
                    e("s_nop 1")
                    e(f"v_cndmask_b32 v{vt+4}, v{vt+5}, v{vt+4}, vcc")
                    e(f"v_cmp_gt_u32 vcc, 64, v{vt+1}")
                    e("s_nop 1")
                    e(f"v_cndmask_b32 v{vo+j}, v{vt+5}, v{vt+4}, vcc")
                    s.dma.append((vo + j, so, S_KN, mo + (j >> 2) if (j & 3) == 0 else None, (j & 3) * 1024))
                so = quads.pop(0) if quads else None
            else:
                cset(ri, None, so)
                s.srds.append(so)
                if r.ng == 8:
                    assert r.DW == 4
                    e(f"v_lshrrev_b32 v{vt}, 4, v{vlane}")
                    e(f"v_mul_u32_u24 v{vt+1}, {r.gstride}, v{vt}")
                    e(f"v_lshlrev_b32 v{vt}, 5, v{vt}")
                    e(f"v_and_b32 v{vt+2}, 15, v{vlane}")
                    e(f"v_lshlrev_b32 v{vt+2}, 4, v{vt+2}")
                    e(f"v_xor_b32 v{vt+2}, v{vt+2}, v{vt}")
                    e(f"v_xor_b32 v{vt+3}, 128, v{vt+2}")
                    e(f"v_add_u32 v{vt+2}, v{vt+2}, v{vt+1}")
                    e(f"v_add_u32 v{vt+3}, v{vt+3}, v{vt+1}")
                    e(f"s_mul_i32 s{S_T1}, s{sw}, {16*r.gstride}")
                    e(f"s_add_u32 s{S_T0}, s{S_T0}, s{S_T1}")
                    for j in range(4):
                        e(f"s_add_u32 s{S_T1}, s{S_T0}, {j*4*r.gstride - (j&3)*1024}")
                        e(f"v_add_u32 v{vo+j}, s{S_T1}, v{vt+2+((j>>1)&1)}")
                        s.dma.append((vo + j, so, S_KN, mo if j == 0 else None, j * 1024))
                else:
                    assert r.DW == 2
                    e(f"v_lshrrev_b32 v{vt}, 3, v{vlane}")
                    e(f"v_mul_u32_u24 v{vt+1}, {r.gstride}, v{vt}")
                    e(f"v_lshrrev_b32 v{vt}, 4, v{vlane}")
                    e(f"v_and_b32 v{vt}, 1, v{vt}")
                    e(f"v_lshlrev_b32 v{vt}, 5, v{vt}")
                    e(f"v_and_b32 v{vt+2}, 7, v{vlane}")
                    e(f"v_lshlrev_b32 v{vt+2}, 4, v{vt+2}")
                    e(f"v_xor_b32 v{vt+2}, v{vt+2}, v{vt}")
                    e(f"v_xor_b32 v{vt+3}, 64, v{vt+2}")
                    e(f"v_add_u32 v{vt+2}, v{vt+2}, v{vt+1}")
                    e(f"v_add_u32 v{vt+3}, v{vt+3}, v{vt+1}")
                    e(f"s_mul_i32 s{S_T1}, s{sw}, {16*r.gstride}")
                    e(f"s_add_u32 s{S_T0}, s{S_T0}, s{S_T1}")
                    for j in range(2):
                        e(f"s_add_u32 s{S_T1}, s{S_T0}, {j*8*r.gstride - j*1024}")
                        e(f"v_add_u32 v{vo+j}, s{S_T1}, v{vt+2+j}")
                        s.dma.append((vo + j, so, S_KN, mo if j == 0 else None, j * 1024))
                so = quads.pop(0) if quads else None
            vo += DW
            mo += ng4
        assert mo <= S_NS
        s.D = len(s.dma)

    def dma_groups(s):
        out = []
        for k, (v, sr, so, m0, io) in enumerate(s.dma):
            g = []
            if m0 is not None:
                g.append(f"s_add_u32 m0, s{s.wc if (s.wc and k >= s.nR) else S_WR}, s{m0}")
                g.append("s_nop 0")
            sc = " sc1" if (s.sc1R if k < s.nR else s.sc1C) else ""
            sof = "0" if (k < s.nR and s.pre_R) else f"s{so}"
            g.append(f"buffer_load_dwordx4 v{v}, s[{sr}:{sr+3}], {sof} offen offset:{io}{sc} lds" if io else
                     f"buffer_load_dwordx4 v{v}, s[{sr}:{sr+3}], {sof} offen{sc} lds")
            out.append(g)
        return out

    def dma_book(s):
        kr = 2048 if s.rblk else 128
        kc = 2048 if s.cblk else 128
        g = list(s.kr_step) if s.kr_step else [f"s_add_u32 s{S_KR}, s{S_KR}, {kr}"]
        if any(r.typ == 'T' for r in s.regions):
            g.append(f"s_add_u32 s{S_KC}, s{S_KC}, {kc}")
        for r in s.regions:
            if r.typ != 'T':
                if s.kn_step:
                    g += s.kn_step
                else:
                    g.append(f"s_add_u32 s{S_KN}, s{S_KN}, {64*r.gstride}")
        if s.rot:
            g.append(f"s_add_u32 s{S_KI}, s{S_KI}, 1")
            g.append(f"s_cmp_ge_u32 s{S_KI}, s{S_NS}")
            g.append(f"s_cselect_b32 s{S_KI}, 0, s{S_KI}")
            g.append(f"s_cselect_b32 s{S_T0}, {kr*s.nsteps}, 0")
            if any(r.typ == 'T' for r in s.regions):
                g.append(f"s_cselect_b32 s{S_T1}, {kc*s.nsteps}, 0")
                g.append(f"s_sub_u32 s{S_KC}, s{S_KC}, s{S_T1}")
            g.append(f"s_sub_u32 s{S_KR}, s{S_KR}, s{S_T0}")
            for r in s.regions:
                if r.typ != 'T':
                    g.append(f"s_mul_i32 s{S_T0}, s{S_KI}, 1")
                    g.append(f"s_cmp_eq_u32 s{S_KI}, 0")
                    g.append(f"s_cselect_b32 s{S_T0}, {64*r.gstride*s.nsteps}, 0")
                    g.append(f"s_sub_u32 s{S_KN}, s{S_KN}, s{S_T0}")
        g.append(f"s_add_u32 s{S_WR}, s{S_WR}, {s.SS}")
        g.append(f"s_cmp_ge_u32 s{S_WR}, {s.SS*s.S}")
        g.append(f"s_cselect_b32 s{S_WR}, 0, s{S_WR}")
        g.append(f"s_sub_u32 s{S_LEFT}, s{S_LEFT}, 1")
        g.append(f"s_cmp_lt_i32 s{S_LEFT}, 1")
        for sr in s.srds:
            g.append(f"s_cselect_b32 s{sr+2}, 0, s{sr+2}")
        return g

    def loader_init(s):
        e = s.e
        e(f"s_mov_b32 s{S_WR}, 0")
        e(f"s_mov_b32 s{S_LEFT}, s{S_NS}")
        if s.rot:
            W, mul = s.rot
            if W == 1:
                e(f"s_and_b32 s{S_KI}, s2, 7")
            elif W == 2:
                e(f"s_lshr_b32 s{S_KI}, s2, 3")
                e(f"s_and_b32 s{S_KI}, s{S_KI}, 3")
                e(f"s_and_b32 s{S_T0}, s2, 1")
                e(f"s_lshl_b32 s{S_T0}, s{S_T0}, 2")
                e(f"s_add_u32 s{S_KI}, s{S_KI}, s{S_T0}")
                e(f"s_and_b32 s{S_T0}, s2, 4")
                e(f"s_lshl_b32 s{S_T0}, s{S_T0}, 1")
                e(f"s_add_u32 s{S_KI}, s{S_KI}, s{S_T0}")
            elif W == 3:
                e(f"s_and_b32 s{S_KI}, s2, 1")
                e(f"s_and_b32 s{S_T0}, s2, 4")
                e(f"s_lshr_b32 s{S_T0}, s{S_T0}, 1")
                e(f"s_add_u32 s{S_KI}, s{S_KI}, s{S_T0}")
            elif W == 4:
                e(f"s_and_b32 s{S_KI}, s2, 7")
                e(f"s_lshl_b32 s{S_KI}, s{S_KI}, 1")
                e(f"s_lshr_b32 s{S_T0}, s2, 3")
                e(f"s_and_b32 s{S_T0}, s{S_T0}, 1")
                e(f"s_add_u32 s{S_KI}, s{S_KI}, s{S_T0}")
            elif W == 5:
                e(f"s_lshr_b32 s{S_KI}, s2, 5")
                e(f"s_and_b32 s{S_T0}, s2, 8")
                e(f"s_add_u32 s{S_KI}, s{S_KI}, s{S_T0}")
            elif W == 6:
                e(f"s_lshr_b32 s{S_KI}, s2, 5")
                e(f"s_and_b32 s{S_T0}, s2, 24")
                e(f"s_add_u32 s{S_KI}, s{S_KI}, s{S_T0}")
            elif W == 7:
                e(f"s_lshr_b32 s{S_KI}, s2, 3")
                e(f"s_and_b32 s{S_KI}, s{S_KI}, 15")
            elif W == 8:
                e(f"s_lshr_b32 s{S_KI}, s2, 5")
            elif W == 9:
                e(f"s_lshr_b32 s{S_KI}, s2, 5")
                e(f"s_and_b32 s{S_KI}, s{S_KI}, 3")
                e(f"s_and_b32 s{S_T0}, s2, 24")
                e(f"s_lshr_b32 s{S_T0}, s{S_T0}, 1")
                e(f"s_add_u32 s{S_KI}, s{S_KI}, s{S_T0}")
            e(f"s_mul_i32 s{S_KI}, s{S_KI}, {mul}")
            e(f"s_cmp_ge_u32 s{S_KI}, s{S_NS}")
            e(f"s_cselect_b32 s{S_T0}, s{S_NS}, 0")
            e(f"s_sub_u32 s{S_KI}, s{S_KI}, s{S_T0}")
            e(f"s_lshl_b32 s{S_T0}, s{S_KI}, {11 if s.rblk else 7}")
            e(f"s_add_u32 s{S_KR}, s{S_KR}, s{S_T0}")
            e(f"s_lshl_b32 s{S_T0}, s{S_KI}, {11 if s.cblk else 7}")
            e(f"s_add_u32 s{S_KC}, s{S_KC}, s{S_T0}")
            for r in s.regions:
                if r.typ != 'T':
                    e(f"s_mul_i32 s{S_T0}, s{S_KI}, {64*r.gstride}")
                    e(f"s_add_u32 s{S_KN}, s{S_KN}, s{S_T0}")

    def stats_step(s):
        e = s.e
        for kk in range(2):
            for m in range(4):
                e(f"ds_read_b128 v[{40+16*kk+4*m}:{43+16*kk+4*m}], v24 offset:{m*2048+kk*512}")
        for kk in range(2):
            for m in range(4):
                e(f"s_waitcnt lgkmcnt({7-4*kk-m})")
                for x in range(4):
                    r = 40 + 16 * kk + 4 * m + x
                    e(f"v_dot2_f32_bf16 v{28+m}, v{r}, v39, v{28+m}")
                    e(f"v_dot2_f32_bf16 v{32+m}, v{r}, v{r}, v{32+m}")
        t = 40
        lst = []
        for ri, r in enumerate(s.regions):
            for j in range(-(-r.ng // 4)):
                for kk in range(2):
                    if r.typ == 'T':
                        e(f"ds_read_b128 v[{t}:{t+3}], v{25+ri} offset:{4*j*2048+kk*512}")
                    else:
                        o = kk * (32 * r.RS + 512) + 4 * j * 32
                        e(f"ds_read_b64_tr_b16 v[{t}:{t+1}], v{25+ri} offset:{o}")
                        e(f"ds_read_b64_tr_b16 v[{t+2}:{t+3}], v{25+ri} offset:{o+4*r.RS}")
                    lst.append((t, len(lst) // 2))
                    t += 4
        e("s_waitcnt lgkmcnt(0)")
        for (t, a) in lst:
            for x in range(4):
                e(f"v_dot2_f32_bf16 v{36+a}, v{t+x}, v39, v{36+a}")
        sg, _ = s.adv_addr()
        e.ext(sg)
        for a in range(1 + len(s.regions)):
            e(f"v_add_u32 v{24+a}, s{S_DL}, v{24+a}")

    def stats_final(s):
        e = s.e
        regs = list(range(28, 39))
        for r in regs:
            e(f"v_mov_b32 v40, v{r}")
            e("s_nop 1")
            e(f"v_permlane32_swap_b32 v{r}, v40")
            e(f"v_add_f32 v{r}, v{r}, v40")
            e(f"v_mov_b32 v40, v{r}")
            e("s_nop 1")
            e(f"v_permlane16_swap_b32 v{r}, v40")
            e(f"v_add_f32 v{r}, v{r}, v40")
        e("v_and_b32 v2, 15, v1")
        e(f"s_lshl_b32 s{S_T0}, s{S_WAVE}, 8")
        e(f"s_add_u32 s{S_T0}, s{S_T0}, {s.st_off}")
        e(f"v_lshl_add_u32 v3, v2, 2, s{S_T0}")
        for m in range(4):
            a, q = 28 + m, 32 + m
            e(f"v_mul_f32 v{a}, 0x3a800000, v{a}")
            e(f"v_mul_f32 v{q}, 0x3a800000, v{q}")
            e(f"v_fma_f32 v{q}, -v{a}, v{a}, v{q}")
            e(f"v_max_f32 v{q}, 0, v{q}")
            e(f"v_cvt_pk_bf16_f32 v40, v{a}, v{q}")
            e(f"v_lshlrev_b32 v{a}, 16, v40")
            e(f"v_and_b32 v{q}, 0xffff0000, v40")
            e(f"v_add_f32 v{q}, 0x3727c5ac, v{q}")
            e(f"v_cvt_pk_bf16_f32 v40, v{q}, v{q}")
            e(f"v_lshlrev_b32 v{q}, 16, v40")
            e(f"v_sqrt_f32 v{q}, v{q}")
            e("s_nop 0")
            e(f"v_cvt_pk_bf16_f32 v40, v{q}, v{q}")
            e(f"v_lshlrev_b32 v{q}, 16, v40")
            e(f"v_rcp_f32 v41, v{q}")
            e("s_nop 0")
            e(f"v_fma_f32 v42, -v{q}, v41, 1.0")
            e(f"v_fma_f32 v41, v42, v41, v41")
            e(f"v_mul_f32 v{a}, v{a}, v41")
            e(f"ds_write_b32 v3, v41 offset:{64*m}")
            e(f"ds_write_b32 v3, v{a} offset:{1024+64*m}")
        k = 0
        for ri, r in enumerate(s.regions):
            for j in range(-(-r.ng // 4)):
                e(f"s_add_u32 s{S_T0}, s{S_WAVE}, {4*j}")
                e(f"s_cmp_lt_u32 s{S_T0}, {r.ng}")
                e(f"s_cselect_b32 s{S_T0}, s{S_T0}, {12 - r.g0}")
                e(f"s_lshl_b32 s{S_T0}, s{S_T0}, 6")
                e(f"s_add_u32 s{S_T0}, s{S_T0}, {s.st_off + 2048 + 64 * r.g0}")
                e(f"v_lshl_add_u32 v3, v2, 2, s{S_T0}")
                e(f"ds_write_b32 v3, v{36+k}")
                k += 1
        e("s_waitcnt lgkmcnt(0)")
        e("s_barrier")

    def loader_loop(s):
        e, p = s.e, s.pre
        s.loader_init()
        for st in range(s.S):
            for g in s.dma_groups():
                e.ext(g)
            e.ext(s.dma_book())
        if s.st_off:
            s.compute_setup(1, 40, ldst=24)
            for r in range(28, 39):
                e(f"v_mov_b32 v{r}, 0")
            e("v_mov_b32 v39, 0x3f803f80")
            e(f"s_mov_b32 s{S_RD}, 0")
            e(f"s_mov_b32 s{S_NREC}, {s.SS}")
        e(f"s_waitcnt vmcnt({(s.S-1)*s.D})")
        e("s_barrier")
        e(f"s_mov_b32 s{S_CNT}, s{S_NS}")
        e.lab(f"{p}_lloop")
        if s.st_off:
            s.stats_step()
        e(f"s_waitcnt vmcnt({(s.S-2)*s.D})")
        e("s_barrier")
        for g in s.dma_groups():
            e.ext(g)
        e.ext(s.dma_book())
        e(f"s_sub_u32 s{S_CNT}, s{S_CNT}, 1")
        e(f"s_cmp_lg_u32 s{S_CNT}, 0")
        e(f"s_cbranch_scc1 {p}_lloop")
        if s.st_off:
            s.stats_final()
        e("s_endpgm")

    def compute_setup(s, vlane, vt, ldst=None):
        e = s.e
        if s.WN == 1:
            e(f"s_mul_i32 s{S_T0}, s{S_WAVE}, {s.MT*16*128}")
            e(f"s_mov_b32 s{S_T1}, 0")
        else:
            e(f"s_lshr_b32 s{S_T0}, s{S_WAVE}, 1")
            e(f"s_mul_i32 s{S_T0}, s{S_T0}, {s.MT*16*128}")
            e(f"s_and_b32 s{S_T1}, s{S_WAVE}, 1")
        e(f"v_and_b32 v{vt}, 15, v{vlane}")
        e(f"v_lshrrev_b32 v{vt+1}, 4, v{vlane}")
        e(f"v_lshrrev_b32 v{vt+2}, 3, v{vt}")
        e(f"v_lshrrev_b32 v{vt+3}, 2, v{vt}")
        e(f"v_and_b32 v{vt+3}, 1, v{vt+3}")
        e(f"v_xor_b32 v{vt+3}, v{vt+3}, v{vt+2}")
        e(f"v_lshl_add_u32 v{vt+3}, v{vt+3}, 1, v{vt+2}")
        e(f"v_xor_b32 v{vt+3}, v{vt+3}, v{vt+1}")
        e(f"v_lshlrev_b32 v{vt+3}, 4, v{vt+3}")
        e(f"v_lshl_add_u32 v{vt+11}, v{vt}, 6, v{vt+3}")
        e(f"v_lshl_add_u32 v{vt+3}, v{vt+2}, 10, v{vt+3}")
        e(f"v_and_b32 v{vt+2}, 7, v{vt}")
        e(f"v_lshl_add_u32 v{vt+2}, v{vt+2}, 6, v{vt+3}")
        e(f"v_lshrrev_b32 v{vt+4}, 2, v{vlane}")
        e(f"v_and_b32 v{vt+4}, 3, v{vt+4}")
        e(f"v_and_b32 v{vt+5}, 3, v{vlane}")
        tmp = {}
        for ri, r in enumerate(s.regions):
            base = s.CB + r.lds_off
            if r.typ == 'T':
                e(f"s_mul_i32 s{S_T2}, s{S_T1}, {s.NT*16*128}")
                e(f"s_add_u32 s{S_T2}, s{S_T2}, {base}")
                e(f"v_add_u32 v{vt+6+2*ri}, s{S_T2}, v{vt+11 if s.cblk else vt+2}")
                tmp[ri] = [vt + 6 + 2 * ri]
            elif r.typ == 'Nadd':
                assert s.WN == 1
                d = vt + 6 + 2 * ri
                e(f"v_lshl_add_u32 v{d}, v{vt+1}, 3, v{vt+4}")
                e(f"v_mul_u32_u24 v{d}, {r.RS}, v{d}")
                e(f"v_lshl_add_u32 v{d}, v{vt+1}, 7, v{d}")
                e(f"v_lshl_add_u32 v{d}, v{vt+5}, 3, v{d}")
                e(f"v_add_u32 v{d}, {base}, v{d}")
                tmp[ri] = [d]
            else:
                d = vt + 6 + 2 * ri
                e(f"v_lshl_add_u32 v{d}, v{vt+1}, 3, v{vt+4}")
                e(f"v_mul_u32_u24 v{d}, {r.RS}, v{d}")
                e(f"v_lshl_add_u32 v{d}, v{vt+5}, 3, v{d}")
                e(f"v_add_u32 v{d}, {base}, v{d}")
                e(f"v_and_b32 v{d+1}, 1, v{vt+1}")
                if r.ng == 8:
                    e(f"v_lshl_add_u32 v{d+1}, v{d+1}, 2, v{vt+4}")
                    e(f"s_mul_i32 s{S_T2}, s{S_T1}, {s.NT}")
                    e(f"v_xor_b32 v{d+1}, s{S_T2}, v{d+1}")
                else:
                    e(f"v_lshrrev_b32 v{vt+10}, 1, v{vt+4}")
                    e(f"v_lshl_add_u32 v{d+1}, v{d+1}, 1, v{vt+10}")
                e(f"v_lshl_add_u32 v{d}, v{d+1}, 5, v{d}")
                tmp[ri] = [d]
        if ldst is not None:
            e(f"v_add_u32 v{ldst}, s{S_T0}, v{vt+2}")
            for ri, r in enumerate(s.regions):
                e(f"s_mul_i32 s{S_T2}, s{S_WAVE}, {2048 if r.typ == 'T' else 32}")
                e(f"v_add_u32 v{ldst+1+ri}, s{S_T2}, v{tmp[ri][0]}")
            return
        for ri, r in enumerate(s.regions):
            if r.typ == 'Nxor':
                for j, vv in enumerate(s.vC[ri]):
                    e(f"v_xor_b32 v{vv}, {32*j}, v{tmp[ri][0]}")
            else:
                for vv, t in zip(s.vC[ri], tmp[ri]):
                    e(f"v_mov_b32 v{vv}, v{t}")
        e(f"v_add_u32 v{s.vR[0]}, s{S_T0}, v{vt+11 if s.rblk else vt+2}")
        for a in range(s.nacc):
            e(f"v_mov_b32 v{a+s.accv}, 0" if s.accv else f"v_accvgpr_write_b32 a{a}, 0")

    def adv_addr(s):
        SS, S = (s.CS, s.SC) if s.splitring else (s.SS, s.S)
        g = [f"s_add_u32 s{S_RD}, s{S_RD}, {SS}",
             f"s_cmp_ge_u32 s{S_RD}, {SS*S}",
             f"s_cselect_b32 s{S_RD}, 0, s{S_RD}",
             f"s_cselect_b32 s{S_DL}, {-(S-1)*SS & 0xffffffff}, s{S_NREC}"]
        v = [f"v_add_u32 v{a}, s{S_DL}, v{a}" for a in range(s.naddr)]
        if s.splitring:
            if s.SR == 2:
                v[0] = "v_xor_b32 v0, 0x8000, v0"
            else:
                g += [f"s_add_u32 s91, s91, {RT}",
                      f"s_cmp_ge_u32 s91, {RT*s.SR}",
                      f"s_cselect_b32 s91, 0, s91",
                      f"s_cselect_b32 s92, {-(s.SR-1)*RT & 0xffffffff}, s93"]
                v[0] = "v_add_u32 v0, s92, v0"
        return g, v

    def compute_loop(s, X):
        e, p = s.e, s.pre
        MT, NT = s.MT, s.NT
        if s.outer == 'C':
            NO, NI = NT, MT
            order = [(m, n) for n in range(NT) for m in range(MT)]
        else:
            NO, NI = MT, NT
            order = [(m, n) for m in range(MT) for n in range(NT)]
        NM = MT * NT

        def rd_outer(kk, o):
            return s.rd_C(kk, o) if s.outer == 'C' else s.rd_R(kk, o)

        def rd_inner(kk, i):
            return s.rd_R(kk, i) if s.outer == 'C' else s.rd_C(kk, i)

        seq = [(1, t) for t in range(X, NM)] + [(0, t) for t in range(NM)] + [(1, t) for t in range(X)]
        P1 = NM - X
        NSEQ = len(seq)
        BR = OPT.get('BR', 6)
        sg, vg = s.adv_addr()
        fill = []
        fill.append([0, -10, [(x, None) for x in vg], 'x'])
        first_rd = 0 if len(vg) <= 1 else (len(vg) + 1) // 2
        for i in range(NI):
            fill.append([first_rd, 0 + i * 0.01, rd_inner(0, i), 'lds'])
        for o in range(NO):
            last = (o + 1) * NI - 1
            fill.append([max(last - X, first_rd), 0.5 + o, rd_outer(0, o), 'lds'])
        for i in range(NI):
            fill.append([P1 - 1, 100 + i * 0.01, rd_inner(1, i), 'lds'])
        for o in range(NO):
            fill.append([P1 + (o + 1) * NI - 1, 100.5 + o, rd_outer(1, o), 'lds'])
        fill.append([P1 + 2, 200, [(x, None) for x in sg[:2]], 'x'])
        fill.append([P1 + 3, 201, [(x, None) for x in sg[2:4]], 'x'])
        if len(sg) > 4:
            fill.append([P1 + 5, 201.1, [(x, None) for x in sg[4:6]], 'x'])
            fill.append([P1 + 6, 201.2, [(x, None) for x in sg[6:8]], 'x'])
        if getattr(s, 'pfl', False):
            fill.append([P1 + 13, 203, [("buffer_load_dword v3, s[64:67], s94 offen lds", None)], 'x'])
            fill.append([P1 + 15, 204, [("s_add_u32 s94, s94, 2048", None), (f"s_and_b32 s{S_T0}, s{S_CNT}, 3", None)], 'x'])
            fill.append([P1 + 17, 205, [(f"s_cmp_eq_u32 s{S_T0}, 1", None), ("s_cselect_b64 s[64:65], s[68:69], s[64:65]", None)], 'x'])
            fill.append([P1 + 18, 206, [("s_cselect_b64 s[68:69], s[70:71], s[68:69]", None), ("s_cselect_b32 s66, s72, s66", None)], 'x'])
            fill.append([P1 + 19, 207, [("s_cselect_b32 s72, s73, s72", None), ("s_cselect_b32 s73, 0, s73", None)], 'x'])
            fill.append([P1 + 20, 208, [("s_cselect_b32 s94, s74, s94", None)], 'x'])
        if s.pfstub:
            fill.append([P1 + 9, 202, [(f"s_cmp_eq_u32 s{S_CNT}, s80", None), (f"s_cbranch_scc1 {p}_pf", None), (f"@{p}_pfret", None)], 'x'])
        dg = []
        if s.design == 'A':
            dg = s.dma_groups()
            tot = NSEQ - 4
            for k, g in enumerate(dg):
                fill.append([int(k * tot / len(dg)) + 1, 50 + k, [(x, None) for x in g], 'dma'])
        if OPT.get('split', 1):
            f2 = []
            for f in fill:
                if f[3] == 'lds' and len(f[2]) > 1:
                    for k, it in enumerate(f[2]):
                        f2.append([f[0], f[1] + 0.001 * k, [it], 'lds'])
                elif f[3] == 'x' and len(f[2]) > 2 and f[0] == 0:
                    for k in range(0, len(f[2]), 2):
                        f2.append([0, f[1] + 0.001 * k, f[2][k:k + 2], 'x'])
                else:
                    f2.append(f)
            fill = f2
        body = []
        pend = sorted(fill, key=lambda f: f[1])
        n_dma_part1 = 0
        CAP = OPT.get('CAP', 2)

        def emit_gap(gi, cap):
            nonlocal pend, n_dma_part1
            used = 0
            rest = []
            for f in pend:
                n = len(f[2])
                if f[0] <= gi and (used == 0 or used + n <= cap):
                    for (x, d) in f[2]:
                        body.append(('lds', x, d) if f[3] == 'lds' else ('x', x, None))
                    used += n + (1 if f[3] == 'lds' and OPT.get('LDS1', 1) else 0)
                    if f[3] == 'dma' and gi < P1 - 1:
                        n_dma_part1 += 1
                else:
                    rest.append(f)
            pend = rest

        for gi, (kk, t) in enumerate(seq):
            m, n = order[t]
            x, srcs = s.mfma(kk, m, n)
            body.append(('mfma', x, srcs))
            if gi == P1 - 1:
                body.append(('lab', f"{p}_mid", None))
            if gi == BR - 2:
                body.append(('x', f"s_sub_u32 s{S_CNT}, s{S_CNT}, 1", None))
                body.append(('x', f"s_cmp_lg_u32 s{S_CNT}, 0", None))
                continue
            if gi == BR - 1:
                body.append(('br', None, None))
                continue
            if gi == NSEQ - 1:
                continue
            emit_gap(gi, CAP if gi < NSEQ - 2 else 99)
            if gi == NSEQ - 3 and s.design == 'A':
                assert not any(f[3] == 'dma' for f in pend)
                for x in s.dma_book():
                    body.append(('x', x, None))
        assert not pend, pend
        body.append(('w0', "s_waitcnt lgkmcnt(0)" + (f" vmcnt({(s.S-2)*s.D})" if s.design == 'A' else ""), None))
        body.append(('x', "s_barrier", None))
        issued = 0
        done = 0
        lastw = {}
        outb = None
        for ps in range(2):
            outb = []
            for (k, x, d) in body:
                if k == 'lds':
                    issued += 1
                    lastw[d] = issued
                    outb.append((k, x))
                elif k == 'w0':
                    done = issued
                    outb.append((k, x))
                elif k == 'mfma':
                    need = max([lastw.get(r, 0) for r in d])
                    if need > done:
                        outb.append(('x', f"s_waitcnt lgkmcnt({min(issued-need, 15)})"))
                        done = need
                    outb.append((k, x))
                else:
                    outb.append((k, x))
        e(f"s_mov_b32 s{S_RD}, 0")
        e(f"s_mov_b32 s{S_NREC}, {s.CS if s.splitring else s.SS}")
        e(f"s_mov_b32 s{S_DL}, {s.CS if s.splitring else s.SS}")
        if s.splitring and s.SR > 2:
            e("s_mov_b32 s91, 0")
            e(f"s_mov_b32 s92, {RT}")
            e(f"s_mov_b32 s93, {RT}")
        if s.design == 'A':
            s.loader_init()
            for st in range(s.S - 1):
                for g in dg:
                    e.ext(g)
                e.ext(s.dma_book())
            for g in dg[:n_dma_part1]:
                e.ext(g)
            e(f"s_waitcnt vmcnt({(s.S-2)*s.D + n_dma_part1})")
        stamp(e, 1)
        e("s_barrier")
        stamp(e, 2)
        for i in range(NI):
            for (x, d) in rd_inner(0, i):
                e(x)
        for o in range(NO):
            for (x, d) in rd_outer(0, o):
                e(x)
        e(f"s_mov_b32 s{S_CNT}, s{S_NS}")
        if OPT.get('prio'):
            e(f"s_setprio {OPT['prio']}")
        e("s_waitcnt lgkmcnt(0)")
        e(f"s_branch {p}_mid")
        if s.pfstub:
            e.lab(f"{p}_pf")
            e(f"s_mov_b32 m0, {s.pfstub}")
            e("s_nop 0")
            for q in range(3):
                e(f"buffer_load_dword v3, s[{64+4*q}:{67+4*q}], s81 offen lds")
            e(f"s_branch {p}_pfret")
        e.L.append(".p2align 6")
        bi = [i for i, (k, x) in enumerate(outb) if k == 'br'][0]
        e.lab(f"{p}_top")
        for (k, x) in outb[bi + 1:] + outb[:bi]:
            if k == 'lab':
                e.lab(x)
            elif x.startswith('@'):
                e.lab(x[1:])
            else:
                e(x)
        e(f"s_cbranch_scc1 {p}_top")
        for (kk, t) in seq[BR:P1]:
            m, n = order[t]
            e(s.mfma(kk, m, n)[0])
        e("s_waitcnt lgkmcnt(0)")
        e("s_nop 7")
        e("s_nop 7")
        stamp(e, 3)


WS_ST = 64 * MB


def stamp(e, k):
    if OPT.get('stamp'):
        e(f"s_memtime s[{90+2*k}:{91+2*k}]")
        if k == 0:
            e("s_memrealtime s[34:35]")
        if k == 4:
            e("s_memrealtime s[36:37]")
        e("s_waitcnt lgkmcnt(0)")


def stamp_out(e, kid):
    if OPT.get('stamp'):
        e("s_waitcnt vmcnt(0)")
        stamp(e, 4)
        srd(e, S_SRD_O, 28, 29, 4 * MB, WS_ST + kid * MB)
        e("s_lshl_b32 s38, s2, 2")
        e(f"s_add_u32 s38, s38, s{S_WAVE}")
        e("s_lshl_b32 s38, s38, 5")
        e("v_mov_b32 v0, s38")
        for k in range(5):
            e(f"v_mov_b32 v{2+k}, s{90+2*k}")
        e("v_mov_b32 v7, s34")
        e("v_mov_b32 v8, s36")
        e("s_getreg_b32 s38, hwreg(HW_REG_XCC_ID)")
        e("v_mov_b32 v9, s38")
        e(f"buffer_store_dwordx4 v[2:5], v0, s[{S_SRD_O}:{S_SRD_O+3}], 0 offen")
        e(f"buffer_store_dwordx4 v[6:9], v0, s[{S_SRD_O}:{S_SRD_O+3}], 0 offen offset:16")


def tl(e, k, end, v=60):
    if not OPT.get('tl'):
        return
    lab = f"tl_{k}_{end}_{len(e.L)}"
    e("s_and_b32 s98, s2, 15")
    e("s_cmp_lg_u32 s98, 0")
    e(f"s_cbranch_scc1 {lab}")
    e("s_waitcnt vmcnt(0)")
    e("s_load_dwordx2 s[96:97], s[0:1], 88")
    e("s_memrealtime s[98:99]")
    e("s_waitcnt lgkmcnt(0)")
    e(f"s_add_u32 s96, s96, {512*(3-k)}")
    e("s_addc_u32 s97, s97, 0")
    if not end:
        e("s_not_b32 s98, s98")
    e(f"v_mov_b32 v{v}, s98")
    e(f"v_mov_b32 v{v+1}, {8*k+4*end}")
    e("s_mov_b64 s[100:101], exec")
    e("s_mov_b64 exec, 1")
    e(f"global_atomic_umax v{v+1}, v{v}, s[96:97]")
    e("s_waitcnt vmcnt(0)")
    e("s_mov_b64 exec, s[100:101]")
    e.lab(lab)


def prefetch(e, vtmp, items, lds_dummy):
    e(f"v_mbcnt_lo_u32_b32 v{vtmp}, -1, 0")
    e(f"v_mbcnt_hi_u32_b32 v{vtmp}, -1, v{vtmp}")
    e(f"s_lshl_b32 s{S_T0}, s2, 2")
    e(f"s_add_u32 s{S_T0}, s{S_T0}, s{S_WAVE}")
    e(f"s_mov_b32 m0, {lds_dummy}")
    for (lo, hi, nb) in items:
        per = -(-(nb // 128) // 1024)
        srd(e, 64, lo, hi, nb)
        e(f"s_mul_i32 s{S_T1}, s{S_T0}, {per*128}")
        e(f"v_lshlrev_b32 v{vtmp+1}, 7, v{vtmp}")
        if per < 64:
            e(f"v_cmp_gt_u32 vcc, {per}, v{vtmp}")
            e(f"v_mov_b32 v{vtmp+2}, 0x7ff00000")
            e("s_nop 0")
            e(f"v_cndmask_b32 v{vtmp+1}, v{vtmp+2}, v{vtmp+1}, vcc")
        for hh in range(OPT.get('pfhalves', 1)):
            e(f"buffer_load_dword v{vtmp+1}, s[64:67], s{S_T1} offen offset:{hh*64} lds" + (" nt" if OPT.get('pfnt') else ""))


def lane_wave(e, design):
    stamp(e, 0)
    e("v_lshrrev_b32 v1, 6, v0")
    e("s_nop 0")
    e(f"v_readfirstlane_b32 s{S_T2}, v1")
    e("v_and_b32 v1, 63, v0")
    e("s_nop 2")
    e(f"s_and_b32 s{S_WAVE}, s{S_T2}, 3")


def gen_g1(e):
    name = "g1_kernel"
    design, S, X = OPT['design1'], OPT['S1'], OPT['X']
    khead(e, name)
    e("s_cmp_ge_u32 s2, 256")
    e("s_cbranch_scc1 g1_done")
    tl(e, 1, 0)
    e("s_load_dwordx4 s[20:23], s[0:1], 24")
    e("s_load_dwordx4 s[24:27], s[0:1], 48")
    e("s_load_dwordx2 s[28:29], s[0:1], 96")
    e("s_load_dwordx2 s[32:33], s[0:1], 0")
    e("s_load_dwordx4 s[72:75], s[0:1], 8")
    e("s_load_dwordx2 s[76:77], s[0:1], 64")
    lane_wave(e, design)
    e("s_and_b32 s30, s2, 1")
    e("s_lshl_b32 s30, s30, 2")
    e("s_lshr_b32 s31, s2, 3")
    e(f"s_and_b32 s{S_ROW0}, s31, 3")
    e(f"s_add_u32 s{S_ROW0}, s{S_ROW0}, s30")
    e(f"s_lshl_b32 s{S_ROW0}, s{S_ROW0}, 8")
    e("s_and_b32 s30, s2, 6")
    e("s_lshl_b32 s30, s30, 2")
    e(f"s_lshr_b32 s{S_COL0}, s31, 2")
    e(f"s_add_u32 s{S_COL0}, s{S_COL0}, s30")
    e(f"s_mov_b32 s{S_NS}, 16")
    e(f"s_mov_b32 s{S_KR}, 0")
    e(f"s_mov_b32 s{S_KC}, 0")
    e(f"s_mov_b32 s{S_KN}, 0")
    e("s_waitcnt lgkmcnt(0)")
    FL = OPT.get('fuse_ln')
    if FL:
        srd(e, S_SRD_R, 32, 33, 4 * MB)
    else:
        srd(e, S_SRD_R, 28, 29, 2048 * XS, WS_XN)
    e(f"s_cmp_lt_u32 s{S_COL0}, 11")
    e("s_cbranch_scc1 g1d_start")
    e(f"s_cmp_eq_u32 s{S_COL0}, 11")
    e("s_cbranch_scc1 g1m_start")
    e("s_branch g1f_start")

    variants = {
        'g1d': [Region('T', 0, 11, 0, 2048)],
        'g1m': [Region('T', 0, 7, 0, 2048), Region('Nadd', 7, 4, 16384, 7168)],
        'g1f': [Region('Nadd', 0, 11, 0, 7168)],
    }
    vt_max = 0
    ss_max = 0
    for pre, regs in variants.items():
        orient = []
        for r in regs:
            orient += ['RA' if r.typ == 'T' else 'CA'] * r.ng
        G = Gemm(e, pre, design, S, 4, 11, 4, 1, regs, 2048 if FL else XS, 'C', orient, nsteps=16)
        if FL:
            G.st_off = 122880 + 1024
        if OPT.get('rot1'):
            G.rot = (OPT['rot1'], OPT.get('rotmul1', 1))
        e.lab(f"{pre}_start")

        def cset(ri, j, so, G=G, pre=pre):
            r = G.regions[ri]
            if r.typ == 'T':
                e(f"s_mul_i32 s{S_T0}, s{S_COL0}, 22")
                e(f"s_mul_i32 s{S_T1}, s{S_WAVE}, {r.DW}")
                e(f"s_add_u32 s{S_T1}, s{S_T1}, {j}")
                e(f"s_add_u32 s{S_T0}, s{S_T0}, s{S_T1}")
                e(f"s_cmp_lt_u32 s{S_T0}, 128")
                e(f"s_cselect_b32 s{so}, s20, s22")
                e(f"s_cselect_b32 s{so+1}, s21, s23")
                e(f"s_and_b32 s{S_T0}, s{S_T0}, 127")
                e(f"s_lshl_b32 s{S_T0}, s{S_T0}, 14")
                e(f"s_cmp_lt_u32 s{S_T1}, {r.ninstr}")
                e(f"s_cselect_b32 s{so+2}, {2*MB}, 0")
                e(f"s_mov_b32 s{so+3}, 0x20000")
                e(f"s_cselect_b32 s{S_T0}, s{S_T0}, 4096")
            else:
                srd(e, so, 24, 25, 1024 * 7168)
                e(f"s_mul_i32 s{S_T0}, s{S_COL0}, 352")
                e(f"s_sub_u32 s{S_T0}, s{S_T0}, {(128 - r.g0) * 32}")

        if design == 'B':
            e(f"s_cmp_ge_u32 s{S_T2}, 4")
            e(f"s_cbranch_scc0 {pre}_comp")
            G.loader_setup(1, 2, cset)
            G.loader_loop()
            e.lab(f"{pre}_comp")
        else:
            G.loader_setup(1, G.vfrag0, cset)
        e(f"v_mov_b32 v{G.vfrag0+16}, v1")
        if OPT.get('pf1'):
            prefetch(e, G.vfrag0 + 20, [(20, 21, 2 * MB), (22, 23, 2 * MB), (24, 25, 1024 * 7168)], 122880)
        if OPT.get('pf2') == 1:
            prefetch(e, G.vfrag0 + 20, [(72, 73, 8 * MB), (74, 75, 8 * MB), (76, 77, 3584 * 2048)], 122880)
        if OPT.get('pf2') == 3:
            G.pfstub = 122880
            e("s_mov_b64 s[82:83], s[72:73]")
            e("s_mov_b64 s[84:85], s[74:75]")
            e("s_mov_b64 s[86:87], s[76:77]")
            srd(e, 64, 82, 83, 8 * MB)
            srd(e, 68, 84, 85, 8 * MB)
            srd(e, 72, 86, 87, 3584 * 2048)
            e(f"s_lshl_b32 s81, s2, 2")
            e(f"s_add_u32 s81, s81, s{S_WAVE}")
            e(f"s_lshl_b32 s81, s81, 13")
            e(f"s_mul_i32 s80, s{S_WAVE}, {OPT.get('pfsp', 2)}")
            e(f"s_sub_u32 s80, {OPT.get('pfat', 12)}, s80")
            e("v_lshlrev_b32 v3, 7, v1")
        G.compute_setup(G.vfrag0 + 16, G.vfrag0)
        G.compute_loop(X)
        if OPT.get('pf2') == 2:
            prefetch(e, 8, [(72, 73, 8 * MB), (74, 75, 8 * MB), (76, 77, 3584 * 2048)], 122880)
        g1_epilogue(e, G, pre)
        stamp_out(e, 0)
        tl(e, 1, 1)
        e("s_endpgm")
        vt_max = max(vt_max, G.vtop)
        ss_max = max(ss_max, G.SS)
    e.lab("g1_done")
    e("s_endpgm")
    acc0 = (vt_max + 3) // 4 * 4
    kdesc(e, name, acc0 + 176, acc0)
    return ss_max * S + 1024 + 3072


def f2u(f):
    import struct
    return struct.unpack("<I", struct.pack("<f", f))[0]


def g1_epilogue(e, G, pre):
    FL = G.st_off
    if FL:
        e("s_barrier")
    e("v_mbcnt_lo_u32_b32 v1, -1, 0")
    e("v_mbcnt_hi_u32_b32 v1, -1, v1")
    e("v_and_b32 v2, 15, v1")
    e("v_lshrrev_b32 v3, 4, v1")
    e("v_and_b32 v4, 1, v3")
    e("v_lshlrev_b32 v4, 4, v4")
    e("v_lshrrev_b32 v5, 1, v3")
    e("v_lshl_add_u32 v4, v5, 3, v4")
    e(f"s_lshl_b32 s{S_T0}, s{S_WAVE}, 6")
    e(f"s_add_u32 s{S_T0}, s{S_T0}, s{S_ROW0}")
    T = 16
    for r in G.regions:
        if r.typ == 'T':
            srd(e, S_SRD_O, 28, 29, 2048 * ATS, WS_AT)
            if FL:
                e(f"s_lshl_b32 s{S_T1}, s{S_WAVE}, 8")
                e(f"s_add_u32 s{S_T1}, s{S_T1}, {FL}")
                e(f"v_lshl_add_u32 v7, v3, 4, s{S_T1}")
                for m in range(4):
                    e(f"ds_read_b128 v[{44+4*m}:{47+4*m}], v7 offset:{64*m}")
                    e(f"ds_read_b128 v[{60+4*m}:{63+4*m}], v7 offset:{1024+64*m}")
                e(f"v_lshlrev_b32 v7, 2, v2")
                e(f"v_add_u32 v7, {FL}, v7")
                for j in range(r.ng):
                    e(f"ds_read_b32 v{32+j}, v7 offset:{2048 + 64*(r.g0+j)}")
            e(f"s_mul_i32 s{S_T1}, s{S_COL0}, 176")
            e(f"v_add_u32 v6, s{S_T1}, v2")
            e(f"s_mov_b32 s{S_T2}, {ATS}")
            e(f"v_mul_lo_u32 v6, v6, s{S_T2}")
            e(f"v_add_u32 v7, s{S_T0}, v4")
            e("v_lshl_add_u32 v6, v7, 1, v6")
            e(f"s_mul_i32 s{S_T1}, s{S_COL0}, 11")
            e("s_waitcnt lgkmcnt(0)")
            for j in range(r.ng):
                n = r.g0 + j
                e(f"s_add_u32 s{S_T2}, s{S_T1}, {n}")
                e(f"s_cmp_lt_u32 s{S_T2}, 64")
                e(f"s_cselect_b32 s{S_DL}, 0, 0x80008000")
                e(f"s_mov_b32 s{S_T2}, {n*16*ATS}")
                for mp in range(2):
                    t = 8 + ((j * 2 + mp) % 2) * 12
                    for q in range(2):
                        a = G.acc(2 * mp + q, n)
                        for x in range(4):
                            e(f"v_accvgpr_read_b32 v{t+4+q*4+x}, a{a+x}")
                    if FL:
                        for q in range(2):
                            m = 2 * mp + q
                            for h in range(2):
                                d = t + 4 + q * 4 + 2 * h
                                e(f"v_pk_mul_f32 v[{d}:{d+1}], v[{d}:{d+1}], v[{44+4*m+2*h}:{45+4*m+2*h}]")
                        for q in range(2):
                            m = 2 * mp + q
                            for h in range(2):
                                d = t + 4 + q * 4 + 2 * h
                                c = 32 + j
                                ce = c & ~1
                                sel = "op_sel:[0,1,0] op_sel_hi:[1,1,1]" if c & 1 else "op_sel_hi:[1,0,1]"
                                e(f"v_pk_fma_f32 v[{d}:{d+1}], v[{60+4*m+2*h}:{61+4*m+2*h}], v[{ce}:{ce+1}], v[{d}:{d+1}] {sel} neg_lo:[1,0,0] neg_hi:[1,0,0]")
                    for q in range(2):
                        e(f"v_cvt_pk_bf16_f32 v{t+2*q}, v{t+4+q*4}, v{t+5+q*4}")
                        e(f"v_cvt_pk_bf16_f32 v{t+2*q+1}, v{t+6+q*4}, v{t+7+q*4}")
                    for x in range(4):
                        e(f"v_xor_b32 v{t+x}, s{S_DL}, v{t+x}")
                    e("s_nop 1")
                    e(f"v_permlane16_swap_b32 v{t}, v{t+2}")
                    e(f"v_permlane16_swap_b32 v{t+1}, v{t+3}")
                    e(f"buffer_store_dwordx4 v[{t}:{t+3}], v6, s[{S_SRD_O}:{S_SRD_O+3}], s{S_T2} offen offset:{mp*64}" + (" sc1" if G.sc1R else ""))
        else:
            srd(e, S_SRD_O, 28, 29, 2048 * HS, WS_H)
            srd(e, S_SRD_B, 26, 27, 7168)
            e(f"s_mul_i32 s{S_T1}, s{S_COL0}, 352")
            e(f"s_sub_u32 s{S_T1}, s{S_T1}, {(128 - r.g0) * 32}")
            e("v_lshlrev_b32 v7, 3, v3")
            e(f"v_add_u32 v7, s{S_T1}, v7")
            BB = 52
            for j in range(r.ng):
                e(f"buffer_load_dwordx2 v[{BB+2*j}:{BB+2*j+1}], v7, s[{S_SRD_B}:{S_SRD_B+3}], 0 offen offset:{32*j}")
            if FL:
                e(f"s_lshl_b32 s{S_T2}, s{S_WAVE}, 8")
                e(f"s_add_u32 s{S_T2}, s{S_T2}, {FL}")
                e(f"v_lshl_add_u32 v7, v2, 2, s{S_T2}")
                for m in range(4):
                    e(f"ds_read_b32 v{44+2*m}, v7 offset:{64*m}")
                    e(f"ds_read_b32 v{45+2*m}, v7 offset:{1024+64*m}")
                e("v_lshlrev_b32 v9, 4, v3")
                e(f"v_add_u32 v9, {FL}, v9")
            e(f"v_add_u32 v6, s{S_T0}, v2")
            e(f"s_mov_b32 s{S_T2}, {HS}")
            e(f"v_mul_lo_u32 v6, v6, s{S_T2}")
            e(f"v_add_u32 v6, s{S_T1}, v6")
            e("v_lshl_add_u32 v8, v3, 3, v6")
            e("v_lshl_add_u32 v6, v4, 1, v6")
            c1 = -2.0 * math.log2(math.e) * math.sqrt(2.0 / math.pi)
            c2 = c1 * 0.044715
            e(f"v_mov_b32 v10, {f2u(c1):#x}")
            e(f"v_mov_b32 v11, {f2u(c1):#x}")
            e(f"v_mov_b32 v12, {f2u(c2):#x}")
            e(f"v_mov_b32 v13, {f2u(c2):#x}")
            e("v_mov_b32 v14, 1.0")
            e("v_mov_b32 v15, 1.0")
            e("s_waitcnt vmcnt(0)")
            j = 0
            while j < r.ng:
                npair = 2 if j + 1 < r.ng else 1
                for q in range(npair):
                    b = BB + 2 * (j + q)
                    e(f"v_lshlrev_b32 v{32+4*q}, 16, v{b}")
                    e(f"v_and_b32 v{33+4*q}, 0xffff0000, v{b}")
                    e(f"v_lshlrev_b32 v{34+4*q}, 16, v{b+1}")
                    e(f"v_and_b32 v{35+4*q}, 0xffff0000, v{b+1}")
                if FL:
                    csr = [76, BB + 2 * j if npair == 2 else 76]
                    e(f"ds_read_b128 v[76:79], v9 offset:{2048 + 64*(r.g0+j)}")
                    if npair == 2:
                        e(f"ds_read_b128 v[{csr[1]}:{csr[1]+3}], v9 offset:{2048 + 64*(r.g0+j+1)}")
                    e("s_waitcnt lgkmcnt(0)")
                for m in range(4):
                    t = 16
                    for q in range(npair):
                        a = G.acc(m, r.g0 + j + q)
                        for x in range(4):
                            e(f"v_accvgpr_read_b32 v{t+4*q+x}, a{a+x}")
                    np_ = 2 * npair
                    if FL:
                        st = 44 + 2 * m
                        for h in range(np_):
                            c = csr[h >> 1] + 2 * (h & 1)
                            e(f"v_pk_fma_f32 v[{t+8+2*h}:{t+9+2*h}], v[{c}:{c+1}], v[{st}:{st+1}], v[{32+2*h}:{33+2*h}] op_sel:[0,1,0] op_sel_hi:[1,1,1] neg_lo:[1,0,0] neg_hi:[1,0,0]")
                        for h in range(np_):
                            e(f"v_pk_fma_f32 v[{t+2*h}:{t+2*h+1}], v[{t+2*h}:{t+2*h+1}], v[{st}:{st+1}], v[{t+8+2*h}:{t+9+2*h}] op_sel_hi:[1,0,1]")
                    else:
                        for h in range(np_):
                            e(f"v_pk_add_f32 v[{t+2*h}:{t+2*h+1}], v[{t+2*h}:{t+2*h+1}], v[{32+2*h}:{33+2*h}]")
                    for h in range(np_):
                        e(f"v_pk_mul_f32 v[{t+8+2*h}:{t+9+2*h}], v[{t+2*h}:{t+2*h+1}], v[{t+2*h}:{t+2*h+1}]")
                    for h in range(np_):
                        e(f"v_pk_fma_f32 v[{t+8+2*h}:{t+9+2*h}], v[{t+8+2*h}:{t+9+2*h}], v[12:13], v[10:11]")
                    for h in range(np_):
                        e(f"v_pk_mul_f32 v[{t+8+2*h}:{t+9+2*h}], v[{t+8+2*h}:{t+9+2*h}], v[{t+2*h}:{t+2*h+1}]")
                    for x in range(2 * np_):
                        e(f"v_exp_f32 v{t+8+x}, v{t+8+x}")
                    for h in range(np_):
                        e(f"v_pk_add_f32 v[{t+8+2*h}:{t+9+2*h}], v[{t+8+2*h}:{t+9+2*h}], v[14:15]")
                    for x in range(2 * np_):
                        e(f"v_rcp_f32 v{t+8+x}, v{t+8+x}")
                    for h in range(np_):
                        e(f"v_pk_mul_f32 v[{t+2*h}:{t+2*h+1}], v[{t+2*h}:{t+2*h+1}], v[{t+8+2*h}:{t+9+2*h}]")
                    o = 40
                    for h in range(np_):
                        e(f"v_cvt_pk_bf16_f32 v{o+h}, v{t+2*h}, v{t+2*h+1}")
                    e(f"s_mov_b32 s{S_T2}, {m*16*HS}")
                    if npair == 2:
                        e("s_nop 0")
                        e(f"v_permlane16_swap_b32 v{o}, v{o+2}")
                        e(f"v_permlane16_swap_b32 v{o+1}, v{o+3}")
                        e(f"buffer_store_dwordx4 v[{o}:{o+3}], v6, s[{S_SRD_O}:{S_SRD_O+3}], s{S_T2} offen offset:{j*32}" + (" sc1" if G.sc1R else ""))
                    else:
                        e(f"buffer_store_dwordx2 v[{o}:{o+1}], v8, s[{S_SRD_O}:{S_SRD_O+3}], s{S_T2} offen offset:{j*32}" + (" sc1" if G.sc1R else ""))
                j += npair


def gen_g2(e):
    name = "g2_kernel"
    design, S, X = OPT['design2'], OPT['S2'], OPT['X']
    khead(e, name)
    e("s_cmp_ge_u32 s2, 256")
    e("s_cbranch_scc1 g2_done")
    tl(e, 2, 0)
    e("s_load_dwordx4 s[20:23], s[0:1], 8")
    e("s_load_dwordx2 s[24:25], s[0:1], 64")
    e("s_load_dwordx2 s[28:29], s[0:1], 96")
    lane_wave(e, design)
    e("s_and_b32 s30, s2, 3")
    e("s_lshr_b32 s31, s2, 2")
    e("s_and_b32 s31, s31, 1")
    e("s_lshr_b32 s32, s2, 3")
    e(f"s_and_b32 s{S_ROW0}, s32, 3")
    e(f"s_lshl_b32 s31, s31, 2")
    e(f"s_add_u32 s{S_ROW0}, s{S_ROW0}, s31")
    e(f"s_lshl_b32 s{S_ROW0}, s{S_ROW0}, 8")
    e(f"s_lshr_b32 s{S_COL0}, s32, 2")
    e(f"s_lshl_b32 s{S_COL0}, s{S_COL0}, 7")
    e(f"s_mov_b32 s{S_KC}, 0")
    e("s_waitcnt lgkmcnt(0)")
    e("s_cmp_ge_u32 s30, 2")
    e("s_cbranch_scc1 g2o_start")
    variants = {
        'g2y': ([Region('T', 0, 8, 0, ATS)], 4096),
        'g2o': ([Region('Nxor', 0, 8, 0, 2048)], HS),
    }
    vt_max = 0
    for pre, (regs, rstride) in variants.items():
        G = Gemm(e, pre, design, S, 8, 4, 2, 2, regs, rstride, 'R', ['CA'] * 4, nsteps=32 if pre == 'g2y' else 28)
        if OPT.get('rot2') and (pre == 'g2y' or OPT.get('rot2o')):
            G.rot = (OPT['rot2'], OPT.get('rotmul2', 1))
        e.lab(f"{pre}_start")
        if pre == 'g2y':
            e(f"s_mov_b32 s{S_NS}, 32")
            e(f"s_mov_b32 s{S_KR}, 0")
            e("s_cmp_eq_u32 s30, 0")
            e(f"s_cselect_b32 s{S_SRD_R}, s20, s22")
            e(f"s_cselect_b32 s{S_SRD_R+1}, s21, s23")
            e(f"s_mov_b32 s{S_SRD_R+2}, {8*MB}")
            e(f"s_mov_b32 s{S_SRD_R+3}, 0x20000")
        else:
            e(f"s_mov_b32 s{S_NS}, 28")
            e("s_and_b32 s33, s30, 1")
            e(f"s_mul_i32 s{S_KR}, s33, {1792*2}")
            e(f"s_mul_i32 s{S_KN}, s33, {1792*2048}")
            srd(e, S_SRD_R, 28, 29, 2048 * HS, WS_H)

        def cset(ri, j, so, G=G, pre=pre):
            r = G.regions[ri]
            if r.typ == 'T':
                srd(e, so, 28, 29, 2048 * ATS, WS_AT)
                e(f"s_lshl_b32 s{S_T0}, s30, 10")
                e(f"s_add_u32 s{S_T0}, s{S_T0}, s{S_COL0}")
                e(f"s_lshl_b32 s{S_T1}, s{S_WAVE}, 5")
                e(f"s_add_u32 s{S_T0}, s{S_T0}, s{S_T1}")
                e(f"s_add_u32 s{S_T0}, s{S_T0}, {8*j}")
                e(f"s_mul_i32 s{S_T0}, s{S_T0}, {ATS}")
            else:
                srd(e, so, 24, 25, 3584 * 2048)
                e(f"s_lshl_b32 s{S_T0}, s{S_COL0}, 1")

        if design == 'B':
            e(f"s_cmp_ge_u32 s{S_T2}, 4")
            e(f"s_cbranch_scc0 {pre}_comp")
            G.loader_setup(1, 2, cset)
            G.loader_loop()
            e.lab(f"{pre}_comp")
        else:
            G.loader_setup(1, G.vfrag0, cset)
        e(f"v_mov_b32 v{G.vfrag0+16}, v1")
        G.compute_setup(G.vfrag0 + 16, G.vfrag0)
        G.compute_loop(X)
        e("v_mbcnt_lo_u32_b32 v1, -1, 0")
        e("v_mbcnt_hi_u32_b32 v1, -1, v1")
        e("v_and_b32 v2, 15, v1")
        e("v_lshrrev_b32 v3, 4, v1")
        e(f"s_lshr_b32 s{S_T0}, s{S_WAVE}, 1")
        e(f"s_lshl_b32 s{S_T0}, s{S_T0}, 7")
        e(f"s_add_u32 s{S_T0}, s{S_T0}, s{S_ROW0}")
        e(f"s_and_b32 s{S_T1}, s{S_WAVE}, 1")
        e(f"s_lshl_b32 s{S_T1}, s{S_T1}, 6")
        e(f"s_add_u32 s{S_T1}, s{S_T1}, s{S_COL0}")
        e(f"v_add_u32 v6, s{S_T0}, v2")
        if pre == 'g2y':
            srd(e, S_SRD_O, 28, 29, 8 * MB, WS_P0)
            e("v_and_b32 v4, 1, v3")
            e("v_lshlrev_b32 v4, 4, v4")
            e("v_lshrrev_b32 v5, 1, v3")
            e("v_lshl_add_u32 v4, v5, 3, v4")
            e(f"v_add_u32 v4, s{S_T1}, v4")
            e("v_lshlrev_b32 v6, 11, v6")
            e("v_lshl_add_u32 v6, v4, 1, v6")
            e("s_lshl_b32 s33, s30, 22")
            for m in range(8):
                e(f"s_add_u32 s{S_T2}, s33, {m*16*2048}")
                for np_ in range(2):
                    t = 16 + np_ * 12
                    for q in range(2):
                        a = G.acc(m, 2 * np_ + q)
                        for x in range(4):
                            e(f"v_accvgpr_read_b32 v{t+4+q*4+x}, a{a+x}")
                    for q in range(2):
                        e(f"v_cvt_pk_bf16_f32 v{t+2*q}, v{t+4+q*4}, v{t+5+q*4}")
                        e(f"v_cvt_pk_bf16_f32 v{t+2*q+1}, v{t+6+q*4}, v{t+7+q*4}")
                    e("s_nop 1")
                    e(f"v_permlane16_swap_b32 v{t}, v{t+2}")
                    e(f"v_permlane16_swap_b32 v{t+1}, v{t+3}")
                    e(f"buffer_store_dwordx4 v[{t}:{t+3}], v6, s[{S_SRD_O}:{S_SRD_O+3}], s{S_T2} offen offset:{np_*64}")
        else:
            srd(e, S_SRD_O, 28, 29, 16 * MB, WS_P2)
            e(f"v_lshl_add_u32 v4, v3, 2, s{S_T1}")
            e("v_lshlrev_b32 v6, 12, v6")
            e("v_lshl_add_u32 v6, v4, 2, v6")
            e("s_lshl_b32 s33, s33, 23")
            for m in range(8):
                e(f"s_add_u32 s{S_T2}, s33, {m*16*4096}")
                for n in range(4):
                    a = G.acc(m, n)
                    e(f"buffer_store_dwordx4 a[{a}:{a+3}], v6, s[{S_SRD_O}:{S_SRD_O+3}], s{S_T2} offen offset:{n*64}")
        stamp_out(e, 1)
        tl(e, 2, 1)
        e("s_endpgm")
        vt_max = max(vt_max, G.vtop)
    e.lab("g2_done")
    e("s_endpgm")
    acc0 = (vt_max + 3) // 4 * 4
    kdesc(e, name, acc0 + 128, acc0)
    return G.SS * S


def main():
    out = sys.argv[1]
    for a in sys.argv[2:]:
        k, v = a.split("=")
        OPT[k] = int(v) if v.lstrip('-').isdigit() else v
    e = E()
    if not OPT.get('fuse_ln'):
        gen_ln(e)
    l1 = gen_g1(e)
    l2 = gen_g2(e)
    gen_fin(e)
    e.lab("text_end")
    e("s_endpgm")
    hdr = open("cdna_kernels/%s.s.ref" % KN).read().split("; Override launch")[0]
    b1 = 512 if OPT['design1'] == 'B' else 256
    b2 = 512 if OPT['design2'] == 'B' else 256
    if not OPT.get('fuse_ln'):
        hdr += "; @launch kernel=ln_kernel grid=(512,1,1) block=(256,1,1) lds=0\n"
    hdr += f"; @launch kernel=g1_kernel grid=(256,1,1) block=({b1},1,1) lds={l1}\n"
    hdr += f"; @launch kernel=g2_kernel grid=(256,1,1) block=({b2},1,1) lds={l2}\n"
    hdr += "; @launch kernel=fin_kernel grid=(1024,1,1) block=(256,1,1) lds=0\n"
    hdr += '.amdgcn_target "amdgcn-amd-amdhsa--gfx950"\n.text\n'
    open(out, "w").write(hdr + "\n".join(e.L) + "\n")


if __name__ == "__main__":
    main()
```

```python
import sys, math
import gen
from gen import *

KNAME = KN + "_kernel"
LDS_CNT = 155648
LDS_TOTAL = 155648 + 512
S_DBG = 96
WS_PB = 32 * MB
SPIN_MAX = 200000


def stamp3(e, k):
    if OPT.get('tl'):
        k += OPT.get('sbase', 0)
        lab = f"tl_{len(e.L)}"
        e("s_and_b32 s100, s2, 7")
        if k:
            e(f"s_or_b32 s100, s100, s{S_WAVE}")
        e("s_cmp_lg_u32 s100, 0")
        e(f"s_cbranch_scc1 {lab}")
        e("s_load_dwordx2 s[76:77], s[0:1], 88")
        e("s_memrealtime s[100:101]")
        e("s_waitcnt lgkmcnt(0)")
        if k == 0:
            e("s_not_b32 s100, s100")
        e("v_accvgpr_write_b32 a175, v0") if False else None
        e("v_mov_b32 v62, s100")
        e(f"v_mov_b32 v63, {8+4*k}")
        e("s_mov_b64 exec, 1")
        e("global_atomic_umax v63, v62, s[76:77]")
        e("s_mov_b64 exec, -1")
        e.lab(lab)
        return
    if OPT.get('stamp'):
        k += OPT.get('sbase', 0)
        e("s_memtime s[100:101]")
        e("s_waitcnt lgkmcnt(0)")
        e(f"s_mov_b32 s{76+k}, s100")
        if k in (0, 10):
            e("s_memrealtime s[100:101]")
            e("s_waitcnt lgkmcnt(0)")
            e(f"s_mov_b32 s{89 + (k != 0)}, s100")


gen.stamp = stamp3


def stamp3_out(e):
    if OPT.get('tl'):
        OPT['sbase'] = 0
        e("s_waitcnt vmcnt(0)")
        stamp3(e, 10)
    if OPT.get('stamp'):
        OPT['sbase'] = 0
        e("s_waitcnt vmcnt(0)")
        stamp3(e, 10)
        srd(e, S_SRD_O, 28, 29, 4 * MB, WS_ST)
        e("s_lshl_b32 s38, s2, 2")
        e(f"s_add_u32 s38, s38, s{S_WAVE}")
        e("s_lshl_b32 s38, s38, 6")
        e("v_mov_b32 v0, s38")
        for k in range(11):
            e(f"v_mov_b32 v{4+k}, s{76+k}")
        e("v_mov_b32 v15, s89")
        e("v_mov_b32 v16, s90")
        e("v_mov_b32 v17, s87")
        for k in range(4):
            e(f"buffer_store_dwordx4 v[{4+4*k}:{7+4*k}], v0, s[{S_SRD_O}:{S_SRD_O+3}], 0 offen offset:{16*k}")


WS_FL = 31 * MB
FL1, FLY, FLO, FLC = 0, 1024, 4096, 8192
S_NONCE = 95
LDS_NONCE = LDS_CNT + 32
LDS_GO = LDS_CNT + 48


def signal(e, phase, uid, offs, vm=0):
    e(f"s_waitcnt vmcnt({vm})")
    e(f"v_mov_b32 v0, {LDS_CNT + 4 * phase}")
    e("v_mov_b32 v1, 1")
    e("s_mov_b64 exec, 1")
    e("ds_add_rtn_u32 v1, v0, v1")
    e("s_waitcnt lgkmcnt(0)")
    e("v_cmp_eq_u32 vcc, 3, v1")
    e(f"s_cbranch_vccz sig_{uid}")
    e("v_mov_b32 v0, 0")
    e(f"v_mov_b32 v1, s{S_NONCE}")
    for o in offs:
        e(f"buffer_store_dword v1, v0, s[{S_DBG}:{S_DBG+3}], s{o} offen sc1")
    e.lab(f"sig_{uid}")
    e("s_mov_b64 exec, -1")


def poll(e, vaddr, vtmp, uid, sleep=2):
    e(f"s_mov_b32 s{S_T2}, {SPIN_MAX}")
    e.lab(f"poll_{uid}")
    e(f"buffer_load_dword v{vtmp}, v{vaddr}, s[{S_DBG}:{S_DBG+3}], 0 offen sc1")
    e("s_waitcnt vmcnt(0)")
    e(f"v_cmp_ne_u32 vcc, s{S_NONCE}, v{vtmp}")
    e(f"s_cbranch_vccz polld_{uid}")
    e(f"s_sleep {sleep}")
    e(f"s_sub_u32 s{S_T2}, s{S_T2}, 1")
    e(f"s_cmp_lg_u32 s{S_T2}, 0")
    e(f"s_cbranch_scc1 poll_{uid}")
    e.lab(f"polld_{uid}")


def lpoll(e, vaddr, vtmp, phase, uid, sleep=2):
    e(f"v_mov_b32 v{vtmp+1}, {LDS_GO + 4 * phase}")
    e(f"s_cmp_lg_u32 s{S_WAVE}, 0")
    e(f"s_cbranch_scc1 lw_{uid}")
    poll(e, vaddr, vtmp, uid, sleep)
    e(f"v_mov_b32 v{vtmp}, 1")
    e(f"ds_write_b32 v{vtmp+1}, v{vtmp}")
    e(f"s_branch lwd_{uid}")
    e.lab(f"lw_{uid}")
    e(f"s_mov_b32 s{S_T2}, {SPIN_MAX * 20}")
    e.lab(f"lwl_{uid}")
    e(f"ds_read_b32 v{vtmp}, v{vtmp+1}")
    e("s_waitcnt lgkmcnt(0)")
    e(f"v_cmp_ne_u32 vcc, 1, v{vtmp}")
    e(f"s_cbranch_vccz lwd_{uid}")
    e("s_sleep 1")
    e(f"s_sub_u32 s{S_T2}, s{S_T2}, 1")
    e(f"s_cmp_lg_u32 s{S_T2}, 0")
    e(f"s_cbranch_scc1 lwl_{uid}")
    e.lab(f"lwd_{uid}")


def get_nonce(e, v):
    e(f"v_mov_b32 v{v}, {LDS_NONCE}")
    e(f"ds_read_b32 v{v}, v{v}")
    e("s_waitcnt lgkmcnt(0)")
    e(f"v_readfirstlane_b32 s{S_NONCE}, v{v}")
    e("s_nop 3")


def split_dma(G):
    g = G.dma_groups()
    return g[:G.nR], g[G.nR:]


def book_part(G, which):
    out = []
    if which == 'R':
        kr = 2048 if G.rblk else 128
        if G.kr_step:
            out += G.kr_step
        else:
            out.append(f"s_add_u32 s{S_KR}, s{S_KR}, {kr}")
        wrap = [(S_KR, kr * G.nsteps)]
    else:
        wrap = []
        if any(r.typ == 'T' for r in G.regions):
            kc = 2048 if G.cblk else 128
            out.append(f"s_add_u32 s{S_KC}, s{S_KC}, {kc}")
            wrap.append((S_KC, kc * G.nsteps))
        for r in G.regions:
            if r.typ != 'T':
                if G.kn_step:
                    out += G.kn_step
                else:
                    out.append(f"s_add_u32 s{S_KN}, s{S_KN}, {64*r.gstride}")
                wrap.append((S_KN, 64 * r.gstride * G.nsteps))
    if G.rot:
        out.append(f"s_add_u32 s{S_KI}, s{S_KI}, 1")
        out.append(f"s_cmp_ge_u32 s{S_KI}, s{S_NS}")
        out.append(f"s_cselect_b32 s{S_KI}, 0, s{S_KI}")
        for (sr, amt) in wrap:
            out.append(f"s_cmp_eq_u32 s{S_KI}, 0")
            out.append(f"s_cselect_b32 s{S_T0}, {amt}, 0")
            out.append(f"s_sub_u32 s{sr}, s{sr}, s{S_T0}")
    out.append(f"s_add_u32 s{S_WR}, s{S_WR}, {G.SS}")
    return out


def loader_phase(e, G, first, mid, sc1_dep):
    p = G.pre
    gr, gc = split_dma(G)
    ind, dep = (gr, gc) if first == 'R' else (gc, gr)
    second = 'C' if first == 'R' else 'R'
    G.loader_init()
    if G.rot:
        e(f"s_mov_b32 s63, s{S_KI}")
    pre = G.pre_R or []
    for st in range(G.S):
        for g in ind:
            e.ext(g)
        e.ext(book_part(G, first))
    e(f"s_mov_b32 s{S_WR}, 0")
    if G.rot:
        e(f"s_mov_b32 s{S_KI}, s63")
    e.ext(pre)
    mid(len(ind) * G.S)
    for st in range(G.S):
        for g in dep:
            e.ext(g)
        e.ext(book_part(G, second))
        e.ext(pre)
    e(f"s_mov_b32 s{S_WR}, 0")
    e(f"s_sub_u32 s{S_LEFT}, s{S_NS}, {G.S}")
    e(f"s_waitcnt vmcnt({(G.S-1)*len(dep)})")
    e("s_barrier")
    e(f"s_mov_b32 s{S_CNT}, s{S_NS}")
    e(f"s_waitcnt vmcnt({(G.S-2)*len(dep)})")
    e(f"s_branch {p}_lmid")
    late = getattr(G, 'late', False)
    if late:
        e.lab(f"{p}_chk")
        e(f"v_cmp_ne_u32 vcc, s{S_NONCE}, v23")
        e(f"s_cbranch_vccz {p}_lmid")
        poll(e, 22, 23, f"{p}_late", 2)
        e(f"s_branch {p}_lmid")
    e.lab(f"{p}_lloop")
    e(f"s_waitcnt vmcnt({(G.S-2)*G.D})")
    if late:
        e(f"s_cmp_eq_u32 s{S_CNT}, 23")
        e(f"s_cbranch_scc1 {p}_chk")
    e.lab(f"{p}_lmid")
    e("s_barrier")
    if late:
        e(f"s_cmp_lg_u32 s{S_CNT}, 24")
        e(f"s_cbranch_scc1 {p}_np")
        e(f"buffer_load_dword v23, v22, s[{S_DBG}:{S_DBG+3}], 0 offen sc1")
        e.lab(f"{p}_np")
    for g in G.dma_groups():
        e.ext(g)
    e.ext(G.dma_book())
    e.ext(pre)
    e(f"s_sub_u32 s{S_CNT}, s{S_CNT}, 1")
    e(f"s_cmp_lg_u32 s{S_CNT}, 0")
    e(f"s_cbranch_scc1 {p}_lloop")


def ln_body(e):
    for i in range(8):
        e(f"v_lshlrev_b32 v{16+2*i}, 16, v{4+i}")
        e(f"v_and_b32 v{17+2*i}, 0xffff0000, v{4+i}")

    def tree(dst, src):
        for i in range(8):
            e(f"v_add_f32 v{40+i}, v{src+2*i}, v{src+2*i+1}")
        for i in range(4):
            e(f"v_add_f32 v{40+i}, v{40+i}, v{44+i}")
        e("v_add_f32 v40, v40, v42")
        e("v_add_f32 v41, v41, v43")
        e(f"v_add_f32 v{dst}, v40, v41")

    def wred(v):
        for sh in (1, 2, 4, 8):
            e("s_nop 1")
            e(f"v_add_f32_dpp v{v}, v{v}, v{v} row_ror:{sh} row_mask:0xf bank_mask:0xf")
        e("v_mov_b32 v48, v%d" % v)
        e("s_nop 1")
        e(f"v_permlane32_swap_b32 v{v}, v48")
        e(f"v_add_f32 v{v}, v{v}, v48")
        e("v_mov_b32 v48, v%d" % v)
        e("s_nop 1")
        e(f"v_permlane16_swap_b32 v{v}, v48")
        e(f"v_add_f32 v{v}, v{v}, v48")

    tree(3, 16)
    wred(3)
    e("v_mul_f32 v3, 0x3a800000, v3")
    for i in range(16):
        e(f"v_sub_f32 v{52+i}, v{16+i}, v3")
    for i in range(16):
        e(f"v_mul_f32 v{52+i}, v{52+i}, v{52+i}")
    tree(12, 52)
    wred(12)
    e("v_mul_f32 v12, 0x3a800000, v12")
    e("v_cvt_pk_bf16_f32 v13, v3, v12")
    e("v_lshlrev_b32 v3, 16, v13")
    e("v_and_b32 v12, 0xffff0000, v13")
    e("v_add_f32 v12, 0x3727c5ac, v12")
    e("v_cvt_pk_bf16_f32 v13, v12, v12")
    e("v_lshlrev_b32 v12, 16, v13")
    e("v_sqrt_f32 v12, v12")
    e("s_nop 0")
    e("v_cvt_pk_bf16_f32 v13, v12, v12")
    e("v_lshlrev_b32 v12, 16, v13")
    e("v_rcp_f32 v14, v12")
    for i in range(8):
        e(f"v_sub_f32 v{16+2*i}, v{16+2*i}, v3")
        e(f"v_sub_f32 v{17+2*i}, v{17+2*i}, v3")
        e(f"v_cvt_pk_bf16_f32 v{4+i}, v{16+2*i}, v{17+2*i}")
        e(f"v_lshlrev_b32 v{16+2*i}, 16, v{4+i}")
        e(f"v_and_b32 v{17+2*i}, 0xffff0000, v{4+i}")
    for i in range(16):
        e(f"v_mul_f32 v{52+i}, v{16+i}, v14")
        e(f"v_fma_f32 v{16+i}, -v{52+i}, v12, v{16+i}")
        e(f"v_fma_f32 v{52+i}, v{16+i}, v14, v{52+i}")
    for i in range(8):
        e(f"v_cvt_pk_bf16_f32 v{4+i}, v{52+2*i}, v{53+2*i}")


HG = 122 * 1024
AG = 66 * 1024
ACC = 80


def g1_epi3(e, G, pre):
    e("v_mbcnt_lo_u32_b32 v1, -1, 0")
    e("v_mbcnt_hi_u32_b32 v1, -1, v1")
    e("v_and_b32 v2, 15, v1")
    e("v_lshrrev_b32 v3, 4, v1")
    e("v_and_b32 v4, 1, v3")
    e("v_lshlrev_b32 v4, 5, v4")
    e("v_lshrrev_b32 v5, 1, v3")
    e("v_lshl_add_u32 v4, v5, 4, v4")
    e("v_lshl_add_u32 v4, v2, 6, v4")
    e(f"s_lshl_b32 s{S_T0}, s{S_WAVE}, 6")
    e(f"s_add_u32 s{S_T0}, s{S_T0}, s{S_ROW0}")
    e(f"s_lshr_b32 s36, s{S_ROW0}, 6")
    e(f"s_lshl_b32 s34, s{S_COL0}, 7")
    e("s_add_u32 s34, s34, s36")
    e(f"s_add_u32 s34, s34, {FLY}")
    e(f"s_lshr_b32 s35, s{S_ROW0}, 1")
    e(f"s_lshl_b32 s37, s{S_COL0}, 2")
    e("s_add_u32 s35, s35, s37")
    e(f"s_add_u32 s35, s35, {FLO}")
    for r in G.regions:
        if r.typ == 'T':
            srd(e, S_SRD_O, 28, 29, 128 * AG, WS_AT)
            e(f"s_mul_i32 s{S_T1}, s{S_COL0}, {11*AG}")
            e(f"s_lshl_b32 s{S_T2}, s{S_T0}, 5")
            e(f"s_add_u32 s{S_T1}, s{S_T1}, s{S_T2}")
            e(f"v_add_u32 v6, s{S_T1}, v4")
            e(f"s_mul_i32 s{S_T1}, s{S_COL0}, 11")
            for j in range(r.ng):
                n = r.g0 + j
                b = 16 + (j & 3) * 8
                e(f"s_add_u32 s{S_T2}, s{S_T1}, {n}")
                e(f"s_cmp_lt_u32 s{S_T2}, 64")
                e(f"s_cselect_b32 s{S_DL}, 0, 0x80008000")
                e(f"s_mov_b32 s{S_T2}, {n*AG}")
                for m in range(4):
                    a = G.acc(m, n)
                    e(f"v_cvt_pk_bf16_f32 v{b+2*m}, v{a}, v{a+1}")
                    e(f"v_cvt_pk_bf16_f32 v{b+2*m+1}, v{a+2}, v{a+3}")
                for k in range(8):
                    e(f"v_xor_b32 v{b+k}, s{S_DL}, v{b+k}")
                e("s_nop 1")
                for h in range(2):
                    e(f"v_permlane16_swap_b32 v{b+4*h}, v{b+2+4*h}")
                    e(f"v_permlane16_swap_b32 v{b+1+4*h}, v{b+3+4*h}")
                e(f"buffer_store_dwordx4 v[{b}:{b+3}], v6, s[{S_SRD_O}:{S_SRD_O+3}], s{S_T2} offen sc1")
                e(f"buffer_store_dwordx4 v[{b+4}:{b+7}], v6, s[{S_SRD_O}:{S_SRD_O+3}], s{S_T2} offen offset:1024 sc1")
        else:
            srd(e, S_SRD_O, 28, 29, 128 * HG, WS_H)
            srd(e, S_SRD_B, 26, 27, 7168)
            e(f"s_mul_i32 s{S_T1}, s{S_COL0}, 352")
            e(f"s_sub_u32 s{S_T1}, s{S_T1}, {(128 - r.g0) * 32}")
            e("v_lshlrev_b32 v7, 3, v3")
            e(f"v_add_u32 v7, s{S_T1}, v7")
            nq = -(-r.ng // 4)

            def ldb(Q):
                for j in range(4 * Q, min(4 * Q + 4, r.ng)):
                    d = 64 + 8 * (Q & 1) + 2 * (j - 4 * Q)
                    e(f"buffer_load_dwordx2 v[{d}:{d+1}], v7, s[{S_SRD_B}:{S_SRD_B+3}], 0 offen offset:{32*j}")
            ldb(0)
            if nq > 1:
                ldb(1)
            e(f"s_lshr_b32 s{S_T2}, s{S_T0}, 4")
            e(f"s_mul_i32 s{S_T2}, s{S_T2}, {HG}")
            if pre != 'g1m':
                e(f"s_mul_i32 s{S_RD}, s{S_COL0}, 6144")
                e(f"s_sub_u32 s{S_RD}, s{S_RD}, {12*6144-2048}")
                e(f"s_add_u32 s{S_T2}, s{S_T2}, s{S_RD}")
            e(f"v_add_u32 v6, s{S_T2}, v4")
            c1 = -2.0 * math.log2(math.e) * math.sqrt(2.0 / math.pi)
            c2 = c1 * 0.044715
            e(f"v_mov_b32 v10, {f2u(c1):#x}")
            e(f"v_mov_b32 v11, {f2u(c1):#x}")
            e(f"v_mov_b32 v12, {f2u(c2):#x}")
            e(f"v_mov_b32 v13, {f2u(c2):#x}")
            e("v_mov_b32 v14, 1.0")
            e("v_mov_b32 v15, 1.0")
            for Q in range(nq):
                ng = min(4, r.ng - 4 * Q)
                if Q == 0:
                    e(f"s_waitcnt vmcnt({min(4, r.ng-4) if nq > 1 else 0})")
                elif Q == 1:
                    e("s_waitcnt vmcnt(11)")
                else:
                    e("s_waitcnt vmcnt(16)")
                for jj in range(ng):
                    bq = 64 + 8 * (Q & 1) + 2 * jj
                    e(f"v_lshlrev_b32 v{48+4*jj}, 16, v{bq}")
                    e(f"v_and_b32 v{49+4*jj}, 0xffff0000, v{bq}")
                    e(f"v_lshlrev_b32 v{50+4*jj}, 16, v{bq+1}")
                    e(f"v_and_b32 v{51+4*jj}, 0xffff0000, v{bq+1}")
                if Q + 2 < nq:
                    ldb(Q + 2)
                for m in range(4):
                    t = G.acc(m, r.g0 + 4 * Q)
                    u = 16 + 16 * (m & 1)
                    np_ = 2 * ng
                    P = lambda b_, h: f"v[{b_+2*h}:{b_+2*h+1}]"
                    for h in range(np_):
                        e(f"v_pk_add_f32 {P(t,h)}, {P(t,h)}, {P(48,h)}")
                    for h in range(np_):
                        e(f"v_pk_mul_f32 {P(u,h)}, {P(t,h)}, {P(t,h)}")
                    for h in range(np_):
                        e(f"v_pk_fma_f32 {P(u,h)}, {P(u,h)}, v[12:13], v[10:11]")
                    for h in range(np_):
                        e(f"v_pk_mul_f32 {P(u,h)}, {P(u,h)}, {P(t,h)}")
                    for x in range(2 * np_):
                        e(f"v_exp_f32 v{u+x}, v{u+x}")
                    for h in range(np_):
                        e(f"v_pk_add_f32 {P(u,h)}, {P(u,h)}, v[14:15]")
                    for x in range(2 * np_):
                        e(f"v_rcp_f32 v{u+x}, v{u+x}")
                    for h in range(np_):
                        e(f"v_pk_mul_f32 {P(t,h)}, {P(t,h)}, {P(u,h)}")
                    for h in range(np_):
                        e(f"v_cvt_pk_bf16_f32 v{u+h}, v{t+2*h}, v{t+2*h+1}")
                    if ng == 3:
                        e(f"v_mov_b32 v{u+6}, 0")
                        e(f"v_mov_b32 v{u+7}, 0")
                    e(f"s_mov_b32 s{S_T2}, {m*HG + Q*2048}")
                    e("s_nop 0")
                    for h in range(2):
                        e(f"v_permlane16_swap_b32 v{u+4*h}, v{u+2+4*h}")
                        e(f"v_permlane16_swap_b32 v{u+1+4*h}, v{u+3+4*h}")
                    e(f"buffer_store_dwordx4 v[{u}:{u+3}], v6, s[{S_SRD_O}:{S_SRD_O+3}], s{S_T2} offen sc1")
                    e(f"buffer_store_dwordx4 v[{u+4}:{u+7}], v6, s[{S_SRD_O}:{S_SRD_O+3}], s{S_T2} offen offset:1024 sc1")
                if Q >= 1:
                    signal(e, 4 + Q - 1, f"{pre}q{Q}", [35], 8)
                    e("s_add_u32 s35, s35, 1024")


def warm(e, pre):
    if not OPT.get('warm'):
        return
    e(f"s_mov_b32 m0, {LDS_CNT + 256}")
    e("s_lshr_b32 s34, s2, 3")
    e("s_cmp_ge_u32 s34, 3")
    e(f"s_cbranch_scc1 {pre}_w1")
    e("s_lshl_b32 s34, s34, 2")
    e(f"s_add_u32 s34, s34, s{S_WAVE}")
    e("s_lshl_b32 s34, s34, 13")
    e("v_lshlrev_b32 v4, 7, v1")
    e("v_add_u32 v4, s34, v4")
    e(f"v_min_u32 v4, k_done-{KNAME}, v4")
    e("s_getpc_b64 s[34:35]")
    e.lab(f"{pre}_pc")
    e(f"s_sub_u32 s34, s34, {pre}_pc-{KNAME}")
    e("s_subb_u32 s35, s35, 0")
    e("global_load_lds_dword v4, s[34:35]")
    e.lab(f"{pre}_w1")
    if OPT['warm'] >= 2:
        e("s_load_dwordx4 s[64:67], s[0:1], 8")
        e("s_load_dwordx2 s[68:69], s[0:1], 64")
        e("s_load_dwordx2 s[70:71], s[0:1], 80")
        e("v_lshlrev_b32 v4, 21, v1")
        e("s_waitcnt lgkmcnt(0)")
        e(f"s_cmp_eq_u32 s{S_WAVE}, 0")
        e("s_cselect_b32 s72, s28, s64")
        e("s_cselect_b32 s73, s29, s65")
        e(f"s_cselect_b32 s74, {64*MB}, s{S_NREC}") if False else None
        e(f"s_mov_b32 s74, {8*MB}")
        e(f"s_cselect_b32 s74, {64*MB}, s74")
        e(f"s_cmp_eq_u32 s{S_WAVE}, 2")
        e("s_cselect_b32 s72, s66, s72")
        e("s_cselect_b32 s73, s67, s73")
        e(f"s_cmp_eq_u32 s{S_WAVE}, 3")
        e("s_cselect_b32 s72, s68, s72")
        e("s_cselect_b32 s73, s69, s73")
        e(f"s_cselect_b32 s74, {3584*2048}, s74")
        e("s_mov_b32 s75, 0x20000")
        e("buffer_load_dword v4, s[72:75], 0 offen lds")
        srd(e, 72, 70, 71, 4 * MB)
        e("buffer_load_dword v4, s[72:75], 0 offen lds")


def combine(e, G, typ, q):
    uid = f"{q}"
    keep = [2 * q, 2 * q + 1]
    e("v_mbcnt_lo_u32_b32 v1, -1, 0")
    e("v_mbcnt_hi_u32_b32 v1, -1, v1")
    e("v_and_b32 v2, 15, v1")
    e("v_lshrrev_b32 v3, 4, v1")
    e("v_lshlrev_b32 v5, 4, v1")
    srd(e, S_SRD_O, 28, 29, 32 * MB, WS_PB)
    e(f"s_lshr_b32 s34, s{S_ROW0}, 5")
    e(f"s_lshr_b32 s35, s{S_COL0}, 7")
    e("s_add_u32 s34, s34, s35")
    e("s_lshl_b32 s34, s34, 4")
    e(f"s_add_u32 s34, s34, s{S_WAVE}")
    e("s_lshl_b32 s34, s34, 15")
    e(f"s_add_u32 s35, s34, {q * 131072}")
    for m in range(8):
        if m in keep:
            continue
        e(f"s_add_u32 s{S_T2}, s35, {m*4096}")
        if typ == 'y':
            for c in range(2):
                t = 16 + ((2 * m + c) & 7) * 4
                for qq in range(2):
                    a = G.acc(m, 2 * c + qq)
                    e(f"v_cvt_pk_bf16_f32 v{t+2*qq}, v{a}, v{a+1}")
                    e(f"v_cvt_pk_bf16_f32 v{t+2*qq+1}, v{a+2}, v{a+3}")
                e(f"buffer_store_dwordx4 v[{t}:{t+3}], v5, s[{S_SRD_O}:{S_SRD_O+3}], s{S_T2} offen offset:{c*1024} sc1")
        else:
            for n in range(4):
                a = G.acc(m, n)
                e(f"buffer_store_dwordx4 v[{a}:{a+3}], v5, s[{S_SRD_O}:{S_SRD_O+3}], s{S_T2} offen offset:{n*1024} sc1")
    e("s_lshr_b32 s36, s34, 12")
    e("s_and_b32 s36, s36, 0xff80")
    e(f"s_add_u32 s36, s36, {FLC}")
    e(f"s_add_u32 s37, s36, {4*q}")
    signal(e, 3, f"c{uid}", [37])
    OPT['sbase'] = 0
    stamp3(e, 8)
    e("s_load_dwordx2 s[20:21], s[0:1], 0")
    e("s_load_dwordx4 s[24:27], s[0:1], 72")
    e("v_mbcnt_lo_u32_b32 v1, -1, 0")
    e("v_mbcnt_hi_u32_b32 v1, -1, v1")
    e(f"s_lshr_b32 s{S_T0}, s{S_WAVE}, 1")
    e(f"s_lshl_b32 s{S_T0}, s{S_T0}, 7")
    e(f"s_add_u32 s{S_T0}, s{S_T0}, s{S_ROW0}")
    e(f"s_add_u32 s{S_T0}, s{S_T0}, {32*q}")
    e(f"s_and_b32 s{S_T1}, s{S_WAVE}, 1")
    e(f"s_lshl_b32 s{S_T1}, s{S_T1}, 6")
    e(f"s_add_u32 s{S_T1}, s{S_T1}, s{S_COL0}")
    e(f"v_add_u32 v6, s{S_T0}, v2")
    e("v_lshlrev_b32 v6, 11, v6")
    e(f"v_lshl_add_u32 v7, v3, 2, s{S_T1}")
    e("v_lshlrev_b32 v7, 1, v7")
    e("v_add_u32 v8, v6, v7")
    e("v_and_b32 v4, 1, v3")
    e("v_lshlrev_b32 v4, 4, v4")
    e("v_lshrrev_b32 v9, 1, v3")
    e("v_lshl_add_u32 v4, v9, 3, v4")
    e(f"v_add_u32 v4, s{S_T1}, v4")
    e("v_lshl_add_u32 v9, v4, 1, v6")
    e("v_and_b32 v10, 3, v1")
    e("v_lshl_add_u32 v10, v10, 2, s36")
    e("s_waitcnt lgkmcnt(0)")
    srd(e, 64, 20, 21, 4 * MB)
    srd(e, 68, 24, 25, 2048)
    srd(e, 72, 26, 27, 4 * MB)
    XA = 240
    for mi in range(2):
        for n in range(4):
            e(f"buffer_load_dwordx2 v[{XA+8*mi+2*n}:{XA+8*mi+2*n+1}], v8, s[64:67], 0 offen offset:{mi*0+n*32}" if mi == 0 else
              f"buffer_load_dwordx2 v[{XA+8*mi+2*n}:{XA+8*mi+2*n+1}], v12, s[64:67], 0 offen offset:{n*32}")
        if mi == 0:
            e("v_add_u32 v12, 0x8000, v8")
    for n in range(4):
        e(f"buffer_load_dwordx2 v[{72+2*n}:{73+2*n}], v7, s[68:71], 0 offen offset:{n*32}")
    poll(e, 10, 11, f"c{uid}", 4)
    stamp3(e, 9)
    ysrc = [s for s in (0, 1) if s != q]
    osrc = [s for s in (2, 3) if s != q]
    loc = {}
    pool_v = []
    pool_a = [G.acc(m, n) for m in range(8) if m not in keep for n in range(4)]
    for mi, m in enumerate(keep):
        for s_ in ysrc + osrc:
            nch = 2 if s_ < 2 else 4
            e(f"s_add_u32 s{S_T2}, s34, {s_*131072 + m*4096}")
            for c in range(nch):
                if pool_a:
                    r = ('v', pool_a.pop(0))
                else:
                    r = ('v', pool_v.pop(0))
                loc[(mi, s_, c)] = r
                e(f"buffer_load_dwordx4 {r[0]}[{r[1]}:{r[1]+3}], v5, s[{S_SRD_O}:{S_SRD_O+3}], s{S_T2} offen offset:{c*1024} sc1")
    assert len(loc) <= 18 or True
    e("s_mov_b32 s37, 0xbfb8aa3b")
    e("s_waitcnt vmcnt(0)")

    def get(dst, r, k):
        if r[0] == 'a':
            e(f"v_accvgpr_read_b32 v{dst}, a{r[1]+k}")
        else:
            e(f"v_mov_b32 v{dst}, v{r[1]+k}")

    def rnd(base, tmp):
        for i in range(4):
            e(f"v_cvt_pk_bf16_f32 v{tmp+i}, v{base+2*i}, v{base+2*i+1}")
        for i in range(4):
            e(f"v_lshlrev_b32 v{base+2*i}, 16, v{tmp+i}")
            e(f"v_and_b32 v{base+2*i+1}, 0xffff0000, v{tmp+i}")

    def unpack(dst, r):
        for i in range(4):
            if r[0] == 'a':
                e(f"v_accvgpr_read_b32 v{dst+2*i+1}, a{r[1]+i}")
                e(f"v_lshlrev_b32 v{dst+2*i}, 16, v{dst+2*i+1}")
                e(f"v_and_b32 v{dst+2*i+1}, 0xffff0000, v{dst+2*i+1}")
            else:
                e(f"v_lshlrev_b32 v{dst+2*i}, 16, v{r[1]+i}")
                e(f"v_and_b32 v{dst+2*i+1}, 0xffff0000, v{r[1]+i}")

    A, B, TM = 12, 20, 28
    PR = lambda r_, h: f"v[{r_+2*h}:{r_+2*h+1}]"
    for mi, m in enumerate(keep):
        for c in range(2):
            own = G.acc(m, 2 * c)
            for k, s_ in enumerate((0, 1)):
                dst = A if k == 0 else B
                if s_ == q:
                    for i in range(4):
                        e(f"v_cvt_pk_bf16_f32 v{TM+i}, v{own+2*i}, v{own+2*i+1}")
                    unpack(dst, ('v', TM))
                else:
                    unpack(dst, loc[(mi, s_, c)])
            for h in range(4):
                e(f"v_pk_add_f32 {PR(A,h)}, {PR(A,h)}, {PR(B,h)}")
            rnd(A, TM)
            for qq in range(2):
                n = 2 * c + qq
                src = [G.acc(m, n) if s_ == q else loc[(mi, s_, n)][1] for s_ in (2, 3)]
                for h in range(2):
                    e(f"v_pk_add_f32 {PR(B+4*qq,h)}, {PR(src[0],h)}, {PR(src[1],h)}")
            rnd(B, TM)
            for qq in range(2):
                bb = 72 + 2 * (2 * c + qq)
                e(f"v_lshlrev_b32 v{TM}, 16, v{bb}")
                e(f"v_and_b32 v{TM+1}, 0xffff0000, v{bb}")
                e(f"v_lshlrev_b32 v{TM+2}, 16, v{bb+1}")
                e(f"v_and_b32 v{TM+3}, 0xffff0000, v{bb+1}")
                for h in range(2):
                    e(f"v_pk_add_f32 {PR(B+4*qq,h)}, {PR(B+4*qq,h)}, {PR(TM,h)}")
            rnd(B, TM)
            U = 32
            for x in range(8):
                e(f"v_mul_f32 v{U+x}, s37, v{B+x}")
            for x in range(8):
                e(f"v_exp_f32 v{U+x}, v{U+x}")
            for x in range(8):
                e(f"v_add_f32 v{U+x}, 1.0, v{U+x}")
            for x in range(8):
                e(f"v_rcp_f32 v{U+x}, v{U+x}")
            for h in range(4):
                e(f"v_pk_mul_f32 {PR(B,h)}, {PR(B,h)}, {PR(U,h)}")
            rnd(B, TM)
            for h in range(4):
                e(f"v_pk_mul_f32 {PR(A,h)}, {PR(A,h)}, {PR(B,h)}")
            rnd(A, TM)
            unpack(B, ('v', XA + 8 * mi + 4 * c))
            for h in range(4):
                e(f"v_pk_add_f32 {PR(A,h)}, {PR(A,h)}, {PR(B,h)}")
            O = 40 + 4 * (2 * mi + c)
            for i in range(4):
                e(f"v_cvt_pk_bf16_f32 v{O+i}, v{A+2*i}, v{A+2*i+1}")
            e(f"s_mov_b32 s{S_T2}, {mi*32768}")
            e("s_nop 0")
            e(f"v_permlane16_swap_b32 v{O}, v{O+2}")
            e(f"v_permlane16_swap_b32 v{O+1}, v{O+3}")
            e(f"buffer_store_dwordx4 v[{O}:{O+3}], v9, s[72:75], s{S_T2} offen offset:{c*64}")


def gen_fused(e):
    X = OPT['X']
    khead(e, KNAME)
    e("s_cmp_ge_u32 s2, 256")
    e("s_cbranch_scc1 k_done")
    e("s_load_dwordx2 s[32:33], s[0:1], 0")
    e("s_load_dwordx4 s[20:23], s[0:1], 24")
    e("s_load_dwordx4 s[24:27], s[0:1], 48")
    e("s_load_dwordx4 s[28:31], s[0:1], 88")
    lane_wave(e, 'B')
    e(f"s_mov_b32 s39, s{S_T2}")
    e("s_lshl_b32 s30_, s2, 3".replace("s30_", "s38"))
    e("s_add_u32 s38, s38, s39")
    e("v_lshlrev_b32 v2, 4, v1")
    e("s_lshl_b32 s37, s38, 11")
    e(f"s_mul_i32 s38, s38, {XS}")
    e(f"v_mov_b32 v3, {LDS_CNT}")
    e("v_mov_b32 v4, 0")
    e("v_mov_b32 v5, 0")
    e("v_mov_b32 v6, 0")
    e("v_mov_b32 v7, 0")
    e("ds_write_b128 v3, v[4:7]")
    e("ds_write_b128 v3, v[4:7] offset:16")
    e("ds_write_b128 v3, v[4:7] offset:48")
    e("s_waitcnt lgkmcnt(0)")
    srd(e, 64, 32, 33, 4 * MB)
    e("buffer_load_dwordx4 v[4:7], v2, s[64:67], s37 offen")
    e("buffer_load_dwordx4 v[8:11], v2, s[64:67], s37 offen offset:1024")
    srd(e, 68, 28, 29, 256)
    e("s_mov_b64 s[28:29], s[30:31]")
    srd(e, S_DBG, 28, 29, 16384, WS_FL)
    e("s_cmp_lg_u32 s39, 4")
    e("s_cbranch_scc1 nonce_done")
    e("v_mov_b32 v12, 0")
    e("s_cmp_lg_u32 s2, 0")
    e("s_cbranch_scc1 nonce_poll")
    e("s_memrealtime s[100:101]")
    e("s_waitcnt lgkmcnt(0)")
    e("s_or_b32 s100, s100, 1")
    e("v_mov_b32 v13, s100")
    e("buffer_store_dword v13, v12, s[68:71], 0 offen sc1")
    e("s_branch nonce_got")
    e.lab("nonce_poll")
    e(f"s_mov_b32 s{S_T2}, {SPIN_MAX}")
    e.lab("nonce_l")
    e("buffer_load_dword v13, v12, s[68:71], 0 offen sc1")
    e("s_waitcnt vmcnt(0)")
    e("v_cmp_eq_u32 vcc, 0, v13")
    e("s_cbranch_vccz nonce_got")
    e("s_sleep 2")
    e(f"s_sub_u32 s{S_T2}, s{S_T2}, 1")
    e(f"s_cmp_lg_u32 s{S_T2}, 0")
    e("s_cbranch_scc1 nonce_l")
    e.lab("nonce_got")
    e("ds_write_b32 v3, v13 offset:32")
    e("s_waitcnt lgkmcnt(0)")
    e.lab("nonce_done")
    srd(e, S_SRD_R, 28, 29, 2048 * XS, WS_XN)
    e("s_and_b32 s30, s2, 1")
    e("s_lshl_b32 s30, s30, 2")
    e("s_lshr_b32 s31, s2, 3")
    e(f"s_and_b32 s{S_ROW0}, s31, 3")
    e(f"s_add_u32 s{S_ROW0}, s{S_ROW0}, s30")
    e(f"s_lshl_b32 s{S_ROW0}, s{S_ROW0}, 8")
    e("s_and_b32 s30, s2, 6")
    e("s_lshl_b32 s30, s30, 2")
    e(f"s_lshr_b32 s{S_COL0}, s31, 2")
    e(f"s_add_u32 s{S_COL0}, s{S_COL0}, s30")
    e(f"s_mov_b32 s{S_NS}, 16")
    e(f"s_mov_b32 s{S_KR}, 0")
    e(f"s_mov_b32 s{S_KC}, 0")
    e(f"s_mov_b32 s{S_KN}, 0")
    e("s_waitcnt vmcnt(0)")
    ln_body(e)
    e(f"buffer_store_dwordx4 v[4:7], v2, s[{S_SRD_R}:{S_SRD_R+3}], s38 offen sc1")
    e(f"buffer_store_dwordx4 v[8:11], v2, s[{S_SRD_R}:{S_SRD_R+3}], s38 offen offset:1024 sc1")
    e(f"s_cmp_lt_u32 s{S_COL0}, 11")
    e("s_cbranch_scc1 g1d_start")
    e(f"s_cmp_eq_u32 s{S_COL0}, 11")
    e("s_cbranch_scc1 g1m_start")
    e("s_branch g1f_start")

    variants = {
        'g1d': [Region('T', 0, 11, 0, 2048)],
        'g1m': [Region('T', 0, 7, 0, 2048), Region('Nadd', 7, 4, 16384, 7168)],
        'g1f': [Region('Nadd', 0, 11, 0, 7168)],
    }
    for pre, regs in variants.items():
        orient = []
        for r in regs:
            orient += ['RA' if r.typ == 'T' else 'CA'] * r.ng
        G = Gemm(e, pre, 'B', 2, 4, 11, 4, 1, regs, XS, 'C', orient, nsteps=16)
        G.sc1R = True
        G.accv = ACC
        if OPT.get('rot1'):
            G.rot = (OPT['rot1'], OPT.get('rotmul1', 1))
        e.lab(f"{pre}_start")

        def cset(ri, j, so, G=G, pre=pre):
            r = G.regions[ri]
            if r.typ == 'T':
                e(f"s_mul_i32 s{S_T0}, s{S_COL0}, 22")
                e(f"s_mul_i32 s{S_T1}, s{G.lw}, {r.DW*G.mult}")
                e(f"s_add_u32 s{S_T1}, s{S_T1}, {j}")
                e(f"s_add_u32 s{S_T0}, s{S_T0}, s{S_T1}")
                e(f"s_cmp_lt_u32 s{S_T0}, 128")
                e(f"s_cselect_b32 s{so}, s20, s22")
                e(f"s_cselect_b32 s{so+1}, s21, s23")
                e(f"s_and_b32 s{S_T0}, s{S_T0}, 127")
                e(f"s_lshl_b32 s{S_T0}, s{S_T0}, 14")
                e(f"s_cmp_lt_u32 s{S_T1}, {r.ninstr}")
                e(f"s_cselect_b32 s{so+2}, {2*MB}, 0")
                e(f"s_mov_b32 s{so+3}, 0x20000")
                e(f"s_cselect_b32 s{S_T0}, s{S_T0}, 4096")
            else:
                srd(e, so, 24, 25, 1024 * 7168)
                e(f"s_mul_i32 s{S_T0}, s{S_COL0}, 352")
                e(f"s_sub_u32 s{S_T0}, s{S_T0}, {(128 - r.g0) * 32}")

        e("s_cmp_ge_u32 s39, 4")
        e(f"s_cbranch_scc0 {pre}_comp")

        def mid(nind, pre=pre, dopoll=True):
            e(f"s_waitcnt vmcnt({nind})")
            e("s_barrier")
            get_nonce(e, 2)
            if not dopoll:
                return
            e(f"s_cmp_lg_u32 s{S_WAVE}, 0")
            e(f"s_cbranch_scc1 {pre}_nf")
            e("s_lshl_b32 s37, s2, 2")
            e("v_mov_b32 v2, 0")
            e(f"v_mov_b32 v3, s{S_NONCE}")
            e("s_mov_b64 exec, 1")
            e(f"buffer_store_dword v3, v2, s[{S_DBG}:{S_DBG+3}], s37 offen sc1")
            e("s_mov_b64 exec, -1")
            e.lab(f"{pre}_nf")
            e(f"s_lshr_b32 s{S_T0}, s{S_ROW0}, 1")
            e("v_and_b32 v2, 31, v1")
            e(f"v_lshl_add_u32 v2, v2, 2, s{S_T0}")
            lpoll(e, 2, 3, 1, pre, 1)
        asym = OPT.get('asym', 'R')
        if asym in ('R', 'C'):
            G.splitring = True
            G.SR, G.SC = (3, 2) if asym == 'R' else (2, 3)
            G.CB = G.SR * RT
            G.wc = 92
            G.loader_setup(1, 2, cset)
            gr, gc = split_dma(G)
            grp = {'R': gr, 'C': gc}
            dep = {'R': G.SR, 'C': G.SC}
            szs = {'R': RT, 'C': G.CS}
            wrs = {'R': S_WR, 'C': 92}
            kis = {'R': S_KI, 'C': 63}
            lefts = {'R': S_LEFT, 'C': 93}

            def book(part):
                out = book_part(G, part)[:-1]
                out = [x.replace(f"s{S_KI}", f"s{kis[part]}") for x in out]
                w = wrs[part]
                out += [f"s_add_u32 s{w}, s{w}, {szs[part]}",
                        f"s_cmp_ge_u32 s{w}, {szs[part]*dep[part]}",
                        f"s_cselect_b32 s{w}, 0, s{w}",
                        f"s_sub_u32 s{lefts[part]}, s{lefts[part]}, 1",
                        f"s_cmp_lt_i32 s{lefts[part]}, 1"]
                for sr in (G.srds[:1] if part == 'R' else G.srds[1:]):
                    out.append(f"s_cselect_b32 s{sr+2}, 0, s{sr+2}")
                return out
            G.loader_init()
            e("s_mov_b32 s92, 0")
            e(f"s_mov_b32 s93, s{S_NS}")
            if G.rot:
                e(f"s_mov_b32 s63, s{S_KI}")
            for st in range(G.SC):
                for g in gc:
                    e.ext(g)
                e.ext(book('C'))
            mid(len(gc) * G.SC)
            for st in range(G.SR):
                for g in gr:
                    e.ext(g)
                e.ext(book('R'))
            sh, dp = ('C', 'R') if asym == 'R' else ('R', 'C')
            e(f"s_waitcnt vmcnt({(G.SR-1)*len(gr)})")
            e("s_barrier")
            e(f"s_mov_b32 s{S_CNT}, s{S_NS}")
            e(f"s_waitcnt vmcnt({(G.SR-2)*len(gr)})")
            e(f"s_branch {pre}_lmid")
            e.lab(f"{pre}_lloop")
            e(f"s_waitcnt vmcnt({len(grp[dp])})")
            e.lab(f"{pre}_lmid")
            e("s_barrier")
            for g in grp[sh]:
                e.ext(g)
            for g in grp[dp]:
                e.ext(g)
            e.ext(book('R'))
            e.ext(book('C'))
            e(f"s_sub_u32 s{S_CNT}, s{S_CNT}, 1")
            e(f"s_cmp_lg_u32 s{S_CNT}, 0")
            e(f"s_cbranch_scc1 {pre}_lloop")
            e("s_branch g2_loader")
        else:
            G.loader_setup(1, 2, cset)
            loader_phase(e, G, 'C', mid, True)
            e("s_branch g2_loader")
        e.lab(f"{pre}_comp")
        npf = 0
        if OPT.get('pfa'):
            e("s_waitcnt vmcnt(0)")
            e("s_barrier")
        if OPT.get('pf0'):
            e("s_load_dwordx4 s[64:67], s[0:1], 8")
            e("s_load_dwordx2 s[68:69], s[0:1], 64")
            e(f"s_mov_b32 m0, {LDS_CNT + 256}")
            e("s_lshl_b32 s34, s2, 2")
            e(f"s_add_u32 s34, s34, s{S_WAVE}")
            e("s_lshl_b32 s34, s34, 13")
            e("v_lshlrev_b32 v12, 7, v1")
            e("s_waitcnt lgkmcnt(0)")
            items = [(68, 3584 * 2048), (64, 8 * MB), (66, 8 * MB)]
            if OPT['pf0'] >= 2:
                items = [(24, 1024 * 7168)] + items
            for (lo, nb) in items:
                srd(e, 72, lo, lo + 1, nb)
                e("buffer_load_dword v12, s[72:75], s34 offen lds")
                npf += 1
        if not OPT.get('pfa'):
            e(f"s_waitcnt vmcnt({npf})")
            e("s_barrier")
        get_nonce(e, 4)
        warm(e, pre)
        if OPT.get('pfl'):
            G.pfl = True
            e("s_load_dwordx2 s[64:65], s[0:1], 8")
            e("s_load_dwordx2 s[68:69], s[0:1], 16")
            e("s_load_dwordx2 s[70:71], s[0:1], 64")
            e(f"s_mov_b32 m0, {LDS_CNT + 256}")
            e("s_lshl_b32 s74, s2, 2")
            e(f"s_add_u32 s74, s74, s{S_WAVE}")
            e("s_lshl_b32 s74, s74, 13")
            e("s_mov_b32 s94, s74")
            e(f"s_mov_b32 s66, {8*MB}")
            e("s_mov_b32 s67, 0x20000")
            e(f"s_mov_b32 s72, {8*MB}")
            e(f"s_mov_b32 s73, {3584*2048}")
            e("v_cmp_gt_u32 vcc, 16, v1")
            e("v_lshlrev_b32 v30, 7, v1")
            e("v_mov_b32 v31, 0x7ff00000")
            e("v_cndmask_b32 v30, v31, v30, vcc")
            e("s_waitcnt lgkmcnt(0)")
        e(f"v_mov_b32 v{G.vfrag0+16}, v1")
        G.compute_setup(G.vfrag0 + 16, G.vfrag0)
        if getattr(G, 'pfl', False):
            e("v_mov_b32 v3, v30")
        G.compute_loop(X)
        g1_epi3(e, G, pre)
        stamp3(e, 11)
        offs = {'g1d': [34], 'g1m': [34, 35], 'g1f': [35]}[pre]
        signal(e, 2, pre, offs)
        stamp3(e, 4)
        e("s_branch g2_comp")

    def g2_common():
        e("s_load_dwordx4 s[20:23], s[0:1], 8")
        e("s_load_dwordx2 s[24:25], s[0:1], 64")
        e("v_mbcnt_lo_u32_b32 v1, -1, 0")
        e("v_mbcnt_hi_u32_b32 v1, -1, v1")
        e("s_lshr_b32 s30, s2, 1")
        e("s_and_b32 s30, s30, 2")
        e("s_and_b32 s31, s2, 1")
        e("s_add_u32 s30, s30, s31")
        e("s_and_b32 s31, s2, 2")
        e("s_lshl_b32 s31, s31, 1")
        e("s_lshr_b32 s32, s2, 3")
        e(f"s_and_b32 s{S_ROW0}, s32, 3")
        e(f"s_add_u32 s{S_ROW0}, s{S_ROW0}, s31")
        e(f"s_lshl_b32 s{S_ROW0}, s{S_ROW0}, 8")
        e(f"s_lshr_b32 s{S_COL0}, s32, 2")
        e(f"s_lshl_b32 s{S_COL0}, s{S_COL0}, 7")
        e(f"s_mov_b32 s{S_KC}, 0")
        e("s_waitcnt lgkmcnt(0)")

    Gs = {}
    for pre, regs, rstride, ns in (('g2y', [Region('T', 0, 8, 0, ATS)], 4096, 32), ('g2o', [Region('Nxor', 0, 8, 0, 2048)], 0, 28)):
        G = Gemm(e, pre, 'B', 3, 8, 4, 2, 2, regs, rstride, 'R', ['CA'] * 4, nsteps=ns)
        G.accv = ACC
        if pre == 'g2y':
            G.sc1C = True
            G.cblk = AG
        else:
            G.sc1R = True
            G.rblk = HG
        if OPT.get('rot2') and (pre == 'g2y' or OPT.get('rot2o')):
            G.rot = (OPT['rot2'], OPT.get('rotmul2', 1))
        Gs[pre] = G
    e.lab("g2_loader")
    g2_common()
    e("s_cmp_ge_u32 s30, 2")
    e("s_cbranch_scc1 g2o_lstart")
    for pre, G in Gs.items():
        e.lab(f"{pre}_lstart")
        if pre == 'g2y':
            e(f"s_mov_b32 s{S_NS}, 32")
            e(f"s_mov_b32 s{S_KR}, 0")
            e("s_cmp_eq_u32 s30, 0")
            e(f"s_cselect_b32 s{S_SRD_R}, s20, s22")
            e(f"s_cselect_b32 s{S_SRD_R+1}, s21, s23")
            e(f"s_mov_b32 s{S_SRD_R+2}, {8*MB}")
            e(f"s_mov_b32 s{S_SRD_R+3}, 0x20000")
        else:
            e("s_and_b32 s33, s30, 1")
            e(f"s_sub_u32 s{S_NS}, 31, s33")
            e(f"s_mul_i32 s{S_KR}, s33, {31*2048}")
            e(f"s_mul_i32 s{S_KN}, s33, {1824*2048}")
            e("s_mov_b32 s68, 0")
            e("s_mov_b32 s69, 0")
            e("s_mul_i32 s70, s33, 98")
            e("s_add_u32 s70, s70, 1")
            e("s_sub_u32 s71, 11, s33")
            e("s_add_u32 s72, s71, 10")
            e(f"s_mul_i32 s73, s33, {30*2048}")
            e("s_add_u32 s73, s73, 2048")
            e(f"s_mul_i32 s74, s33, {1760*2048}")
            e(f"s_add_u32 s74, s74, {64*2048}")

            def stepper(cnt, reg, base, inc, qinc):
                return [f"s_add_u32 s{cnt}, s{cnt}, 1",
                        f"s_add_u32 s{reg}, s{reg}, {inc}",
                        f"s_cmp_eq_u32 s{cnt}, s70",
                        f"s_cselect_b32 s{reg}, s{base}, s{reg}",
                        f"s_add_u32 s{S_T0}, s{base}, {qinc}",
                        f"s_cmp_eq_u32 s{cnt}, s71",
                        f"s_cselect_b32 s{reg}, s{S_T0}, s{reg}",
                        f"s_add_u32 s{S_T0}, s{base}, {2*qinc}",
                        f"s_cmp_eq_u32 s{cnt}, s72",
                        f"s_cselect_b32 s{reg}, s{S_T0}, s{reg}"]
            G.kn_step = stepper(68, S_KN, 74, 176 * 2048, 64 * 2048)
            G.kr_step = stepper(69, S_KR, 73, 6144, 2048)
            G.late = True
            srd(e, S_SRD_R, 28, 29, 128 * HG, WS_H)

        def cset(ri, j, so, G=G):
            r = G.regions[ri]
            if r.typ == 'T':
                srd(e, so, 28, 29, 128 * AG, WS_AT)
                e(f"s_lshl_b32 s{S_T0}, s30, 10")
                e(f"s_add_u32 s{S_T0}, s{S_T0}, s{S_COL0}")
                e(f"s_lshl_b32 s{S_T1}, s{S_WAVE}, 5")
                e(f"s_add_u32 s{S_T0}, s{S_T0}, s{S_T1}")
                e(f"s_add_u32 s{S_T0}, s{S_T0}, {16*(j>>1)}")
                e(f"s_mul_i32 s{S_T0}, s{S_T0}, {AG//16}")
                e(f"s_add_u32 s{S_T0}, s{S_T0}, {1024*(j&1)}")
            else:
                srd(e, so, 24, 25, 3584 * 2048)
                e(f"s_lshl_b32 s{S_T0}, s{S_COL0}, 1")
        G.loader_setup(1, 2, cset)

        def mid(nind, pre=pre):
            if pre == 'g2y':
                e(f"s_lshl_b32 s{S_T0}, s30, 10")
                e(f"s_add_u32 s{S_T0}, s{S_T0}, s{S_COL0}")
                e("v_and_b32 v2, 8, v1")
                e("v_lshlrev_b32 v2, 4, v2")
                e("v_min_u32 v2, 127, v2")
                e(f"v_add_u32 v2, s{S_T0}, v2")
                m1, sh1 = magic(176, 2048)
                e(f"v_mul_u32_u24 v2, {m1}, v2")
                e(f"v_lshrrev_b32 v2, {sh1}, v2")
                e("v_and_b32 v3, 7, v1")
                e("v_lshlrev_b32 v4, 7, v2")
                e("v_lshl_add_u32 v4, v3, 2, v4")
                e(f"v_add_u32 v4, {FLY}, v4")
            else:
                e("v_and_b32 v2, 15, v1")
                e("s_sub_u32 s34, 10, s33")
                e("v_min_u32 v2, s34, v2")
                e("s_mul_i32 s34, s33, 11")
                e("s_add_u32 s34, s34, 11")
                e("v_add_u32 v2, s34, v2")
                e(f"s_lshr_b32 s34, s{S_ROW0}, 1")
                e(f"s_add_u32 s34, s34, {FLO}")
                e("v_lshl_add_u32 v4, v2, 2, s34")
                e("v_and_b32 v2, 15, v1")
                e("v_min_u32 v2, 9, v2")
                e("s_mul_i32 s35, s33, 40")
                e("s_add_u32 s35, s35, s34")
                e(f"s_add_u32 s35, s35, {48 + 1024}")
                e("v_lshl_add_u32 v22, v2, 2, s35")
                e("v_and_b32 v2, 16, v1")
                e("v_lshl_add_u32 v22, v2, 6, v22")
            lpoll(e, 4, 5, 2, pre, 4)
        loader_phase(e, G, 'R' if pre == 'g2y' else 'C', mid, True)
        e("s_endpgm")
    e.lab("g2_comp")
    g2_common()
    e("s_cmp_ge_u32 s30, 2")
    e("s_cbranch_scc1 g2o_cstart")
    for pre, G in Gs.items():
        e.lab(f"{pre}_cstart")
        if pre == 'g2y':
            e(f"s_mov_b32 s{S_NS}, 32")
        else:
            e("s_and_b32 s33, s30, 1")
            e(f"s_sub_u32 s{S_NS}, 31, s33")
        e(f"v_mov_b32 v{G.vfrag0+16}, v1")
        G.compute_setup(G.vfrag0 + 16, G.vfrag0)
        OPT['sbase'] = 4
        G.compute_loop(X)
        OPT['sbase'] = 0
        e("s_and_b32 s33, s30, 1")
        e("s_cmp_eq_u32 s33, 1")
        e(f"s_cbranch_scc1 {pre}_e1")
        q0 = 0 if pre == 'g2y' else 2
        combine(e, G, pre[-1], q0)
        stamp3_out(e)
        e("s_endpgm")
        e.lab(f"{pre}_e1")
        combine(e, G, pre[-1], q0 + 1)
        stamp3_out(e)
        e("s_endpgm")
    e.lab("k_done")
    e("s_endpgm")
    kdesc(e, KNAME, 256, 256)


def main():
    out = sys.argv[1]
    for a in sys.argv[2:]:
        k, v = a.split("=")
        OPT[k] = int(v) if v.lstrip('-').isdigit() else v
    e = E()
    gen_fused(e)
    hdr = open("cdna_kernels/%s.s.ref" % KN).read().split("; Override launch")[0]
    hdr += f"; @launch grid=(256,1,1) block=(512,1,1) lds={LDS_TOTAL}\n"
    hdr += '.amdgcn_target "amdgcn-amd-amdhsa--gfx950"\n.text\n'
    open(out, "w").write(hdr + "\n".join(e.L) + "\n")


if __name__ == "__main__":
    main()
```

```python
import sys, math

KN = "recurrent_scan__spectral_fnet__dense_activation_gelu__prompt"

MB = 1 << 20
WS_XN = 0
WS_AT = 5 * MB
WS_H = 14 * MB
XS, ATS, HS = 2176, 4224, 7296
WS_P0 = 32 * MB
WS_P1 = 36 * MB
WS_P2 = 40 * MB
WS_P3 = 48 * MB

OPT = dict(design1='B', design2='B', S1=2, S2=3, X=8)


class E:
    def __init__(s):
        s.L = []

    def __call__(s, x):
        s.L.append("    " + x)

    def lab(s, x):
        s.L.append(x + ":")

    def c(s, x):
        s.L.append("    ; " + x)

    def ext(s, lst):
        for x in lst:
            s(x)


def srd(e, d, lo, hi, nbytes, add=0):
    if add:
        e(f"s_add_u32 s{d}, s{lo}, {add}")
        e(f"s_addc_u32 s{d+1}, s{hi}, 0")
    else:
        e(f"s_mov_b32 s{d}, s{lo}")
        e(f"s_mov_b32 s{d+1}, s{hi}")
    e(f"s_mov_b32 s{d+2}, {nbytes}")
    e(f"s_mov_b32 s{d+3}, 0x20000")


def kdesc(e, name, vgpr, accoff, sgpr=102):
    e.L.append('.section .rodata,"a"')
    e.L.append(".p2align 6")
    e.L.append(f".amdhsa_kernel {name}")
    e.L.append(f"  .amdhsa_next_free_vgpr {vgpr}")
    e.L.append(f"  .amdhsa_next_free_sgpr {sgpr}")
    e.L.append(f"  .amdhsa_accum_offset {accoff}")
    e.L.append("  .amdhsa_group_segment_fixed_size 0")
    e.L.append("  .amdhsa_kernarg_size 104")
    e.L.append("  .amdhsa_user_sgpr_count 2")
    e.L.append("  .amdhsa_user_sgpr_kernarg_segment_ptr 1")
    e.L.append("  .amdhsa_system_sgpr_workgroup_id_x 1")
    e.L.append(".end_amdhsa_kernel")
    e.L.append(".text")


def khead(e, name):
    e.L.append(f".globl {name}")
    e.L.append(".p2align 8")
    e.L.append(f".type {name},@function")
    e.lab(name)


def gen_ln(e):
    name = "ln_kernel"
    khead(e, name)
    e("s_cmp_ge_u32 s2, 512")
    e("s_cbranch_scc1 ln_done")
    tl(e, 0, 0)
    e("s_load_dwordx2 s[4:5], s[0:1], 0")
    e("s_load_dwordx2 s[6:7], s[0:1], 96")
    e("v_lshrrev_b32 v1, 6, v0")
    e("v_and_b32 v2, 63, v0")
    e("s_lshl_b32 s3, s2, 2")
    e("v_add_u32 v1, s3, v1")
    e(f"s_mov_b32 s16, {XS}")
    e("v_mul_lo_u32 v50, v1, s16")
    e("v_lshl_add_u32 v50, v2, 4, v50")
    e("v_lshlrev_b32 v1, 11, v1")
    e("v_lshl_add_u32 v1, v2, 4, v1")
    e("s_waitcnt lgkmcnt(0)")
    srd(e, 8, 4, 5, 4 * MB)
    srd(e, 12, 6, 7, 2048 * XS, WS_XN)
    e("buffer_load_dwordx4 v[4:7], v1, s[8:11], 0 offen")
    e("buffer_load_dwordx4 v[8:11], v1, s[8:11], 0 offen offset:1024")
    npf = 0
    if OPT.get('pfln'):
        e("s_load_dwordx8 s[36:43], s[0:1], 8")
        e("s_load_dwordx2 s[44:45], s[0:1], 48")
        e("s_load_dwordx2 s[46:47], s[0:1], 64")
        e("v_lshrrev_b32 v70, 6, v0")
        e("v_add_u32 v70, s3, v70")
        e("v_lshlrev_b32 v71, 7, v2")
        e("s_waitcnt lgkmcnt(0)")
        items = [(40, 2 * MB), (42, 2 * MB), (44, 1024 * 7168)]
        if OPT['pfln'] >= 2:
            items += [(36, 8 * MB), (38, 8 * MB), (46, 3584 * 2048)]
        for k, (lo, nb) in enumerate(items):
            per = nb // 128 // 2048
            srd(e, 48, lo, lo + 1, nb)
            e(f"v_mul_u32_u24 v72, {per*128}, v70")
            e("v_add_u32 v72, v72, v71")
            e(f"v_cmp_gt_u32 vcc, {per}, v2")
            e("v_mov_b32 v73, 0x7ff00000")
            e("s_nop 0")
            e("v_cndmask_b32 v72, v73, v72, vcc")
            e(f"buffer_load_dword v{74+k}, v72, s[48:51], 0 offen")
            npf += 1
    if OPT.get('pfcode'):
        e("s_getpc_b64 s[52:53]")
        e.lab("ln_pc")
        e("s_lshr_b32 s54, s2, 3")
        e("s_lshl_b32 s54, s54, 8")
        e("v_add_u32 v72, s54, v0")
        e("v_lshlrev_b32 v72, 7, v72")
        e("v_min_u32 v72, text_end-ln_pc-4, v72")
        e("v_and_b32 v72, 0xfffffffc, v72")
        e("global_load_dword v69, v72, s[52:53]")
        npf += 1
    e(f"s_waitcnt vmcnt({npf})")
    for i in range(8):
        e(f"v_lshlrev_b32 v{16+2*i}, 16, v{4+i}")
        e(f"v_and_b32 v{17+2*i}, 0xffff0000, v{4+i}")

    def tree(dst, src):
        for i in range(8):
            e(f"v_add_f32 v{40+i}, v{src+2*i}, v{src+2*i+1}")
        for i in range(4):
            e(f"v_add_f32 v{40+i}, v{40+i}, v{44+i}")
        e("v_add_f32 v40, v40, v42")
        e("v_add_f32 v41, v41, v43")
        e(f"v_add_f32 v{dst}, v40, v41")

    def wred(v, sdst):
        for sh in (1, 2, 4, 8):
            e("s_nop 1")
            e(f"v_add_f32_dpp v{v}, v{v}, v{v} row_ror:{sh} row_mask:0xf bank_mask:0xf")
        e("s_nop 1")
        e(f"v_readlane_b32 s20, v{v}, 0")
        e(f"v_readlane_b32 s21, v{v}, 16")
        e(f"v_readlane_b32 s22, v{v}, 32")
        e(f"v_readlane_b32 s23, v{v}, 48")
        e("s_nop 1")
        e(f"v_mov_b32 v{v}, s20")
        e(f"v_add_f32 v{v}, s21, v{v}")
        e(f"v_mov_b32 v48, s22")
        e(f"v_add_f32 v48, s23, v48")
        e(f"v_add_f32 v{v}, v{v}, v48")

    tree(3, 16)
    wred(3, 24)
    e("v_mul_f32 v3, 0x3a800000, v3")
    for i in range(16):
        e(f"v_sub_f32 v{52+i}, v{16+i}, v3")
    for i in range(16):
        e(f"v_mul_f32 v{52+i}, v{52+i}, v{52+i}")
    tree(12, 52)
    wred(12, 25)
    e("v_mul_f32 v12, 0x3a800000, v12")
    e("v_cvt_pk_bf16_f32 v13, v3, v12")
    e("v_lshlrev_b32 v3, 16, v13")
    e("v_and_b32 v12, 0xffff0000, v13")
    e("v_add_f32 v12, 0x3727c5ac, v12")
    e("v_cvt_pk_bf16_f32 v13, v12, v12")
    e("v_lshlrev_b32 v12, 16, v13")
    e("v_sqrt_f32 v12, v12")
    e("s_nop 0")
    e("v_cvt_pk_bf16_f32 v13, v12, v12")
    e("v_lshlrev_b32 v12, 16, v13")
    e("v_rcp_f32 v14, v12")
    for i in range(8):
        e(f"v_sub_f32 v{16+2*i}, v{16+2*i}, v3")
        e(f"v_sub_f32 v{17+2*i}, v{17+2*i}, v3")
        e(f"v_cvt_pk_bf16_f32 v{4+i}, v{16+2*i}, v{17+2*i}")
        e(f"v_lshlrev_b32 v{16+2*i}, 16, v{4+i}")
        e(f"v_and_b32 v{17+2*i}, 0xffff0000, v{4+i}")
    for i in range(16):
        e(f"v_mul_f32 v{52+i}, v{16+i}, v14")
        e(f"v_fma_f32 v{16+i}, -v{52+i}, v12, v{16+i}")
        e(f"v_fma_f32 v{52+i}, v{16+i}, v14, v{52+i}")
    for i in range(8):
        e(f"v_cvt_pk_bf16_f32 v{4+i}, v{52+2*i}, v{53+2*i}")
    e("buffer_store_dwordx4 v[4:7], v50, s[12:15], 0 offen")
    e("buffer_store_dwordx4 v[8:11], v50, s[12:15], 0 offen offset:1024")
    tl(e, 0, 1)
    e.lab("ln_done")
    e("s_endpgm")
    kdesc(e, name, 80, 80, 102)


def gen_fin(e):
    name = "fin_kernel"
    khead(e, name)
    e("s_cmp_ge_u32 s2, 1024")
    e("s_cbranch_scc1 fin_done")
    tl(e, 3, 0, 50)
    e("s_load_dwordx2 s[4:5], s[0:1], 0")
    e("s_load_dwordx4 s[24:27], s[0:1], 72")
    e("s_load_dwordx2 s[6:7], s[0:1], 96")
    e("s_lshl_b32 s3, s2, 8")
    e("v_add_u32 v1, s3, v0")
    e("v_lshlrev_b32 v2, 4, v1")
    e("v_lshlrev_b32 v3, 5, v1")
    e("v_and_b32 v4, 0x7ff, v2")
    e("s_mov_b32 s28, 0xbfb8aa3b")
    e("s_waitcnt lgkmcnt(0)")
    srd(e, 8, 4, 5, 4 * MB)
    srd(e, 12, 6, 7, 8 * MB, WS_P0)
    srd(e, 16, 6, 7, 16 * MB, WS_P2)
    srd(e, 20, 24, 25, 2048)
    srd(e, 32, 26, 27, 4 * MB)
    e(f"s_mov_b32 s29, {4*MB}")
    e(f"s_mov_b32 s30, {8*MB}")
    e("buffer_load_dwordx4 v[8:11], v2, s[12:15], 0 offen")
    e("buffer_load_dwordx4 v[12:15], v2, s[12:15], s29 offen")
    e("buffer_load_dwordx4 v[16:19], v3, s[16:19], 0 offen")
    e("buffer_load_dwordx4 v[20:23], v3, s[16:19], 0 offen offset:16")
    e("buffer_load_dwordx4 v[24:27], v3, s[16:19], s30 offen")
    e("buffer_load_dwordx4 v[28:31], v3, s[16:19], s30 offen offset:16")
    e("buffer_load_dwordx4 v[32:35], v4, s[20:23], 0 offen")
    e("buffer_load_dwordx4 v[36:39], v2, s[8:11], 0 offen")
    e("s_waitcnt vmcnt(6)")
    for i in range(4):
        e(f"v_lshlrev_b32 v{40+2*i}, 16, v{8+i}")
        e(f"v_and_b32 v{41+2*i}, 0xffff0000, v{8+i}")
        e(f"v_lshlrev_b32 v{48+2*i}, 16, v{12+i}")
        e(f"v_and_b32 v{49+2*i}, 0xffff0000, v{12+i}")
    for i in range(8):
        e(f"v_add_f32 v{40+i}, v{40+i}, v{48+i}")
    for i in range(4):
        e(f"v_cvt_pk_bf16_f32 v{8+i}, v{40+2*i}, v{41+2*i}")
        e(f"v_lshlrev_b32 v{40+2*i}, 16, v{8+i}")
        e(f"v_and_b32 v{41+2*i}, 0xffff0000, v{8+i}")
    e("s_waitcnt vmcnt(1)")
    for i in range(8):
        e(f"v_add_f32 v{16+i}, v{16+i}, v{24+i}")
    for i in range(4):
        e(f"v_cvt_pk_bf16_f32 v{8+i}, v{16+2*i}, v{17+2*i}")
        e(f"v_lshlrev_b32 v{16+2*i}, 16, v{8+i}")
        e(f"v_and_b32 v{17+2*i}, 0xffff0000, v{8+i}")
        e(f"v_lshlrev_b32 v{24+2*i}, 16, v{32+i}")
        e(f"v_and_b32 v{25+2*i}, 0xffff0000, v{32+i}")
    for i in range(8):
        e(f"v_add_f32 v{16+i}, v{16+i}, v{24+i}")
    for i in range(4):
        e(f"v_cvt_pk_bf16_f32 v{8+i}, v{16+2*i}, v{17+2*i}")
        e(f"v_lshlrev_b32 v{16+2*i}, 16, v{8+i}")
        e(f"v_and_b32 v{17+2*i}, 0xffff0000, v{8+i}")
    for i in range(8):
        e(f"v_mul_f32 v{24+i}, s28, v{16+i}")
    for i in range(8):
        e(f"v_exp_f32 v{24+i}, v{24+i}")
    for i in range(8):
        e(f"v_add_f32 v{24+i}, 1.0, v{24+i}")
    for i in range(8):
        e(f"v_rcp_f32 v{24+i}, v{24+i}")
    for i in range(8):
        e(f"v_mul_f32 v{16+i}, v{16+i}, v{24+i}")
    for i in range(4):
        e(f"v_cvt_pk_bf16_f32 v{8+i}, v{16+2*i}, v{17+2*i}")
        e(f"v_lshlrev_b32 v{16+2*i}, 16, v{8+i}")
        e(f"v_and_b32 v{17+2*i}, 0xffff0000, v{8+i}")
    for i in range(8):
        e(f"v_mul_f32 v{16+i}, v{16+i}, v{40+i}")
    e("s_waitcnt vmcnt(0)")
    for i in range(4):
        e(f"v_cvt_pk_bf16_f32 v{8+i}, v{16+2*i}, v{17+2*i}")
        e(f"v_lshlrev_b32 v{16+2*i}, 16, v{8+i}")
        e(f"v_and_b32 v{17+2*i}, 0xffff0000, v{8+i}")
        e(f"v_lshlrev_b32 v{24+2*i}, 16, v{36+i}")
        e(f"v_and_b32 v{25+2*i}, 0xffff0000, v{36+i}")
    for i in range(8):
        e(f"v_add_f32 v{16+i}, v{16+i}, v{24+i}")
    for i in range(4):
        e(f"v_cvt_pk_bf16_f32 v{8+i}, v{16+2*i}, v{17+2*i}")
    e("buffer_store_dwordx4 v[8:11], v2, s[32:35], 0 offen")
    tl(e, 3, 1, 50)
    e.lab("fin_done")
    e("s_endpgm")
    kdesc(e, name, 56, 56, 102)


S_WAVE = 3
S_ROW0 = 40
S_COL0 = 41
S_KR = 42
S_KC = 43
S_KN = 44
S_CNT = 45
S_WR = 46
S_RD = 47
S_DL = 48
S_T0 = 49
S_T1 = 50
S_T2 = 51
S_M0 = 52
S_NS = 60
S_LEFT = 61
S_KI = 62
S_SRD_R = 8
S_SRD_O = 12
S_SRD_B = 16
S_SRD_C = 64
S_NREC = 88
RT = 32768


class Region:
    def __init__(s, typ, g0, ng, lds_off, gstride):
        s.typ, s.g0, s.ng, s.lds_off, s.gstride = typ, g0, ng, lds_off, gstride
        if typ == 'T':
            s.ninstr = ng * 2
        elif typ == 'Nadd':
            W = ng * 32
            s.RS = W if ng % 2 else W + 32
            s.BL = 8 * s.RS // 16 + 8
            s.ninstr = -(-8 * s.BL // 64)
        elif typ == 'Nxor':
            assert ng in (4, 8)
            s.RS = ng * 32
            s.ninstr = ng * 2
        s.DW = -(-s.ninstr // 4)
        s.bytes = s.DW * 4 * 1024


def magic(d, n):
    for sh in range(8, 24):
        m = -(-(1 << sh) // d)
        if m < (1 << 24) and all((x * m) >> sh == x // d for x in range(n)):
            return m, sh
    raise Exception


class Gemm:
    def __init__(s, e, pre, design, S, MT, NT, WM, WN, regions, rstride, outer, orient, nsteps_sgpr=False, nsteps=None):
        s.e, s.pre, s.design, s.S = e, pre, design, S
        s.MT, s.NT, s.WM, s.WN = MT, NT, WM, WN
        s.regions, s.rstride, s.outer, s.orient = regions, rstride, outer, orient
        s.CS = sum(r.bytes for r in regions)
        s.SS = RT + s.CS
        s.nsteps = nsteps
        s.rot = None
        s.pfstub = None
        s.st_off = 0
        s.sc1R = False
        s.sc1C = False
        s.pre_R = None
        s.kn_step = None
        s.kr_step = None
        s.rblk = None
        s.cblk = None
        s.CB = RT
        s.splitring = False
        s.SR, s.SC = 2, 3
        s.wc = None
        s.accv = 0
        s.D = 8 + sum(r.DW for r in regions)
        nacc = MT * NT * 4
        s.nacc = nacc
        v = 0
        s.vR = [0]
        v = 1
        s.vC = {}
        for ri, r in enumerate(regions):
            if r.typ == 'T':
                s.vC[ri] = [v]; v += 1
            elif r.typ == 'Nadd':
                s.vC[ri] = [v]; v += 1
            else:
                n = min(NT, r.ng)
                s.vC[ri] = list(range(v, v + n)); v += n
        s.naddr = v
        v = (v + 3) // 4 * 4
        if outer == 'C':
            s.fR = [[v + (st * MT + m) * 4 for m in range(MT)] for st in range(2)]
            v += 2 * MT * 4
            s.fC = [[v + n * 4 for n in range(NT)]] * 2
            v += NT * 4
        else:
            s.fR = [[v + m * 4 for m in range(MT)]] * 2
            v += MT * 4
            s.fC = [[v + (st * NT + n) * 4 for n in range(NT)] for st in range(2)]
            v += 2 * NT * 4
        s.vfrag0 = (s.naddr + 3) // 4 * 4
        s.vend = v
        if design == 'A':
            s.vL = v
            v += s.D
        else:
            s.vL = 8
        s.vtop = v

    def region_of(s, n):
        if s.WN > 1:
            return 0, n
        for ri, r in enumerate(s.regions):
            if r.g0 <= n < r.g0 + r.ng:
                return ri, n - r.g0
        raise Exception

    def rd_R(s, kk, m):
        d = s.fR[kk][m]
        return [(f"ds_read_b128 v[{d}:{d+3}], v{s.vR[0]} offset:{m*2048+kk*(1024 if s.rblk else 512)}", d)]

    def rd_C(s, kk, n):
        d = s.fC[kk][n]
        ri, j = s.region_of(n)
        r = s.regions[ri]
        if r.typ == 'T':
            return [(f"ds_read_b128 v[{d}:{d+3}], v{s.vC[ri][0]} offset:{j*2048+kk*(1024 if s.cblk else 512)}", d)]
        if r.typ == 'Nadd':
            o = kk * (32 * r.RS + 512) + j * 32
            return [(f"ds_read_b64_tr_b16 v[{d}:{d+1}], v{s.vC[ri][0]} offset:{o}", d),
                    (f"ds_read_b64_tr_b16 v[{d+2}:{d+3}], v{s.vC[ri][0]} offset:{o+4*r.RS}", d + 2)]
        o = kk * 32 * r.RS
        return [(f"ds_read_b64_tr_b16 v[{d}:{d+1}], v{s.vC[ri][j]} offset:{o}", d),
                (f"ds_read_b64_tr_b16 v[{d+2}:{d+3}], v{s.vC[ri][j]} offset:{o+4*r.RS}", d + 2)]

    def acc(s, m, n):
        return (m * s.NT + n) * 4 + s.accv

    def mfma(s, kk, m, n):
        a = s.acc(m, n)
        r, c = s.fR[kk][m], s.fC[kk][n]
        if s.orient[n] == 'RA':
            x, y = r, c
        else:
            x, y = c, r
        t = 'v' if s.accv else 'a'
        return (f"v_mfma_f32_16x16x32_bf16 {t}[{a}:{a+3}], v[{x}:{x+3}], v[{y}:{y+3}], {t}[{a}:{a+3}]", [r, c, c + 2])

    def loader_setup(s, vlane, vt, cset, part='both', mult=1, sw=S_WAVE, quads=None):
        e = s.e
        L = s.vL
        s.lw, s.mult = sw, mult
        quads = list(quads) if quads else list(range(S_SRD_C, S_NREC, 4))
        def tparts(stride):
            e(f"v_lshrrev_b32 v{vt}, 2, v{vlane}")
            e(f"v_and_b32 v{vt}, 7, v{vt}")
            e(f"s_mov_b32 s{S_T1}, {stride}")
            e(f"v_mul_lo_u32 v{vt}, v{vt}, s{S_T1}")
            e(f"v_lshrrev_b32 v{vt+1}, 5, v{vlane}")
            e(f"v_lshl_add_u32 v{vt}, v{vt+1}, 6, v{vt}")
            e(f"v_lshrrev_b32 v{vt+1}, 3, v{vlane}")
            e(f"v_and_b32 v{vt+1}, 2, v{vt+1}")
            e(f"v_and_b32 v{vt+2}, 3, v{vlane}")
            e(f"v_xor_b32 v{vt+1}, v{vt+1}, v{vt+2}")
            e(f"v_lshlrev_b32 v{vt+1}, 4, v{vt+1}")
            e(f"v_xor_b32 v{vt+2}, 48, v{vt+1}")
            e(f"v_add_u32 v{vt+1}, v{vt+1}, v{vt}")
            e(f"v_add_u32 v{vt+2}, v{vt+2}, v{vt}")
        def bparts():
            e(f"v_lshrrev_b32 v{vt}, 5, v{vlane}")
            e(f"v_lshrrev_b32 v{vt+1}, 4, v{vlane}")
            e(f"v_and_b32 v{vt+1}, 1, v{vt+1}")
            e(f"v_xor_b32 v{vt+1}, v{vt+1}, v{vt}")
            e(f"v_lshl_add_u32 v{vt+1}, v{vt+1}, 1, v{vt}")
            e(f"v_xor_b32 v{vt+1}, v{vt+1}, v{vlane}")
            e(f"v_lshlrev_b32 v{vt+1}, 4, v{vt+1}")
            e(f"v_mov_b32 v{vt+2}, v{vt+1}")
        s.dma = []
        s.srds = []
        s.nR = 0
        NR = 8 * mult
        vo = L
        mo = S_M0
        if part != 'C':
            e(f"s_lshl_b32 s{S_T0}, s{sw}, {5 + mult}")
            e(f"s_add_u32 s{S_T0}, s{S_T0}, s{S_ROW0}")
            if s.rblk:
                bparts()
                e(f"s_lshr_b32 s{S_T0}, s{S_T0}, 4")
                e(f"s_mul_i32 s{S_T0}, s{S_T0}, {s.rblk}")
            else:
                tparts(s.rstride)
                e(f"s_mul_i32 s{S_T0}, s{S_T0}, {s.rstride}")
            for j in range(NR):
                off = (j >> 1) * s.rblk + (j & 1) * 1024 if s.rblk else j * 8 * s.rstride
                e(f"s_add_u32 s{S_T1}, s{S_T0}, {off - (j&3)*1024}")
                e(f"v_add_u32 v{L+j}, s{S_T1}, v{vt+1+(j&1)}")
            e(f"s_lshl_b32 s{S_M0}, s{sw}, {12 + mult}")
            for g in range(1, NR // 4):
                e(f"s_add_u32 s{S_M0+g}, s{S_M0}, {4096*g}")
            for j in range(NR):
                s.dma.append((L + j, S_SRD_R, S_KR, S_M0 + (j >> 2) if (j & 3) == 0 else None, (j & 3) * 1024))
            vo = L + NR
            mo = S_M0 + NR // 4
            s.srds = [S_SRD_R]
            s.nR = NR
        so = quads.pop(0)
        for ri, r in enumerate(s.regions if part != 'R' else []):
            DW = r.DW * mult
            ng4 = -(-DW // 4)
            e(f"s_mul_i32 s{mo}, s{sw}, {DW*1024}")
            e(f"s_add_u32 s{mo}, s{mo}, {s.CB + r.lds_off}")
            for g in range(1, ng4):
                e(f"s_add_u32 s{mo+g}, s{mo}, {4096*g}")
            if r.typ == 'T':
                assert r.DW % 2 == 0
                bparts() if s.cblk else tparts(r.gstride)
                for j in range(DW):
                    cset(ri, j, so)
                    if (j & 3):
                        e(f"s_sub_u32 s{S_T0}, s{S_T0}, {(j&3)*1024}")
                    e(f"v_add_u32 v{vo+j}, s{S_T0}, v{vt+1+(j&1)}")
                    s.dma.append((vo + j, so, S_KC, mo + (j >> 2) if (j & 3) == 0 else None, (j & 3) * 1024))
                    s.srds.append(so)
                    so = quads.pop(0) if quads else None
            elif r.typ == 'Nadd':
                cset(ri, None, so)
                s.srds.append(so)
                m1, sh1 = magic(r.BL, 4 * r.DW * 64)
                rc = r.RS // 16
                m2, sh2 = magic(rc, r.BL)
                e(f"s_mul_i32 s{S_T1}, s{sw}, {DW*64}")
                for j in range(DW):
                    e(f"v_add_u32 v{vt}, s{S_T1}, v{vlane}")
                    if j:
                        e(f"v_add_u32 v{vt}, {64*j}, v{vt}")
                    e(f"v_mul_u32_u24 v{vt+1}, {m1}, v{vt}")
                    e(f"v_lshrrev_b32 v{vt+1}, {sh1}, v{vt+1}")
                    e(f"v_mul_u32_u24 v{vt+2}, {r.BL}, v{vt+1}")
                    e(f"v_sub_u32 v{vt}, v{vt}, v{vt+2}")
                    e(f"v_mul_u32_u24 v{vt+2}, {m2}, v{vt}")
                    e(f"v_lshrrev_b32 v{vt+2}, {sh2}, v{vt+2}")
                    e(f"v_mul_u32_u24 v{vt+3}, {rc}, v{vt+2}")
                    e(f"v_sub_u32 v{vt+3}, v{vt}, v{vt+3}")
                    e(f"v_lshl_add_u32 v{vt+1}, v{vt+1}, 3, v{vt+2}")
                    e(f"v_mul_u32_u24 v{vt+4}, {r.gstride}, v{vt+1}")
                    e(f"v_lshl_add_u32 v{vt+4}, v{vt+3}, 4, v{vt+4}")
                    e(f"v_add_u32 v{vt+4}, s{S_T0}, v{vt+4}")
                    if j & 3:
                        e(f"v_subrev_u32 v{vt+4}, {(j&3)*1024}, v{vt+4}")
                    e(f"v_cmp_gt_u32 vcc, 8, v{vt+2}")
                    e(f"v_mov_b32 v{vt+5}, 0x7ff00000")
                    e("s_nop 0")
                    e(f"v_cndmask_b32 v{vt+4}, v{vt+5}, v{vt+4}, vcc")
                    e(f"v_cmp_gt_u32 vcc, {r.ng*2}, v{vt+3}")
                    e("s_nop 1")
                    e(f"v_cndmask_b32 v{vt+4}, v{vt+5}, v{vt+4}, vcc")
                    e(f"v_cmp_gt_u32 vcc, 64, v{vt+1}")
                    e("s_nop 1")
                    e(f"v_cndmask_b32 v{vo+j}, v{vt+5}, v{vt+4}, vcc")
                    s.dma.append((vo + j, so, S_KN, mo + (j >> 2) if (j & 3) == 0 else None, (j & 3) * 1024))
                so = quads.pop(0) if quads else None
            else:
                cset(ri, None, so)
                s.srds.append(so)
                if r.ng == 8:
                    assert r.DW == 4
                    e(f"v_lshrrev_b32 v{vt}, 4, v{vlane}")
                    e(f"v_mul_u32_u24 v{vt+1}, {r.gstride}, v{vt}")
                    e(f"v_lshlrev_b32 v{vt}, 5, v{vt}")
                    e(f"v_and_b32 v{vt+2}, 15, v{vlane}")
                    e(f"v_lshlrev_b32 v{vt+2}, 4, v{vt+2}")
                    e(f"v_xor_b32 v{vt+2}, v{vt+2}, v{vt}")
                    e(f"v_xor_b32 v{vt+3}, 128, v{vt+2}")
                    e(f"v_add_u32 v{vt+2}, v{vt+2}, v{vt+1}")
                    e(f"v_add_u32 v{vt+3}, v{vt+3}, v{vt+1}")
                    e(f"s_mul_i32 s{S_T1}, s{sw}, {16*r.gstride}")
                    e(f"s_add_u32 s{S_T0}, s{S_T0}, s{S_T1}")
                    for j in range(4):
                        e(f"s_add_u32 s{S_T1}, s{S_T0}, {j*4*r.gstride - (j&3)*1024}")
                        e(f"v_add_u32 v{vo+j}, s{S_T1}, v{vt+2+((j>>1)&1)}")
                        s.dma.append((vo + j, so, S_KN, mo if j == 0 else None, j * 1024))
                else:
                    assert r.DW == 2
                    e(f"v_lshrrev_b32 v{vt}, 3, v{vlane}")
                    e(f"v_mul_u32_u24 v{vt+1}, {r.gstride}, v{vt}")
                    e(f"v_lshrrev_b32 v{vt}, 4, v{vlane}")
                    e(f"v_and_b32 v{vt}, 1, v{vt}")
                    e(f"v_lshlrev_b32 v{vt}, 5, v{vt}")
                    e(f"v_and_b32 v{vt+2}, 7, v{vlane}")
                    e(f"v_lshlrev_b32 v{vt+2}, 4, v{vt+2}")
                    e(f"v_xor_b32 v{vt+2}, v{vt+2}, v{vt}")
                    e(f"v_xor_b32 v{vt+3}, 64, v{vt+2}")
                    e(f"v_add_u32 v{vt+2}, v{vt+2}, v{vt+1}")
                    e(f"v_add_u32 v{vt+3}, v{vt+3}, v{vt+1}")
                    e(f"s_mul_i32 s{S_T1}, s{sw}, {16*r.gstride}")
                    e(f"s_add_u32 s{S_T0}, s{S_T0}, s{S_T1}")
                    for j in range(2):
                        e(f"s_add_u32 s{S_T1}, s{S_T0}, {j*8*r.gstride - j*1024}")
                        e(f"v_add_u32 v{vo+j}, s{S_T1}, v{vt+2+j}")
                        s.dma.append((vo + j, so, S_KN, mo if j == 0 else None, j * 1024))
                so = quads.pop(0) if quads else None
            vo += DW
            mo += ng4
        assert mo <= S_NS
        s.D = len(s.dma)

    def dma_groups(s):
        out = []
        for k, (v, sr, so, m0, io) in enumerate(s.dma):
            g = []
            if m0 is not None:
                g.append(f"s_add_u32 m0, s{s.wc if (s.wc and k >= s.nR) else S_WR}, s{m0}")
                g.append("s_nop 0")
            sc = " sc1" if (s.sc1R if k < s.nR else s.sc1C) else ""
            sof = "0" if (k < s.nR and s.pre_R) else f"s{so}"
            g.append(f"buffer_load_dwordx4 v{v}, s[{sr}:{sr+3}], {sof} offen offset:{io}{sc} lds" if io else
                     f"buffer_load_dwordx4 v{v}, s[{sr}:{sr+3}], {sof} offen{sc} lds")
            out.append(g)
        return out

    def dma_book(s):
        kr = 2048 if s.rblk else 128
        kc = 2048 if s.cblk else 128
        g = list(s.kr_step) if s.kr_step else [f"s_add_u32 s{S_KR}, s{S_KR}, {kr}"]
        if any(r.typ == 'T' for r in s.regions):
            g.append(f"s_add_u32 s{S_KC}, s{S_KC}, {kc}")
        for r in s.regions:
            if r.typ != 'T':
                if s.kn_step:
                    g += s.kn_step
                else:
                    g.append(f"s_add_u32 s{S_KN}, s{S_KN}, {64*r.gstride}")
        if s.rot:
            g.append(f"s_add_u32 s{S_KI}, s{S_KI}, 1")
            g.append(f"s_cmp_ge_u32 s{S_KI}, s{S_NS}")
            g.append(f"s_cselect_b32 s{S_KI}, 0, s{S_KI}")
            g.append(f"s_cselect_b32 s{S_T0}, {kr*s.nsteps}, 0")
            if any(r.typ == 'T' for r in s.regions):
                g.append(f"s_cselect_b32 s{S_T1}, {kc*s.nsteps}, 0")
                g.append(f"s_sub_u32 s{S_KC}, s{S_KC}, s{S_T1}")
            g.append(f"s_sub_u32 s{S_KR}, s{S_KR}, s{S_T0}")
            for r in s.regions:
                if r.typ != 'T':
                    g.append(f"s_mul_i32 s{S_T0}, s{S_KI}, 1")
                    g.append(f"s_cmp_eq_u32 s{S_KI}, 0")
                    g.append(f"s_cselect_b32 s{S_T0}, {64*r.gstride*s.nsteps}, 0")
                    g.append(f"s_sub_u32 s{S_KN}, s{S_KN}, s{S_T0}")
        g.append(f"s_add_u32 s{S_WR}, s{S_WR}, {s.SS}")
        g.append(f"s_cmp_ge_u32 s{S_WR}, {s.SS*s.S}")
        g.append(f"s_cselect_b32 s{S_WR}, 0, s{S_WR}")
        g.append(f"s_sub_u32 s{S_LEFT}, s{S_LEFT}, 1")
        g.append(f"s_cmp_lt_i32 s{S_LEFT}, 1")
        for sr in s.srds:
            g.append(f"s_cselect_b32 s{sr+2}, 0, s{sr+2}")
        return g

    def loader_init(s):
        e = s.e
        e(f"s_mov_b32 s{S_WR}, 0")
        e(f"s_mov_b32 s{S_LEFT}, s{S_NS}")
        if s.rot:
            W, mul = s.rot
            if W == 1:
                e(f"s_and_b32 s{S_KI}, s2, 7")
            elif W == 2:
                e(f"s_lshr_b32 s{S_KI}, s2, 3")
                e(f"s_and_b32 s{S_KI}, s{S_KI}, 3")
                e(f"s_and_b32 s{S_T0}, s2, 1")
                e(f"s_lshl_b32 s{S_T0}, s{S_T0}, 2")
                e(f"s_add_u32 s{S_KI}, s{S_KI}, s{S_T0}")
                e(f"s_and_b32 s{S_T0}, s2, 4")
                e(f"s_lshl_b32 s{S_T0}, s{S_T0}, 1")
                e(f"s_add_u32 s{S_KI}, s{S_KI}, s{S_T0}")
            elif W == 3:
                e(f"s_and_b32 s{S_KI}, s2, 1")
                e(f"s_and_b32 s{S_T0}, s2, 4")
                e(f"s_lshr_b32 s{S_T0}, s{S_T0}, 1")
                e(f"s_add_u32 s{S_KI}, s{S_KI}, s{S_T0}")
            elif W == 4:
                e(f"s_and_b32 s{S_KI}, s2, 7")
                e(f"s_lshl_b32 s{S_KI}, s{S_KI}, 1")
                e(f"s_lshr_b32 s{S_T0}, s2, 3")
                e(f"s_and_b32 s{S_T0}, s{S_T0}, 1")
                e(f"s_add_u32 s{S_KI}, s{S_KI}, s{S_T0}")
            elif W == 5:
                e(f"s_lshr_b32 s{S_KI}, s2, 5")
                e(f"s_and_b32 s{S_T0}, s2, 8")
                e(f"s_add_u32 s{S_KI}, s{S_KI}, s{S_T0}")
            elif W == 6:
                e(f"s_lshr_b32 s{S_KI}, s2, 5")
                e(f"s_and_b32 s{S_T0}, s2, 24")
                e(f"s_add_u32 s{S_KI}, s{S_KI}, s{S_T0}")
            elif W == 7:
                e(f"s_lshr_b32 s{S_KI}, s2, 3")
                e(f"s_and_b32 s{S_KI}, s{S_KI}, 15")
            elif W == 8:
                e(f"s_lshr_b32 s{S_KI}, s2, 5")
            elif W == 9:
                e(f"s_lshr_b32 s{S_KI}, s2, 5")
                e(f"s_and_b32 s{S_KI}, s{S_KI}, 3")
                e(f"s_and_b32 s{S_T0}, s2, 24")
                e(f"s_lshr_b32 s{S_T0}, s{S_T0}, 1")
                e(f"s_add_u32 s{S_KI}, s{S_KI}, s{S_T0}")
            e(f"s_mul_i32 s{S_KI}, s{S_KI}, {mul}")
            e(f"s_cmp_ge_u32 s{S_KI}, s{S_NS}")
            e(f"s_cselect_b32 s{S_T0}, s{S_NS}, 0")
            e(f"s_sub_u32 s{S_KI}, s{S_KI}, s{S_T0}")
            e(f"s_lshl_b32 s{S_T0}, s{S_KI}, {11 if s.rblk else 7}")
            e(f"s_add_u32 s{S_KR}, s{S_KR}, s{S_T0}")
            e(f"s_lshl_b32 s{S_T0}, s{S_KI}, {11 if s.cblk else 7}")
            e(f"s_add_u32 s{S_KC}, s{S_KC}, s{S_T0}")
            for r in s.regions:
                if r.typ != 'T':
                    e(f"s_mul_i32 s{S_T0}, s{S_KI}, {64*r.gstride}")
                    e(f"s_add_u32 s{S_KN}, s{S_KN}, s{S_T0}")

    def stats_step(s):
        e = s.e
        for kk in range(2):
            for m in range(4):
                e(f"ds_read_b128 v[{40+16*kk+4*m}:{43+16*kk+4*m}], v24 offset:{m*2048+kk*512}")
        for kk in range(2):
            for m in range(4):
                e(f"s_waitcnt lgkmcnt({7-4*kk-m})")
                for x in range(4):
                    r = 40 + 16 * kk + 4 * m + x
                    e(f"v_dot2_f32_bf16 v{28+m}, v{r}, v39, v{28+m}")
                    e(f"v_dot2_f32_bf16 v{32+m}, v{r}, v{r}, v{32+m}")
        t = 40
        lst = []
        for ri, r in enumerate(s.regions):
            for j in range(-(-r.ng // 4)):
                for kk in range(2):
                    if r.typ == 'T':
                        e(f"ds_read_b128 v[{t}:{t+3}], v{25+ri} offset:{4*j*2048+kk*512}")
                    else:
                        o = kk * (32 * r.RS + 512) + 4 * j * 32
                        e(f"ds_read_b64_tr_b16 v[{t}:{t+1}], v{25+ri} offset:{o}")
                        e(f"ds_read_b64_tr_b16 v[{t+2}:{t+3}], v{25+ri} offset:{o+4*r.RS}")
                    lst.append((t, len(lst) // 2))
                    t += 4
        e("s_waitcnt lgkmcnt(0)")
        for (t, a) in lst:
            for x in range(4):
                e(f"v_dot2_f32_bf16 v{36+a}, v{t+x}, v39, v{36+a}")
        sg, _ = s.adv_addr()
        e.ext(sg)
        for a in range(1 + len(s.regions)):
            e(f"v_add_u32 v{24+a}, s{S_DL}, v{24+a}")

    def stats_final(s):
        e = s.e
        regs = list(range(28, 39))
        for r in regs:
            e(f"v_mov_b32 v40, v{r}")
            e("s_nop 1")
            e(f"v_permlane32_swap_b32 v{r}, v40")
            e(f"v_add_f32 v{r}, v{r}, v40")
            e(f"v_mov_b32 v40, v{r}")
            e("s_nop 1")
            e(f"v_permlane16_swap_b32 v{r}, v40")
            e(f"v_add_f32 v{r}, v{r}, v40")
        e("v_and_b32 v2, 15, v1")
        e(f"s_lshl_b32 s{S_T0}, s{S_WAVE}, 8")
        e(f"s_add_u32 s{S_T0}, s{S_T0}, {s.st_off}")
        e(f"v_lshl_add_u32 v3, v2, 2, s{S_T0}")
        for m in range(4):
            a, q = 28 + m, 32 + m
            e(f"v_mul_f32 v{a}, 0x3a800000, v{a}")
            e(f"v_mul_f32 v{q}, 0x3a800000, v{q}")
            e(f"v_fma_f32 v{q}, -v{a}, v{a}, v{q}")
            e(f"v_max_f32 v{q}, 0, v{q}")
            e(f"v_cvt_pk_bf16_f32 v40, v{a}, v{q}")
            e(f"v_lshlrev_b32 v{a}, 16, v40")
            e(f"v_and_b32 v{q}, 0xffff0000, v40")
            e(f"v_add_f32 v{q}, 0x3727c5ac, v{q}")
            e(f"v_cvt_pk_bf16_f32 v40, v{q}, v{q}")
            e(f"v_lshlrev_b32 v{q}, 16, v40")
            e(f"v_sqrt_f32 v{q}, v{q}")
            e("s_nop 0")
            e(f"v_cvt_pk_bf16_f32 v40, v{q}, v{q}")
            e(f"v_lshlrev_b32 v{q}, 16, v40")
            e(f"v_rcp_f32 v41, v{q}")
            e("s_nop 0")
            e(f"v_fma_f32 v42, -v{q}, v41, 1.0")
            e(f"v_fma_f32 v41, v42, v41, v41")
            e(f"v_mul_f32 v{a}, v{a}, v41")
            e(f"ds_write_b32 v3, v41 offset:{64*m}")
            e(f"ds_write_b32 v3, v{a} offset:{1024+64*m}")
        k = 0
        for ri, r in enumerate(s.regions):
            for j in range(-(-r.ng // 4)):
                e(f"s_add_u32 s{S_T0}, s{S_WAVE}, {4*j}")
                e(f"s_cmp_lt_u32 s{S_T0}, {r.ng}")
                e(f"s_cselect_b32 s{S_T0}, s{S_T0}, {12 - r.g0}")
                e(f"s_lshl_b32 s{S_T0}, s{S_T0}, 6")
                e(f"s_add_u32 s{S_T0}, s{S_T0}, {s.st_off + 2048 + 64 * r.g0}")
                e(f"v_lshl_add_u32 v3, v2, 2, s{S_T0}")
                e(f"ds_write_b32 v3, v{36+k}")
                k += 1
        e("s_waitcnt lgkmcnt(0)")
        e("s_barrier")

    def loader_loop(s):
        e, p = s.e, s.pre
        s.loader_init()
        for st in range(s.S):
            for g in s.dma_groups():
                e.ext(g)
            e.ext(s.dma_book())
        if s.st_off:
            s.compute_setup(1, 40, ldst=24)
            for r in range(28, 39):
                e(f"v_mov_b32 v{r}, 0")
            e("v_mov_b32 v39, 0x3f803f80")
            e(f"s_mov_b32 s{S_RD}, 0")
            e(f"s_mov_b32 s{S_NREC}, {s.SS}")
        e(f"s_waitcnt vmcnt({(s.S-1)*s.D})")
        e("s_barrier")
        e(f"s_mov_b32 s{S_CNT}, s{S_NS}")
        e.lab(f"{p}_lloop")
        if s.st_off:
            s.stats_step()
        e(f"s_waitcnt vmcnt({(s.S-2)*s.D})")
        e("s_barrier")
        for g in s.dma_groups():
            e.ext(g)
        e.ext(s.dma_book())
        e(f"s_sub_u32 s{S_CNT}, s{S_CNT}, 1")
        e(f"s_cmp_lg_u32 s{S_CNT}, 0")
        e(f"s_cbranch_scc1 {p}_lloop")
        if s.st_off:
            s.stats_final()
        e("s_endpgm")

    def compute_setup(s, vlane, vt, ldst=None):
        e = s.e
        if s.WN == 1:
            e(f"s_mul_i32 s{S_T0}, s{S_WAVE}, {s.MT*16*128}")
            e(f"s_mov_b32 s{S_T1}, 0")
        else:
            e(f"s_lshr_b32 s{S_T0}, s{S_WAVE}, 1")
            e(f"s_mul_i32 s{S_T0}, s{S_T0}, {s.MT*16*128}")
            e(f"s_and_b32 s{S_T1}, s{S_WAVE}, 1")
        e(f"v_and_b32 v{vt}, 15, v{vlane}")
        e(f"v_lshrrev_b32 v{vt+1}, 4, v{vlane}")
        e(f"v_lshrrev_b32 v{vt+2}, 3, v{vt}")
        e(f"v_lshrrev_b32 v{vt+3}, 2, v{vt}")
        e(f"v_and_b32 v{vt+3}, 1, v{vt+3}")
        e(f"v_xor_b32 v{vt+3}, v{vt+3}, v{vt+2}")
        e(f"v_lshl_add_u32 v{vt+3}, v{vt+3}, 1, v{vt+2}")
        e(f"v_xor_b32 v{vt+3}, v{vt+3}, v{vt+1}")
        e(f"v_lshlrev_b32 v{vt+3}, 4, v{vt+3}")
        e(f"v_lshl_add_u32 v{vt+11}, v{vt}, 6, v{vt+3}")
        e(f"v_lshl_add_u32 v{vt+3}, v{vt+2}, 10, v{vt+3}")
        e(f"v_and_b32 v{vt+2}, 7, v{vt}")
        e(f"v_lshl_add_u32 v{vt+2}, v{vt+2}, 6, v{vt+3}")
        e(f"v_lshrrev_b32 v{vt+4}, 2, v{vlane}")
        e(f"v_and_b32 v{vt+4}, 3, v{vt+4}")
        e(f"v_and_b32 v{vt+5}, 3, v{vlane}")
        tmp = {}
        for ri, r in enumerate(s.regions):
            base = s.CB + r.lds_off
            if r.typ == 'T':
                e(f"s_mul_i32 s{S_T2}, s{S_T1}, {s.NT*16*128}")
                e(f"s_add_u32 s{S_T2}, s{S_T2}, {base}")
                e(f"v_add_u32 v{vt+6+2*ri}, s{S_T2}, v{vt+11 if s.cblk else vt+2}")
                tmp[ri] = [vt + 6 + 2 * ri]
            elif r.typ == 'Nadd':
                assert s.WN == 1
                d = vt + 6 + 2 * ri
                e(f"v_lshl_add_u32 v{d}, v{vt+1}, 3, v{vt+4}")
                e(f"v_mul_u32_u24 v{d}, {r.RS}, v{d}")
                e(f"v_lshl_add_u32 v{d}, v{vt+1}, 7, v{d}")
                e(f"v_lshl_add_u32 v{d}, v{vt+5}, 3, v{d}")
                e(f"v_add_u32 v{d}, {base}, v{d}")
                tmp[ri] = [d]
            else:
                d = vt + 6 + 2 * ri
                e(f"v_lshl_add_u32 v{d}, v{vt+1}, 3, v{vt+4}")
                e(f"v_mul_u32_u24 v{d}, {r.RS}, v{d}")
                e(f"v_lshl_add_u32 v{d}, v{vt+5}, 3, v{d}")
                e(f"v_add_u32 v{d}, {base}, v{d}")
                e(f"v_and_b32 v{d+1}, 1, v{vt+1}")
                if r.ng == 8:
                    e(f"v_lshl_add_u32 v{d+1}, v{d+1}, 2, v{vt+4}")
                    e(f"s_mul_i32 s{S_T2}, s{S_T1}, {s.NT}")
                    e(f"v_xor_b32 v{d+1}, s{S_T2}, v{d+1}")
                else:
                    e(f"v_lshrrev_b32 v{vt+10}, 1, v{vt+4}")
                    e(f"v_lshl_add_u32 v{d+1}, v{d+1}, 1, v{vt+10}")
                e(f"v_lshl_add_u32 v{d}, v{d+1}, 5, v{d}")
                tmp[ri] = [d]
        if ldst is not None:
            e(f"v_add_u32 v{ldst}, s{S_T0}, v{vt+2}")
            for ri, r in enumerate(s.regions):
                e(f"s_mul_i32 s{S_T2}, s{S_WAVE}, {2048 if r.typ == 'T' else 32}")
                e(f"v_add_u32 v{ldst+1+ri}, s{S_T2}, v{tmp[ri][0]}")
            return
        for ri, r in enumerate(s.regions):
            if r.typ == 'Nxor':
                for j, vv in enumerate(s.vC[ri]):
                    e(f"v_xor_b32 v{vv}, {32*j}, v{tmp[ri][0]}")
            else:
                for vv, t in zip(s.vC[ri], tmp[ri]):
                    e(f"v_mov_b32 v{vv}, v{t}")
        e(f"v_add_u32 v{s.vR[0]}, s{S_T0}, v{vt+11 if s.rblk else vt+2}")
        for a in range(s.nacc):
            e(f"v_mov_b32 v{a+s.accv}, 0" if s.accv else f"v_accvgpr_write_b32 a{a}, 0")

    def adv_addr(s):
        SS, S = (s.CS, s.SC) if s.splitring else (s.SS, s.S)
        g = [f"s_add_u32 s{S_RD}, s{S_RD}, {SS}",
             f"s_cmp_ge_u32 s{S_RD}, {SS*S}",
             f"s_cselect_b32 s{S_RD}, 0, s{S_RD}",
             f"s_cselect_b32 s{S_DL}, {-(S-1)*SS & 0xffffffff}, s{S_NREC}"]
        v = [f"v_add_u32 v{a}, s{S_DL}, v{a}" for a in range(s.naddr)]
        if s.splitring:
            if s.SR == 2:
                v[0] = "v_xor_b32 v0, 0x8000, v0"
            else:
                g += [f"s_add_u32 s91, s91, {RT}",
                      f"s_cmp_ge_u32 s91, {RT*s.SR}",
                      f"s_cselect_b32 s91, 0, s91",
                      f"s_cselect_b32 s92, {-(s.SR-1)*RT & 0xffffffff}, s93"]
                v[0] = "v_add_u32 v0, s92, v0"
        return g, v

    def compute_loop(s, X):
        e, p = s.e, s.pre
        MT, NT = s.MT, s.NT
        if s.outer == 'C':
            NO, NI = NT, MT
            order = [(m, n) for n in range(NT) for m in range(MT)]
        else:
            NO, NI = MT, NT
            order = [(m, n) for m in range(MT) for n in range(NT)]
        NM = MT * NT

        def rd_outer(kk, o):
            return s.rd_C(kk, o) if s.outer == 'C' else s.rd_R(kk, o)

        def rd_inner(kk, i):
            return s.rd_R(kk, i) if s.outer == 'C' else s.rd_C(kk, i)

        seq = [(1, t) for t in range(X, NM)] + [(0, t) for t in range(NM)] + [(1, t) for t in range(X)]
        P1 = NM - X
        NSEQ = len(seq)
        BR = OPT.get('BR', 6)
        sg, vg = s.adv_addr()
        fill = []
        fill.append([0, -10, [(x, None) for x in vg], 'x'])
        first_rd = 0 if len(vg) <= 1 else (len(vg) + 1) // 2
        for i in range(NI):
            fill.append([first_rd, 0 + i * 0.01, rd_inner(0, i), 'lds'])
        for o in range(NO):
            last = (o + 1) * NI - 1
            fill.append([max(last - X, first_rd), 0.5 + o, rd_outer(0, o), 'lds'])
        for i in range(NI):
            fill.append([P1 - 1, 100 + i * 0.01, rd_inner(1, i), 'lds'])
        for o in range(NO):
            fill.append([P1 + (o + 1) * NI - 1, 100.5 + o, rd_outer(1, o), 'lds'])
        fill.append([P1 + 2, 200, [(x, None) for x in sg[:2]], 'x'])
        fill.append([P1 + 3, 201, [(x, None) for x in sg[2:4]], 'x'])
        if len(sg) > 4:
            fill.append([P1 + 5, 201.1, [(x, None) for x in sg[4:6]], 'x'])
            fill.append([P1 + 6, 201.2, [(x, None) for x in sg[6:8]], 'x'])
        if getattr(s, 'pfl', False):
            fill.append([P1 + 13, 203, [("buffer_load_dword v3, s[64:67], s94 offen lds", None)], 'x'])
            fill.append([P1 + 15, 204, [(f"s_add_u32 s94, s94, {2048*OPT['pfl']}", None), (f"s_and_b32 s{S_T0}, s{S_CNT}, {4//OPT['pfl']-1}", None)], 'x'])
            fill.append([P1 + 17, 205, [(f"s_cmp_eq_u32 s{S_T0}, {1 if OPT['pfl'] < 4 else 0}", None), ("s_cselect_b64 s[64:65], s[68:69], s[64:65]", None)], 'x'])
            fill.append([P1 + 18, 206, [("s_cselect_b64 s[68:69], s[70:71], s[68:69]", None), ("s_cselect_b32 s66, s72, s66", None)], 'x'])
            fill.append([P1 + 19, 207, [("s_cselect_b32 s72, s73, s72", None), ("s_cselect_b32 s73, 0, s73", None)], 'x'])
            fill.append([P1 + 20, 208, [("s_cselect_b32 s94, s74, s94", None)], 'x'])
        if getattr(s, 'stub', None):
            fill.append([P1 + 9, 202, [(f"s_cmp_eq_u32 s{S_CNT}, {s.stub[0]}", None), (f"s_cbranch_scc1 {p}_stub", None), (f"@{p}_stubret", None)], 'x'])
        if s.pfstub:
            fill.append([P1 + 9, 202, [(f"s_cmp_eq_u32 s{S_CNT}, s80", None), (f"s_cbranch_scc1 {p}_pf", None), (f"@{p}_pfret", None)], 'x'])
        dg = []
        if s.design == 'A':
            dg = s.dma_groups()
            tot = NSEQ - 4
            for k, g in enumerate(dg):
                fill.append([int(k * tot / len(dg)) + 1, 50 + k, [(x, None) for x in g], 'dma'])
        if OPT.get('split', 1):
            f2 = []
            for f in fill:
                if f[3] == 'lds' and len(f[2]) > 1:
                    for k, it in enumerate(f[2]):
                        f2.append([f[0], f[1] + 0.001 * k, [it], 'lds'])
                elif f[3] == 'x' and len(f[2]) > 2 and f[0] == 0:
                    for k in range(0, len(f[2]), 2):
                        f2.append([0, f[1] + 0.001 * k, f[2][k:k + 2], 'x'])
                else:
                    f2.append(f)
            fill = f2
        body = []
        pend = sorted(fill, key=lambda f: f[1])
        n_dma_part1 = 0
        CAP = OPT.get('CAP', 2)

        def emit_gap(gi, cap):
            nonlocal pend, n_dma_part1
            used = 0
            rest = []
            for f in pend:
                n = len(f[2])
                if f[0] <= gi and (used == 0 or used + n <= cap):
                    for (x, d) in f[2]:
                        body.append(('lds', x, d) if f[3] == 'lds' else ('x', x, None))
                    used += n + (1 if f[3] == 'lds' and OPT.get('LDS1', 1) else 0)
                    if f[3] == 'dma' and gi < P1 - 1:
                        n_dma_part1 += 1
                else:
                    rest.append(f)
            pend = rest

        for gi, (kk, t) in enumerate(seq):
            m, n = order[t]
            x, srcs = s.mfma(kk, m, n)
            body.append(('mfma', x, srcs))
            if gi == P1 - 1:
                body.append(('lab', f"{p}_mid", None))
            if gi == BR - 2:
                body.append(('x', f"s_sub_u32 s{S_CNT}, s{S_CNT}, 1", None))
                body.append(('x', f"s_cmp_lg_u32 s{S_CNT}, 0", None))
                continue
            if gi == BR - 1:
                body.append(('br', None, None))
                continue
            if gi == NSEQ - 1:
                continue
            emit_gap(gi, CAP if gi < NSEQ - 2 else 99)
            if gi == NSEQ - 3 and s.design == 'A':
                assert not any(f[3] == 'dma' for f in pend)
                for x in s.dma_book():
                    body.append(('x', x, None))
        assert not pend, pend
        body.append(('w0', "s_waitcnt lgkmcnt(0)" + (f" vmcnt({(s.S-2)*s.D})" if s.design == 'A' else ""), None))
        body.append(('x', "s_barrier", None))
        issued = 0
        done = 0
        lastw = {}
        outb = None
        for ps in range(2):
            outb = []
            for (k, x, d) in body:
                if k == 'lds':
                    issued += 1
                    lastw[d] = issued
                    outb.append((k, x))
                elif k == 'w0':
                    done = issued
                    outb.append((k, x))
                elif k == 'mfma':
                    need = max([lastw.get(r, 0) for r in d])
                    if need > done:
                        outb.append(('x', f"s_waitcnt lgkmcnt({min(issued-need, 15)})"))
                        done = need
                    outb.append((k, x))
                else:
                    outb.append((k, x))
        e(f"s_mov_b32 s{S_RD}, 0")
        e(f"s_mov_b32 s{S_NREC}, {s.CS if s.splitring else s.SS}")
        e(f"s_mov_b32 s{S_DL}, {s.CS if s.splitring else s.SS}")
        if s.splitring and s.SR > 2:
            e("s_mov_b32 s91, 0")
            e(f"s_mov_b32 s92, {RT}")
            e(f"s_mov_b32 s93, {RT}")
        if s.design == 'A':
            s.loader_init()
            for st in range(s.S - 1):
                for g in dg:
                    e.ext(g)
                e.ext(s.dma_book())
            for g in dg[:n_dma_part1]:
                e.ext(g)
            e(f"s_waitcnt vmcnt({(s.S-2)*s.D + n_dma_part1})")
        stamp(e, 1)
        e("s_barrier")
        stamp(e, 2)
        for i in range(NI):
            for (x, d) in rd_inner(0, i):
                e(x)
        for o in range(NO):
            for (x, d) in rd_outer(0, o):
                e(x)
        e(f"s_mov_b32 s{S_CNT}, s{S_NS}")
        if OPT.get('prio'):
            e(f"s_setprio {OPT['prio']}")
        e("s_waitcnt lgkmcnt(0)")
        e(f"s_branch {p}_mid")
        if getattr(s, 'stub', None):
            e.lab(f"{p}_stub")
            s.stub[1]()
            e(f"s_branch {p}_stubret")
        if s.pfstub:
            e.lab(f"{p}_pf")
            e(f"s_mov_b32 m0, {s.pfstub}")
            e("s_nop 0")
            for q in range(3):
                e(f"buffer_load_dword v3, s[{64+4*q}:{67+4*q}], s81 offen lds")
            e(f"s_branch {p}_pfret")
        e.L.append(".p2align 6")
        bi = [i for i, (k, x) in enumerate(outb) if k == 'br'][0]
        e.lab(f"{p}_top")
        for (k, x) in outb[bi + 1:] + outb[:bi]:
            if k == 'lab':
                e.lab(x)
            elif x.startswith('@'):
                e.lab(x[1:])
            else:
                e(x)
        e(f"s_cbranch_scc1 {p}_top")
        for (kk, t) in seq[BR:P1]:
            m, n = order[t]
            e(s.mfma(kk, m, n)[0])
        e("s_waitcnt lgkmcnt(0)")
        e("s_nop 7")
        e("s_nop 7")
        stamp(e, 3)


WS_ST = 64 * MB


def stamp(e, k):
    if OPT.get('stamp'):
        e(f"s_memtime s[{90+2*k}:{91+2*k}]")
        if k == 0:
            e("s_memrealtime s[34:35]")
        if k == 4:
            e("s_memrealtime s[36:37]")
        e("s_waitcnt lgkmcnt(0)")


def stamp_out(e, kid):
    if OPT.get('stamp'):
        e("s_waitcnt vmcnt(0)")
        stamp(e, 4)
        srd(e, S_SRD_O, 28, 29, 4 * MB, WS_ST + kid * MB)
        e("s_lshl_b32 s38, s2, 2")
        e(f"s_add_u32 s38, s38, s{S_WAVE}")
        e("s_lshl_b32 s38, s38, 5")
        e("v_mov_b32 v0, s38")
        for k in range(5):
            e(f"v_mov_b32 v{2+k}, s{90+2*k}")
        e("v_mov_b32 v7, s34")
        e("v_mov_b32 v8, s36")
        e("s_getreg_b32 s38, hwreg(HW_REG_XCC_ID)")
        e("v_mov_b32 v9, s38")
        e(f"buffer_store_dwordx4 v[2:5], v0, s[{S_SRD_O}:{S_SRD_O+3}], 0 offen")
        e(f"buffer_store_dwordx4 v[6:9], v0, s[{S_SRD_O}:{S_SRD_O+3}], 0 offen offset:16")


def tl(e, k, end, v=60):
    if not OPT.get('tl'):
        return
    lab = f"tl_{k}_{end}_{len(e.L)}"
    e("s_and_b32 s98, s2, 15")
    e("s_cmp_lg_u32 s98, 0")
    e(f"s_cbranch_scc1 {lab}")
    e("s_waitcnt vmcnt(0)")
    e("s_load_dwordx2 s[96:97], s[0:1], 88")
    e("s_memrealtime s[98:99]")
    e("s_waitcnt lgkmcnt(0)")
    e(f"s_add_u32 s96, s96, {512*(3-k)}")
    e("s_addc_u32 s97, s97, 0")
    if not end:
        e("s_not_b32 s98, s98")
    e(f"v_mov_b32 v{v}, s98")
    e(f"v_mov_b32 v{v+1}, {8*k+4*end}")
    e("s_mov_b64 s[100:101], exec")
    e("s_mov_b64 exec, 1")
    e(f"global_atomic_umax v{v+1}, v{v}, s[96:97]")
    e("s_waitcnt vmcnt(0)")
    e("s_mov_b64 exec, s[100:101]")
    e.lab(lab)


def prefetch(e, vtmp, items, lds_dummy):
    e(f"v_mbcnt_lo_u32_b32 v{vtmp}, -1, 0")
    e(f"v_mbcnt_hi_u32_b32 v{vtmp}, -1, v{vtmp}")
    e(f"s_lshl_b32 s{S_T0}, s2, 2")
    e(f"s_add_u32 s{S_T0}, s{S_T0}, s{S_WAVE}")
    e(f"s_mov_b32 m0, {lds_dummy}")
    for (lo, hi, nb) in items:
        per = -(-(nb // 128) // 1024)
        srd(e, 64, lo, hi, nb)
        e(f"s_mul_i32 s{S_T1}, s{S_T0}, {per*128}")
        e(f"v_lshlrev_b32 v{vtmp+1}, 7, v{vtmp}")
        if per < 64:
            e(f"v_cmp_gt_u32 vcc, {per}, v{vtmp}")
            e(f"v_mov_b32 v{vtmp+2}, 0x7ff00000")
            e("s_nop 0")
            e(f"v_cndmask_b32 v{vtmp+1}, v{vtmp+2}, v{vtmp+1}, vcc")
        for hh in range(OPT.get('pfhalves', 1)):
            e(f"buffer_load_dword v{vtmp+1}, s[64:67], s{S_T1} offen offset:{hh*64} lds" + (" nt" if OPT.get('pfnt') else ""))


def lane_wave(e, design):
    stamp(e, 0)
    e("v_lshrrev_b32 v1, 6, v0")
    e("s_nop 0")
    e(f"v_readfirstlane_b32 s{S_T2}, v1")
    e("v_and_b32 v1, 63, v0")
    e("s_nop 2")
    e(f"s_and_b32 s{S_WAVE}, s{S_T2}, 3")


def gen_g1(e):
    name = "g1_kernel"
    design, S, X = OPT['design1'], OPT['S1'], OPT['X']
    khead(e, name)
    e("s_cmp_ge_u32 s2, 256")
    e("s_cbranch_scc1 g1_done")
    tl(e, 1, 0)
    e("s_load_dwordx4 s[20:23], s[0:1], 24")
    e("s_load_dwordx4 s[24:27], s[0:1], 48")
    e("s_load_dwordx2 s[28:29], s[0:1], 96")
    e("s_load_dwordx2 s[32:33], s[0:1], 0")
    e("s_load_dwordx4 s[72:75], s[0:1], 8")
    e("s_load_dwordx2 s[76:77], s[0:1], 64")
    lane_wave(e, design)
    e("s_and_b32 s30, s2, 1")
    e("s_lshl_b32 s30, s30, 2")
    e("s_lshr_b32 s31, s2, 3")
    e(f"s_and_b32 s{S_ROW0}, s31, 3")
    e(f"s_add_u32 s{S_ROW0}, s{S_ROW0}, s30")
    e(f"s_lshl_b32 s{S_ROW0}, s{S_ROW0}, 8")
    e("s_and_b32 s30, s2, 6")
    e("s_lshl_b32 s30, s30, 2")
    e(f"s_lshr_b32 s{S_COL0}, s31, 2")
    e(f"s_add_u32 s{S_COL0}, s{S_COL0}, s30")
    e(f"s_mov_b32 s{S_NS}, 16")
    e(f"s_mov_b32 s{S_KR}, 0")
    e(f"s_mov_b32 s{S_KC}, 0")
    e(f"s_mov_b32 s{S_KN}, 0")
    e("s_waitcnt lgkmcnt(0)")
    FL = OPT.get('fuse_ln')
    if FL:
        srd(e, S_SRD_R, 32, 33, 4 * MB)
    else:
        srd(e, S_SRD_R, 28, 29, 2048 * XS, WS_XN)
    e(f"s_cmp_lt_u32 s{S_COL0}, 11")
    e("s_cbranch_scc1 g1d_start")
    e(f"s_cmp_eq_u32 s{S_COL0}, 11")
    e("s_cbranch_scc1 g1m_start")
    e("s_branch g1f_start")

    variants = {
        'g1d': [Region('T', 0, 11, 0, 2048)],
        'g1m': [Region('T', 0, 7, 0, 2048), Region('Nadd', 7, 4, 16384, 7168)],
        'g1f': [Region('Nadd', 0, 11, 0, 7168)],
    }
    vt_max = 0
    ss_max = 0
    for pre, regs in variants.items():
        orient = []
        for r in regs:
            orient += ['RA' if r.typ == 'T' else 'CA'] * r.ng
        G = Gemm(e, pre, design, S, 4, 11, 4, 1, regs, 2048 if FL else XS, 'C', orient, nsteps=16)
        if FL:
            G.st_off = 122880 + 1024
        if OPT.get('rot1'):
            G.rot = (OPT['rot1'], OPT.get('rotmul1', 1))
        e.lab(f"{pre}_start")

        def cset(ri, j, so, G=G, pre=pre):
            r = G.regions[ri]
            if r.typ == 'T':
                e(f"s_mul_i32 s{S_T0}, s{S_COL0}, 22")
                e(f"s_mul_i32 s{S_T1}, s{S_WAVE}, {r.DW}")
                e(f"s_add_u32 s{S_T1}, s{S_T1}, {j}")
                e(f"s_add_u32 s{S_T0}, s{S_T0}, s{S_T1}")
                e(f"s_cmp_lt_u32 s{S_T0}, 128")
                e(f"s_cselect_b32 s{so}, s20, s22")
                e(f"s_cselect_b32 s{so+1}, s21, s23")
                e(f"s_and_b32 s{S_T0}, s{S_T0}, 127")
                e(f"s_lshl_b32 s{S_T0}, s{S_T0}, 14")
                e(f"s_cmp_lt_u32 s{S_T1}, {r.ninstr}")
                e(f"s_cselect_b32 s{so+2}, {2*MB}, 0")
                e(f"s_mov_b32 s{so+3}, 0x20000")
                e(f"s_cselect_b32 s{S_T0}, s{S_T0}, 4096")
            else:
                srd(e, so, 24, 25, 1024 * 7168)
                e(f"s_mul_i32 s{S_T0}, s{S_COL0}, 352")
                e(f"s_sub_u32 s{S_T0}, s{S_T0}, {(128 - r.g0) * 32}")

        if design == 'B':
            e(f"s_cmp_ge_u32 s{S_T2}, 4")
            e(f"s_cbranch_scc0 {pre}_comp")
            G.loader_setup(1, 2, cset)
            G.loader_loop()
            e.lab(f"{pre}_comp")
        else:
            G.loader_setup(1, G.vfrag0, cset)
        e(f"v_mov_b32 v{G.vfrag0+16}, v1")
        if OPT.get('pf1'):
            prefetch(e, G.vfrag0 + 20, [(20, 21, 2 * MB), (22, 23, 2 * MB), (24, 25, 1024 * 7168)], 122880)
        if OPT.get('pf2') == 1:
            prefetch(e, G.vfrag0 + 20, [(72, 73, 8 * MB), (74, 75, 8 * MB), (76, 77, 3584 * 2048)], 122880)
        if OPT.get('pf2') == 3:
            G.pfstub = 122880
            e("s_mov_b64 s[82:83], s[72:73]")
            e("s_mov_b64 s[84:85], s[74:75]")
            e("s_mov_b64 s[86:87], s[76:77]")
            srd(e, 64, 82, 83, 8 * MB)
            srd(e, 68, 84, 85, 8 * MB)
            srd(e, 72, 86, 87, 3584 * 2048)
            e(f"s_lshl_b32 s81, s2, 2")
            e(f"s_add_u32 s81, s81, s{S_WAVE}")
            e(f"s_lshl_b32 s81, s81, 13")
            e(f"s_mul_i32 s80, s{S_WAVE}, {OPT.get('pfsp', 2)}")
            e(f"s_sub_u32 s80, {OPT.get('pfat', 12)}, s80")
            e("v_lshlrev_b32 v3, 7, v1")
        G.compute_setup(G.vfrag0 + 16, G.vfrag0)
        G.compute_loop(X)
        if OPT.get('pf2') == 2:
            prefetch(e, 8, [(72, 73, 8 * MB), (74, 75, 8 * MB), (76, 77, 3584 * 2048)], 122880)
        g1_epilogue(e, G, pre)
        stamp_out(e, 0)
        tl(e, 1, 1)
        e("s_endpgm")
        vt_max = max(vt_max, G.vtop)
        ss_max = max(ss_max, G.SS)
    e.lab("g1_done")
    e("s_endpgm")
    acc0 = (vt_max + 3) // 4 * 4
    kdesc(e, name, acc0 + 176, acc0)
    return ss_max * S + 1024 + 3072


def f2u(f):
    import struct
    return struct.unpack("<I", struct.pack("<f", f))[0]


def g1_epilogue(e, G, pre):
    FL = G.st_off
    if FL:
        e("s_barrier")
    e("v_mbcnt_lo_u32_b32 v1, -1, 0")
    e("v_mbcnt_hi_u32_b32 v1, -1, v1")
    e("v_and_b32 v2, 15, v1")
    e("v_lshrrev_b32 v3, 4, v1")
    e("v_and_b32 v4, 1, v3")
    e("v_lshlrev_b32 v4, 4, v4")
    e("v_lshrrev_b32 v5, 1, v3")
    e("v_lshl_add_u32 v4, v5, 3, v4")
    e(f"s_lshl_b32 s{S_T0}, s{S_WAVE}, 6")
    e(f"s_add_u32 s{S_T0}, s{S_T0}, s{S_ROW0}")
    T = 16
    for r in G.regions:
        if r.typ == 'T':
            srd(e, S_SRD_O, 28, 29, 2048 * ATS, WS_AT)
            if FL:
                e(f"s_lshl_b32 s{S_T1}, s{S_WAVE}, 8")
                e(f"s_add_u32 s{S_T1}, s{S_T1}, {FL}")
                e(f"v_lshl_add_u32 v7, v3, 4, s{S_T1}")
                for m in range(4):
                    e(f"ds_read_b128 v[{44+4*m}:{47+4*m}], v7 offset:{64*m}")
                    e(f"ds_read_b128 v[{60+4*m}:{63+4*m}], v7 offset:{1024+64*m}")
                e(f"v_lshlrev_b32 v7, 2, v2")
                e(f"v_add_u32 v7, {FL}, v7")
                for j in range(r.ng):
                    e(f"ds_read_b32 v{32+j}, v7 offset:{2048 + 64*(r.g0+j)}")
            e(f"s_mul_i32 s{S_T1}, s{S_COL0}, 176")
            e(f"v_add_u32 v6, s{S_T1}, v2")
            e(f"s_mov_b32 s{S_T2}, {ATS}")
            e(f"v_mul_lo_u32 v6, v6, s{S_T2}")
            e(f"v_add_u32 v7, s{S_T0}, v4")
            e("v_lshl_add_u32 v6, v7, 1, v6")
            e(f"s_mul_i32 s{S_T1}, s{S_COL0}, 11")
            e("s_waitcnt lgkmcnt(0)")
            for j in range(r.ng):
                n = r.g0 + j
                e(f"s_add_u32 s{S_T2}, s{S_T1}, {n}")
                e(f"s_cmp_lt_u32 s{S_T2}, 64")
                e(f"s_cselect_b32 s{S_DL}, 0, 0x80008000")
                e(f"s_mov_b32 s{S_T2}, {n*16*ATS}")
                for mp in range(2):
                    t = 8 + ((j * 2 + mp) % 2) * 12
                    for q in range(2):
                        a = G.acc(2 * mp + q, n)
                        for x in range(4):
                            e(f"v_accvgpr_read_b32 v{t+4+q*4+x}, a{a+x}")
                    if FL:
                        for q in range(2):
                            m = 2 * mp + q
                            for h in range(2):
                                d = t + 4 + q * 4 + 2 * h
                                e(f"v_pk_mul_f32 v[{d}:{d+1}], v[{d}:{d+1}], v[{44+4*m+2*h}:{45+4*m+2*h}]")
                        for q in range(2):
                            m = 2 * mp + q
                            for h in range(2):
                                d = t + 4 + q * 4 + 2 * h
                                c = 32 + j
                                ce = c & ~1
                                sel = "op_sel:[0,1,0] op_sel_hi:[1,1,1]" if c & 1 else "op_sel_hi:[1,0,1]"
                                e(f"v_pk_fma_f32 v[{d}:{d+1}], v[{60+4*m+2*h}:{61+4*m+2*h}], v[{ce}:{ce+1}], v[{d}:{d+1}] {sel} neg_lo:[1,0,0] neg_hi:[1,0,0]")
                    for q in range(2):
                        e(f"v_cvt_pk_bf16_f32 v{t+2*q}, v{t+4+q*4}, v{t+5+q*4}")
                        e(f"v_cvt_pk_bf16_f32 v{t+2*q+1}, v{t+6+q*4}, v{t+7+q*4}")
                    for x in range(4):
                        e(f"v_xor_b32 v{t+x}, s{S_DL}, v{t+x}")
                    e("s_nop 1")
                    e(f"v_permlane16_swap_b32 v{t}, v{t+2}")
                    e(f"v_permlane16_swap_b32 v{t+1}, v{t+3}")
                    e(f"buffer_store_dwordx4 v[{t}:{t+3}], v6, s[{S_SRD_O}:{S_SRD_O+3}], s{S_T2} offen offset:{mp*64}" + (" sc1" if G.sc1R else ""))
        else:
            srd(e, S_SRD_O, 28, 29, 2048 * HS, WS_H)
            srd(e, S_SRD_B, 26, 27, 7168)
            e(f"s_mul_i32 s{S_T1}, s{S_COL0}, 352")
            e(f"s_sub_u32 s{S_T1}, s{S_T1}, {(128 - r.g0) * 32}")
            e("v_lshlrev_b32 v7, 3, v3")
            e(f"v_add_u32 v7, s{S_T1}, v7")
            BB = 52
            for j in range(r.ng):
                e(f"buffer_load_dwordx2 v[{BB+2*j}:{BB+2*j+1}], v7, s[{S_SRD_B}:{S_SRD_B+3}], 0 offen offset:{32*j}")
            if FL:
                e(f"s_lshl_b32 s{S_T2}, s{S_WAVE}, 8")
                e(f"s_add_u32 s{S_T2}, s{S_T2}, {FL}")
                e(f"v_lshl_add_u32 v7, v2, 2, s{S_T2}")
                for m in range(4):
                    e(f"ds_read_b32 v{44+2*m}, v7 offset:{64*m}")
                    e(f"ds_read_b32 v{45+2*m}, v7 offset:{1024+64*m}")
                e("v_lshlrev_b32 v9, 4, v3")
                e(f"v_add_u32 v9, {FL}, v9")
            e(f"v_add_u32 v6, s{S_T0}, v2")
            e(f"s_mov_b32 s{S_T2}, {HS}")
            e(f"v_mul_lo_u32 v6, v6, s{S_T2}")
            e(f"v_add_u32 v6, s{S_T1}, v6")
            e("v_lshl_add_u32 v8, v3, 3, v6")
            e("v_lshl_add_u32 v6, v4, 1, v6")
            c1 = -2.0 * math.log2(math.e) * math.sqrt(2.0 / math.pi)
            c2 = c1 * 0.044715
            e(f"v_mov_b32 v10, {f2u(c1):#x}")
            e(f"v_mov_b32 v11, {f2u(c1):#x}")
            e(f"v_mov_b32 v12, {f2u(c2):#x}")
            e(f"v_mov_b32 v13, {f2u(c2):#x}")
            e("v_mov_b32 v14, 1.0")
            e("v_mov_b32 v15, 1.0")
            e("s_waitcnt vmcnt(0)")
            j = 0
            while j < r.ng:
                npair = 2 if j + 1 < r.ng else 1
                for q in range(npair):
                    b = BB + 2 * (j + q)
                    e(f"v_lshlrev_b32 v{32+4*q}, 16, v{b}")
                    e(f"v_and_b32 v{33+4*q}, 0xffff0000, v{b}")
                    e(f"v_lshlrev_b32 v{34+4*q}, 16, v{b+1}")
                    e(f"v_and_b32 v{35+4*q}, 0xffff0000, v{b+1}")
                if FL:
                    csr = [76, BB + 2 * j if npair == 2 else 76]
                    e(f"ds_read_b128 v[76:79], v9 offset:{2048 + 64*(r.g0+j)}")
                    if npair == 2:
                        e(f"ds_read_b128 v[{csr[1]}:{csr[1]+3}], v9 offset:{2048 + 64*(r.g0+j+1)}")
                    e("s_waitcnt lgkmcnt(0)")
                for m in range(4):
                    t = 16
                    for q in range(npair):
                        a = G.acc(m, r.g0 + j + q)
                        for x in range(4):
                            e(f"v_accvgpr_read_b32 v{t+4*q+x}, a{a+x}")
                    np_ = 2 * npair
                    if FL:
                        st = 44 + 2 * m
                        for h in range(np_):
                            c = csr[h >> 1] + 2 * (h & 1)
                            e(f"v_pk_fma_f32 v[{t+8+2*h}:{t+9+2*h}], v[{c}:{c+1}], v[{st}:{st+1}], v[{32+2*h}:{33+2*h}] op_sel:[0,1,0] op_sel_hi:[1,1,1] neg_lo:[1,0,0] neg_hi:[1,0,0]")
                        for h in range(np_):
                            e(f"v_pk_fma_f32 v[{t+2*h}:{t+2*h+1}], v[{t+2*h}:{t+2*h+1}], v[{st}:{st+1}], v[{t+8+2*h}:{t+9+2*h}] op_sel_hi:[1,0,1]")
                    else:
                        for h in range(np_):
                            e(f"v_pk_add_f32 v[{t+2*h}:{t+2*h+1}], v[{t+2*h}:{t+2*h+1}], v[{32+2*h}:{33+2*h}]")
                    for h in range(np_):
                        e(f"v_pk_mul_f32 v[{t+8+2*h}:{t+9+2*h}], v[{t+2*h}:{t+2*h+1}], v[{t+2*h}:{t+2*h+1}]")
                    for h in range(np_):
                        e(f"v_pk_fma_f32 v[{t+8+2*h}:{t+9+2*h}], v[{t+8+2*h}:{t+9+2*h}], v[12:13], v[10:11]")
                    for h in range(np_):
                        e(f"v_pk_mul_f32 v[{t+8+2*h}:{t+9+2*h}], v[{t+8+2*h}:{t+9+2*h}], v[{t+2*h}:{t+2*h+1}]")
                    for x in range(2 * np_):
                        e(f"v_exp_f32 v{t+8+x}, v{t+8+x}")
                    for h in range(np_):
                        e(f"v_pk_add_f32 v[{t+8+2*h}:{t+9+2*h}], v[{t+8+2*h}:{t+9+2*h}], v[14:15]")
                    for x in range(2 * np_):
                        e(f"v_rcp_f32 v{t+8+x}, v{t+8+x}")
                    for h in range(np_):
                        e(f"v_pk_mul_f32 v[{t+2*h}:{t+2*h+1}], v[{t+2*h}:{t+2*h+1}], v[{t+8+2*h}:{t+9+2*h}]")
                    o = 40
                    for h in range(np_):
                        e(f"v_cvt_pk_bf16_f32 v{o+h}, v{t+2*h}, v{t+2*h+1}")
                    e(f"s_mov_b32 s{S_T2}, {m*16*HS}")
                    if npair == 2:
                        e("s_nop 0")
                        e(f"v_permlane16_swap_b32 v{o}, v{o+2}")
                        e(f"v_permlane16_swap_b32 v{o+1}, v{o+3}")
                        e(f"buffer_store_dwordx4 v[{o}:{o+3}], v6, s[{S_SRD_O}:{S_SRD_O+3}], s{S_T2} offen offset:{j*32}" + (" sc1" if G.sc1R else ""))
                    else:
                        e(f"buffer_store_dwordx2 v[{o}:{o+1}], v8, s[{S_SRD_O}:{S_SRD_O+3}], s{S_T2} offen offset:{j*32}" + (" sc1" if G.sc1R else ""))
                j += npair


def gen_g2(e):
    name = "g2_kernel"
    design, S, X = OPT['design2'], OPT['S2'], OPT['X']
    khead(e, name)
    e("s_cmp_ge_u32 s2, 256")
    e("s_cbranch_scc1 g2_done")
    tl(e, 2, 0)
    e("s_load_dwordx4 s[20:23], s[0:1], 8")
    e("s_load_dwordx2 s[24:25], s[0:1], 64")
    e("s_load_dwordx2 s[28:29], s[0:1], 96")
    lane_wave(e, design)
    e("s_and_b32 s30, s2, 3")
    e("s_lshr_b32 s31, s2, 2")
    e("s_and_b32 s31, s31, 1")
    e("s_lshr_b32 s32, s2, 3")
    e(f"s_and_b32 s{S_ROW0}, s32, 3")
    e(f"s_lshl_b32 s31, s31, 2")
    e(f"s_add_u32 s{S_ROW0}, s{S_ROW0}, s31")
    e(f"s_lshl_b32 s{S_ROW0}, s{S_ROW0}, 8")
    e(f"s_lshr_b32 s{S_COL0}, s32, 2")
    e(f"s_lshl_b32 s{S_COL0}, s{S_COL0}, 7")
    e(f"s_mov_b32 s{S_KC}, 0")
    e("s_waitcnt lgkmcnt(0)")
    e("s_cmp_ge_u32 s30, 2")
    e("s_cbranch_scc1 g2o_start")
    variants = {
        'g2y': ([Region('T', 0, 8, 0, ATS)], 4096),
        'g2o': ([Region('Nxor', 0, 8, 0, 2048)], HS),
    }
    vt_max = 0
    for pre, (regs, rstride) in variants.items():
        G = Gemm(e, pre, design, S, 8, 4, 2, 2, regs, rstride, 'R', ['CA'] * 4, nsteps=32 if pre == 'g2y' else 28)
        if OPT.get('rot2') and (pre == 'g2y' or OPT.get('rot2o')):
            G.rot = (OPT['rot2'], OPT.get('rotmul2', 1))
        e.lab(f"{pre}_start")
        if pre == 'g2y':
            e(f"s_mov_b32 s{S_NS}, 32")
            e(f"s_mov_b32 s{S_KR}, 0")
            e("s_cmp_eq_u32 s30, 0")
            e(f"s_cselect_b32 s{S_SRD_R}, s20, s22")
            e(f"s_cselect_b32 s{S_SRD_R+1}, s21, s23")
            e(f"s_mov_b32 s{S_SRD_R+2}, {8*MB}")
            e(f"s_mov_b32 s{S_SRD_R+3}, 0x20000")
        else:
            e(f"s_mov_b32 s{S_NS}, 28")
            e("s_and_b32 s33, s30, 1")
            e(f"s_mul_i32 s{S_KR}, s33, {1792*2}")
            e(f"s_mul_i32 s{S_KN}, s33, {1792*2048}")
            srd(e, S_SRD_R, 28, 29, 2048 * HS, WS_H)

        def cset(ri, j, so, G=G, pre=pre):
            r = G.regions[ri]
            if r.typ == 'T':
                srd(e, so, 28, 29, 2048 * ATS, WS_AT)
                e(f"s_lshl_b32 s{S_T0}, s30, 10")
                e(f"s_add_u32 s{S_T0}, s{S_T0}, s{S_COL0}")
                e(f"s_lshl_b32 s{S_T1}, s{S_WAVE}, 5")
                e(f"s_add_u32 s{S_T0}, s{S_T0}, s{S_T1}")
                e(f"s_add_u32 s{S_T0}, s{S_T0}, {8*j}")
                e(f"s_mul_i32 s{S_T0}, s{S_T0}, {ATS}")
            else:
                srd(e, so, 24, 25, 3584 * 2048)
                e(f"s_lshl_b32 s{S_T0}, s{S_COL0}, 1")

        if design == 'B':
            e(f"s_cmp_ge_u32 s{S_T2}, 4")
            e(f"s_cbranch_scc0 {pre}_comp")
            G.loader_setup(1, 2, cset)
            G.loader_loop()
            e.lab(f"{pre}_comp")
        else:
            G.loader_setup(1, G.vfrag0, cset)
        e(f"v_mov_b32 v{G.vfrag0+16}, v1")
        G.compute_setup(G.vfrag0 + 16, G.vfrag0)
        G.compute_loop(X)
        e("v_mbcnt_lo_u32_b32 v1, -1, 0")
        e("v_mbcnt_hi_u32_b32 v1, -1, v1")
        e("v_and_b32 v2, 15, v1")
        e("v_lshrrev_b32 v3, 4, v1")
        e(f"s_lshr_b32 s{S_T0}, s{S_WAVE}, 1")
        e(f"s_lshl_b32 s{S_T0}, s{S_T0}, 7")
        e(f"s_add_u32 s{S_T0}, s{S_T0}, s{S_ROW0}")
        e(f"s_and_b32 s{S_T1}, s{S_WAVE}, 1")
        e(f"s_lshl_b32 s{S_T1}, s{S_T1}, 6")
        e(f"s_add_u32 s{S_T1}, s{S_T1}, s{S_COL0}")
        e(f"v_add_u32 v6, s{S_T0}, v2")
        if pre == 'g2y':
            srd(e, S_SRD_O, 28, 29, 8 * MB, WS_P0)
            e("v_and_b32 v4, 1, v3")
            e("v_lshlrev_b32 v4, 4, v4")
            e("v_lshrrev_b32 v5, 1, v3")
            e("v_lshl_add_u32 v4, v5, 3, v4")
            e(f"v_add_u32 v4, s{S_T1}, v4")
            e("v_lshlrev_b32 v6, 11, v6")
            e("v_lshl_add_u32 v6, v4, 1, v6")
            e("s_lshl_b32 s33, s30, 22")
            for m in range(8):
                e(f"s_add_u32 s{S_T2}, s33, {m*16*2048}")
                for np_ in range(2):
                    t = 16 + np_ * 12
                    for q in range(2):
                        a = G.acc(m, 2 * np_ + q)
                        for x in range(4):
                            e(f"v_accvgpr_read_b32 v{t+4+q*4+x}, a{a+x}")
                    for q in range(2):
                        e(f"v_cvt_pk_bf16_f32 v{t+2*q}, v{t+4+q*4}, v{t+5+q*4}")
                        e(f"v_cvt_pk_bf16_f32 v{t+2*q+1}, v{t+6+q*4}, v{t+7+q*4}")
                    e("s_nop 1")
                    e(f"v_permlane16_swap_b32 v{t}, v{t+2}")
                    e(f"v_permlane16_swap_b32 v{t+1}, v{t+3}")
                    e(f"buffer_store_dwordx4 v[{t}:{t+3}], v6, s[{S_SRD_O}:{S_SRD_O+3}], s{S_T2} offen offset:{np_*64}")
        else:
            srd(e, S_SRD_O, 28, 29, 16 * MB, WS_P2)
            e(f"v_lshl_add_u32 v4, v3, 2, s{S_T1}")
            e("v_lshlrev_b32 v6, 12, v6")
            e("v_lshl_add_u32 v6, v4, 2, v6")
            e("s_lshl_b32 s33, s33, 23")
            for m in range(8):
                e(f"s_add_u32 s{S_T2}, s33, {m*16*4096}")
                for n in range(4):
                    a = G.acc(m, n)
                    e(f"buffer_store_dwordx4 a[{a}:{a+3}], v6, s[{S_SRD_O}:{S_SRD_O+3}], s{S_T2} offen offset:{n*64}")
        stamp_out(e, 1)
        tl(e, 2, 1)
        e("s_endpgm")
        vt_max = max(vt_max, G.vtop)
    e.lab("g2_done")
    e("s_endpgm")
    acc0 = (vt_max + 3) // 4 * 4
    kdesc(e, name, acc0 + 128, acc0)
    return G.SS * S


def main():
    out = sys.argv[1]
    for a in sys.argv[2:]:
        k, v = a.split("=")
        OPT[k] = int(v) if v.lstrip('-').isdigit() else v
    e = E()
    if not OPT.get('fuse_ln'):
        gen_ln(e)
    l1 = gen_g1(e)
    l2 = gen_g2(e)
    gen_fin(e)
    e.lab("text_end")
    e("s_endpgm")
    hdr = open("cdna_kernels/%s.s.ref" % KN).read().split("; Override launch")[0]
    b1 = 512 if OPT['design1'] == 'B' else 256
    b2 = 512 if OPT['design2'] == 'B' else 256
    if not OPT.get('fuse_ln'):
        hdr += "; @launch kernel=ln_kernel grid=(512,1,1) block=(256,1,1) lds=0\n"
    hdr += f"; @launch kernel=g1_kernel grid=(256,1,1) block=({b1},1,1) lds={l1}\n"
    hdr += f"; @launch kernel=g2_kernel grid=(256,1,1) block=({b2},1,1) lds={l2}\n"
    hdr += "; @launch kernel=fin_kernel grid=(1024,1,1) block=(256,1,1) lds=0\n"
    hdr += '.amdgcn_target "amdgcn-amd-amdhsa--gfx950"\n.text\n'
    open(out, "w").write(hdr + "\n".join(e.L) + "\n")


if __name__ == "__main__":
    main()
```

```python
import sys, math
import gen
from gen import *

KNAME = KN + "_kernel"
LDS_CNT = 155648
LDS_TOTAL = 155648 + 512
S_DBG = 96
WS_PB = 32 * MB
SPIN_MAX = 200000


def stamp3(e, k):
    if OPT.get('tl'):
        k += OPT.get('sbase', 0)
        lab = f"tl_{len(e.L)}"
        e("s_and_b32 s100, s2, 7")
        if k:
            e(f"s_or_b32 s100, s100, s{S_WAVE}")
        e("s_cmp_lg_u32 s100, 0")
        e(f"s_cbranch_scc1 {lab}")
        e("s_load_dwordx2 s[76:77], s[0:1], 88")
        e("s_memrealtime s[100:101]")
        e("s_waitcnt lgkmcnt(0)")
        if k == 0:
            e("s_not_b32 s100, s100")
        e("v_accvgpr_write_b32 a175, v0") if False else None
        e("v_mov_b32 v62, s100")
        e(f"v_mov_b32 v63, {8+4*k}")
        e("s_mov_b64 exec, 1")
        e("global_atomic_umax v63, v62, s[76:77]")
        e("s_mov_b64 exec, -1")
        e.lab(lab)
        return
    if OPT.get('stamp'):
        k += OPT.get('sbase', 0)
        e("s_memtime s[100:101]")
        e("s_waitcnt lgkmcnt(0)")
        e(f"s_mov_b32 s{76+k}, s100")
        if k in (0, 10):
            e("s_memrealtime s[100:101]")
            e("s_waitcnt lgkmcnt(0)")
            e(f"s_mov_b32 s{89 + (k != 0)}, s100")


gen.stamp = stamp3


def stamp3_out(e):
    if OPT.get('tl'):
        OPT['sbase'] = 0
        e("s_waitcnt vmcnt(0)")
        stamp3(e, 10)
    if OPT.get('stamp'):
        OPT['sbase'] = 0
        e("s_waitcnt vmcnt(0)")
        stamp3(e, 10)
        srd(e, S_SRD_O, 28, 29, 4 * MB, WS_ST)
        e("s_lshl_b32 s38, s2, 2")
        e(f"s_add_u32 s38, s38, s{S_WAVE}")
        e("s_lshl_b32 s38, s38, 6")
        e("v_mov_b32 v0, s38")
        for k in range(11):
            e(f"v_mov_b32 v{4+k}, s{76+k}")
        e("v_mov_b32 v15, s89")
        e("v_mov_b32 v16, s90")
        e("v_mov_b32 v17, s87")
        for k in range(4):
            e(f"buffer_store_dwordx4 v[{4+4*k}:{7+4*k}], v0, s[{S_SRD_O}:{S_SRD_O+3}], 0 offen offset:{16*k}")


WS_FL = 31 * MB
FL1, FLY, FLO, FLC = 0, 1024, 4096, 8192
S_NONCE = 95
LDS_NONCE = LDS_CNT + 32
LDS_GO = LDS_CNT + 48


def signal(e, phase, uid, offs, vm=0, v=0):
    e(f"s_waitcnt vmcnt({vm})")
    e(f"v_mov_b32 v{v}, {LDS_CNT + 4 * phase}")
    e(f"v_mov_b32 v{v+1}, 1")
    e("s_mov_b64 exec, 1")
    e(f"ds_add_rtn_u32 v{v+1}, v{v}, v{v+1}")
    e("s_waitcnt lgkmcnt(0)")
    e(f"v_cmp_eq_u32 vcc, 3, v{v+1}")
    e(f"s_cbranch_vccz sig_{uid}")
    e(f"v_mov_b32 v{v}, 0")
    e(f"v_mov_b32 v{v+1}, s{S_NONCE}")
    for o in offs:
        e(f"buffer_store_dword v{v+1}, v{v}, s[{S_DBG}:{S_DBG+3}], s{o} offen sc1")
    e.lab(f"sig_{uid}")
    e("s_mov_b64 exec, -1")


def poll(e, vaddr, vtmp, uid, sleep=2):
    e(f"s_mov_b32 s{S_T2}, {SPIN_MAX}")
    e.lab(f"poll_{uid}")
    e(f"buffer_load_dword v{vtmp}, v{vaddr}, s[{S_DBG}:{S_DBG+3}], 0 offen sc1")
    e("s_waitcnt vmcnt(0)")
    e(f"v_cmp_ne_u32 vcc, s{S_NONCE}, v{vtmp}")
    e(f"s_cbranch_vccz polld_{uid}")
    e(f"s_sleep {sleep}")
    e(f"s_sub_u32 s{S_T2}, s{S_T2}, 1")
    e(f"s_cmp_lg_u32 s{S_T2}, 0")
    e(f"s_cbranch_scc1 poll_{uid}")
    e.lab(f"polld_{uid}")


def lpoll(e, vaddr, vtmp, phase, uid, sleep=2):
    e(f"v_mov_b32 v{vtmp+1}, {LDS_GO + 4 * phase}")
    e(f"s_cmp_lg_u32 s{S_WAVE}, 0")
    e(f"s_cbranch_scc1 lw_{uid}")
    poll(e, vaddr, vtmp, uid, sleep)
    e(f"v_mov_b32 v{vtmp}, 1")
    e(f"ds_write_b32 v{vtmp+1}, v{vtmp}")
    e(f"s_branch lwd_{uid}")
    e.lab(f"lw_{uid}")
    e(f"s_mov_b32 s{S_T2}, {SPIN_MAX * 20}")
    e.lab(f"lwl_{uid}")
    e(f"ds_read_b32 v{vtmp}, v{vtmp+1}")
    e("s_waitcnt lgkmcnt(0)")
    e(f"v_cmp_ne_u32 vcc, 1, v{vtmp}")
    e(f"s_cbranch_vccz lwd_{uid}")
    e("s_sleep 1")
    e(f"s_sub_u32 s{S_T2}, s{S_T2}, 1")
    e(f"s_cmp_lg_u32 s{S_T2}, 0")
    e(f"s_cbranch_scc1 lwl_{uid}")
    e.lab(f"lwd_{uid}")


def get_nonce(e, v):
    e(f"v_mov_b32 v{v}, {LDS_NONCE}")
    e(f"ds_read_b32 v{v}, v{v}")
    e("s_waitcnt lgkmcnt(0)")
    e(f"v_readfirstlane_b32 s{S_NONCE}, v{v}")
    e("s_nop 3")


def split_dma(G):
    g = G.dma_groups()
    return g[:G.nR], g[G.nR:]


def book_part(G, which):
    out = []
    if which == 'R':
        kr = 2048 if G.rblk else 128
        if G.kr_step:
            out += G.kr_step
        else:
            out.append(f"s_add_u32 s{S_KR}, s{S_KR}, {kr}")
        wrap = [(S_KR, kr * G.nsteps)]
    else:
        wrap = []
        if any(r.typ == 'T' for r in G.regions):
            kc = 2048 if G.cblk else 128
            out.append(f"s_add_u32 s{S_KC}, s{S_KC}, {kc}")
            wrap.append((S_KC, kc * G.nsteps))
        for r in G.regions:
            if r.typ != 'T':
                if G.kn_step:
                    out += G.kn_step
                else:
                    out.append(f"s_add_u32 s{S_KN}, s{S_KN}, {64*r.gstride}")
                wrap.append((S_KN, 64 * r.gstride * G.nsteps))
    if G.rot:
        out.append(f"s_add_u32 s{S_KI}, s{S_KI}, 1")
        out.append(f"s_cmp_ge_u32 s{S_KI}, s{S_NS}")
        out.append(f"s_cselect_b32 s{S_KI}, 0, s{S_KI}")
        for (sr, amt) in wrap:
            out.append(f"s_cmp_eq_u32 s{S_KI}, 0")
            out.append(f"s_cselect_b32 s{S_T0}, {amt}, 0")
            out.append(f"s_sub_u32 s{sr}, s{sr}, s{S_T0}")
    out.append(f"s_add_u32 s{S_WR}, s{S_WR}, {G.SS}")
    return out


def loader_phase(e, G, first, mid, sc1_dep):
    p = G.pre
    gr, gc = split_dma(G)
    ind, dep = (gr, gc) if first == 'R' else (gc, gr)
    second = 'C' if first == 'R' else 'R'
    G.loader_init()
    if G.rot:
        e(f"s_mov_b32 s63, s{S_KI}")
    pre = G.pre_R or []
    for st in range(G.S):
        for g in ind:
            e.ext(g)
        e.ext(book_part(G, first))
    e(f"s_mov_b32 s{S_WR}, 0")
    if G.rot:
        e(f"s_mov_b32 s{S_KI}, s63")
    e.ext(pre)
    mid(len(ind) * G.S)
    for st in range(G.S):
        for g in dep:
            e.ext(g)
        e.ext(book_part(G, second))
        e.ext(pre)
    e(f"s_mov_b32 s{S_WR}, 0")
    e(f"s_sub_u32 s{S_LEFT}, s{S_NS}, {G.S}")
    e(f"s_waitcnt vmcnt({(G.S-1)*len(dep)})")
    e("s_barrier")
    e(f"s_mov_b32 s{S_CNT}, s{S_NS}")
    e(f"s_waitcnt vmcnt({(G.S-2)*len(dep)})")
    e(f"s_branch {p}_lmid")
    late = getattr(G, 'late', False)
    if late:
        e.lab(f"{p}_chk")
        e(f"v_cmp_ne_u32 vcc, s{S_NONCE}, v23")
        e(f"s_cbranch_vccz {p}_lmid")
        poll(e, 22, 23, f"{p}_late", 2)
        e(f"s_branch {p}_lmid")
    e.lab(f"{p}_lloop")
    e(f"s_waitcnt vmcnt({(G.S-2)*G.D})")
    if late:
        e(f"s_cmp_eq_u32 s{S_CNT}, 23")
        e(f"s_cbranch_scc1 {p}_chk")
    e.lab(f"{p}_lmid")
    e("s_barrier")
    if late:
        e(f"s_cmp_lg_u32 s{S_CNT}, 24")
        e(f"s_cbranch_scc1 {p}_np")
        e(f"buffer_load_dword v23, v22, s[{S_DBG}:{S_DBG+3}], 0 offen sc1")
        e.lab(f"{p}_np")
    for g in G.dma_groups():
        e.ext(g)
    e.ext(G.dma_book())
    e.ext(pre)
    e(f"s_sub_u32 s{S_CNT}, s{S_CNT}, 1")
    e(f"s_cmp_lg_u32 s{S_CNT}, 0")
    e(f"s_cbranch_scc1 {p}_lloop")


def ln_body(e):
    for i in range(8):
        e(f"v_lshlrev_b32 v{16+2*i}, 16, v{4+i}")
        e(f"v_and_b32 v{17+2*i}, 0xffff0000, v{4+i}")

    def tree(dst, src):
        for i in range(8):
            e(f"v_add_f32 v{40+i}, v{src+2*i}, v{src+2*i+1}")
        for i in range(4):
            e(f"v_add_f32 v{40+i}, v{40+i}, v{44+i}")
        e("v_add_f32 v40, v40, v42")
        e("v_add_f32 v41, v41, v43")
        e(f"v_add_f32 v{dst}, v40, v41")

    def wred(v):
        for sh in (1, 2, 4, 8):
            e("s_nop 1")
            e(f"v_add_f32_dpp v{v}, v{v}, v{v} row_ror:{sh} row_mask:0xf bank_mask:0xf")
        e("v_mov_b32 v48, v%d" % v)
        e("s_nop 1")
        e(f"v_permlane32_swap_b32 v{v}, v48")
        e(f"v_add_f32 v{v}, v{v}, v48")
        e("v_mov_b32 v48, v%d" % v)
        e("s_nop 1")
        e(f"v_permlane16_swap_b32 v{v}, v48")
        e(f"v_add_f32 v{v}, v{v}, v48")

    tree(3, 16)
    wred(3)
    e("v_mul_f32 v3, 0x3a800000, v3")
    for i in range(16):
        e(f"v_sub_f32 v{52+i}, v{16+i}, v3")
    for i in range(16):
        e(f"v_mul_f32 v{52+i}, v{52+i}, v{52+i}")
    tree(12, 52)
    wred(12)
    e("v_mul_f32 v12, 0x3a800000, v12")
    e("v_cvt_pk_bf16_f32 v13, v3, v12")
    e("v_lshlrev_b32 v3, 16, v13")
    e("v_and_b32 v12, 0xffff0000, v13")
    e("v_add_f32 v12, 0x3727c5ac, v12")
    e("v_cvt_pk_bf16_f32 v13, v12, v12")
    e("v_lshlrev_b32 v12, 16, v13")
    e("v_sqrt_f32 v12, v12")
    e("s_nop 0")
    e("v_cvt_pk_bf16_f32 v13, v12, v12")
    e("v_lshlrev_b32 v12, 16, v13")
    e("v_rcp_f32 v14, v12")
    for i in range(8):
        e(f"v_sub_f32 v{16+2*i}, v{16+2*i}, v3")
        e(f"v_sub_f32 v{17+2*i}, v{17+2*i}, v3")
        e(f"v_cvt_pk_bf16_f32 v{4+i}, v{16+2*i}, v{17+2*i}")
        e(f"v_lshlrev_b32 v{16+2*i}, 16, v{4+i}")
        e(f"v_and_b32 v{17+2*i}, 0xffff0000, v{4+i}")
    for i in range(16):
        e(f"v_mul_f32 v{52+i}, v{16+i}, v14")
        e(f"v_fma_f32 v{16+i}, -v{52+i}, v12, v{16+i}")
        e(f"v_fma_f32 v{52+i}, v{16+i}, v14, v{52+i}")
    for i in range(8):
        e(f"v_cvt_pk_bf16_f32 v{4+i}, v{52+2*i}, v{53+2*i}")


HG = 122 * 1024
AG = 66 * 1024
ACC = 80


def g1_epi3(e, G, pre):
    e("v_mbcnt_lo_u32_b32 v1, -1, 0")
    e("v_mbcnt_hi_u32_b32 v1, -1, v1")
    e("v_and_b32 v2, 15, v1")
    e("v_lshrrev_b32 v3, 4, v1")
    e("v_and_b32 v4, 1, v3")
    e("v_lshlrev_b32 v4, 5, v4")
    e("v_lshrrev_b32 v5, 1, v3")
    e("v_lshl_add_u32 v4, v5, 4, v4")
    e("v_lshl_add_u32 v4, v2, 6, v4")
    e(f"s_lshl_b32 s{S_T0}, s{S_WAVE}, 6")
    e(f"s_add_u32 s{S_T0}, s{S_T0}, s{S_ROW0}")
    e(f"s_lshr_b32 s36, s{S_ROW0}, 6")
    e(f"s_lshl_b32 s34, s{S_COL0}, 7")
    e("s_add_u32 s34, s34, s36")
    e(f"s_add_u32 s34, s34, {FLY}")
    e(f"s_lshr_b32 s35, s{S_ROW0}, 1")
    e(f"s_lshl_b32 s37, s{S_COL0}, 2")
    e("s_add_u32 s35, s35, s37")
    e(f"s_add_u32 s35, s35, {FLO}")
    for r in G.regions:
        if r.typ == 'T':
            srd(e, S_SRD_O, 28, 29, 128 * AG, WS_AT)
            e(f"s_mul_i32 s{S_T1}, s{S_COL0}, {11*AG}")
            e(f"s_lshl_b32 s{S_T2}, s{S_T0}, 5")
            e(f"s_add_u32 s{S_T1}, s{S_T1}, s{S_T2}")
            e(f"v_add_u32 v6, s{S_T1}, v4")
            e(f"s_mul_i32 s{S_T1}, s{S_COL0}, 11")
            for j in range(r.ng):
                n = r.g0 + j
                b = 16 + (j & 3) * 8
                e(f"s_add_u32 s{S_T2}, s{S_T1}, {n}")
                e(f"s_cmp_lt_u32 s{S_T2}, 64")
                e(f"s_cselect_b32 s{S_DL}, 0, 0x80008000")
                e(f"s_mov_b32 s{S_T2}, {n*AG}")
                for m in range(4):
                    a = G.acc(m, n)
                    e(f"v_cvt_pk_bf16_f32 v{b+2*m}, v{a}, v{a+1}")
                    e(f"v_cvt_pk_bf16_f32 v{b+2*m+1}, v{a+2}, v{a+3}")
                for k in range(8):
                    e(f"v_xor_b32 v{b+k}, s{S_DL}, v{b+k}")
                e("s_nop 1")
                for h in range(2):
                    e(f"v_permlane16_swap_b32 v{b+4*h}, v{b+2+4*h}")
                    e(f"v_permlane16_swap_b32 v{b+1+4*h}, v{b+3+4*h}")
                e(f"buffer_store_dwordx4 v[{b}:{b+3}], v6, s[{S_SRD_O}:{S_SRD_O+3}], s{S_T2} offen sc1")
                e(f"buffer_store_dwordx4 v[{b+4}:{b+7}], v6, s[{S_SRD_O}:{S_SRD_O+3}], s{S_T2} offen offset:1024 sc1")
        else:
            srd(e, S_SRD_O, 28, 29, 128 * HG, WS_H)
            srd(e, S_SRD_B, 26, 27, 7168)
            e(f"s_mul_i32 s{S_T1}, s{S_COL0}, 352")
            e(f"s_sub_u32 s{S_T1}, s{S_T1}, {(128 - r.g0) * 32}")
            e("v_lshlrev_b32 v7, 3, v3")
            e(f"v_add_u32 v7, s{S_T1}, v7")
            nq = -(-r.ng // 4)

            def ldb(Q):
                for j in range(4 * Q, min(4 * Q + 4, r.ng)):
                    d = 64 + 8 * (Q & 1) + 2 * (j - 4 * Q)
                    e(f"buffer_load_dwordx2 v[{d}:{d+1}], v7, s[{S_SRD_B}:{S_SRD_B+3}], 0 offen offset:{32*j}")
            ldb(0)
            if nq > 1:
                ldb(1)
            e(f"s_lshr_b32 s{S_T2}, s{S_T0}, 4")
            e(f"s_mul_i32 s{S_T2}, s{S_T2}, {HG}")
            if pre != 'g1m':
                e(f"s_mul_i32 s{S_RD}, s{S_COL0}, 6144")
                e(f"s_sub_u32 s{S_RD}, s{S_RD}, {12*6144-2048}")
                e(f"s_add_u32 s{S_T2}, s{S_T2}, s{S_RD}")
            e(f"v_add_u32 v6, s{S_T2}, v4")
            c1 = -2.0 * math.log2(math.e) * math.sqrt(2.0 / math.pi)
            c2 = c1 * 0.044715
            e(f"v_mov_b32 v10, {f2u(c1):#x}")
            e(f"v_mov_b32 v11, {f2u(c1):#x}")
            e(f"v_mov_b32 v12, {f2u(c2):#x}")
            e(f"v_mov_b32 v13, {f2u(c2):#x}")
            e("v_mov_b32 v14, 1.0")
            e("v_mov_b32 v15, 1.0")
            for Q in range(nq):
                ng = min(4, r.ng - 4 * Q)
                if Q == 0:
                    e(f"s_waitcnt vmcnt({min(4, r.ng-4) if nq > 1 else 0})")
                elif Q == 1:
                    e("s_waitcnt vmcnt(11)")
                else:
                    e("s_waitcnt vmcnt(16)")
                for jj in range(ng):
                    bq = 64 + 8 * (Q & 1) + 2 * jj
                    e(f"v_lshlrev_b32 v{48+4*jj}, 16, v{bq}")
                    e(f"v_and_b32 v{49+4*jj}, 0xffff0000, v{bq}")
                    e(f"v_lshlrev_b32 v{50+4*jj}, 16, v{bq+1}")
                    e(f"v_and_b32 v{51+4*jj}, 0xffff0000, v{bq+1}")
                if Q + 2 < nq:
                    ldb(Q + 2)
                for m in range(4):
                    t = G.acc(m, r.g0 + 4 * Q)
                    u = 16 + 16 * (m & 1)
                    np_ = 2 * ng
                    P = lambda b_, h: f"v[{b_+2*h}:{b_+2*h+1}]"
                    for h in range(np_):
                        e(f"v_pk_add_f32 {P(t,h)}, {P(t,h)}, {P(48,h)}")
                    for h in range(np_):
                        e(f"v_pk_mul_f32 {P(u,h)}, {P(t,h)}, {P(t,h)}")
                    for h in range(np_):
                        e(f"v_pk_fma_f32 {P(u,h)}, {P(u,h)}, v[12:13], v[10:11]")
                    for h in range(np_):
                        e(f"v_pk_mul_f32 {P(u,h)}, {P(u,h)}, {P(t,h)}")
                    for x in range(2 * np_):
                        e(f"v_exp_f32 v{u+x}, v{u+x}")
                    for h in range(np_):
                        e(f"v_pk_add_f32 {P(u,h)}, {P(u,h)}, v[14:15]")
                    for x in range(2 * np_):
                        e(f"v_rcp_f32 v{u+x}, v{u+x}")
                    for h in range(np_):
                        e(f"v_pk_mul_f32 {P(t,h)}, {P(t,h)}, {P(u,h)}")
                    for h in range(np_):
                        e(f"v_cvt_pk_bf16_f32 v{u+h}, v{t+2*h}, v{t+2*h+1}")
                    if ng == 3:
                        e(f"v_mov_b32 v{u+6}, 0")
                        e(f"v_mov_b32 v{u+7}, 0")
                    e(f"s_mov_b32 s{S_T2}, {m*HG + Q*2048}")
                    e("s_nop 0")
                    for h in range(2):
                        e(f"v_permlane16_swap_b32 v{u+4*h}, v{u+2+4*h}")
                        e(f"v_permlane16_swap_b32 v{u+1+4*h}, v{u+3+4*h}")
                    e(f"buffer_store_dwordx4 v[{u}:{u+3}], v6, s[{S_SRD_O}:{S_SRD_O+3}], s{S_T2} offen sc1")
                    e(f"buffer_store_dwordx4 v[{u+4}:{u+7}], v6, s[{S_SRD_O}:{S_SRD_O+3}], s{S_T2} offen offset:1024 sc1")
                if Q >= 1 and not (OPT.get('defer', 1) and Q == 2):
                    signal(e, 4 + Q - 1, f"{pre}q{Q}", [35], 8)
                    e("s_add_u32 s35, s35, 1024")


def warm(e, pre):
    if not OPT.get('warm'):
        return
    e(f"s_mov_b32 m0, {LDS_CNT + 256}")
    e("s_lshr_b32 s34, s2, 3")
    e("s_cmp_ge_u32 s34, 3")
    e(f"s_cbranch_scc1 {pre}_w1")
    e("s_lshl_b32 s34, s34, 2")
    e(f"s_add_u32 s34, s34, s{S_WAVE}")
    e("s_lshl_b32 s34, s34, 13")
    e("v_lshlrev_b32 v4, 7, v1")
    e("v_add_u32 v4, s34, v4")
    e(f"v_min_u32 v4, k_done-{KNAME}, v4")
    e("s_getpc_b64 s[34:35]")
    e.lab(f"{pre}_pc")
    e(f"s_sub_u32 s34, s34, {pre}_pc-{KNAME}")
    e("s_subb_u32 s35, s35, 0")
    e("global_load_lds_dword v4, s[34:35]")
    e.lab(f"{pre}_w1")
    if OPT['warm'] >= 2:
        e("s_load_dwordx4 s[64:67], s[0:1], 8")
        e("s_load_dwordx2 s[68:69], s[0:1], 64")
        e("s_load_dwordx2 s[70:71], s[0:1], 80")
        e("v_lshlrev_b32 v4, 21, v1")
        e("s_waitcnt lgkmcnt(0)")
        e(f"s_cmp_eq_u32 s{S_WAVE}, 0")
        e("s_cselect_b32 s72, s28, s64")
        e("s_cselect_b32 s73, s29, s65")
        e(f"s_cselect_b32 s74, {64*MB}, s{S_NREC}") if False else None
        e(f"s_mov_b32 s74, {8*MB}")
        e(f"s_cselect_b32 s74, {64*MB}, s74")
        e(f"s_cmp_eq_u32 s{S_WAVE}, 2")
        e("s_cselect_b32 s72, s66, s72")
        e("s_cselect_b32 s73, s67, s73")
        e(f"s_cmp_eq_u32 s{S_WAVE}, 3")
        e("s_cselect_b32 s72, s68, s72")
        e("s_cselect_b32 s73, s69, s73")
        e(f"s_cselect_b32 s74, {3584*2048}, s74")
        e("s_mov_b32 s75, 0x20000")
        e("buffer_load_dword v4, s[72:75], 0 offen lds")
        srd(e, 72, 70, 71, 4 * MB)
        e("buffer_load_dword v4, s[72:75], 0 offen lds")


def combine(e, G, typ, q):
    uid = f"{q}"
    keep = [2 * q, 2 * q + 1]
    e("v_mbcnt_lo_u32_b32 v1, -1, 0")
    e("v_mbcnt_hi_u32_b32 v1, -1, v1")
    e("v_and_b32 v2, 15, v1")
    e("v_lshrrev_b32 v3, 4, v1")
    e("v_lshlrev_b32 v5, 4, v1")
    srd(e, S_SRD_O, 28, 29, 32 * MB, WS_PB)
    e(f"s_lshr_b32 s34, s{S_ROW0}, 5")
    e(f"s_lshr_b32 s35, s{S_COL0}, 7")
    e("s_add_u32 s34, s34, s35")
    e("s_lshl_b32 s34, s34, 4")
    e(f"s_add_u32 s34, s34, s{S_WAVE}")
    e("s_lshl_b32 s34, s34, 15")
    e(f"s_add_u32 s35, s34, {q * 131072}")
    for m in range(8):
        if m in keep:
            continue
        e(f"s_add_u32 s{S_T2}, s35, {m*4096}")
        if typ == 'y' or OPT.get('ob'):
            for c in range(2):
                t = 16 + ((2 * m + c) & 7) * 4
                for qq in range(2):
                    a = G.acc(m, 2 * c + qq)
                    e(f"v_cvt_pk_bf16_f32 v{t+2*qq}, v{a}, v{a+1}")
                    e(f"v_cvt_pk_bf16_f32 v{t+2*qq+1}, v{a+2}, v{a+3}")
                e(f"buffer_store_dwordx4 v[{t}:{t+3}], v5, s[{S_SRD_O}:{S_SRD_O+3}], s{S_T2} offen offset:{c*1024} sc1")
        else:
            for n in range(4):
                a = G.acc(m, n)
                e(f"buffer_store_dwordx4 v[{a}:{a+3}], v5, s[{S_SRD_O}:{S_SRD_O+3}], s{S_T2} offen offset:{n*1024} sc1")
    e("s_lshr_b32 s36, s34, 12")
    e("s_and_b32 s36, s36, 0xff80")
    e(f"s_add_u32 s36, s36, {FLC}")
    e(f"s_add_u32 s37, s36, {4*q}")
    signal(e, 3, f"c{uid}", [37])
    OPT['sbase'] = 0
    stamp3(e, 8)
    e("s_load_dwordx2 s[20:21], s[0:1], 0")
    e("s_load_dwordx4 s[24:27], s[0:1], 72")
    e("v_mbcnt_lo_u32_b32 v1, -1, 0")
    e("v_mbcnt_hi_u32_b32 v1, -1, v1")
    e(f"s_lshr_b32 s{S_T0}, s{S_WAVE}, 1")
    e(f"s_lshl_b32 s{S_T0}, s{S_T0}, 7")
    e(f"s_add_u32 s{S_T0}, s{S_T0}, s{S_ROW0}")
    e(f"s_add_u32 s{S_T0}, s{S_T0}, {32*q}")
    e(f"s_and_b32 s{S_T1}, s{S_WAVE}, 1")
    e(f"s_lshl_b32 s{S_T1}, s{S_T1}, 6")
    e(f"s_add_u32 s{S_T1}, s{S_T1}, s{S_COL0}")
    e(f"v_add_u32 v6, s{S_T0}, v2")
    e("v_lshlrev_b32 v6, 11, v6")
    e(f"v_lshl_add_u32 v7, v3, 2, s{S_T1}")
    e("v_lshlrev_b32 v7, 1, v7")
    e("v_add_u32 v8, v6, v7")
    e("v_and_b32 v4, 1, v3")
    e("v_lshlrev_b32 v4, 4, v4")
    e("v_lshrrev_b32 v9, 1, v3")
    e("v_lshl_add_u32 v4, v9, 3, v4")
    e(f"v_add_u32 v4, s{S_T1}, v4")
    e("v_lshl_add_u32 v9, v4, 1, v6")
    e("v_and_b32 v10, 3, v1")
    e("v_lshl_add_u32 v10, v10, 2, s36")
    e("s_waitcnt lgkmcnt(0)")
    srd(e, 64, 20, 21, 4 * MB)
    srd(e, 68, 24, 25, 2048)
    srd(e, 72, 26, 27, 4 * MB)
    XA = 240
    for mi in range(2):
        for n in range(4):
            e(f"buffer_load_dwordx2 v[{XA+8*mi+2*n}:{XA+8*mi+2*n+1}], v8, s[64:67], 0 offen offset:{mi*0+n*32}" if mi == 0 else
              f"buffer_load_dwordx2 v[{XA+8*mi+2*n}:{XA+8*mi+2*n+1}], v12, s[64:67], 0 offen offset:{n*32}")
        if mi == 0:
            e("v_add_u32 v12, 0x8000, v8")
    for n in range(4):
        e(f"buffer_load_dwordx2 v[{72+2*n}:{73+2*n}], v7, s[68:71], 0 offen offset:{n*32}")
    poll(e, 10, 11, f"c{uid}", OPT.get('slc', 4))
    stamp3(e, 9)
    ysrc = [s for s in (0, 1) if s != q]
    osrc = [s for s in (2, 3) if s != q]
    loc = {}
    pool_v = []
    pool_a = [G.acc(m, n) for m in range(8) if m not in keep for n in range(4)]
    for mi, m in enumerate(keep):
        for s_ in ysrc + osrc:
            nch = 2 if (s_ < 2 or OPT.get('ob')) else 4
            e(f"s_add_u32 s{S_T2}, s34, {s_*131072 + m*4096}")
            for c in range(nch):
                if pool_a:
                    r = ('v', pool_a.pop(0))
                else:
                    r = ('v', pool_v.pop(0))
                loc[(mi, s_, c)] = r
                e(f"buffer_load_dwordx4 {r[0]}[{r[1]}:{r[1]+3}], v5, s[{S_SRD_O}:{S_SRD_O+3}], s{S_T2} offen offset:{c*1024} sc1")
    assert len(loc) <= 18 or True
    e("s_mov_b32 s37, 0xbfb8aa3b")
    nld = len(loc) // 2

    def get(dst, r, k):
        if r[0] == 'a':
            e(f"v_accvgpr_read_b32 v{dst}, a{r[1]+k}")
        else:
            e(f"v_mov_b32 v{dst}, v{r[1]+k}")

    def rnd(base, tmp):
        for i in range(4):
            e(f"v_cvt_pk_bf16_f32 v{tmp+i}, v{base+2*i}, v{base+2*i+1}")
        for i in range(4):
            e(f"v_lshlrev_b32 v{base+2*i}, 16, v{tmp+i}")
            e(f"v_and_b32 v{base+2*i+1}, 0xffff0000, v{tmp+i}")

    def unpack(dst, r):
        for i in range(4):
            if r[0] == 'a':
                e(f"v_accvgpr_read_b32 v{dst+2*i+1}, a{r[1]+i}")
                e(f"v_lshlrev_b32 v{dst+2*i}, 16, v{dst+2*i+1}")
                e(f"v_and_b32 v{dst+2*i+1}, 0xffff0000, v{dst+2*i+1}")
            else:
                e(f"v_lshlrev_b32 v{dst+2*i}, 16, v{r[1]+i}")
                e(f"v_and_b32 v{dst+2*i+1}, 0xffff0000, v{r[1]+i}")

    A, B, TM = 12, 20, 28
    PR = lambda r_, h: f"v[{r_+2*h}:{r_+2*h+1}]"
    for mi, m in enumerate(keep):
        e(f"s_waitcnt vmcnt({nld if mi == 0 else 2})")
        for c in range(2):
            own = G.acc(m, 2 * c)
            for k, s_ in enumerate((0, 1)):
                dst = A if k == 0 else B
                if s_ == q:
                    for i in range(4):
                        e(f"v_cvt_pk_bf16_f32 v{TM+i}, v{own+2*i}, v{own+2*i+1}")
                    unpack(dst, ('v', TM))
                else:
                    unpack(dst, loc[(mi, s_, c)])
            for h in range(4):
                e(f"v_pk_add_f32 {PR(A,h)}, {PR(A,h)}, {PR(B,h)}")
            rnd(A, TM)
            if OPT.get('ob'):
                for k, s_ in enumerate((2, 3)):
                    dst = B if k == 0 else 32
                    if s_ == q:
                        for i in range(4):
                            e(f"v_cvt_pk_bf16_f32 v{TM+i}, v{own+2*i}, v{own+2*i+1}")
                        unpack(dst, ('v', TM))
                    else:
                        unpack(dst, loc[(mi, s_, c)])
                for h in range(4):
                    e(f"v_pk_add_f32 {PR(B,h)}, {PR(B,h)}, {PR(32,h)}")
            for qq in range(2 if not OPT.get('ob') else 0):
                n = 2 * c + qq
                src = [G.acc(m, n) if s_ == q else loc[(mi, s_, n)][1] for s_ in (2, 3)]
                for h in range(2):
                    e(f"v_pk_add_f32 {PR(B+4*qq,h)}, {PR(src[0],h)}, {PR(src[1],h)}")
            rnd(B, TM)
            for qq in range(2):
                bb = 72 + 2 * (2 * c + qq)
                e(f"v_lshlrev_b32 v{TM}, 16, v{bb}")
                e(f"v_and_b32 v{TM+1}, 0xffff0000, v{bb}")
                e(f"v_lshlrev_b32 v{TM+2}, 16, v{bb+1}")
                e(f"v_and_b32 v{TM+3}, 0xffff0000, v{bb+1}")
                for h in range(2):
                    e(f"v_pk_add_f32 {PR(B+4*qq,h)}, {PR(B+4*qq,h)}, {PR(TM,h)}")
            rnd(B, TM)
            U = 32
            for x in range(8):
                e(f"v_mul_f32 v{U+x}, s37, v{B+x}")
            for x in range(8):
                e(f"v_exp_f32 v{U+x}, v{U+x}")
            for x in range(8):
                e(f"v_add_f32 v{U+x}, 1.0, v{U+x}")
            for x in range(8):
                e(f"v_rcp_f32 v{U+x}, v{U+x}")
            for h in range(4):
                e(f"v_pk_mul_f32 {PR(B,h)}, {PR(B,h)}, {PR(U,h)}")
            rnd(B, TM)
            for h in range(4):
                e(f"v_pk_mul_f32 {PR(A,h)}, {PR(A,h)}, {PR(B,h)}")
            rnd(A, TM)
            unpack(B, ('v', XA + 8 * mi + 4 * c))
            for h in range(4):
                e(f"v_pk_add_f32 {PR(A,h)}, {PR(A,h)}, {PR(B,h)}")
            O = 40 + 4 * (2 * mi + c)
            for i in range(4):
                e(f"v_cvt_pk_bf16_f32 v{O+i}, v{A+2*i}, v{A+2*i+1}")
            e(f"s_mov_b32 s{S_T2}, {mi*32768}")
            e("s_nop 0")
            e(f"v_permlane16_swap_b32 v{O}, v{O+2}")
            e(f"v_permlane16_swap_b32 v{O+1}, v{O+3}")
            e(f"buffer_store_dwordx4 v[{O}:{O+3}], v9, s[72:75], s{S_T2} offen offset:{c*64}")


def gen_fused(e):
    X = OPT['X']
    khead(e, KNAME)
    e("s_cmp_ge_u32 s2, 256")
    e("s_cbranch_scc1 k_done")
    e("s_load_dwordx2 s[32:33], s[0:1], 0")
    e("s_load_dwordx4 s[20:23], s[0:1], 24")
    e("s_load_dwordx4 s[24:27], s[0:1], 48")
    e("s_load_dwordx4 s[28:31], s[0:1], 88")
    lane_wave(e, 'B')
    e(f"s_mov_b32 s39, s{S_T2}")
    e("s_lshl_b32 s30_, s2, 3".replace("s30_", "s38"))
    e("s_add_u32 s38, s38, s39")
    e("v_lshlrev_b32 v2, 4, v1")
    e("s_lshl_b32 s37, s38, 11")
    e(f"s_mul_i32 s38, s38, {XS}")
    e(f"v_mov_b32 v3, {LDS_CNT}")
    e("v_mov_b32 v4, 0")
    e("v_mov_b32 v5, 0")
    e("v_mov_b32 v6, 0")
    e("v_mov_b32 v7, 0")
    e("ds_write_b128 v3, v[4:7]")
    e("ds_write_b128 v3, v[4:7] offset:16")
    e("ds_write_b128 v3, v[4:7] offset:48")
    e("s_waitcnt lgkmcnt(0)")
    srd(e, 64, 32, 33, 4 * MB)
    e("buffer_load_dwordx4 v[4:7], v2, s[64:67], s37 offen")
    e("buffer_load_dwordx4 v[8:11], v2, s[64:67], s37 offen offset:1024")
    srd(e, 68, 28, 29, 256)
    e("s_mov_b64 s[28:29], s[30:31]")
    srd(e, S_DBG, 28, 29, 16384, WS_FL)
    e("s_cmp_lg_u32 s39, 4")
    e("s_cbranch_scc1 nonce_done")
    e("v_mov_b32 v12, 0")
    e("s_cmp_lg_u32 s2, 0")
    e("s_cbranch_scc1 nonce_poll")
    e("s_memrealtime s[100:101]")
    e("s_waitcnt lgkmcnt(0)")
    e("s_or_b32 s100, s100, 1")
    e("v_mov_b32 v13, s100")
    e("buffer_store_dword v13, v12, s[68:71], 0 offen sc1")
    e("s_branch nonce_got")
    e.lab("nonce_poll")
    e(f"s_mov_b32 s{S_T2}, {SPIN_MAX}")
    e.lab("nonce_l")
    e("buffer_load_dword v13, v12, s[68:71], 0 offen sc1")
    e("s_waitcnt vmcnt(0)")
    e("v_cmp_eq_u32 vcc, 0, v13")
    e("s_cbranch_vccz nonce_got")
    e("s_sleep 2")
    e(f"s_sub_u32 s{S_T2}, s{S_T2}, 1")
    e(f"s_cmp_lg_u32 s{S_T2}, 0")
    e("s_cbranch_scc1 nonce_l")
    e.lab("nonce_got")
    e("ds_write_b32 v3, v13 offset:32")
    e("s_waitcnt lgkmcnt(0)")
    e.lab("nonce_done")
    srd(e, S_SRD_R, 28, 29, 2048 * XS, WS_XN)
    e("s_and_b32 s30, s2, 1")
    e("s_lshl_b32 s30, s30, 2")
    e("s_lshr_b32 s31, s2, 3")
    e(f"s_and_b32 s{S_ROW0}, s31, 3")
    e(f"s_add_u32 s{S_ROW0}, s{S_ROW0}, s30")
    e(f"s_lshl_b32 s{S_ROW0}, s{S_ROW0}, 8")
    e("s_and_b32 s30, s2, 6")
    e("s_lshl_b32 s30, s30, 2")
    e(f"s_lshr_b32 s{S_COL0}, s31, 2")
    e(f"s_add_u32 s{S_COL0}, s{S_COL0}, s30")
    e(f"s_mov_b32 s{S_NS}, 16")
    e(f"s_mov_b32 s{S_KR}, 0")
    e(f"s_mov_b32 s{S_KC}, 0")
    e(f"s_mov_b32 s{S_KN}, 0")
    e("s_waitcnt vmcnt(0)")
    ln_body(e)
    e(f"buffer_store_dwordx4 v[4:7], v2, s[{S_SRD_R}:{S_SRD_R+3}], s38 offen sc1")
    e(f"buffer_store_dwordx4 v[8:11], v2, s[{S_SRD_R}:{S_SRD_R+3}], s38 offen offset:1024 sc1")
    e(f"s_cmp_lt_u32 s{S_COL0}, 11")
    e("s_cbranch_scc1 g1d_start")
    e(f"s_cmp_eq_u32 s{S_COL0}, 11")
    e("s_cbranch_scc1 g1m_start")
    e("s_branch g1f_start")

    variants = {
        'g1d': [Region('T', 0, 11, 0, 2048)],
        'g1m': [Region('T', 0, 7, 0, 2048), Region('Nadd', 7, 4, 16384, 7168)],
        'g1f': [Region('Nadd', 0, 11, 0, 7168)],
    }
    for pre, regs in variants.items():
        orient = []
        for r in regs:
            orient += ['RA' if r.typ == 'T' else 'CA'] * r.ng
        G = Gemm(e, pre, 'B', 2, 4, 11, 4, 1, regs, XS, 'C', orient, nsteps=16)
        G.sc1R = True
        G.accv = ACC
        if OPT.get('rot1'):
            G.rot = (OPT['rot1'], OPT.get('rotmul1', 1))
        e.lab(f"{pre}_start")

        def cset(ri, j, so, G=G, pre=pre):
            r = G.regions[ri]
            if r.typ == 'T':
                e(f"s_mul_i32 s{S_T0}, s{S_COL0}, 22")
                e(f"s_mul_i32 s{S_T1}, s{G.lw}, {r.DW*G.mult}")
                e(f"s_add_u32 s{S_T1}, s{S_T1}, {j}")
                e(f"s_add_u32 s{S_T0}, s{S_T0}, s{S_T1}")
                e(f"s_cmp_lt_u32 s{S_T0}, 128")
                e(f"s_cselect_b32 s{so}, s20, s22")
                e(f"s_cselect_b32 s{so+1}, s21, s23")
                e(f"s_and_b32 s{S_T0}, s{S_T0}, 127")
                e(f"s_lshl_b32 s{S_T0}, s{S_T0}, 14")
                e(f"s_cmp_lt_u32 s{S_T1}, {r.ninstr}")
                e(f"s_cselect_b32 s{so+2}, {2*MB}, 0")
                e(f"s_mov_b32 s{so+3}, 0x20000")
                e(f"s_cselect_b32 s{S_T0}, s{S_T0}, 4096")
            else:
                srd(e, so, 24, 25, 1024 * 7168)
                e(f"s_mul_i32 s{S_T0}, s{S_COL0}, 352")
                e(f"s_sub_u32 s{S_T0}, s{S_T0}, {(128 - r.g0) * 32}")

        e("s_cmp_ge_u32 s39, 4")
        e(f"s_cbranch_scc0 {pre}_comp")

        def mid(nind, pre=pre, dopoll=True):
            e(f"s_waitcnt vmcnt({nind})")
            e("s_barrier")
            get_nonce(e, 2)
            if not dopoll:
                return
            e(f"s_cmp_lg_u32 s{S_WAVE}, 0")
            e(f"s_cbranch_scc1 {pre}_nf")
            e("s_lshl_b32 s37, s2, 2")
            e("v_mov_b32 v2, 0")
            e(f"v_mov_b32 v3, s{S_NONCE}")
            e("s_mov_b64 exec, 1")
            e(f"buffer_store_dword v3, v2, s[{S_DBG}:{S_DBG+3}], s37 offen sc1")
            e("s_mov_b64 exec, -1")
            e.lab(f"{pre}_nf")
            e(f"s_lshr_b32 s{S_T0}, s{S_ROW0}, 1")
            e("v_and_b32 v2, 31, v1")
            e(f"v_lshl_add_u32 v2, v2, 2, s{S_T0}")
            lpoll(e, 2, 3, 1, pre, 1)
        asym = OPT.get('asym', 'R')
        if asym in ('R', 'C'):
            G.splitring = True
            G.SR, G.SC = (3, 2) if asym == 'R' else (2, 3)
            G.CB = G.SR * RT
            G.wc = 92
            G.loader_setup(1, 2, cset)
            gr, gc = split_dma(G)
            grp = {'R': gr, 'C': gc}
            dep = {'R': G.SR, 'C': G.SC}
            szs = {'R': RT, 'C': G.CS}
            wrs = {'R': S_WR, 'C': 92}
            kis = {'R': S_KI, 'C': 63}
            lefts = {'R': S_LEFT, 'C': 93}

            def book(part):
                out = book_part(G, part)[:-1]
                out = [x.replace(f"s{S_KI}", f"s{kis[part]}") for x in out]
                w = wrs[part]
                out += [f"s_add_u32 s{w}, s{w}, {szs[part]}",
                        f"s_cmp_ge_u32 s{w}, {szs[part]*dep[part]}",
                        f"s_cselect_b32 s{w}, 0, s{w}",
                        f"s_sub_u32 s{lefts[part]}, s{lefts[part]}, 1",
                        f"s_cmp_lt_i32 s{lefts[part]}, 1"]
                for sr in (G.srds[:1] if part == 'R' else G.srds[1:]):
                    out.append(f"s_cselect_b32 s{sr+2}, 0, s{sr+2}")
                return out
            G.loader_init()
            e("s_mov_b32 s92, 0")
            e(f"s_mov_b32 s93, s{S_NS}")
            if G.rot:
                e(f"s_mov_b32 s63, s{S_KI}")
            for st in range(G.SC):
                for g in gc:
                    e.ext(g)
                e.ext(book('C'))
            mid(len(gc) * G.SC)
            for st in range(G.SR):
                for g in gr:
                    e.ext(g)
                e.ext(book('R'))
            sh, dp = ('C', 'R') if asym == 'R' else ('R', 'C')
            e(f"s_waitcnt vmcnt({(G.SR-1)*len(gr)})")
            e("s_barrier")
            e(f"s_mov_b32 s{S_CNT}, s{S_NS}")
            e(f"s_waitcnt vmcnt({(G.SR-2)*len(gr)})")
            e(f"s_branch {pre}_lmid")
            e.lab(f"{pre}_lloop")
            e(f"s_waitcnt vmcnt({len(grp[dp])})")
            e.lab(f"{pre}_lmid")
            e("s_barrier")
            for g in grp[sh]:
                e.ext(g)
            for g in grp[dp]:
                e.ext(g)
            e.ext(book('R'))
            e.ext(book('C'))
            e(f"s_sub_u32 s{S_CNT}, s{S_CNT}, 1")
            e(f"s_cmp_lg_u32 s{S_CNT}, 0")
            e(f"s_cbranch_scc1 {pre}_lloop")
            e("s_branch g2_loader")
        else:
            G.loader_setup(1, 2, cset)
            loader_phase(e, G, 'C', mid, True)
            e("s_branch g2_loader")
        e.lab(f"{pre}_comp")
        npf = 0
        if OPT.get('pfa'):
            e("s_waitcnt vmcnt(0)")
            e("s_barrier")
        if OPT.get('pf0'):
            e("s_load_dwordx4 s[64:67], s[0:1], 8")
            e("s_load_dwordx2 s[68:69], s[0:1], 64")
            e(f"s_mov_b32 m0, {LDS_CNT + 256}")
            e("s_lshl_b32 s34, s2, 2")
            e(f"s_add_u32 s34, s34, s{S_WAVE}")
            e("s_lshl_b32 s34, s34, 13")
            e("v_lshlrev_b32 v12, 7, v1")
            e("s_waitcnt lgkmcnt(0)")
            items = [(68, 3584 * 2048), (64, 8 * MB), (66, 8 * MB)]
            if OPT['pf0'] >= 2:
                items = [(24, 1024 * 7168)] + items
            for (lo, nb) in items:
                srd(e, 72, lo, lo + 1, nb)
                e("buffer_load_dword v12, s[72:75], s34 offen lds")
                npf += 1
        if not OPT.get('pfa'):
            e(f"s_waitcnt vmcnt({npf})")
            e("s_barrier")
        get_nonce(e, 4)
        warm(e, pre)
        if OPT.get('pfl'):
            G.pfl = True
            e("s_load_dwordx2 s[64:65], s[0:1], 8")
            e("s_load_dwordx2 s[68:69], s[0:1], 16")
            e("s_load_dwordx2 s[70:71], s[0:1], 64")
            e(f"s_mov_b32 m0, {LDS_CNT + 256}")
            e("s_lshl_b32 s74, s2, 2")
            e(f"s_add_u32 s74, s74, s{S_WAVE}")
            e("s_lshl_b32 s74, s74, 13")
            e("s_mov_b32 s94, s74")
            e(f"s_mov_b32 s66, {8*MB}")
            e("s_mov_b32 s67, 0x20000")
            e(f"s_mov_b32 s72, {8*MB}")
            e(f"s_mov_b32 s73, {3584*2048}")
            e("v_cmp_gt_u32 vcc, 16, v1")
            e("v_lshlrev_b32 v30, 7, v1")
            e("v_mov_b32 v31, 0x7ff00000")
            e("v_cndmask_b32 v30, v31, v30, vcc")
            e("s_waitcnt lgkmcnt(0)")
        e(f"v_mov_b32 v{G.vfrag0+16}, v1")
        G.compute_setup(G.vfrag0 + 16, G.vfrag0)
        if getattr(G, 'pfl', False):
            e("v_mov_b32 v3, v30")
        G.compute_loop(X)
        g1_epi3(e, G, pre)
        stamp3(e, 11)
        offs = {'g1d': [34], 'g1m': [34, 35], 'g1f': [35]}[pre]
        if OPT.get('defer', 1) and pre == 'g1f':
            e("s_mov_b32 s94, 28")
            e("s_add_u32 s74, s35, 1024")
            e("s_mov_b32 s75, s35")
        else:
            e("s_mov_b32 s94, 99")
            signal(e, 2, pre, offs)
        stamp3(e, 4)
        e("s_branch g2_comp")

    def g2_common():
        e("s_load_dwordx4 s[20:23], s[0:1], 8")
        e("s_load_dwordx2 s[24:25], s[0:1], 64")
        e("v_mbcnt_lo_u32_b32 v1, -1, 0")
        e("v_mbcnt_hi_u32_b32 v1, -1, v1")
        e("s_lshr_b32 s30, s2, 1")
        e("s_and_b32 s30, s30, 2")
        e("s_and_b32 s31, s2, 1")
        e("s_add_u32 s30, s30, s31")
        e("s_and_b32 s31, s2, 2")
        e("s_lshl_b32 s31, s31, 1")
        e("s_lshr_b32 s32, s2, 3")
        e(f"s_and_b32 s{S_ROW0}, s32, 3")
        e(f"s_add_u32 s{S_ROW0}, s{S_ROW0}, s31")
        e(f"s_lshl_b32 s{S_ROW0}, s{S_ROW0}, 8")
        e(f"s_lshr_b32 s{S_COL0}, s32, 2")
        e(f"s_lshl_b32 s{S_COL0}, s{S_COL0}, 7")
        e(f"s_mov_b32 s{S_KC}, 0")
        e("s_waitcnt lgkmcnt(0)")

    Gs = {}
    for pre, regs, rstride, ns in (('g2y', [Region('T', 0, 8, 0, ATS)], 4096, 32), ('g2o', [Region('Nxor', 0, 8, 0, 2048)], 0, 28)):
        G = Gemm(e, pre, 'B', 3, 8, 4, 2, 2, regs, rstride, 'R', ['CA'] * 4, nsteps=ns)
        G.accv = ACC
        if pre == 'g2y':
            G.sc1C = True
            G.cblk = AG
        else:
            G.sc1R = True
            G.rblk = HG
        if OPT.get('rot2') and (pre == 'g2y' or OPT.get('rot2o')):
            G.rot = (OPT['rot2'], OPT.get('rotmul2', 1))
        Gs[pre] = G
    e.lab("g2_loader")
    g2_common()
    e("s_cmp_ge_u32 s30, 2")
    e("s_cbranch_scc1 g2o_lstart")
    for pre, G in Gs.items():
        e.lab(f"{pre}_lstart")
        if pre == 'g2y':
            e(f"s_mov_b32 s{S_NS}, 32")
            e(f"s_mov_b32 s{S_KR}, 0")
            e("s_cmp_eq_u32 s30, 0")
            e(f"s_cselect_b32 s{S_SRD_R}, s20, s22")
            e(f"s_cselect_b32 s{S_SRD_R+1}, s21, s23")
            e(f"s_mov_b32 s{S_SRD_R+2}, {8*MB}")
            e(f"s_mov_b32 s{S_SRD_R+3}, 0x20000")
        else:
            e("s_and_b32 s33, s30, 1")
            e(f"s_sub_u32 s{S_NS}, 31, s33")
            e(f"s_mul_i32 s{S_KR}, s33, {31*2048}")
            e(f"s_mul_i32 s{S_KN}, s33, {1824*2048}")
            e("s_mov_b32 s68, 0")
            e("s_mov_b32 s69, 0")
            e("s_mul_i32 s70, s33, 98")
            e("s_add_u32 s70, s70, 1")
            e("s_sub_u32 s71, 11, s33")
            e("s_add_u32 s72, s71, 10")
            e(f"s_mul_i32 s73, s33, {30*2048}")
            e("s_add_u32 s73, s73, 2048")
            e(f"s_mul_i32 s74, s33, {1760*2048}")
            e(f"s_add_u32 s74, s74, {64*2048}")

            def stepper(cnt, reg, base, inc, qinc):
                return [f"s_add_u32 s{cnt}, s{cnt}, 1",
                        f"s_add_u32 s{reg}, s{reg}, {inc}",
                        f"s_cmp_eq_u32 s{cnt}, s70",
                        f"s_cselect_b32 s{reg}, s{base}, s{reg}",
                        f"s_add_u32 s{S_T0}, s{base}, {qinc}",
                        f"s_cmp_eq_u32 s{cnt}, s71",
                        f"s_cselect_b32 s{reg}, s{S_T0}, s{reg}",
                        f"s_add_u32 s{S_T0}, s{base}, {2*qinc}",
                        f"s_cmp_eq_u32 s{cnt}, s72",
                        f"s_cselect_b32 s{reg}, s{S_T0}, s{reg}"]
            G.kn_step = stepper(68, S_KN, 74, 176 * 2048, 64 * 2048)
            G.kr_step = stepper(69, S_KR, 73, 6144, 2048)
            G.late = True
            srd(e, S_SRD_R, 28, 29, 128 * HG, WS_H)

        def cset(ri, j, so, G=G):
            r = G.regions[ri]
            if r.typ == 'T':
                srd(e, so, 28, 29, 128 * AG, WS_AT)
                e(f"s_lshl_b32 s{S_T0}, s30, 10")
                e(f"s_add_u32 s{S_T0}, s{S_T0}, s{S_COL0}")
                e(f"s_lshl_b32 s{S_T1}, s{S_WAVE}, 5")
                e(f"s_add_u32 s{S_T0}, s{S_T0}, s{S_T1}")
                e(f"s_add_u32 s{S_T0}, s{S_T0}, {16*(j>>1)}")
                e(f"s_mul_i32 s{S_T0}, s{S_T0}, {AG//16}")
                e(f"s_add_u32 s{S_T0}, s{S_T0}, {1024*(j&1)}")
            else:
                srd(e, so, 24, 25, 3584 * 2048)
                e(f"s_lshl_b32 s{S_T0}, s{S_COL0}, 1")
        G.loader_setup(1, 2, cset)

        def mid(nind, pre=pre):
            if pre == 'g2y':
                e(f"s_lshl_b32 s{S_T0}, s30, 10")
                e(f"s_add_u32 s{S_T0}, s{S_T0}, s{S_COL0}")
                e("v_and_b32 v2, 8, v1")
                e("v_lshlrev_b32 v2, 4, v2")
                e("v_min_u32 v2, 127, v2")
                e(f"v_add_u32 v2, s{S_T0}, v2")
                m1, sh1 = magic(176, 2048)
                e(f"v_mul_u32_u24 v2, {m1}, v2")
                e(f"v_lshrrev_b32 v2, {sh1}, v2")
                e("v_and_b32 v3, 7, v1")
                e("v_lshlrev_b32 v4, 7, v2")
                e("v_lshl_add_u32 v4, v3, 2, v4")
                e(f"v_add_u32 v4, {FLY}, v4")
            else:
                e("v_and_b32 v2, 15, v1")
                e("s_sub_u32 s34, 10, s33")
                e("v_min_u32 v2, s34, v2")
                e("s_mul_i32 s34, s33, 11")
                e("s_add_u32 s34, s34, 11")
                e("v_add_u32 v2, s34, v2")
                e(f"s_lshr_b32 s34, s{S_ROW0}, 1")
                e(f"s_add_u32 s34, s34, {FLO}")
                e("v_lshl_add_u32 v4, v2, 2, s34")
                e("v_and_b32 v2, 15, v1")
                e("v_min_u32 v2, 9, v2")
                e("s_mul_i32 s35, s33, 40")
                e("s_add_u32 s35, s35, s34")
                e(f"s_add_u32 s35, s35, {48 + 1024}")
                e("v_lshl_add_u32 v22, v2, 2, s35")
                e("v_and_b32 v2, 16, v1")
                e("v_lshl_add_u32 v22, v2, 6, v22")
            lpoll(e, 4, 5, 2, pre, OPT.get('sl2', 4))
        loader_phase(e, G, 'R' if pre == 'g2y' else 'C', mid, True)
        e("s_endpgm")
    e.lab("g2_comp")
    g2_common()
    e("s_cmp_ge_u32 s30, 2")
    e("s_cbranch_scc1 g2o_cstart")
    for pre, G in Gs.items():
        e.lab(f"{pre}_cstart")
        if pre == 'g2y':
            e(f"s_mov_b32 s{S_NS}, 32")
        else:
            e("s_and_b32 s33, s30, 1")
            e(f"s_sub_u32 s{S_NS}, 31, s33")
        e(f"v_mov_b32 v{G.vfrag0+16}, v1")
        G.compute_setup(G.vfrag0 + 16, G.vfrag0)
        OPT['sbase'] = 4
        if OPT.get('defer', 1):
            G.stub = ("s94", lambda pre=pre: signal(e, 2, f"d{pre}", [75, 74], 0, 72))
        G.compute_loop(X)
        OPT['sbase'] = 0
        e("s_and_b32 s33, s30, 1")
        e("s_cmp_eq_u32 s33, 1")
        e(f"s_cbranch_scc1 {pre}_e1")
        q0 = 0 if pre == 'g2y' else 2
        combine(e, G, pre[-1], q0)
        stamp3_out(e)
        e("s_endpgm")
        e.lab(f"{pre}_e1")
        combine(e, G, pre[-1], q0 + 1)
        stamp3_out(e)
        e("s_endpgm")
    e.lab("k_done")
    e("s_endpgm")
    kdesc(e, KNAME, 256, 256)


def main():
    out = sys.argv[1]
    for a in sys.argv[2:]:
        k, v = a.split("=")
        OPT[k] = int(v) if v.lstrip('-').isdigit() else v
    e = E()
    gen_fused(e)
    hdr = open("cdna_kernels/%s.s.ref" % KN).read().split("; Override launch")[0]
    hdr += f"; @launch grid=(256,1,1) block=(512,1,1) lds={LDS_TOTAL}\n"
    hdr += '.amdgcn_target "amdgcn-amd-amdhsa--gfx950"\n.text\n'
    open(out, "w").write(hdr + "\n".join(e.L) + "\n")


if __name__ == "__main__":
    main()
```

```python
import sys, math
import gen
from gen import *

KNAME = KN + "_kernel"
LDS_CNT = 155648
LDS_TOTAL = 155648 + 512
S_DBG = 96
WS_PB = 32 * MB
SPIN_MAX = 200000


def stamp3(e, k):
    if OPT.get('tl'):
        k += OPT.get('sbase', 0)
        lab = f"tl_{len(e.L)}"
        e("s_and_b32 s100, s2, 7")
        if k:
            e(f"s_or_b32 s100, s100, s{S_WAVE}")
        e("s_cmp_lg_u32 s100, 0")
        e(f"s_cbranch_scc1 {lab}")
        e("s_load_dwordx2 s[76:77], s[0:1], 88")
        e("s_memrealtime s[100:101]")
        e("s_waitcnt lgkmcnt(0)")
        if k == 0:
            e("s_not_b32 s100, s100")
        e("v_accvgpr_write_b32 a175, v0") if False else None
        e("v_mov_b32 v62, s100")
        e(f"v_mov_b32 v63, {8+4*k}")
        e("s_mov_b64 exec, 1")
        e("global_atomic_umax v63, v62, s[76:77]")
        e("s_mov_b64 exec, -1")
        e.lab(lab)
        return
    if OPT.get('stamp'):
        k += OPT.get('sbase', 0)
        e("s_memtime s[100:101]")
        e("s_waitcnt lgkmcnt(0)")
        e(f"s_mov_b32 s{76+k}, s100")
        if k in (0, 10):
            e("s_memrealtime s[100:101]")
            e("s_waitcnt lgkmcnt(0)")
            e(f"s_mov_b32 s{89 + (k != 0)}, s100")


gen.stamp = stamp3


def stamp3_out(e):
    if OPT.get('tl'):
        OPT['sbase'] = 0
        e("s_waitcnt vmcnt(0)")
        stamp3(e, 10)
    if OPT.get('stamp'):
        OPT['sbase'] = 0
        e("s_waitcnt vmcnt(0)")
        stamp3(e, 10)
        srd(e, S_SRD_O, 28, 29, 4 * MB, WS_ST)
        e("s_lshl_b32 s38, s2, 2")
        e(f"s_add_u32 s38, s38, s{S_WAVE}")
        e("s_lshl_b32 s38, s38, 6")
        e("v_mov_b32 v0, s38")
        for k in range(11):
            e(f"v_mov_b32 v{4+k}, s{76+k}")
        e("v_mov_b32 v15, s89")
        e("v_mov_b32 v16, s90")
        e("v_mov_b32 v17, s87")
        for k in range(4):
            e(f"buffer_store_dwordx4 v[{4+4*k}:{7+4*k}], v0, s[{S_SRD_O}:{S_SRD_O+3}], 0 offen offset:{16*k}")


WS_FL = 31 * MB
FL1, FLY, FLO, FLC = 0, 1024, 4096, 8192
S_NONCE = 95
LDS_NONCE = LDS_CNT + 32
LDS_GO = LDS_CNT + 48


def signal(e, phase, uid, offs, vm=0, v=0):
    e(f"s_waitcnt vmcnt({vm})")
    e(f"v_mov_b32 v{v}, {LDS_CNT + 4 * phase}")
    e(f"v_mov_b32 v{v+1}, 1")
    e("s_mov_b64 exec, 1")
    e(f"ds_add_rtn_u32 v{v+1}, v{v}, v{v+1}")
    e("s_waitcnt lgkmcnt(0)")
    e(f"v_cmp_eq_u32 vcc, 3, v{v+1}")
    e(f"s_cbranch_vccz sig_{uid}")
    e(f"v_mov_b32 v{v}, 0")
    e(f"v_mov_b32 v{v+1}, s{S_NONCE}")
    for o in offs:
        e(f"buffer_store_dword v{v+1}, v{v}, s[{S_DBG}:{S_DBG+3}], s{o} offen sc1")
    e.lab(f"sig_{uid}")
    e("s_mov_b64 exec, -1")


def poll(e, vaddr, vtmp, uid, sleep=2):
    e(f"s_mov_b32 s{S_T2}, {SPIN_MAX}")
    e.lab(f"poll_{uid}")
    e(f"buffer_load_dword v{vtmp}, v{vaddr}, s[{S_DBG}:{S_DBG+3}], 0 offen sc1")
    e("s_waitcnt vmcnt(0)")
    e(f"v_cmp_ne_u32 vcc, s{S_NONCE}, v{vtmp}")
    e(f"s_cbranch_vccz polld_{uid}")
    e(f"s_sleep {sleep}")
    e(f"s_sub_u32 s{S_T2}, s{S_T2}, 1")
    e(f"s_cmp_lg_u32 s{S_T2}, 0")
    e(f"s_cbranch_scc1 poll_{uid}")
    e.lab(f"polld_{uid}")


def lpoll(e, vaddr, vtmp, phase, uid, sleep=2):
    e(f"v_mov_b32 v{vtmp+1}, {LDS_GO + 4 * phase}")
    e(f"s_cmp_lg_u32 s{S_WAVE}, 0")
    e(f"s_cbranch_scc1 lw_{uid}")
    poll(e, vaddr, vtmp, uid, sleep)
    e(f"v_mov_b32 v{vtmp}, 1")
    e(f"ds_write_b32 v{vtmp+1}, v{vtmp}")
    e(f"s_branch lwd_{uid}")
    e.lab(f"lw_{uid}")
    e(f"s_mov_b32 s{S_T2}, {SPIN_MAX * 20}")
    e.lab(f"lwl_{uid}")
    e(f"ds_read_b32 v{vtmp}, v{vtmp+1}")
    e("s_waitcnt lgkmcnt(0)")
    e(f"v_cmp_ne_u32 vcc, 1, v{vtmp}")
    e(f"s_cbranch_vccz lwd_{uid}")
    e("s_sleep 1")
    e(f"s_sub_u32 s{S_T2}, s{S_T2}, 1")
    e(f"s_cmp_lg_u32 s{S_T2}, 0")
    e(f"s_cbranch_scc1 lwl_{uid}")
    e.lab(f"lwd_{uid}")


def get_nonce(e, v):
    e(f"v_mov_b32 v{v}, {LDS_NONCE}")
    e(f"ds_read_b32 v{v}, v{v}")
    e("s_waitcnt lgkmcnt(0)")
    e(f"v_readfirstlane_b32 s{S_NONCE}, v{v}")
    e("s_nop 3")


def split_dma(G):
    g = G.dma_groups()
    return g[:G.nR], g[G.nR:]


def book_part(G, which):
    out = []
    if which == 'R':
        kr = 2048 if G.rblk else 128
        if G.kr_step:
            out += G.kr_step
        else:
            out.append(f"s_add_u32 s{S_KR}, s{S_KR}, {kr}")
        wrap = [(S_KR, kr * G.nsteps)]
    else:
        wrap = []
        if any(r.typ == 'T' for r in G.regions):
            kc = 2048 if G.cblk else 128
            out.append(f"s_add_u32 s{S_KC}, s{S_KC}, {kc}")
            wrap.append((S_KC, kc * G.nsteps))
        for r in G.regions:
            if r.typ != 'T':
                if G.kn_step:
                    out += G.kn_step
                else:
                    out.append(f"s_add_u32 s{S_KN}, s{S_KN}, {64*r.gstride}")
                wrap.append((S_KN, 64 * r.gstride * G.nsteps))
    if G.rot:
        out.append(f"s_add_u32 s{S_KI}, s{S_KI}, 1")
        out.append(f"s_cmp_ge_u32 s{S_KI}, s{S_NS}")
        out.append(f"s_cselect_b32 s{S_KI}, 0, s{S_KI}")
        for (sr, amt) in wrap:
            out.append(f"s_cmp_eq_u32 s{S_KI}, 0")
            out.append(f"s_cselect_b32 s{S_T0}, {amt}, 0")
            out.append(f"s_sub_u32 s{sr}, s{sr}, s{S_T0}")
    out.append(f"s_add_u32 s{S_WR}, s{S_WR}, {G.SS}")
    return out


def loader_phase(e, G, first, mid, sc1_dep):
    p = G.pre
    gr, gc = split_dma(G)
    ind, dep = (gr, gc) if first == 'R' else (gc, gr)
    second = 'C' if first == 'R' else 'R'
    G.loader_init()
    if G.rot:
        e(f"s_mov_b32 s63, s{S_KI}")
    pre = G.pre_R or []
    for st in range(G.S):
        for g in ind:
            e.ext(g)
        e.ext(book_part(G, first))
    e(f"s_mov_b32 s{S_WR}, 0")
    if G.rot:
        e(f"s_mov_b32 s{S_KI}, s63")
    e.ext(pre)
    mid(len(ind) * G.S)
    for st in range(G.S):
        for g in dep:
            e.ext(g)
        e.ext(book_part(G, second))
        e.ext(pre)
    e(f"s_mov_b32 s{S_WR}, 0")
    e(f"s_sub_u32 s{S_LEFT}, s{S_NS}, {G.S}")
    e(f"s_waitcnt vmcnt({(G.S-1)*len(dep)})")
    e("s_barrier")
    e(f"s_mov_b32 s{S_CNT}, s{S_NS}")
    e(f"s_waitcnt vmcnt({(G.S-2)*len(dep)})")
    e(f"s_branch {p}_lmid")
    late = getattr(G, 'late', False)
    if late:
        e.lab(f"{p}_chk")
        e(f"v_cmp_ne_u32 vcc, s{S_NONCE}, v23")
        e(f"s_cbranch_vccz {p}_lmid")
        poll(e, 22, 23, f"{p}_late", 2)
        e(f"s_branch {p}_lmid")
    e.lab(f"{p}_lloop")
    e(f"s_waitcnt vmcnt({(G.S-2)*G.D})")
    if late:
        e(f"s_cmp_eq_u32 s{S_CNT}, 23")
        e(f"s_cbranch_scc1 {p}_chk")
    e.lab(f"{p}_lmid")
    e("s_barrier")
    if late:
        e(f"s_cmp_lg_u32 s{S_CNT}, 24")
        e(f"s_cbranch_scc1 {p}_np")
        e(f"buffer_load_dword v23, v22, s[{S_DBG}:{S_DBG+3}], 0 offen sc1")
        e.lab(f"{p}_np")
    for g in G.dma_groups():
        e.ext(g)
    e.ext(G.dma_book())
    e.ext(pre)
    e(f"s_sub_u32 s{S_CNT}, s{S_CNT}, 1")
    e(f"s_cmp_lg_u32 s{S_CNT}, 0")
    e(f"s_cbranch_scc1 {p}_lloop")


def ln_body(e):
    for i in range(8):
        e(f"v_lshlrev_b32 v{16+2*i}, 16, v{4+i}")
        e(f"v_and_b32 v{17+2*i}, 0xffff0000, v{4+i}")

    def tree(dst, src):
        for i in range(8):
            e(f"v_add_f32 v{40+i}, v{src+2*i}, v{src+2*i+1}")
        for i in range(4):
            e(f"v_add_f32 v{40+i}, v{40+i}, v{44+i}")
        e("v_add_f32 v40, v40, v42")
        e("v_add_f32 v41, v41, v43")
        e(f"v_add_f32 v{dst}, v40, v41")

    def wred(v):
        for sh in (1, 2, 4, 8):
            e("s_nop 1")
            e(f"v_add_f32_dpp v{v}, v{v}, v{v} row_ror:{sh} row_mask:0xf bank_mask:0xf")
        e("v_mov_b32 v48, v%d" % v)
        e("s_nop 1")
        e(f"v_permlane32_swap_b32 v{v}, v48")
        e(f"v_add_f32 v{v}, v{v}, v48")
        e("v_mov_b32 v48, v%d" % v)
        e("s_nop 1")
        e(f"v_permlane16_swap_b32 v{v}, v48")
        e(f"v_add_f32 v{v}, v{v}, v48")

    tree(3, 16)
    wred(3)
    e("v_mul_f32 v3, 0x3a800000, v3")
    for i in range(16):
        e(f"v_sub_f32 v{52+i}, v{16+i}, v3")
    for i in range(16):
        e(f"v_mul_f32 v{52+i}, v{52+i}, v{52+i}")
    tree(12, 52)
    wred(12)
    e("v_mul_f32 v12, 0x3a800000, v12")
    e("v_cvt_pk_bf16_f32 v13, v3, v12")
    e("v_lshlrev_b32 v3, 16, v13")
    e("v_and_b32 v12, 0xffff0000, v13")
    e("v_add_f32 v12, 0x3727c5ac, v12")
    e("v_cvt_pk_bf16_f32 v13, v12, v12")
    e("v_lshlrev_b32 v12, 16, v13")
    e("v_sqrt_f32 v12, v12")
    e("s_nop 0")
    e("v_cvt_pk_bf16_f32 v13, v12, v12")
    e("v_lshlrev_b32 v12, 16, v13")
    e("v_rcp_f32 v14, v12")
    for i in range(8):
        e(f"v_sub_f32 v{16+2*i}, v{16+2*i}, v3")
        e(f"v_sub_f32 v{17+2*i}, v{17+2*i}, v3")
        e(f"v_cvt_pk_bf16_f32 v{4+i}, v{16+2*i}, v{17+2*i}")
        e(f"v_lshlrev_b32 v{16+2*i}, 16, v{4+i}")
        e(f"v_and_b32 v{17+2*i}, 0xffff0000, v{4+i}")
    for i in range(16):
        e(f"v_mul_f32 v{52+i}, v{16+i}, v14")
        e(f"v_fma_f32 v{16+i}, -v{52+i}, v12, v{16+i}")
        e(f"v_fma_f32 v{52+i}, v{16+i}, v14, v{52+i}")
    for i in range(8):
        e(f"v_cvt_pk_bf16_f32 v{4+i}, v{52+2*i}, v{53+2*i}")


HG = 122 * 1024
AG = 66 * 1024
ACC = 80


def g1_epi3(e, G, pre):
    e("v_mbcnt_lo_u32_b32 v1, -1, 0")
    e("v_mbcnt_hi_u32_b32 v1, -1, v1")
    e("v_and_b32 v2, 15, v1")
    e("v_lshrrev_b32 v3, 4, v1")
    e("v_and_b32 v4, 1, v3")
    e("v_lshlrev_b32 v4, 5, v4")
    e("v_lshrrev_b32 v5, 1, v3")
    e("v_lshl_add_u32 v4, v5, 4, v4")
    e("v_lshl_add_u32 v4, v2, 6, v4")
    e(f"s_lshl_b32 s{S_T0}, s{S_WAVE}, 6")
    e(f"s_add_u32 s{S_T0}, s{S_T0}, s{S_ROW0}")
    e(f"s_lshr_b32 s36, s{S_ROW0}, 6")
    e(f"s_lshl_b32 s34, s{S_COL0}, 7")
    e("s_add_u32 s34, s34, s36")
    e(f"s_add_u32 s34, s34, {FLY}")
    e(f"s_lshr_b32 s35, s{S_ROW0}, 1")
    e(f"s_lshl_b32 s37, s{S_COL0}, 2")
    e("s_add_u32 s35, s35, s37")
    e(f"s_add_u32 s35, s35, {FLO}")
    for r in G.regions:
        if r.typ == 'T':
            srd(e, S_SRD_O, 28, 29, 128 * AG, WS_AT)
            e(f"s_mul_i32 s{S_T1}, s{S_COL0}, {11*AG}")
            e(f"s_lshl_b32 s{S_T2}, s{S_T0}, 5")
            e(f"s_add_u32 s{S_T1}, s{S_T1}, s{S_T2}")
            e(f"v_add_u32 v6, s{S_T1}, v4")
            e(f"s_mul_i32 s{S_T1}, s{S_COL0}, 11")
            for j in range(r.ng):
                n = r.g0 + j
                b = 16 + (j & 3) * 8
                e(f"s_add_u32 s{S_T2}, s{S_T1}, {n}")
                e(f"s_cmp_lt_u32 s{S_T2}, 64")
                e(f"s_cselect_b32 s{S_DL}, 0, 0x80008000")
                e(f"s_mov_b32 s{S_T2}, {n*AG}")
                for m in range(4):
                    a = G.acc(m, n)
                    e(f"v_cvt_pk_bf16_f32 v{b+2*m}, v{a}, v{a+1}")
                    e(f"v_cvt_pk_bf16_f32 v{b+2*m+1}, v{a+2}, v{a+3}")
                for k in range(8):
                    e(f"v_xor_b32 v{b+k}, s{S_DL}, v{b+k}")
                e("s_nop 1")
                for h in range(2):
                    e(f"v_permlane16_swap_b32 v{b+4*h}, v{b+2+4*h}")
                    e(f"v_permlane16_swap_b32 v{b+1+4*h}, v{b+3+4*h}")
                e(f"buffer_store_dwordx4 v[{b}:{b+3}], v6, s[{S_SRD_O}:{S_SRD_O+3}], s{S_T2} offen sc1")
                e(f"buffer_store_dwordx4 v[{b+4}:{b+7}], v6, s[{S_SRD_O}:{S_SRD_O+3}], s{S_T2} offen offset:1024 sc1")
        else:
            srd(e, S_SRD_O, 28, 29, 128 * HG, WS_H)
            srd(e, S_SRD_B, 26, 27, 7168)
            e(f"s_mul_i32 s{S_T1}, s{S_COL0}, 352")
            e(f"s_sub_u32 s{S_T1}, s{S_T1}, {(128 - r.g0) * 32}")
            e("v_lshlrev_b32 v7, 3, v3")
            e(f"v_add_u32 v7, s{S_T1}, v7")
            nq = -(-r.ng // 4)

            def ldb(Q):
                for j in range(4 * Q, min(4 * Q + 4, r.ng)):
                    d = 64 + 8 * (Q & 1) + 2 * (j - 4 * Q)
                    e(f"buffer_load_dwordx2 v[{d}:{d+1}], v7, s[{S_SRD_B}:{S_SRD_B+3}], 0 offen offset:{32*j}")
            ldb(0)
            if nq > 1:
                ldb(1)
            e(f"s_lshr_b32 s{S_T2}, s{S_T0}, 4")
            e(f"s_mul_i32 s{S_T2}, s{S_T2}, {HG}")
            if pre != 'g1m':
                e(f"s_mul_i32 s{S_RD}, s{S_COL0}, 6144")
                e(f"s_sub_u32 s{S_RD}, s{S_RD}, {12*6144-2048}")
                e(f"s_add_u32 s{S_T2}, s{S_T2}, s{S_RD}")
            e(f"v_add_u32 v6, s{S_T2}, v4")
            c1 = -2.0 * math.log2(math.e) * math.sqrt(2.0 / math.pi)
            c2 = c1 * 0.044715
            e(f"v_mov_b32 v10, {f2u(c1):#x}")
            e(f"v_mov_b32 v11, {f2u(c1):#x}")
            e(f"v_mov_b32 v12, {f2u(c2):#x}")
            e(f"v_mov_b32 v13, {f2u(c2):#x}")
            e("v_mov_b32 v14, 1.0")
            e("v_mov_b32 v15, 1.0")
            for Q in range(nq):
                ng = min(4, r.ng - 4 * Q)
                if Q == 0:
                    e(f"s_waitcnt vmcnt({min(4, r.ng-4) if nq > 1 else 0})")
                elif Q == 1:
                    e("s_waitcnt vmcnt(11)")
                else:
                    e("s_waitcnt vmcnt(16)")
                for jj in range(ng):
                    bq = 64 + 8 * (Q & 1) + 2 * jj
                    e(f"v_lshlrev_b32 v{48+4*jj}, 16, v{bq}")
                    e(f"v_and_b32 v{49+4*jj}, 0xffff0000, v{bq}")
                    e(f"v_lshlrev_b32 v{50+4*jj}, 16, v{bq+1}")
                    e(f"v_and_b32 v{51+4*jj}, 0xffff0000, v{bq+1}")
                if Q + 2 < nq:
                    ldb(Q + 2)
                for m in range(4):
                    t = G.acc(m, r.g0 + 4 * Q)
                    u = 16 + 16 * (m & 1)
                    np_ = 2 * ng
                    P = lambda b_, h: f"v[{b_+2*h}:{b_+2*h+1}]"
                    for h in range(np_):
                        e(f"v_pk_add_f32 {P(t,h)}, {P(t,h)}, {P(48,h)}")
                    for h in range(np_):
                        e(f"v_pk_mul_f32 {P(u,h)}, {P(t,h)}, {P(t,h)}")
                    for h in range(np_):
                        e(f"v_pk_fma_f32 {P(u,h)}, {P(u,h)}, v[12:13], v[10:11]")
                    for h in range(np_):
                        e(f"v_pk_mul_f32 {P(u,h)}, {P(u,h)}, {P(t,h)}")
                    for x in range(2 * np_):
                        e(f"v_exp_f32 v{u+x}, v{u+x}")
                    for h in range(np_):
                        e(f"v_pk_add_f32 {P(u,h)}, {P(u,h)}, v[14:15]")
                    for x in range(2 * np_):
                        e(f"v_rcp_f32 v{u+x}, v{u+x}")
                    for h in range(np_):
                        e(f"v_pk_mul_f32 {P(t,h)}, {P(t,h)}, {P(u,h)}")
                    for h in range(np_):
                        e(f"v_cvt_pk_bf16_f32 v{u+h}, v{t+2*h}, v{t+2*h+1}")
                    if ng == 3:
                        e(f"v_mov_b32 v{u+6}, 0")
                        e(f"v_mov_b32 v{u+7}, 0")
                    e(f"s_mov_b32 s{S_T2}, {m*HG + Q*2048}")
                    e("s_nop 0")
                    for h in range(2):
                        e(f"v_permlane16_swap_b32 v{u+4*h}, v{u+2+4*h}")
                        e(f"v_permlane16_swap_b32 v{u+1+4*h}, v{u+3+4*h}")
                    e(f"buffer_store_dwordx4 v[{u}:{u+3}], v6, s[{S_SRD_O}:{S_SRD_O+3}], s{S_T2} offen sc1")
                    e(f"buffer_store_dwordx4 v[{u+4}:{u+7}], v6, s[{S_SRD_O}:{S_SRD_O+3}], s{S_T2} offen offset:1024 sc1")
                if Q >= 1 and not (OPT.get('defer', 1) and Q == 2):
                    signal(e, 4 + Q - 1, f"{pre}q{Q}", [35], 8)
                    e("s_add_u32 s35, s35, 1024")


def warm(e, pre):
    if not OPT.get('warm'):
        return
    e(f"s_mov_b32 m0, {LDS_CNT + 256}")
    e("s_lshr_b32 s34, s2, 3")
    e("s_cmp_ge_u32 s34, 3")
    e(f"s_cbranch_scc1 {pre}_w1")
    e("s_lshl_b32 s34, s34, 2")
    e(f"s_add_u32 s34, s34, s{S_WAVE}")
    e("s_lshl_b32 s34, s34, 13")
    e("v_lshlrev_b32 v4, 7, v1")
    e("v_add_u32 v4, s34, v4")
    e(f"v_min_u32 v4, k_done-{KNAME}, v4")
    e("s_getpc_b64 s[34:35]")
    e.lab(f"{pre}_pc")
    e(f"s_sub_u32 s34, s34, {pre}_pc-{KNAME}")
    e("s_subb_u32 s35, s35, 0")
    e("global_load_lds_dword v4, s[34:35]")
    e.lab(f"{pre}_w1")
    if OPT['warm'] >= 2:
        e("s_load_dwordx4 s[64:67], s[0:1], 8")
        e("s_load_dwordx2 s[68:69], s[0:1], 64")
        e("s_load_dwordx2 s[70:71], s[0:1], 80")
        e("v_lshlrev_b32 v4, 21, v1")
        e("s_waitcnt lgkmcnt(0)")
        e(f"s_cmp_eq_u32 s{S_WAVE}, 0")
        e("s_cselect_b32 s72, s28, s64")
        e("s_cselect_b32 s73, s29, s65")
        e(f"s_cselect_b32 s74, {64*MB}, s{S_NREC}") if False else None
        e(f"s_mov_b32 s74, {8*MB}")
        e(f"s_cselect_b32 s74, {64*MB}, s74")
        e(f"s_cmp_eq_u32 s{S_WAVE}, 2")
        e("s_cselect_b32 s72, s66, s72")
        e("s_cselect_b32 s73, s67, s73")
        e(f"s_cmp_eq_u32 s{S_WAVE}, 3")
        e("s_cselect_b32 s72, s68, s72")
        e("s_cselect_b32 s73, s69, s73")
        e(f"s_cselect_b32 s74, {3584*2048}, s74")
        e("s_mov_b32 s75, 0x20000")
        e("buffer_load_dword v4, s[72:75], 0 offen lds")
        srd(e, 72, 70, 71, 4 * MB)
        e("buffer_load_dword v4, s[72:75], 0 offen lds")


def combine(e, G, typ, q):
    uid = f"{q}"
    keep = [2 * q, 2 * q + 1]
    e("v_mbcnt_lo_u32_b32 v1, -1, 0")
    e("v_mbcnt_hi_u32_b32 v1, -1, v1")
    e("v_and_b32 v2, 15, v1")
    e("v_lshrrev_b32 v3, 4, v1")
    e("v_lshlrev_b32 v5, 4, v1")
    srd(e, S_SRD_O, 28, 29, 32 * MB, WS_PB)
    e(f"s_lshr_b32 s34, s{S_ROW0}, 5")
    e(f"s_lshr_b32 s35, s{S_COL0}, 7")
    e("s_add_u32 s34, s34, s35")
    e("s_lshl_b32 s34, s34, 4")
    e(f"s_add_u32 s34, s34, s{S_WAVE}")
    e("s_lshl_b32 s34, s34, 15")
    e(f"s_add_u32 s35, s34, {q * 131072}")
    for m in range(8):
        if m in keep:
            continue
        e(f"s_add_u32 s{S_T2}, s35, {m*4096}")
        if typ == 'y' or OPT.get('ob'):
            for c in range(2):
                t = 16 + ((2 * m + c) & 7) * 4
                for qq in range(2):
                    a = G.acc(m, 2 * c + qq)
                    e(f"v_cvt_pk_bf16_f32 v{t+2*qq}, v{a}, v{a+1}")
                    e(f"v_cvt_pk_bf16_f32 v{t+2*qq+1}, v{a+2}, v{a+3}")
                e(f"buffer_store_dwordx4 v[{t}:{t+3}], v5, s[{S_SRD_O}:{S_SRD_O+3}], s{S_T2} offen offset:{c*1024} sc1")
        else:
            for n in range(4):
                a = G.acc(m, n)
                e(f"buffer_store_dwordx4 v[{a}:{a+3}], v5, s[{S_SRD_O}:{S_SRD_O+3}], s{S_T2} offen offset:{n*1024} sc1")
    e("s_lshr_b32 s36, s34, 12")
    e("s_and_b32 s36, s36, 0xff80")
    e(f"s_add_u32 s36, s36, {FLC}")
    e(f"s_add_u32 s37, s36, {4*q}")
    signal(e, 3, f"c{uid}", [37])
    OPT['sbase'] = 0
    stamp3(e, 8)
    e("s_load_dwordx2 s[20:21], s[0:1], 0")
    e("s_load_dwordx4 s[24:27], s[0:1], 72")
    e("v_mbcnt_lo_u32_b32 v1, -1, 0")
    e("v_mbcnt_hi_u32_b32 v1, -1, v1")
    e(f"s_lshr_b32 s{S_T0}, s{S_WAVE}, 1")
    e(f"s_lshl_b32 s{S_T0}, s{S_T0}, 7")
    e(f"s_add_u32 s{S_T0}, s{S_T0}, s{S_ROW0}")
    e(f"s_add_u32 s{S_T0}, s{S_T0}, {32*q}")
    e(f"s_and_b32 s{S_T1}, s{S_WAVE}, 1")
    e(f"s_lshl_b32 s{S_T1}, s{S_T1}, 6")
    e(f"s_add_u32 s{S_T1}, s{S_T1}, s{S_COL0}")
    e(f"v_add_u32 v6, s{S_T0}, v2")
    e("v_lshlrev_b32 v6, 11, v6")
    e(f"v_lshl_add_u32 v7, v3, 2, s{S_T1}")
    e("v_lshlrev_b32 v7, 1, v7")
    e("v_add_u32 v8, v6, v7")
    e("v_and_b32 v4, 1, v3")
    e("v_lshlrev_b32 v4, 4, v4")
    e("v_lshrrev_b32 v9, 1, v3")
    e("v_lshl_add_u32 v4, v9, 3, v4")
    e(f"v_add_u32 v4, s{S_T1}, v4")
    e("v_lshl_add_u32 v9, v4, 1, v6")
    e("v_and_b32 v10, 3, v1")
    e("v_lshl_add_u32 v10, v10, 2, s36")
    e("s_waitcnt lgkmcnt(0)")
    srd(e, 64, 20, 21, 4 * MB)
    srd(e, 68, 24, 25, 2048)
    srd(e, 72, 26, 27, 4 * MB)
    XA = 240
    for mi in range(2):
        for n in range(4):
            e(f"buffer_load_dwordx2 v[{XA+8*mi+2*n}:{XA+8*mi+2*n+1}], v8, s[64:67], 0 offen offset:{mi*0+n*32}" if mi == 0 else
              f"buffer_load_dwordx2 v[{XA+8*mi+2*n}:{XA+8*mi+2*n+1}], v12, s[64:67], 0 offen offset:{n*32}")
        if mi == 0:
            e("v_add_u32 v12, 0x8000, v8")
    for n in range(4):
        e(f"buffer_load_dwordx2 v[{72+2*n}:{73+2*n}], v7, s[68:71], 0 offen offset:{n*32}")
    poll(e, 10, 11, f"c{uid}", OPT.get('slc', 4))
    stamp3(e, 9)
    ysrc = [s for s in (0, 1) if s != q]
    osrc = [s for s in (2, 3) if s != q]
    loc = {}
    pool_v = []
    pool_a = [G.acc(m, n) for m in range(8) if m not in keep for n in range(4)]
    for mi, m in enumerate(keep):
        for s_ in ysrc + osrc:
            nch = 2 if (s_ < 2 or OPT.get('ob')) else 4
            e(f"s_add_u32 s{S_T2}, s34, {s_*131072 + m*4096}")
            for c in range(nch):
                if pool_a:
                    r = ('v', pool_a.pop(0))
                else:
                    r = ('v', pool_v.pop(0))
                loc[(mi, s_, c)] = r
                e(f"buffer_load_dwordx4 {r[0]}[{r[1]}:{r[1]+3}], v5, s[{S_SRD_O}:{S_SRD_O+3}], s{S_T2} offen offset:{c*1024} sc1")
    assert len(loc) <= 18 or True
    e("s_mov_b32 s37, 0xbfb8aa3b")
    nld = len(loc) // 2

    def get(dst, r, k):
        if r[0] == 'a':
            e(f"v_accvgpr_read_b32 v{dst}, a{r[1]+k}")
        else:
            e(f"v_mov_b32 v{dst}, v{r[1]+k}")

    def rnd(base, tmp):
        for i in range(4):
            e(f"v_cvt_pk_bf16_f32 v{tmp+i}, v{base+2*i}, v{base+2*i+1}")
        for i in range(4):
            e(f"v_lshlrev_b32 v{base+2*i}, 16, v{tmp+i}")
            e(f"v_and_b32 v{base+2*i+1}, 0xffff0000, v{tmp+i}")

    def unpack(dst, r):
        for i in range(4):
            if r[0] == 'a':
                e(f"v_accvgpr_read_b32 v{dst+2*i+1}, a{r[1]+i}")
                e(f"v_lshlrev_b32 v{dst+2*i}, 16, v{dst+2*i+1}")
                e(f"v_and_b32 v{dst+2*i+1}, 0xffff0000, v{dst+2*i+1}")
            else:
                e(f"v_lshlrev_b32 v{dst+2*i}, 16, v{r[1]+i}")
                e(f"v_and_b32 v{dst+2*i+1}, 0xffff0000, v{r[1]+i}")

    A, B, TM = 12, 20, 28
    PR = lambda r_, h: f"v[{r_+2*h}:{r_+2*h+1}]"
    for mi, m in enumerate(keep):
        e(f"s_waitcnt vmcnt({nld if mi == 0 else 2})")
        for c in range(2):
            own = G.acc(m, 2 * c)
            for k, s_ in enumerate((0, 1)):
                dst = A if k == 0 else B
                if s_ == q:
                    for i in range(4):
                        e(f"v_cvt_pk_bf16_f32 v{TM+i}, v{own+2*i}, v{own+2*i+1}")
                    unpack(dst, ('v', TM))
                else:
                    unpack(dst, loc[(mi, s_, c)])
            for h in range(4):
                e(f"v_pk_add_f32 {PR(A,h)}, {PR(A,h)}, {PR(B,h)}")
            rnd(A, TM)
            if OPT.get('ob'):
                for k, s_ in enumerate((2, 3)):
                    dst = B if k == 0 else 32
                    if s_ == q:
                        for i in range(4):
                            e(f"v_cvt_pk_bf16_f32 v{TM+i}, v{own+2*i}, v{own+2*i+1}")
                        unpack(dst, ('v', TM))
                    else:
                        unpack(dst, loc[(mi, s_, c)])
                for h in range(4):
                    e(f"v_pk_add_f32 {PR(B,h)}, {PR(B,h)}, {PR(32,h)}")
            for qq in range(2 if not OPT.get('ob') else 0):
                n = 2 * c + qq
                src = [G.acc(m, n) if s_ == q else loc[(mi, s_, n)][1] for s_ in (2, 3)]
                for h in range(2):
                    e(f"v_pk_add_f32 {PR(B+4*qq,h)}, {PR(src[0],h)}, {PR(src[1],h)}")
            rnd(B, TM)
            for qq in range(2):
                bb = 72 + 2 * (2 * c + qq)
                e(f"v_lshlrev_b32 v{TM}, 16, v{bb}")
                e(f"v_and_b32 v{TM+1}, 0xffff0000, v{bb}")
                e(f"v_lshlrev_b32 v{TM+2}, 16, v{bb+1}")
                e(f"v_and_b32 v{TM+3}, 0xffff0000, v{bb+1}")
                for h in range(2):
                    e(f"v_pk_add_f32 {PR(B+4*qq,h)}, {PR(B+4*qq,h)}, {PR(TM,h)}")
            rnd(B, TM)
            U = 32
            for x in range(8):
                e(f"v_mul_f32 v{U+x}, s37, v{B+x}")
            for x in range(8):
                e(f"v_exp_f32 v{U+x}, v{U+x}")
            for x in range(8):
                e(f"v_add_f32 v{U+x}, 1.0, v{U+x}")
            for x in range(8):
                e(f"v_rcp_f32 v{U+x}, v{U+x}")
            for h in range(4):
                e(f"v_pk_mul_f32 {PR(B,h)}, {PR(B,h)}, {PR(U,h)}")
            rnd(B, TM)
            for h in range(4):
                e(f"v_pk_mul_f32 {PR(A,h)}, {PR(A,h)}, {PR(B,h)}")
            rnd(A, TM)
            unpack(B, ('v', XA + 8 * mi + 4 * c))
            for h in range(4):
                e(f"v_pk_add_f32 {PR(A,h)}, {PR(A,h)}, {PR(B,h)}")
            O = 40 + 4 * (2 * mi + c)
            for i in range(4):
                e(f"v_cvt_pk_bf16_f32 v{O+i}, v{A+2*i}, v{A+2*i+1}")
            e(f"s_mov_b32 s{S_T2}, {mi*32768}")
            e("s_nop 0")
            e(f"v_permlane16_swap_b32 v{O}, v{O+2}")
            e(f"v_permlane16_swap_b32 v{O+1}, v{O+3}")
            e(f"buffer_store_dwordx4 v[{O}:{O+3}], v9, s[72:75], s{S_T2} offen offset:{c*64}")


def gen_fused(e):
    X = OPT['X']
    khead(e, KNAME)
    e("s_cmp_ge_u32 s2, 256")
    e("s_cbranch_scc1 k_done")
    e("s_load_dwordx2 s[32:33], s[0:1], 0")
    if OPT.get('pfc'):
        e("s_getpc_b64 s[36:37]")
        e.lab("entry_pc")
        e("v_lshlrev_b32 v60, 7, v0")
        e("v_min_u32 v60, k_done-entry_pc, v60")
        e("global_load_dword v61, v60, s[36:37]")
    e("s_load_dwordx4 s[20:23], s[0:1], 24")
    e("s_load_dwordx4 s[24:27], s[0:1], 48")
    e("s_load_dwordx4 s[28:31], s[0:1], 88")
    lane_wave(e, 'B')
    e(f"s_mov_b32 s39, s{S_T2}")
    e("s_lshl_b32 s30_, s2, 3".replace("s30_", "s38"))
    e("s_add_u32 s38, s38, s39")
    e("v_lshlrev_b32 v2, 4, v1")
    e("s_lshl_b32 s37, s38, 11")
    e(f"s_mul_i32 s38, s38, {XS}")
    e(f"v_mov_b32 v3, {LDS_CNT}")
    e("v_mov_b32 v4, 0")
    e("v_mov_b32 v5, 0")
    e("v_mov_b32 v6, 0")
    e("v_mov_b32 v7, 0")
    e("ds_write_b128 v3, v[4:7]")
    e("ds_write_b128 v3, v[4:7] offset:16")
    e("ds_write_b128 v3, v[4:7] offset:48")
    e("s_waitcnt lgkmcnt(0)")
    srd(e, 64, 32, 33, 4 * MB)
    e("buffer_load_dwordx4 v[4:7], v2, s[64:67], s37 offen")
    e("buffer_load_dwordx4 v[8:11], v2, s[64:67], s37 offen offset:1024")
    srd(e, 68, 28, 29, 256)
    e("s_mov_b64 s[28:29], s[30:31]")
    srd(e, S_DBG, 28, 29, 16384, WS_FL)
    e("s_cmp_lg_u32 s39, 4")
    e("s_cbranch_scc1 nonce_done")
    e("v_mov_b32 v12, 0")
    e("s_cmp_lg_u32 s2, 0")
    e("s_cbranch_scc1 nonce_poll")
    e("s_memrealtime s[100:101]")
    e("s_waitcnt lgkmcnt(0)")
    e("s_or_b32 s100, s100, 1")
    e("v_mov_b32 v13, s100")
    e("buffer_store_dword v13, v12, s[68:71], 0 offen sc1")
    e("s_branch nonce_got")
    e.lab("nonce_poll")
    e(f"s_mov_b32 s{S_T2}, {SPIN_MAX}")
    e.lab("nonce_l")
    e("buffer_load_dword v13, v12, s[68:71], 0 offen sc1")
    e("s_waitcnt vmcnt(0)")
    e("v_cmp_eq_u32 vcc, 0, v13")
    e("s_cbranch_vccz nonce_got")
    e("s_sleep 2")
    e(f"s_sub_u32 s{S_T2}, s{S_T2}, 1")
    e(f"s_cmp_lg_u32 s{S_T2}, 0")
    e("s_cbranch_scc1 nonce_l")
    e.lab("nonce_got")
    e("ds_write_b32 v3, v13 offset:32")
    e("s_waitcnt lgkmcnt(0)")
    e.lab("nonce_done")
    srd(e, S_SRD_R, 28, 29, 2048 * XS, WS_XN)
    e("s_and_b32 s30, s2, 1")
    e("s_lshl_b32 s30, s30, 2")
    e("s_lshr_b32 s31, s2, 3")
    e(f"s_and_b32 s{S_ROW0}, s31, 3")
    e(f"s_add_u32 s{S_ROW0}, s{S_ROW0}, s30")
    e(f"s_lshl_b32 s{S_ROW0}, s{S_ROW0}, 8")
    e("s_and_b32 s30, s2, 6")
    e("s_lshl_b32 s30, s30, 2")
    e(f"s_lshr_b32 s{S_COL0}, s31, 2")
    e(f"s_add_u32 s{S_COL0}, s{S_COL0}, s30")
    e(f"s_mov_b32 s{S_NS}, 16")
    e(f"s_mov_b32 s{S_KR}, 0")
    e(f"s_mov_b32 s{S_KC}, 0")
    e(f"s_mov_b32 s{S_KN}, 0")
    e("s_waitcnt vmcnt(0)")
    ln_body(e)
    e(f"buffer_store_dwordx4 v[4:7], v2, s[{S_SRD_R}:{S_SRD_R+3}], s38 offen sc1")
    e(f"buffer_store_dwordx4 v[8:11], v2, s[{S_SRD_R}:{S_SRD_R+3}], s38 offen offset:1024 sc1")
    e(f"s_cmp_lt_u32 s{S_COL0}, 11")
    e("s_cbranch_scc1 g1d_start")
    e(f"s_cmp_eq_u32 s{S_COL0}, 11")
    e("s_cbranch_scc1 g1m_start")
    e("s_branch g1f_start")

    variants = {
        'g1d': [Region('T', 0, 11, 0, 2048)],
        'g1m': [Region('T', 0, 7, 0, 2048), Region('Nadd', 7, 4, 16384, 7168)],
        'g1f': [Region('Nadd', 0, 11, 0, 7168)],
    }
    for pre, regs in variants.items():
        orient = []
        for r in regs:
            orient += ['RA' if r.typ == 'T' else 'CA'] * r.ng
        G = Gemm(e, pre, 'B', 2, 4, 11, 4, 1, regs, XS, 'C', orient, nsteps=16)
        G.sc1R = True
        G.accv = ACC
        if OPT.get('rot1'):
            G.rot = (OPT['rot1'], OPT.get('rotmul1', 1))
        e.lab(f"{pre}_start")

        def cset(ri, j, so, G=G, pre=pre):
            r = G.regions[ri]
            if r.typ == 'T':
                e(f"s_mul_i32 s{S_T0}, s{S_COL0}, 22")
                e(f"s_mul_i32 s{S_T1}, s{G.lw}, {r.DW*G.mult}")
                e(f"s_add_u32 s{S_T1}, s{S_T1}, {j}")
                e(f"s_add_u32 s{S_T0}, s{S_T0}, s{S_T1}")
                e(f"s_cmp_lt_u32 s{S_T0}, 128")
                e(f"s_cselect_b32 s{so}, s20, s22")
                e(f"s_cselect_b32 s{so+1}, s21, s23")
                e(f"s_and_b32 s{S_T0}, s{S_T0}, 127")
                e(f"s_lshl_b32 s{S_T0}, s{S_T0}, 14")
                e(f"s_cmp_lt_u32 s{S_T1}, {r.ninstr}")
                e(f"s_cselect_b32 s{so+2}, {2*MB}, 0")
                e(f"s_mov_b32 s{so+3}, 0x20000")
                e(f"s_cselect_b32 s{S_T0}, s{S_T0}, 4096")
            else:
                srd(e, so, 24, 25, 1024 * 7168)
                e(f"s_mul_i32 s{S_T0}, s{S_COL0}, 352")
                e(f"s_sub_u32 s{S_T0}, s{S_T0}, {(128 - r.g0) * 32}")

        e("s_cmp_ge_u32 s39, 4")
        e(f"s_cbranch_scc0 {pre}_comp")

        def mid(nind, pre=pre, dopoll=True):
            e(f"s_waitcnt vmcnt({nind})")
            e("s_barrier")
            get_nonce(e, 2)
            if not dopoll:
                return
            e(f"s_cmp_lg_u32 s{S_WAVE}, 0")
            e(f"s_cbranch_scc1 {pre}_nf")
            e("s_lshl_b32 s37, s2, 2")
            e("v_mov_b32 v2, 0")
            e(f"v_mov_b32 v3, s{S_NONCE}")
            e("s_mov_b64 exec, 1")
            e(f"buffer_store_dword v3, v2, s[{S_DBG}:{S_DBG+3}], s37 offen sc1")
            e("s_mov_b64 exec, -1")
            e.lab(f"{pre}_nf")
            e(f"s_lshr_b32 s{S_T0}, s{S_ROW0}, 1")
            e("v_and_b32 v2, 31, v1")
            e(f"v_lshl_add_u32 v2, v2, 2, s{S_T0}")
            lpoll(e, 2, 3, 1, pre, 1)
        asym = OPT.get('asym', 'R')
        if asym in ('R', 'C'):
            G.splitring = True
            G.SR, G.SC = (3, 2) if asym == 'R' else (2, 3)
            G.CB = G.SR * RT
            G.wc = 92
            G.loader_setup(1, 2, cset)
            gr, gc = split_dma(G)
            grp = {'R': gr, 'C': gc}
            dep = {'R': G.SR, 'C': G.SC}
            szs = {'R': RT, 'C': G.CS}
            wrs = {'R': S_WR, 'C': 92}
            kis = {'R': S_KI, 'C': 63}
            lefts = {'R': S_LEFT, 'C': 93}

            def book(part):
                out = book_part(G, part)[:-1]
                out = [x.replace(f"s{S_KI}", f"s{kis[part]}") for x in out]
                w = wrs[part]
                out += [f"s_add_u32 s{w}, s{w}, {szs[part]}",
                        f"s_cmp_ge_u32 s{w}, {szs[part]*dep[part]}",
                        f"s_cselect_b32 s{w}, 0, s{w}",
                        f"s_sub_u32 s{lefts[part]}, s{lefts[part]}, 1",
                        f"s_cmp_lt_i32 s{lefts[part]}, 1"]
                for sr in (G.srds[:1] if part == 'R' else G.srds[1:]):
                    out.append(f"s_cselect_b32 s{sr+2}, 0, s{sr+2}")
                return out
            G.loader_init()
            e("s_mov_b32 s92, 0")
            e(f"s_mov_b32 s93, s{S_NS}")
            if G.rot:
                e(f"s_mov_b32 s63, s{S_KI}")
            for st in range(G.SC):
                for g in gc:
                    e.ext(g)
                e.ext(book('C'))
            mid(len(gc) * G.SC)
            for st in range(G.SR):
                for g in gr:
                    e.ext(g)
                e.ext(book('R'))
            sh, dp = ('C', 'R') if asym == 'R' else ('R', 'C')
            e(f"s_waitcnt vmcnt({(G.SR-1)*len(gr)})")
            e("s_barrier")
            e(f"s_mov_b32 s{S_CNT}, s{S_NS}")
            e(f"s_waitcnt vmcnt({(G.SR-2)*len(gr)})")
            e(f"s_branch {pre}_lmid")
            e.lab(f"{pre}_lloop")
            e(f"s_waitcnt vmcnt({len(grp[dp])})")
            e.lab(f"{pre}_lmid")
            e("s_barrier")
            for g in grp[sh]:
                e.ext(g)
            for g in grp[dp]:
                e.ext(g)
            e.ext(book('R'))
            e.ext(book('C'))
            e(f"s_sub_u32 s{S_CNT}, s{S_CNT}, 1")
            e(f"s_cmp_lg_u32 s{S_CNT}, 0")
            e(f"s_cbranch_scc1 {pre}_lloop")
            e("s_branch g2_loader")
        else:
            G.loader_setup(1, 2, cset)
            loader_phase(e, G, 'C', mid, True)
            e("s_branch g2_loader")
        e.lab(f"{pre}_comp")
        npf = 0
        if OPT.get('pfa'):
            e("s_waitcnt vmcnt(0)")
            e("s_barrier")
        if OPT.get('pf0'):
            e("s_load_dwordx4 s[64:67], s[0:1], 8")
            e("s_load_dwordx2 s[68:69], s[0:1], 64")
            e(f"s_mov_b32 m0, {LDS_CNT + 256}")
            e("s_lshl_b32 s34, s2, 2")
            e(f"s_add_u32 s34, s34, s{S_WAVE}")
            e("s_lshl_b32 s34, s34, 13")
            e("v_lshlrev_b32 v12, 7, v1")
            e("s_waitcnt lgkmcnt(0)")
            items = [(68, 3584 * 2048), (64, 8 * MB), (66, 8 * MB)]
            if OPT['pf0'] >= 2:
                items = [(24, 1024 * 7168)] + items
            for (lo, nb) in items:
                srd(e, 72, lo, lo + 1, nb)
                e("buffer_load_dword v12, s[72:75], s34 offen lds")
                npf += 1
        if not OPT.get('pfa'):
            e(f"s_waitcnt vmcnt({npf})")
            e("s_barrier")
        get_nonce(e, 4)
        warm(e, pre)
        if OPT.get('pfl'):
            G.pfl = True
            e("s_load_dwordx2 s[64:65], s[0:1], 8")
            e("s_load_dwordx2 s[68:69], s[0:1], 16")
            e("s_load_dwordx2 s[70:71], s[0:1], 64")
            e(f"s_mov_b32 m0, {LDS_CNT + 256}")
            e("s_lshl_b32 s74, s2, 2")
            e(f"s_add_u32 s74, s74, s{S_WAVE}")
            e("s_lshl_b32 s74, s74, 13")
            e("s_mov_b32 s94, s74")
            e(f"s_mov_b32 s66, {8*MB}")
            e("s_mov_b32 s67, 0x20000")
            e(f"s_mov_b32 s72, {8*MB}")
            e(f"s_mov_b32 s73, {3584*2048}")
            e("v_cmp_gt_u32 vcc, 16, v1")
            e("v_lshlrev_b32 v30, 7, v1")
            e("v_mov_b32 v31, 0x7ff00000")
            e("v_cndmask_b32 v30, v31, v30, vcc")
            e("s_waitcnt lgkmcnt(0)")
        e(f"v_mov_b32 v{G.vfrag0+16}, v1")
        G.compute_setup(G.vfrag0 + 16, G.vfrag0)
        if getattr(G, 'pfl', False):
            e("v_mov_b32 v3, v30")
        G.compute_loop(X)
        g1_epi3(e, G, pre)
        stamp3(e, 11)
        offs = {'g1d': [34], 'g1m': [34, 35], 'g1f': [35]}[pre]
        if OPT.get('defer', 1) and pre == 'g1f':
            e("s_mov_b32 s94, 28")
            e("s_add_u32 s74, s35, 1024")
            e("s_mov_b32 s75, s35")
        else:
            e("s_mov_b32 s94, 99")
            signal(e, 2, pre, offs)
        stamp3(e, 4)
        e("s_branch g2_comp")

    def g2_common():
        e("s_load_dwordx4 s[20:23], s[0:1], 8")
        e("s_load_dwordx2 s[24:25], s[0:1], 64")
        e("v_mbcnt_lo_u32_b32 v1, -1, 0")
        e("v_mbcnt_hi_u32_b32 v1, -1, v1")
        e("s_lshr_b32 s30, s2, 1")
        e("s_and_b32 s30, s30, 2")
        e("s_and_b32 s31, s2, 1")
        e("s_add_u32 s30, s30, s31")
        e("s_and_b32 s31, s2, 2")
        e("s_lshl_b32 s31, s31, 1")
        e("s_lshr_b32 s32, s2, 3")
        e(f"s_and_b32 s{S_ROW0}, s32, 3")
        e(f"s_add_u32 s{S_ROW0}, s{S_ROW0}, s31")
        e(f"s_lshl_b32 s{S_ROW0}, s{S_ROW0}, 8")
        e(f"s_lshr_b32 s{S_COL0}, s32, 2")
        e(f"s_lshl_b32 s{S_COL0}, s{S_COL0}, 7")
        e(f"s_mov_b32 s{S_KC}, 0")
        e("s_waitcnt lgkmcnt(0)")

    Gs = {}
    for pre, regs, rstride, ns in (('g2y', [Region('T', 0, 8, 0, ATS)], 4096, 32), ('g2o', [Region('Nxor', 0, 8, 0, 2048)], 0, 28)):
        G = Gemm(e, pre, 'B', 3, 8, 4, 2, 2, regs, rstride, 'R', ['CA'] * 4, nsteps=ns)
        G.accv = ACC
        if pre == 'g2y':
            G.sc1C = True
            G.cblk = AG
        else:
            G.sc1R = True
            G.rblk = HG
        if OPT.get('rot2') and (pre == 'g2y' or OPT.get('rot2o')):
            G.rot = (OPT['rot2'], OPT.get('rotmul2', 1))
        Gs[pre] = G
    e.lab("g2_loader")
    g2_common()
    e("s_cmp_ge_u32 s30, 2")
    e("s_cbranch_scc1 g2o_lstart")
    for pre, G in Gs.items():
        e.lab(f"{pre}_lstart")
        if pre == 'g2y':
            e(f"s_mov_b32 s{S_NS}, 32")
            e(f"s_mov_b32 s{S_KR}, 0")
            e("s_cmp_eq_u32 s30, 0")
            e(f"s_cselect_b32 s{S_SRD_R}, s20, s22")
            e(f"s_cselect_b32 s{S_SRD_R+1}, s21, s23")
            e(f"s_mov_b32 s{S_SRD_R+2}, {8*MB}")
            e(f"s_mov_b32 s{S_SRD_R+3}, 0x20000")
        else:
            e("s_and_b32 s33, s30, 1")
            e(f"s_sub_u32 s{S_NS}, 31, s33")
            e(f"s_mul_i32 s{S_KR}, s33, {31*2048}")
            e(f"s_mul_i32 s{S_KN}, s33, {1824*2048}")
            e("s_mov_b32 s68, 0")
            e("s_mov_b32 s69, 0")
            e("s_mul_i32 s70, s33, 98")
            e("s_add_u32 s70, s70, 1")
            e("s_sub_u32 s71, 11, s33")
            e("s_add_u32 s72, s71, 10")
            e(f"s_mul_i32 s73, s33, {30*2048}")
            e("s_add_u32 s73, s73, 2048")
            e(f"s_mul_i32 s74, s33, {1760*2048}")
            e(f"s_add_u32 s74, s74, {64*2048}")

            def stepper(cnt, reg, base, inc, qinc):
                return [f"s_add_u32 s{cnt}, s{cnt}, 1",
                        f"s_add_u32 s{reg}, s{reg}, {inc}",
                        f"s_cmp_eq_u32 s{cnt}, s70",
                        f"s_cselect_b32 s{reg}, s{base}, s{reg}",
                        f"s_add_u32 s{S_T0}, s{base}, {qinc}",
                        f"s_cmp_eq_u32 s{cnt}, s71",
                        f"s_cselect_b32 s{reg}, s{S_T0}, s{reg}",
                        f"s_add_u32 s{S_T0}, s{base}, {2*qinc}",
                        f"s_cmp_eq_u32 s{cnt}, s72",
                        f"s_cselect_b32 s{reg}, s{S_T0}, s{reg}"]
            G.kn_step = stepper(68, S_KN, 74, 176 * 2048, 64 * 2048)
            G.kr_step = stepper(69, S_KR, 73, 6144, 2048)
            G.late = True
            srd(e, S_SRD_R, 28, 29, 128 * HG, WS_H)

        def cset(ri, j, so, G=G):
            r = G.regions[ri]
            if r.typ == 'T':
                srd(e, so, 28, 29, 128 * AG, WS_AT)
                e(f"s_lshl_b32 s{S_T0}, s30, 10")
                e(f"s_add_u32 s{S_T0}, s{S_T0}, s{S_COL0}")
                e(f"s_lshl_b32 s{S_T1}, s{S_WAVE}, 5")
                e(f"s_add_u32 s{S_T0}, s{S_T0}, s{S_T1}")
                e(f"s_add_u32 s{S_T0}, s{S_T0}, {16*(j>>1)}")
                e(f"s_mul_i32 s{S_T0}, s{S_T0}, {AG//16}")
                e(f"s_add_u32 s{S_T0}, s{S_T0}, {1024*(j&1)}")
            else:
                srd(e, so, 24, 25, 3584 * 2048)
                e(f"s_lshl_b32 s{S_T0}, s{S_COL0}, 1")
        G.loader_setup(1, 2, cset)

        def mid(nind, pre=pre):
            if pre == 'g2y':
                e(f"s_lshl_b32 s{S_T0}, s30, 10")
                e(f"s_add_u32 s{S_T0}, s{S_T0}, s{S_COL0}")
                e("v_and_b32 v2, 8, v1")
                e("v_lshlrev_b32 v2, 4, v2")
                e("v_min_u32 v2, 127, v2")
                e(f"v_add_u32 v2, s{S_T0}, v2")
                m1, sh1 = magic(176, 2048)
                e(f"v_mul_u32_u24 v2, {m1}, v2")
                e(f"v_lshrrev_b32 v2, {sh1}, v2")
                e("v_and_b32 v3, 7, v1")
                e("v_lshlrev_b32 v4, 7, v2")
                e("v_lshl_add_u32 v4, v3, 2, v4")
                e(f"v_add_u32 v4, {FLY}, v4")
            else:
                e("v_and_b32 v2, 15, v1")
                e("s_sub_u32 s34, 10, s33")
                e("v_min_u32 v2, s34, v2")
                e("s_mul_i32 s34, s33, 11")
                e("s_add_u32 s34, s34, 11")
                e("v_add_u32 v2, s34, v2")
                e(f"s_lshr_b32 s34, s{S_ROW0}, 1")
                e(f"s_add_u32 s34, s34, {FLO}")
                e("v_lshl_add_u32 v4, v2, 2, s34")
                e("v_and_b32 v2, 15, v1")
                e("v_min_u32 v2, 9, v2")
                e("s_mul_i32 s35, s33, 40")
                e("s_add_u32 s35, s35, s34")
                e(f"s_add_u32 s35, s35, {48 + 1024}")
                e("v_lshl_add_u32 v22, v2, 2, s35")
                e("v_and_b32 v2, 16, v1")
                e("v_lshl_add_u32 v22, v2, 6, v22")
            lpoll(e, 4, 5, 2, pre, OPT.get('sl2', 4))
        loader_phase(e, G, 'R' if pre == 'g2y' else 'C', mid, True)
        e("s_endpgm")
    e.lab("g2_comp")
    g2_common()
    e("s_cmp_ge_u32 s30, 2")
    e("s_cbranch_scc1 g2o_cstart")
    for pre, G in Gs.items():
        e.lab(f"{pre}_cstart")
        if pre == 'g2y':
            e(f"s_mov_b32 s{S_NS}, 32")
        else:
            e("s_and_b32 s33, s30, 1")
            e(f"s_sub_u32 s{S_NS}, 31, s33")
        e(f"v_mov_b32 v{G.vfrag0+16}, v1")
        G.compute_setup(G.vfrag0 + 16, G.vfrag0)
        OPT['sbase'] = 4
        if OPT.get('defer', 1):
            G.stub = ("s94", lambda pre=pre: signal(e, 2, f"d{pre}", [75, 74], 0, 72))
        G.compute_loop(X)
        OPT['sbase'] = 0
        e("s_and_b32 s33, s30, 1")
        e("s_cmp_eq_u32 s33, 1")
        e(f"s_cbranch_scc1 {pre}_e1")
        q0 = 0 if pre == 'g2y' else 2
        combine(e, G, pre[-1], q0)
        stamp3_out(e)
        e("s_endpgm")
        e.lab(f"{pre}_e1")
        combine(e, G, pre[-1], q0 + 1)
        stamp3_out(e)
        e("s_endpgm")
    e.lab("k_done")
    e("s_endpgm")
    kdesc(e, KNAME, 256, 256)


def main():
    out = sys.argv[1]
    for a in sys.argv[2:]:
        k, v = a.split("=")
        OPT[k] = int(v) if v.lstrip('-').isdigit() else v
    e = E()
    gen_fused(e)
    hdr = open("cdna_kernels/%s.s.ref" % KN).read().split("; Override launch")[0]
    hdr += f"; @launch grid=(256,1,1) block=(512,1,1) lds={LDS_TOTAL}\n"
    hdr += '.amdgcn_target "amdgcn-amd-amdhsa--gfx950"\n.text\n'
    open(out, "w").write(hdr + "\n".join(e.L) + "\n")


if __name__ == "__main__":
    main()
```

```python
import sys, math
import gen
from gen import *

KNAME = KN + "_kernel"
LDS_CNT = 155648
LDS_TOTAL = 155648 + 512 + 3072 + 1024
S_DBG = 96
WS_PB = 32 * MB
SPIN_MAX = 200000


def stamp3(e, k, force=False):
    if OPT.get('dg') and not force and 5 <= k + OPT.get('sbase', 0) <= 9:
        return
    if OPT.get('tl'):
        k += OPT.get('sbase', 0)
        lab = f"tl_{len(e.L)}"
        e("s_and_b32 s100, s2, 7")
        if k:
            e(f"s_or_b32 s100, s100, s{S_WAVE}")
        e("s_cmp_lg_u32 s100, 0")
        e(f"s_cbranch_scc1 {lab}")
        e("s_load_dwordx2 s[76:77], s[0:1], 88")
        e("s_memrealtime s[100:101]")
        e("s_waitcnt lgkmcnt(0)")
        if k == 0:
            e("s_not_b32 s100, s100")
        e("v_accvgpr_write_b32 a175, v0") if False else None
        e("v_mov_b32 v62, s100")
        e(f"v_mov_b32 v63, {8+4*k}")
        e("s_mov_b64 exec, 1")
        e("global_atomic_umax v63, v62, s[76:77]")
        e("s_mov_b64 exec, -1")
        e.lab(lab)
        return
    if OPT.get('stamp'):
        k += OPT.get('sbase', 0)
        e("s_memtime s[100:101]")
        e("s_waitcnt lgkmcnt(0)")
        e(f"s_mov_b32 s{76+k}, s100")
        if k in (0, 10):
            e("s_memrealtime s[100:101]")
            e("s_waitcnt lgkmcnt(0)")
            e(f"s_mov_b32 s{89 + (k != 0)}, s100")


gen.stamp = stamp3


def stamp3_out(e):
    if OPT.get('tl'):
        OPT['sbase'] = 0
        e("s_waitcnt vmcnt(0)")
        stamp3(e, 10)
    if OPT.get('stamp'):
        OPT['sbase'] = 0
        e("s_waitcnt vmcnt(0)")
        stamp3(e, 10)
        srd(e, S_SRD_O, 28, 29, 4 * MB, WS_ST)
        e("s_lshl_b32 s38, s2, 2")
        e(f"s_add_u32 s38, s38, s{S_WAVE}")
        e("s_lshl_b32 s38, s38, 6")
        e("v_mov_b32 v0, s38")
        for k in range(11):
            e(f"v_mov_b32 v{4+k}, s{76+k}")
        e("v_mov_b32 v15, s89")
        e("v_mov_b32 v16, s90")
        e("v_mov_b32 v17, s87")
        for k in range(4):
            e(f"buffer_store_dwordx4 v[{4+4*k}:{7+4*k}], v0, s[{S_SRD_O}:{S_SRD_O+3}], 0 offen offset:{16*k}")


WS_FL = 31 * MB
FL1, FLY, FLO, FLC = 0, 1024, 4096, 8192
S_NONCE = 95
WS_STAT = 30 * MB
LDS_ST = LDS_CNT + 512
LDS_PB = LDS_ST + 3072
LDS_NONCE = LDS_CNT + 32
LDS_GO = LDS_CNT + 48


def signal(e, phase, uid, offs, vm=0, v=0):
    e(f"s_waitcnt vmcnt({vm})")
    e(f"v_mov_b32 v{v}, {LDS_CNT + 4 * phase}")
    e(f"v_mov_b32 v{v+1}, 1")
    e("s_mov_b64 exec, 1")
    e(f"ds_add_rtn_u32 v{v+1}, v{v}, v{v+1}")
    e("s_waitcnt lgkmcnt(0)")
    e(f"v_cmp_eq_u32 vcc, 3, v{v+1}")
    e(f"s_cbranch_vccz sig_{uid}")
    e(f"v_mov_b32 v{v}, 0")
    e(f"v_mov_b32 v{v+1}, s{S_NONCE}")
    for o in offs:
        e(f"buffer_store_dword v{v+1}, v{v}, s[{S_DBG}:{S_DBG+3}], s{o} offen sc1")
    e.lab(f"sig_{uid}")
    e("s_mov_b64 exec, -1")


def poll(e, vaddr, vtmp, uid, sleep=2):
    e(f"s_mov_b32 s{S_T2}, {SPIN_MAX}")
    e.lab(f"poll_{uid}")
    e(f"buffer_load_dword v{vtmp}, v{vaddr}, s[{S_DBG}:{S_DBG+3}], 0 offen sc1")
    e("s_waitcnt vmcnt(0)")
    e(f"v_cmp_ne_u32 vcc, s{S_NONCE}, v{vtmp}")
    e(f"s_cbranch_vccz polld_{uid}")
    e(f"s_sleep {sleep}")
    e(f"s_sub_u32 s{S_T2}, s{S_T2}, 1")
    e(f"s_cmp_lg_u32 s{S_T2}, 0")
    e(f"s_cbranch_scc1 poll_{uid}")
    e.lab(f"polld_{uid}")


def lpoll(e, vaddr, vtmp, phase, uid, sleep=2):
    e(f"v_mov_b32 v{vtmp+1}, {LDS_GO + 4 * phase}")
    e(f"s_cmp_lg_u32 s{S_WAVE}, 0")
    e(f"s_cbranch_scc1 lw_{uid}")
    poll(e, vaddr, vtmp, uid, sleep)
    e(f"v_mov_b32 v{vtmp}, 1")
    e(f"ds_write_b32 v{vtmp+1}, v{vtmp}")
    e(f"s_branch lwd_{uid}")
    e.lab(f"lw_{uid}")
    e(f"s_mov_b32 s{S_T2}, {SPIN_MAX * 20}")
    e.lab(f"lwl_{uid}")
    e(f"ds_read_b32 v{vtmp}, v{vtmp+1}")
    e("s_waitcnt lgkmcnt(0)")
    e(f"v_cmp_ne_u32 vcc, 1, v{vtmp}")
    e(f"s_cbranch_vccz lwd_{uid}")
    e("s_sleep 1")
    e(f"s_sub_u32 s{S_T2}, s{S_T2}, 1")
    e(f"s_cmp_lg_u32 s{S_T2}, 0")
    e(f"s_cbranch_scc1 lwl_{uid}")
    e.lab(f"lwd_{uid}")


def get_nonce(e, v):
    e(f"v_mov_b32 v{v}, {LDS_NONCE}")
    e(f"ds_read_b32 v{v}, v{v}")
    e("s_waitcnt lgkmcnt(0)")
    e(f"v_readfirstlane_b32 s{S_NONCE}, v{v}")
    e("s_nop 3")


def split_dma(G):
    g = G.dma_groups()
    return g[:G.nR], g[G.nR:]


def book_part(G, which):
    out = []
    if which == 'R':
        kr = 2048 if G.rblk else 128
        if G.kr_step:
            out += G.kr_step
        else:
            out.append(f"s_add_u32 s{S_KR}, s{S_KR}, {kr}")
        wrap = [(S_KR, kr * G.nsteps)]
    else:
        wrap = []
        if any(r.typ == 'T' for r in G.regions):
            kc = 2048 if G.cblk else 128
            out.append(f"s_add_u32 s{S_KC}, s{S_KC}, {kc}")
            wrap.append((S_KC, kc * G.nsteps))
        for r in G.regions:
            if r.typ != 'T':
                if G.kn_step:
                    out += G.kn_step
                else:
                    out.append(f"s_add_u32 s{S_KN}, s{S_KN}, {64*r.gstride}")
                wrap.append((S_KN, 64 * r.gstride * G.nsteps))
    if G.rot:
        out.append(f"s_add_u32 s{S_KI}, s{S_KI}, 1")
        out.append(f"s_cmp_ge_u32 s{S_KI}, s{S_NS}")
        out.append(f"s_cselect_b32 s{S_KI}, 0, s{S_KI}")
        for (sr, amt) in wrap:
            out.append(f"s_cmp_eq_u32 s{S_KI}, 0")
            out.append(f"s_cselect_b32 s{S_T0}, {amt}, 0")
            out.append(f"s_sub_u32 s{sr}, s{sr}, s{S_T0}")
    out.append(f"s_add_u32 s{S_WR}, s{S_WR}, {G.SS}")
    return out


def loader_phase(e, G, first, mid, sc1_dep):
    p = G.pre
    gr, gc = split_dma(G)
    ind, dep = (gr, gc) if first == 'R' else (gc, gr)
    second = 'C' if first == 'R' else 'R'
    G.loader_init()
    if G.rot:
        e(f"s_mov_b32 s63, s{S_KI}")
    pre = G.pre_R or []
    for st in range(G.S):
        for g in ind:
            e.ext(g)
        e.ext(book_part(G, first))
    e(f"s_mov_b32 s{S_WR}, 0")
    if G.rot:
        e(f"s_mov_b32 s{S_KI}, s63")
    e.ext(pre)
    mid(len(ind) * G.S)
    for st in range(G.S):
        for g in dep:
            e.ext(g)
        e.ext(book_part(G, second))
        e.ext(pre)
    e(f"s_mov_b32 s{S_WR}, 0")
    e(f"s_sub_u32 s{S_LEFT}, s{S_NS}, {G.S}")
    e(f"s_waitcnt vmcnt({(G.S-1)*len(dep)})")
    e("s_barrier")
    e(f"s_mov_b32 s{S_CNT}, s{S_NS}")
    e(f"s_waitcnt vmcnt({(G.S-2)*len(dep)})")
    e(f"s_branch {p}_lmid")
    late = getattr(G, 'late', False)
    if late:
        e.lab(f"{p}_chk")
        e(f"v_cmp_ne_u32 vcc, s{S_NONCE}, v23")
        e(f"s_cbranch_vccz {p}_lmid")
        poll(e, 22, 23, f"{p}_late", 2)
        e(f"s_branch {p}_lmid")
    e.lab(f"{p}_lloop")
    e(f"s_waitcnt vmcnt({(G.S-2)*G.D})")
    if late:
        e(f"s_cmp_eq_u32 s{S_CNT}, 23")
        e(f"s_cbranch_scc1 {p}_chk")
    e.lab(f"{p}_lmid")
    e("s_barrier")
    if late:
        e(f"s_cmp_lg_u32 s{S_CNT}, 24")
        e(f"s_cbranch_scc1 {p}_np")
        e(f"buffer_load_dword v23, v22, s[{S_DBG}:{S_DBG+3}], 0 offen sc1")
        e.lab(f"{p}_np")
    for g in G.dma_groups():
        e.ext(g)
    e.ext(G.dma_book())
    e.ext(pre)
    e(f"s_sub_u32 s{S_CNT}, s{S_CNT}, 1")
    e(f"s_cmp_lg_u32 s{S_CNT}, 0")
    e(f"s_cbranch_scc1 {p}_lloop")


def ln_body(e):
    for i in range(8):
        e(f"v_lshlrev_b32 v{16+2*i}, 16, v{4+i}")
        e(f"v_and_b32 v{17+2*i}, 0xffff0000, v{4+i}")

    def tree(dst, src):
        for i in range(8):
            e(f"v_add_f32 v{40+i}, v{src+2*i}, v{src+2*i+1}")
        for i in range(4):
            e(f"v_add_f32 v{40+i}, v{40+i}, v{44+i}")
        e("v_add_f32 v40, v40, v42")
        e("v_add_f32 v41, v41, v43")
        e(f"v_add_f32 v{dst}, v40, v41")

    def wred(v):
        for sh in (1, 2, 4, 8):
            e("s_nop 1")
            e(f"v_add_f32_dpp v{v}, v{v}, v{v} row_ror:{sh} row_mask:0xf bank_mask:0xf")
        e("v_mov_b32 v48, v%d" % v)
        e("s_nop 1")
        e(f"v_permlane32_swap_b32 v{v}, v48")
        e(f"v_add_f32 v{v}, v{v}, v48")
        e("v_mov_b32 v48, v%d" % v)
        e("s_nop 1")
        e(f"v_permlane16_swap_b32 v{v}, v48")
        e(f"v_add_f32 v{v}, v{v}, v48")

    tree(3, 16)
    wred(3)
    e("v_mul_f32 v3, 0x3a800000, v3")
    for i in range(16):
        e(f"v_sub_f32 v{52+i}, v{16+i}, v3")
    for i in range(16):
        e(f"v_mul_f32 v{52+i}, v{52+i}, v{52+i}")
    tree(12, 52)
    wred(12)
    e("v_mul_f32 v12, 0x3a800000, v12")
    e("v_cvt_pk_bf16_f32 v13, v3, v12")
    e("v_lshlrev_b32 v3, 16, v13")
    e("v_and_b32 v12, 0xffff0000, v13")
    e("v_add_f32 v12, 0x3727c5ac, v12")
    e("v_cvt_pk_bf16_f32 v13, v12, v12")
    e("v_lshlrev_b32 v12, 16, v13")
    e("v_sqrt_f32 v12, v12")
    e("s_nop 0")
    e("v_cvt_pk_bf16_f32 v13, v12, v12")
    e("v_lshlrev_b32 v12, 16, v13")
    e("v_rcp_f32 v14, v12")
    for i in range(8):
        e(f"v_sub_f32 v{16+2*i}, v{16+2*i}, v3")
        e(f"v_sub_f32 v{17+2*i}, v{17+2*i}, v3")
        e(f"v_cvt_pk_bf16_f32 v{4+i}, v{16+2*i}, v{17+2*i}")
        e(f"v_lshlrev_b32 v{16+2*i}, 16, v{4+i}")
        e(f"v_and_b32 v{17+2*i}, 0xffff0000, v{4+i}")
    for i in range(16):
        e(f"v_mul_f32 v{52+i}, v{16+i}, v14")
        e(f"v_fma_f32 v{16+i}, -v{52+i}, v12, v{16+i}")
        e(f"v_fma_f32 v{52+i}, v{16+i}, v14, v{52+i}")
    for i in range(8):
        e(f"v_cvt_pk_bf16_f32 v{4+i}, v{52+2*i}, v{53+2*i}")


HG = 122 * 1024
AG = 66 * 1024
ACC = 80


def g1_epi3(e, G, pre):
    e("v_mbcnt_lo_u32_b32 v1, -1, 0")
    e("v_mbcnt_hi_u32_b32 v1, -1, v1")
    e("v_and_b32 v2, 15, v1")
    e("v_lshrrev_b32 v3, 4, v1")
    e("v_and_b32 v4, 1, v3")
    e("v_lshlrev_b32 v4, 5, v4")
    e("v_lshrrev_b32 v5, 1, v3")
    e("v_lshl_add_u32 v4, v5, 4, v4")
    e("v_lshl_add_u32 v4, v2, 6, v4")
    e(f"s_lshl_b32 s{S_T0}, s{S_WAVE}, 6")
    e(f"s_add_u32 s{S_T0}, s{S_T0}, s{S_ROW0}")
    e(f"s_lshr_b32 s36, s{S_ROW0}, 6")
    e(f"s_lshl_b32 s34, s{S_COL0}, 7")
    e("s_add_u32 s34, s34, s36")
    e(f"s_add_u32 s34, s34, {FLY}")
    e(f"s_lshr_b32 s35, s{S_ROW0}, 1")
    e(f"s_lshl_b32 s37, s{S_COL0}, 2")
    e("s_add_u32 s35, s35, s37")
    e(f"s_add_u32 s35, s35, {FLO}")
    for r in G.regions:
        if r.typ == 'T':
            srd(e, S_SRD_O, 28, 29, 128 * AG, WS_AT)
            e(f"s_mul_i32 s{S_T1}, s{S_COL0}, {11*AG}")
            e(f"s_lshl_b32 s{S_T2}, s{S_T0}, 5")
            e(f"s_add_u32 s{S_T1}, s{S_T1}, s{S_T2}")
            e(f"v_add_u32 v6, s{S_T1}, v4")
            e(f"s_mul_i32 s{S_T1}, s{S_COL0}, 11")
            if OPT.get('alg'):
                e(f"s_lshl_b32 s{S_T2}, s{S_WAVE}, 8")
                e(f"s_add_u32 s{S_T2}, s{S_T2}, {LDS_ST}")
                e(f"v_lshl_add_u32 v7, v3, 4, s{S_T2}")
                for m in range(4):
                    e(f"ds_read_b128 v[{48+4*m}:{51+4*m}], v7 offset:{64*m}")
                    e(f"ds_read_b128 v[{64+4*m}:{67+4*m}], v7 offset:{1024+64*m}")
                e("v_lshlrev_b32 v7, 2, v2")
                e(f"v_add_u32 v7, {LDS_ST + 2048}, v7")
            for j in range(r.ng):
                n = r.g0 + j
                b = 16 + (j & 3) * 8
                if OPT.get('alg'):
                    if j == 0:
                        e(f"ds_read_b32 v8, v7 offset:{64*n}")
                    if j + 1 < r.ng:
                        e(f"ds_read_b32 v{8+((j+1)&1)*2}, v7 offset:{64*(n+1)}")
                        e("s_waitcnt lgkmcnt(1)")
                    else:
                        e("s_waitcnt lgkmcnt(0)")
                    c = 8 + (j & 1) * 2
                    for m in range(4):
                        a = G.acc(m, n)
                        for h in range(2):
                            e(f"v_pk_mul_f32 v[{a+2*h}:{a+2*h+1}], v[{a+2*h}:{a+2*h+1}], v[{48+4*m+2*h}:{49+4*m+2*h}]")
                    for m in range(4):
                        a = G.acc(m, n)
                        for h in range(2):
                            e(f"v_pk_fma_f32 v[{a+2*h}:{a+2*h+1}], v[{64+4*m+2*h}:{65+4*m+2*h}], v[{c}:{c+1}], v[{a+2*h}:{a+2*h+1}] op_sel_hi:[1,0,1] neg_lo:[1,0,0] neg_hi:[1,0,0]")
                e(f"s_add_u32 s{S_T2}, s{S_T1}, {n}")
                e(f"s_cmp_lt_u32 s{S_T2}, 64")
                e(f"s_cselect_b32 s{S_DL}, 0, 0x80008000")
                e(f"s_mov_b32 s{S_T2}, {n*AG}")
                for m in range(4):
                    a = G.acc(m, n)
                    e(f"v_cvt_pk_bf16_f32 v{b+2*m}, v{a}, v{a+1}")
                    e(f"v_cvt_pk_bf16_f32 v{b+2*m+1}, v{a+2}, v{a+3}")
                for k in range(8):
                    e(f"v_xor_b32 v{b+k}, s{S_DL}, v{b+k}")
                e("s_nop 1")
                for h in range(2):
                    e(f"v_permlane16_swap_b32 v{b+4*h}, v{b+2+4*h}")
                    e(f"v_permlane16_swap_b32 v{b+1+4*h}, v{b+3+4*h}")
                e(f"buffer_store_dwordx4 v[{b}:{b+3}], v6, s[{S_SRD_O}:{S_SRD_O+3}], s{S_T2} offen sc1")
                e(f"buffer_store_dwordx4 v[{b+4}:{b+7}], v6, s[{S_SRD_O}:{S_SRD_O+3}], s{S_T2} offen offset:1024 sc1")
        else:
            srd(e, S_SRD_O, 28, 29, 128 * HG, WS_H)
            srd(e, S_SRD_B, 26, 27, 7168)
            e(f"s_mul_i32 s{S_T1}, s{S_COL0}, 352")
            e(f"s_sub_u32 s{S_T1}, s{S_T1}, {(128 - r.g0) * 32}")
            e("v_lshlrev_b32 v7, 3, v3")
            e(f"v_add_u32 v7, s{S_T1}, v7")
            nq = -(-r.ng // 4)

            def ldb(Q):
                for j in range(4 * Q, min(4 * Q + 4, r.ng)):
                    d = 64 + 8 * (Q & 1) + 2 * (j - 4 * Q)
                    e(f"buffer_load_dwordx2 v[{d}:{d+1}], v7, s[{S_SRD_B}:{S_SRD_B+3}], 0 offen offset:{32*j}")
            ldb(0)
            if nq > 1:
                ldb(1)
            e(f"s_lshr_b32 s{S_T2}, s{S_T0}, 4")
            e(f"s_mul_i32 s{S_T2}, s{S_T2}, {HG}")
            if pre != 'g1m':
                e(f"s_mul_i32 s{S_RD}, s{S_COL0}, 6144")
                e(f"s_sub_u32 s{S_RD}, s{S_RD}, {12*6144-2048}")
                e(f"s_add_u32 s{S_T2}, s{S_T2}, s{S_RD}")
            e(f"v_add_u32 v6, s{S_T2}, v4")
            c1 = -2.0 * math.log2(math.e) * math.sqrt(2.0 / math.pi)
            c2 = c1 * 0.044715
            e(f"v_mov_b32 v10, {f2u(c1):#x}")
            e(f"v_mov_b32 v11, {f2u(c1):#x}")
            e(f"v_mov_b32 v12, {f2u(c2):#x}")
            e(f"v_mov_b32 v13, {f2u(c2):#x}")
            e("v_mov_b32 v14, 1.0")
            e("v_mov_b32 v15, 1.0")
            if OPT.get('alg'):
                e(f"s_lshl_b32 s{S_T2}, s{S_WAVE}, 8")
                e(f"s_add_u32 s{S_T2}, s{S_T2}, {LDS_ST}")
                e(f"v_lshl_add_u32 v8, v2, 2, s{S_T2}")
                e("v_lshlrev_b32 v9, 4, v3")
                e(f"v_add_u32 v9, {LDS_ST + 2048}, v9")
            for Q in range(nq):
                ng = min(4, r.ng - 4 * Q)
                if Q == 0:
                    e(f"s_waitcnt vmcnt({min(4, r.ng-4) if nq > 1 else 0})")
                elif Q == 1:
                    e("s_waitcnt vmcnt(11)")
                else:
                    e("s_waitcnt vmcnt(16)")
                for jj in range(ng):
                    bq = 64 + 8 * (Q & 1) + 2 * jj
                    e(f"v_lshlrev_b32 v{48+4*jj}, 16, v{bq}")
                    e(f"v_and_b32 v{49+4*jj}, 0xffff0000, v{bq}")
                    e(f"v_lshlrev_b32 v{50+4*jj}, 16, v{bq+1}")
                    e(f"v_and_b32 v{51+4*jj}, 0xffff0000, v{bq+1}")
                if Q + 2 < nq:
                    ldb(Q + 2)
                for m in range(4):
                    t = G.acc(m, r.g0 + 4 * Q)
                    u = 16 + 16 * (m & 1)
                    np_ = 2 * ng
                    P = lambda b_, h: f"v[{b_+2*h}:{b_+2*h+1}]"
                    if OPT.get('alg'):
                        e(f"ds_read_b32 v0, v8 offset:{64*m}")
                        e(f"ds_read_b32 v1, v8 offset:{1024+64*m}")
                        for jj in range(ng):
                            e(f"ds_read_b128 v[{u+4*jj}:{u+4*jj+3}], v9 offset:{64*(r.g0+4*Q+jj)}")
                        e("s_waitcnt lgkmcnt(0)")
                        for h in range(np_):
                            e(f"v_pk_fma_f32 {P(u,h)}, {P(u,h)}, v[0:1], {P(48,h)} op_sel:[0,1,0] op_sel_hi:[1,1,1] neg_lo:[1,0,0] neg_hi:[1,0,0]")
                        for h in range(np_):
                            e(f"v_pk_fma_f32 {P(t,h)}, {P(t,h)}, v[0:1], {P(u,h)} op_sel_hi:[1,0,1]")
                    for h in range(np_ if not OPT.get('alg') else 0):
                        e(f"v_pk_add_f32 {P(t,h)}, {P(t,h)}, {P(48,h)}")
                    for h in range(np_):
                        e(f"v_pk_mul_f32 {P(u,h)}, {P(t,h)}, {P(t,h)}")
                    for h in range(np_):
                        e(f"v_pk_fma_f32 {P(u,h)}, {P(u,h)}, v[12:13], v[10:11]")
                    for h in range(np_):
                        e(f"v_pk_mul_f32 {P(u,h)}, {P(u,h)}, {P(t,h)}")
                    for x in range(2 * np_):
                        e(f"v_exp_f32 v{u+x}, v{u+x}")
                    for h in range(np_):
                        e(f"v_pk_add_f32 {P(u,h)}, {P(u,h)}, v[14:15]")
                    for x in range(2 * np_):
                        e(f"v_rcp_f32 v{u+x}, v{u+x}")
                    for h in range(np_):
                        e(f"v_pk_mul_f32 {P(t,h)}, {P(t,h)}, {P(u,h)}")
                    for h in range(np_):
                        e(f"v_cvt_pk_bf16_f32 v{u+h}, v{t+2*h}, v{t+2*h+1}")
                    if ng == 3:
                        e(f"v_mov_b32 v{u+6}, 0")
                        e(f"v_mov_b32 v{u+7}, 0")
                    e(f"s_mov_b32 s{S_T2}, {m*HG + Q*2048}")
                    e("s_nop 0")
                    for h in range(2):
                        e(f"v_permlane16_swap_b32 v{u+4*h}, v{u+2+4*h}")
                        e(f"v_permlane16_swap_b32 v{u+1+4*h}, v{u+3+4*h}")
                    e(f"buffer_store_dwordx4 v[{u}:{u+3}], v6, s[{S_SRD_O}:{S_SRD_O+3}], s{S_T2} offen sc1")
                    e(f"buffer_store_dwordx4 v[{u+4}:{u+7}], v6, s[{S_SRD_O}:{S_SRD_O+3}], s{S_T2} offen offset:1024 sc1")
                if Q >= 1 and not (OPT.get('defer', 1) and Q == 2):
                    signal(e, 4 + Q - 1, f"{pre}q{Q}", [35], 8)
                    e("s_add_u32 s35, s35, 1024")


def warm(e, pre):
    if not OPT.get('warm'):
        return
    e(f"s_mov_b32 m0, {LDS_CNT + 256}")
    e("s_lshr_b32 s34, s2, 3")
    e("s_cmp_ge_u32 s34, 3")
    e(f"s_cbranch_scc1 {pre}_w1")
    e("s_lshl_b32 s34, s34, 2")
    e(f"s_add_u32 s34, s34, s{S_WAVE}")
    e("s_lshl_b32 s34, s34, 13")
    e("v_lshlrev_b32 v4, 7, v1")
    e("v_add_u32 v4, s34, v4")
    e(f"v_min_u32 v4, k_done-{KNAME}, v4")
    e("s_getpc_b64 s[34:35]")
    e.lab(f"{pre}_pc")
    e(f"s_sub_u32 s34, s34, {pre}_pc-{KNAME}")
    e("s_subb_u32 s35, s35, 0")
    e("global_load_lds_dword v4, s[34:35]")
    e.lab(f"{pre}_w1")
    if OPT['warm'] >= 2:
        e("s_load_dwordx4 s[64:67], s[0:1], 8")
        e("s_load_dwordx2 s[68:69], s[0:1], 64")
        e("s_load_dwordx2 s[70:71], s[0:1], 80")
        e("v_lshlrev_b32 v4, 21, v1")
        e("s_waitcnt lgkmcnt(0)")
        e(f"s_cmp_eq_u32 s{S_WAVE}, 0")
        e("s_cselect_b32 s72, s28, s64")
        e("s_cselect_b32 s73, s29, s65")
        e(f"s_cselect_b32 s74, {64*MB}, s{S_NREC}") if False else None
        e(f"s_mov_b32 s74, {8*MB}")
        e(f"s_cselect_b32 s74, {64*MB}, s74")
        e(f"s_cmp_eq_u32 s{S_WAVE}, 2")
        e("s_cselect_b32 s72, s66, s72")
        e("s_cselect_b32 s73, s67, s73")
        e(f"s_cmp_eq_u32 s{S_WAVE}, 3")
        e("s_cselect_b32 s72, s68, s72")
        e("s_cselect_b32 s73, s69, s73")
        e(f"s_cselect_b32 s74, {3584*2048}, s74")
        e("s_mov_b32 s75, 0x20000")
        e("buffer_load_dword v4, s[72:75], 0 offen lds")
        srd(e, 72, 70, 71, 4 * MB)
        e("buffer_load_dword v4, s[72:75], 0 offen lds")


def wred64(e, v, t):
    for sh in (1, 2, 4, 8):
        e("s_nop 1")
        e(f"v_add_f32_dpp v{v}, v{v}, v{v} row_ror:{sh} row_mask:0xf bank_mask:0xf")
    e(f"v_mov_b32 v{t}, v{v}")
    e("s_nop 1")
    e(f"v_permlane32_swap_b32 v{v}, v{t}")
    e(f"v_add_f32 v{v}, v{v}, v{t}")
    e(f"v_mov_b32 v{t}, v{v}")
    e("s_nop 1")
    e(f"v_permlane16_swap_b32 v{v}, v{t}")
    e(f"v_add_f32 v{v}, v{v}, v{t}")


def alg_stats(e, G, pre):
    e("s_lshl_b32 s37, s2, 3")
    e(f"s_lshl_b32 s38, s{S_WAVE}, 1")
    e("s_add_u32 s37, s37, s38")
    e("s_lshl_b32 s37, s37, 11")
    srd(e, 64, 32, 33, 4 * MB)
    for k in range(4):
        e(f"buffer_load_dwordx4 v[{80+4*k}:{83+4*k}], v2, s[64:67], s37 offen offset:{1024*k}")
    nl = 4
    e(f"s_lshr_b32 s36, s{S_ROW0}, 8")
    plan = []
    vb = 96
    for r in G.regions:
        if r.typ == 'T':
            per = r.ng * 2
            nr = -(-per // 4)
            for j in range(nr):
                e(f"s_mul_i32 s34, s36, {per}")
                e(f"s_add_u32 s35, s{S_WAVE}, {4*j}")
                e("s_add_u32 s34, s34, s35")
                e(f"s_mul_i32 s38, s{S_COL0}, 176")
                e("s_add_u32 s34, s34, s38")
                e("s_cmp_lt_u32 s34, 1024")
                e("s_cselect_b32 s68, s20, s22")
                e("s_cselect_b32 s69, s21, s23")
                e("s_and_b32 s34, s34, 1023")
                e("s_lshl_b32 s34, s34, 11")
                e(f"s_cmp_lt_u32 s35, {per}")
                e(f"s_cselect_b32 s70, {2*MB}, 0")
                e("s_mov_b32 s71, 0x20000")
                e(f"buffer_load_dwordx4 v[{vb}:{vb+3}], v2, s[68:71], s34 offen")
                e(f"buffer_load_dwordx4 v[{vb+4}:{vb+7}], v2, s[68:71], s34 offen offset:1024")
                plan.append(('T', r, j, vb))
                vb += 8
        else:
            nch = r.ng * 2
            rpi = 64 // nch
            nld = 32 // rpi
            m1, sh1 = magic(nch, 64)
            e(f"v_mul_u32_u24 v3, {m1}, v1")
            e(f"v_lshrrev_b32 v3, {sh1}, v3")
            e(f"v_mul_u32_u24 v4, {nch}, v3")
            e("v_sub_u32 v4, v1, v4")
            e(f"v_mul_u32_u24 v5, 7168, v3")
            e("v_lshl_add_u32 v5, v4, 4, v5")
            e(f"v_cmp_gt_u32 vcc, {rpi}, v3")
            e("v_mov_b32 v6, 0x7ff00000")
            e("v_lshlrev_b32 v7, 5, v4")
            e("v_cndmask_b32 v5, v6, v5, vcc")
            e("v_cndmask_b32 v7, 0, v7, vcc")
            e(f"v_add_u32 v7, {LDS_PB + 64 + 64 * r.g0}, v7")
            srd(e, 72, 24, 25, 1024 * 7168)
            e("s_lshl_b32 s34, s36, 7")
            e(f"s_lshl_b32 s35, s{S_WAVE}, 5")
            e("s_add_u32 s34, s34, s35")
            e("s_mul_i32 s34, s34, 7168")
            e(f"s_mul_i32 s35, s{S_COL0}, 352")
            e("s_add_u32 s34, s34, s35")
            e(f"s_sub_u32 s34, s34, {(128 - r.g0) * 32}")
            for j in range(nld):
                e(f"buffer_load_dwordx4 v[{vb}:{vb+3}], v5, s[72:75], s34 offen")
                e(f"s_add_u32 s34, s34, {rpi*7168}")
                plan.append(('N', r, j, vb))
                vb += 4
    assert vb <= 256
    tot = 4 + sum(2 if p[0] == 'T' else 1 for p in plan)
    e("v_mov_b32 v8, 0x3f803f80")
    e("v_mov_b32 v9, 0x00003f80")
    e("v_mov_b32 v10, 0x3f800000")
    e(f"s_waitcnt vmcnt({tot-4})")
    e(f"s_lshl_b32 s34, s{S_WAVE}, 3")
    e(f"v_mov_b32 v11, s34")
    e(f"v_add_u32 v11, {LDS_PB}, v11")
    for rr in range(2):
        src = 80 + 8 * rr
        for i in range(8):
            e(f"v_lshlrev_b32 v{16+2*i}, 16, v{src+i}")
            e(f"v_and_b32 v{17+2*i}, 0xffff0000, v{src+i}")
        e("v_mov_b32 v12, 0")
        e("v_mov_b32 v13, 0")
        for i in range(4):
            e(f"v_dot2_f32_bf16 v12, v{src+2*i}, v8, v12")
            e(f"v_dot2_f32_bf16 v13, v{src+2*i+1}, v8, v13")
        e("s_nop 2")
        e("v_add_f32 v12, v12, v13")
        wred64(e, 12, 14)
        e("v_mul_f32 v12, 0x3a800000, v12")
        for i in range(16):
            e(f"v_sub_f32 v{16+i}, v{16+i}, v12")
        e("v_mul_f32 v13, v16, v16")
        e("v_mul_f32 v15, v17, v17")
        for i in range(1, 8):
            e(f"v_fmac_f32 v13, v{16+2*i}, v{16+2*i}")
            e(f"v_fmac_f32 v15, v{17+2*i}, v{17+2*i}")
        e("v_add_f32 v13, v13, v15")
        wred64(e, 13, 14)
        e("v_mul_f32 v13, 0x3a800000, v13")
        e("v_cvt_pk_bf16_f32 v14, v12, v13")
        e("v_lshlrev_b32 v12, 16, v14")
        e("v_and_b32 v13, 0xffff0000, v14")
        e("v_add_f32 v13, 0x3727c5ac, v13")
        e("v_cvt_pk_bf16_f32 v14, v13, v13")
        e("v_lshlrev_b32 v13, 16, v14")
        e("v_sqrt_f32 v13, v13")
        e("s_nop 0")
        e("v_cvt_pk_bf16_f32 v14, v13, v13")
        e("v_lshlrev_b32 v13, 16, v14")
        e("v_rcp_f32 v14, v13")
        e("s_nop 0")
        e("v_fma_f32 v15, -v13, v14, 1.0")
        e("v_fma_f32 v14, v15, v14, v14")
        e("v_mul_f32 v12, v12, v14")
        e(f"ds_write_b32 v11, v14 offset:{4*rr}")
        e(f"ds_write_b32 v11, v12 offset:{32+4*rr}")
    e("s_waitcnt vmcnt(0)")
    nacc = None
    for (typ, r, j, b) in plan:
        if typ == 'T':
            e("v_mov_b32 v12, 0")
            e("v_mov_b32 v13, 0")
            for i in range(4):
                e(f"v_dot2_f32_bf16 v12, v{b+2*i}, v8, v12")
                e(f"v_dot2_f32_bf16 v13, v{b+2*i+1}, v8, v13")
            e("s_nop 2")
            e("v_add_f32 v12, v12, v13")
            wred64(e, 12, 14)
            e(f"s_add_u32 s34, s{S_WAVE}, {4*j}")
            e("s_lshl_b32 s34, s34, 2")
            e(f"v_mov_b32 v13, s34")
            e(f"v_add_u32 v13, {LDS_PB + 896}, v13")
            e("ds_write_b32 v13, v12")
        else:
            if j == 0:
                for i in range(8):
                    e(f"v_mov_b32 v{16+i}, 0")
            for i in range(4):
                e(f"v_dot2_f32_bf16 v{16+2*i}, v{b+i}, v9, v{16+2*i}")
                e(f"v_dot2_f32_bf16 v{17+2*i}, v{b+i}, v10, v{17+2*i}")
            nacc = True
    if nacc:
        e("s_nop 2")
        for i in range(8):
            e(f"ds_add_f32 v7, v{16+i} offset:{4*i}")
    e("s_waitcnt lgkmcnt(0)")


def alg_publish(e, G):
    n = 0
    e("v_lshlrev_b32 v24, 2, v1")
    e(f"v_add_u32 v25, {LDS_PB}, v24")
    e("ds_read_b32 v26, v25")
    e("ds_read_b32 v27, v25 offset:896")
    e("v_lshlrev_b32 v28, 4, v1")
    e(f"v_add_u32 v29, {LDS_PB + 64}, v28")
    e("v_min_u32 v29, %d, v29" % (LDS_PB + 64 + 16 * 47))
    e("ds_read_b128 v[32:35], v29")
    e("v_mov_b32 v31, 0x7ff00000")
    e("v_and_b32 v25, 7, v1")
    e("v_lshlrev_b32 v25, 2, v25")
    e("v_lshrrev_b32 v30, 3, v1")
    e("v_lshl_add_u32 v25, v30, 13, v25")
    e("v_cmp_gt_u32 vcc, 16, v1")
    e("s_lshl_b32 s34, s2, 5")
    e("v_cndmask_b32 v25, v31, v25, vcc")
    e(f"s_lshr_b32 s36, s{S_ROW0}, 8")
    e("s_waitcnt lgkmcnt(0)")
    e("buffer_store_dword v26, v25, s[4:7], s34 offen sc1")
    n += 1
    for r in G.regions:
        if r.typ == 'T':
            per = r.ng * 2
            e(f"v_cmp_gt_u32 vcc, {per}, v1")
            e(f"s_mul_i32 s34, s36, {per*4}")
            e(f"s_mul_i32 s35, s{S_COL0}, 704")
            e("s_add_u32 s34, s34, s35")
            e("s_add_u32 s34, s34, 16384")
            e("v_cndmask_b32 v24, v31, v24, vcc")
            e("buffer_store_dword v27, v24, s[4:7], s34 offen sc1")
        else:
            e(f"v_cmp_gt_u32 vcc, 44, v1")
            e(f"s_mul_i32 s34, s36, {3584*4}")
            e(f"s_mul_i32 s35, s{S_COL0}, 704")
            e("s_add_u32 s34, s34, s35")
            e(f"s_add_u32 s34, s34, {32768 - 8192 + 1024}")
            e("v_cndmask_b32 v28, v31, v28, vcc")
            e(f"v_cmp_le_u32 vcc, {4*r.g0}, v1")
            e("s_nop 1")
            e("v_cndmask_b32 v28, v31, v28, vcc")
            e("s_sub_u32 s34, s34, 1024")
            e("buffer_store_dwordx4 v[32:35], v28, s[4:7], s34 offen sc1")
        n += 1
    return n


def alg_fetch(e, G, pre):
    e(f"s_lshr_b32 s{S_T0}, s{S_ROW0}, 3")
    e("v_and_b32 v24, 31, v1")
    e(f"v_add_u32 v24, s{S_T0}, v24")
    e(f"s_and_b32 s34, s{S_COL0}, 7")
    e("s_lshl_b32 s34, s34, 5")
    e(f"s_lshr_b32 s35, s{S_COL0}, 3")
    e("s_lshl_b32 s35, s35, 1")
    e("s_add_u32 s34, s34, s35")
    e("v_and_b32 v25, 3, v1")
    e("v_lshl_add_u32 v25, v25, 3, s34")
    e("v_lshrrev_b32 v26, 2, v1")
    e("v_and_b32 v26, 1, v26")
    e("v_add_u32 v25, v25, v26")
    e("v_cmp_gt_u32 vcc, 32, v1")
    e("s_nop 1")
    e("v_cndmask_b32 v24, v25, v24, vcc")
    e("v_lshlrev_b32 v24, 2, v24")
    poll(e, 24, 25, f"st{pre}", 2)
    e("v_lshlrev_b32 v28, 4, v1")
    e(f"s_lshl_b32 s34, s{S_ROW0}, 2")
    e(f"s_mov_b32 m0, {LDS_ST}")
    e("s_add_u32 s35, s34, 8192")
    e("buffer_load_dwordx4 v28, s[4:7], s34 offen sc1 lds")
    e(f"s_mov_b32 m0, {LDS_ST + 1024}")
    e("s_nop 0")
    e("buffer_load_dwordx4 v28, s[4:7], s35 offen sc1 lds")
    e(f"s_mul_i32 s34, s{S_COL0}, 704")
    e(f"v_add_u32 v29, {LDS_ST + 2048}, v28")
    e("v_mov_b32 v31, 0x7ff00000")
    e("v_cmp_gt_u32 vcc, 44, v1")
    e("s_nop 1")
    e("v_cndmask_b32 v28, v31, v28, vcc")
    e(f"v_min_u32 v29, {LDS_ST + 2048 + 16*47}, v29")
    hasT = any(r.typ == 'T' for r in G.regions)
    hasN = any(r.typ != 'T' for r in G.regions)
    if hasT:
        e("s_add_u32 s35, s34, 16384")
        e("buffer_load_dwordx4 v[32:35], v28, s[4:7], s35 offen sc1")
    if hasN:
        e(f"s_add_u32 s35, s34, {32768 - 8192}")
        g0 = [r.g0 for r in G.regions if r.typ != 'T'][0]
        if g0:
            e(f"v_cmp_le_u32 vcc, {4*g0}, v1")
            e("s_nop 1")
            e("v_cndmask_b32 v28, v31, v28, vcc")
        for k in range(8):
            e(f"buffer_load_dwordx4 v[{36+4*k}:{39+4*k}], v28, s[4:7], s35 offen sc1")
            e(f"s_add_u32 s35, s35, {3584*4}")
    e("s_waitcnt vmcnt(0)")
    if hasN:
        for k in range(1, 8):
            for x in range(4):
                e(f"v_add_f32 v{36+x}, v{36+x}, v{36+4*k+x}")
        if hasT:
            for x in range(4):
                e(f"v_cndmask_b32 v{32+x}, v{32+x}, v{36+x}, vcc")
        else:
            for x in range(4):
                e(f"v_mov_b32 v{32+x}, v{36+x}")
    e("ds_write_b128 v29, v[32:35]")
    e("s_waitcnt lgkmcnt(0)")


def combine(e, G, typ, q):
    uid = f"{q}"
    keep = [2 * q, 2 * q + 1]
    e("v_mbcnt_lo_u32_b32 v1, -1, 0")
    e("v_mbcnt_hi_u32_b32 v1, -1, v1")
    e("v_and_b32 v2, 15, v1")
    e("v_lshrrev_b32 v3, 4, v1")
    e("v_lshlrev_b32 v5, 4, v1")
    srd(e, S_SRD_O, 28, 29, 32 * MB, WS_PB)
    e(f"s_lshr_b32 s34, s{S_ROW0}, 5")
    e(f"s_lshr_b32 s35, s{S_COL0}, 7")
    e("s_add_u32 s34, s34, s35")
    e("s_lshl_b32 s34, s34, 4")
    e(f"s_add_u32 s34, s34, s{S_WAVE}")
    e("s_lshl_b32 s34, s34, 15")
    e(f"s_add_u32 s35, s34, {q * 131072}")
    for m in range(8):
        if m in keep:
            continue
        e(f"s_add_u32 s{S_T2}, s35, {m*4096}")
        if typ == 'y' or OPT.get('ob'):
            for c in range(2):
                t = 16 + ((2 * m + c) & 7) * 4
                for qq in range(2):
                    a = G.acc(m, 2 * c + qq)
                    e(f"v_cvt_pk_bf16_f32 v{t+2*qq}, v{a}, v{a+1}")
                    e(f"v_cvt_pk_bf16_f32 v{t+2*qq+1}, v{a+2}, v{a+3}")
                e(f"buffer_store_dwordx4 v[{t}:{t+3}], v5, s[{S_SRD_O}:{S_SRD_O+3}], s{S_T2} offen offset:{c*1024} sc1")
        else:
            for n in range(4):
                a = G.acc(m, n)
                e(f"buffer_store_dwordx4 v[{a}:{a+3}], v5, s[{S_SRD_O}:{S_SRD_O+3}], s{S_T2} offen offset:{n*1024} sc1")
    e("s_lshr_b32 s36, s34, 12")
    e("s_and_b32 s36, s36, 0xff80")
    e(f"s_add_u32 s36, s36, {FLC}")
    e(f"s_add_u32 s37, s36, {4*q}")
    signal(e, 3, f"c{uid}", [37])
    OPT['sbase'] = 0
    stamp3(e, 8)
    e("s_load_dwordx2 s[20:21], s[0:1], 0")
    e("s_load_dwordx4 s[24:27], s[0:1], 72")
    e("v_mbcnt_lo_u32_b32 v1, -1, 0")
    e("v_mbcnt_hi_u32_b32 v1, -1, v1")
    e(f"s_lshr_b32 s{S_T0}, s{S_WAVE}, 1")
    e(f"s_lshl_b32 s{S_T0}, s{S_T0}, 7")
    e(f"s_add_u32 s{S_T0}, s{S_T0}, s{S_ROW0}")
    e(f"s_add_u32 s{S_T0}, s{S_T0}, {32*q}")
    e(f"s_and_b32 s{S_T1}, s{S_WAVE}, 1")
    e(f"s_lshl_b32 s{S_T1}, s{S_T1}, 6")
    e(f"s_add_u32 s{S_T1}, s{S_T1}, s{S_COL0}")
    e(f"v_add_u32 v6, s{S_T0}, v2")
    e("v_lshlrev_b32 v6, 11, v6")
    e(f"v_lshl_add_u32 v7, v3, 2, s{S_T1}")
    e("v_lshlrev_b32 v7, 1, v7")
    e("v_add_u32 v8, v6, v7")
    e("v_and_b32 v4, 1, v3")
    e("v_lshlrev_b32 v4, 4, v4")
    e("v_lshrrev_b32 v9, 1, v3")
    e("v_lshl_add_u32 v4, v9, 3, v4")
    e(f"v_add_u32 v4, s{S_T1}, v4")
    e("v_lshl_add_u32 v9, v4, 1, v6")
    e("v_and_b32 v10, 3, v1")
    e("v_lshl_add_u32 v10, v10, 2, s36")
    e("s_waitcnt lgkmcnt(0)")
    srd(e, 64, 20, 21, 4 * MB)
    srd(e, 68, 24, 25, 2048)
    srd(e, 72, 26, 27, 4 * MB)
    XA = 240
    for mi in range(2):
        for n in range(4):
            e(f"buffer_load_dwordx2 v[{XA+8*mi+2*n}:{XA+8*mi+2*n+1}], v8, s[64:67], 0 offen offset:{mi*0+n*32}" if mi == 0 else
              f"buffer_load_dwordx2 v[{XA+8*mi+2*n}:{XA+8*mi+2*n+1}], v12, s[64:67], 0 offen offset:{n*32}")
        if mi == 0:
            e("v_add_u32 v12, 0x8000, v8")
    for n in range(4):
        e(f"buffer_load_dwordx2 v[{72+2*n}:{73+2*n}], v7, s[68:71], 0 offen offset:{n*32}")
    poll(e, 10, 11, f"c{uid}", OPT.get('slc', 4))
    stamp3(e, 9)
    ysrc = [s for s in (0, 1) if s != q]
    osrc = [s for s in (2, 3) if s != q]
    loc = {}
    pool_v = []
    pool_a = [G.acc(m, n) for m in range(8) if m not in keep for n in range(4)]
    for mi, m in enumerate(keep):
        for s_ in ysrc + osrc:
            nch = 2 if (s_ < 2 or OPT.get('ob')) else 4
            e(f"s_add_u32 s{S_T2}, s34, {s_*131072 + m*4096}")
            for c in range(nch):
                if pool_a:
                    r = ('v', pool_a.pop(0))
                else:
                    r = ('v', pool_v.pop(0))
                loc[(mi, s_, c)] = r
                e(f"buffer_load_dwordx4 {r[0]}[{r[1]}:{r[1]+3}], v5, s[{S_SRD_O}:{S_SRD_O+3}], s{S_T2} offen offset:{c*1024} sc1")
    assert len(loc) <= 18 or True
    e("s_mov_b32 s37, 0xbfb8aa3b")
    nld = len(loc) // 2

    def get(dst, r, k):
        if r[0] == 'a':
            e(f"v_accvgpr_read_b32 v{dst}, a{r[1]+k}")
        else:
            e(f"v_mov_b32 v{dst}, v{r[1]+k}")

    def rnd(base, tmp):
        for i in range(4):
            e(f"v_cvt_pk_bf16_f32 v{tmp+i}, v{base+2*i}, v{base+2*i+1}")
        for i in range(4):
            e(f"v_lshlrev_b32 v{base+2*i}, 16, v{tmp+i}")
            e(f"v_and_b32 v{base+2*i+1}, 0xffff0000, v{tmp+i}")

    def unpack(dst, r):
        for i in range(4):
            if r[0] == 'a':
                e(f"v_accvgpr_read_b32 v{dst+2*i+1}, a{r[1]+i}")
                e(f"v_lshlrev_b32 v{dst+2*i}, 16, v{dst+2*i+1}")
                e(f"v_and_b32 v{dst+2*i+1}, 0xffff0000, v{dst+2*i+1}")
            else:
                e(f"v_lshlrev_b32 v{dst+2*i}, 16, v{r[1]+i}")
                e(f"v_and_b32 v{dst+2*i+1}, 0xffff0000, v{r[1]+i}")

    A, B, TM = 12, 20, 28
    PR = lambda r_, h: f"v[{r_+2*h}:{r_+2*h+1}]"
    for mi, m in enumerate(keep):
        e(f"s_waitcnt vmcnt({nld if mi == 0 else 2})")
        for c in range(2):
            own = G.acc(m, 2 * c)
            for k, s_ in enumerate((0, 1)):
                dst = A if k == 0 else B
                if s_ == q:
                    for i in range(4):
                        e(f"v_cvt_pk_bf16_f32 v{TM+i}, v{own+2*i}, v{own+2*i+1}")
                    unpack(dst, ('v', TM))
                else:
                    unpack(dst, loc[(mi, s_, c)])
            for h in range(4):
                e(f"v_pk_add_f32 {PR(A,h)}, {PR(A,h)}, {PR(B,h)}")
            rnd(A, TM)
            if OPT.get('ob'):
                for k, s_ in enumerate((2, 3)):
                    dst = B if k == 0 else 32
                    if s_ == q:
                        for i in range(4):
                            e(f"v_cvt_pk_bf16_f32 v{TM+i}, v{own+2*i}, v{own+2*i+1}")
                        unpack(dst, ('v', TM))
                    else:
                        unpack(dst, loc[(mi, s_, c)])
                for h in range(4):
                    e(f"v_pk_add_f32 {PR(B,h)}, {PR(B,h)}, {PR(32,h)}")
            for qq in range(2 if not OPT.get('ob') else 0):
                n = 2 * c + qq
                src = [G.acc(m, n) if s_ == q else loc[(mi, s_, n)][1] for s_ in (2, 3)]
                for h in range(2):
                    e(f"v_pk_add_f32 {PR(B+4*qq,h)}, {PR(src[0],h)}, {PR(src[1],h)}")
            rnd(B, TM)
            for qq in range(2):
                bb = 72 + 2 * (2 * c + qq)
                e(f"v_lshlrev_b32 v{TM}, 16, v{bb}")
                e(f"v_and_b32 v{TM+1}, 0xffff0000, v{bb}")
                e(f"v_lshlrev_b32 v{TM+2}, 16, v{bb+1}")
                e(f"v_and_b32 v{TM+3}, 0xffff0000, v{bb+1}")
                for h in range(2):
                    e(f"v_pk_add_f32 {PR(B+4*qq,h)}, {PR(B+4*qq,h)}, {PR(TM,h)}")
            rnd(B, TM)
            U = 32
            for x in range(8):
                e(f"v_mul_f32 v{U+x}, s37, v{B+x}")
            for x in range(8):
                e(f"v_exp_f32 v{U+x}, v{U+x}")
            for x in range(8):
                e(f"v_add_f32 v{U+x}, 1.0, v{U+x}")
            for x in range(8):
                e(f"v_rcp_f32 v{U+x}, v{U+x}")
            for h in range(4):
                e(f"v_pk_mul_f32 {PR(B,h)}, {PR(B,h)}, {PR(U,h)}")
            rnd(B, TM)
            for h in range(4):
                e(f"v_pk_mul_f32 {PR(A,h)}, {PR(A,h)}, {PR(B,h)}")
            rnd(A, TM)
            unpack(B, ('v', XA + 8 * mi + 4 * c))
            for h in range(4):
                e(f"v_pk_add_f32 {PR(A,h)}, {PR(A,h)}, {PR(B,h)}")
            O = 40 + 4 * (2 * mi + c)
            for i in range(4):
                e(f"v_cvt_pk_bf16_f32 v{O+i}, v{A+2*i}, v{A+2*i+1}")
            e(f"s_mov_b32 s{S_T2}, {mi*32768}")
            e("s_nop 0")
            e(f"v_permlane16_swap_b32 v{O}, v{O+2}")
            e(f"v_permlane16_swap_b32 v{O+1}, v{O+3}")
            e(f"buffer_store_dwordx4 v[{O}:{O+3}], v9, s[72:75], s{S_T2} offen offset:{c*64}")


def gen_ln_prologue(e):
    e("s_waitcnt lgkmcnt(0)")
    srd(e, 64, 32, 33, 4 * MB)
    e("buffer_load_dwordx4 v[4:7], v2, s[64:67], s37 offen")
    e("buffer_load_dwordx4 v[8:11], v2, s[64:67], s37 offen offset:1024")
    srd(e, 68, 28, 29, 256)
    e("s_mov_b64 s[28:29], s[30:31]")
    srd(e, S_DBG, 28, 29, 16384, WS_FL)
    e("v_mov_b32 v70, 0")
    e("v_mov_b32 v71, 0")
    e("s_cmp_lg_u32 s39, 4")
    e("s_cbranch_scc1 nonce_done")
    e("s_cmp_lg_u32 s2, 0")
    e("s_cbranch_scc1 nonce_poll")
    e("s_memrealtime s[100:101]")
    e("s_waitcnt lgkmcnt(0)")
    e("s_or_b32 s100, s100, 1")
    e("v_mov_b32 v71, s100")
    e("buffer_store_dword v71, v70, s[68:71], 0 offen sc1")
    e("s_branch nonce_done")
    e.lab("nonce_poll")
    e("buffer_load_dword v71, v70, s[68:71], 0 offen sc1")
    e.lab("nonce_done")
    srd(e, S_SRD_R, 28, 29, 2048 * XS, WS_XN)


def gen_fused(e):
    X = OPT['X']
    khead(e, KNAME)
    e("s_cmp_ge_u32 s2, 256")
    e("s_cbranch_scc1 k_done")
    e("s_load_dwordx2 s[32:33], s[0:1], 0")
    if OPT.get('pfc'):
        e("s_getpc_b64 s[36:37]")
        e.lab("entry_pc")
        e("v_lshlrev_b32 v60, 7, v0")
        e("v_min_u32 v60, k_done-entry_pc, v60")
        e("global_load_dword v61, v60, s[36:37]")
    e("s_load_dwordx4 s[20:23], s[0:1], 24")
    e("s_load_dwordx4 s[24:27], s[0:1], 48")
    e("s_load_dwordx4 s[28:31], s[0:1], 88")
    lane_wave(e, 'B')
    e(f"s_mov_b32 s39, s{S_T2}")
    e("s_lshl_b32 s30_, s2, 3".replace("s30_", "s38"))
    e("s_add_u32 s38, s38, s39")
    e("v_lshlrev_b32 v2, 4, v1")
    e("s_lshl_b32 s37, s38, 11")
    e(f"s_mul_i32 s38, s38, {XS}")
    e(f"v_mov_b32 v3, {LDS_CNT}")
    e("v_mov_b32 v4, 0")
    e("v_mov_b32 v5, 0")
    e("v_mov_b32 v6, 0")
    e("v_mov_b32 v7, 0")
    e("ds_write_b128 v3, v[4:7]")
    e("ds_write_b128 v3, v[4:7] offset:16")
    e("ds_write_b128 v3, v[4:7] offset:48")
    if OPT.get('alg'):
        e(f"v_add_u32 v8, {LDS_PB}, v2")
        e("ds_write_b128 v8, v[4:7]")
        e("s_waitcnt lgkmcnt(0)")
        e("s_barrier")
        srd(e, 68, 28, 29, 256)
        e("s_mov_b64 s[100:101], s[28:29]")
        e("s_mov_b64 s[28:29], s[30:31]")
        srd(e, S_DBG, 28, 29, 16384, WS_FL)
        e("s_cmp_lg_u32 s39, 4")
        e("s_cbranch_scc1 nonce_done")
        e("s_cmp_lg_u32 s2, 0")
        e("s_cbranch_scc1 nonce_done")
        e("s_memrealtime s[34:35]")
        e("v_mov_b32 v12, 0")
        e("s_waitcnt lgkmcnt(0)")
        e("s_or_b32 s34, s34, 1")
        e("v_mov_b32 v13, s34")
        e("buffer_store_dword v13, v12, s[68:71], 0 offen sc1")
        e.lab("nonce_done")
        srd(e, S_SRD_R, 32, 33, 4 * MB)
    else:
        gen_ln_prologue(e)
    e("s_and_b32 s30, s2, 1")
    e("s_lshl_b32 s30, s30, 2")
    e("s_lshr_b32 s31, s2, 3")
    e(f"s_and_b32 s{S_ROW0}, s31, 3")
    e(f"s_add_u32 s{S_ROW0}, s{S_ROW0}, s30")
    e(f"s_lshl_b32 s{S_ROW0}, s{S_ROW0}, 8")
    e("s_and_b32 s30, s2, 6")
    e("s_lshl_b32 s30, s30, 2")
    e(f"s_lshr_b32 s{S_COL0}, s31, 2")
    e(f"s_add_u32 s{S_COL0}, s{S_COL0}, s30")
    e(f"s_mov_b32 s{S_NS}, 16")
    e(f"s_mov_b32 s{S_KR}, 0")
    e(f"s_mov_b32 s{S_KC}, 0")
    e(f"s_mov_b32 s{S_KN}, 0")
    if not OPT.get('alg'):
        if OPT.get('dg'): stamp3(e, 5, True)
        e("s_waitcnt vmcnt(0)")
        if OPT.get('dg'): stamp3(e, 6, True)
        ln_body(e)
        e(f"buffer_store_dwordx4 v[4:7], v2, s[{S_SRD_R}:{S_SRD_R+3}], s38 offen sc1")
        e(f"buffer_store_dwordx4 v[8:11], v2, s[{S_SRD_R}:{S_SRD_R+3}], s38 offen offset:1024 sc1")
        if OPT.get('dg'): stamp3(e, 7, True)
    e(f"s_cmp_lt_u32 s{S_COL0}, 11")
    e("s_cbranch_scc1 g1d_start")
    e(f"s_cmp_eq_u32 s{S_COL0}, 11")
    e("s_cbranch_scc1 g1m_start")
    e("s_branch g1f_start")

    variants = {
        'g1d': [Region('T', 0, 11, 0, 2048)],
        'g1m': [Region('T', 0, 7, 0, 2048), Region('Nadd', 7, 4, 16384, 7168)],
        'g1f': [Region('Nadd', 0, 11, 0, 7168)],
    }
    for pre, regs in variants.items():
        orient = []
        for r in regs:
            orient += ['RA' if r.typ == 'T' else 'CA'] * r.ng
        G = Gemm(e, pre, 'B', 2, 4, 11, 4, 1, regs, 2048 if OPT.get('alg') else XS, 'C', orient, nsteps=16)
        G.sc1R = not OPT.get('alg')
        G.accv = ACC
        if OPT.get('rot1'):
            G.rot = (OPT['rot1'], OPT.get('rotmul1', 1))
        e.lab(f"{pre}_start")

        def cset(ri, j, so, G=G, pre=pre):
            r = G.regions[ri]
            if r.typ == 'T':
                e(f"s_mul_i32 s{S_T0}, s{S_COL0}, 22")
                e(f"s_mul_i32 s{S_T1}, s{G.lw}, {r.DW*G.mult}")
                e(f"s_add_u32 s{S_T1}, s{S_T1}, {j}")
                e(f"s_add_u32 s{S_T0}, s{S_T0}, s{S_T1}")
                e(f"s_cmp_lt_u32 s{S_T0}, 128")
                e(f"s_cselect_b32 s{so}, s20, s22")
                e(f"s_cselect_b32 s{so+1}, s21, s23")
                e(f"s_and_b32 s{S_T0}, s{S_T0}, 127")
                e(f"s_lshl_b32 s{S_T0}, s{S_T0}, 14")
                e(f"s_cmp_lt_u32 s{S_T1}, {r.ninstr}")
                e(f"s_cselect_b32 s{so+2}, {2*MB}, 0")
                e(f"s_mov_b32 s{so+3}, 0x20000")
                e(f"s_cselect_b32 s{S_T0}, s{S_T0}, 4096")
            else:
                srd(e, so, 24, 25, 1024 * 7168)
                e(f"s_mul_i32 s{S_T0}, s{S_COL0}, 352")
                e(f"s_sub_u32 s{S_T0}, s{S_T0}, {(128 - r.g0) * 32}")

        e("s_cmp_ge_u32 s39, 4")
        e(f"s_cbranch_scc0 {pre}_comp")

        def mid1(pre=pre):
            e("s_waitcnt vmcnt(0)")
            e(f"s_cmp_lg_u32 s{S_WAVE}, 0")
            e(f"s_cbranch_scc1 {pre}_nn")
            e(f"s_mov_b32 s{S_T2}, {SPIN_MAX}")
            e.lab(f"{pre}_nl")
            e("v_cmp_eq_u32 vcc, 0, v71")
            e(f"s_cbranch_vccz {pre}_ng")
            e("s_sleep 1")
            e("buffer_load_dword v71, v70, s[68:71], 0 offen sc1")
            e("s_waitcnt vmcnt(0)")
            e(f"s_sub_u32 s{S_T2}, s{S_T2}, 1")
            e(f"s_cmp_lg_u32 s{S_T2}, 0")
            e(f"s_cbranch_scc1 {pre}_nl")
            e.lab(f"{pre}_ng")
            e(f"v_mov_b32 v2, {LDS_NONCE}")
            e("ds_write_b32 v2, v71")
            e("s_waitcnt lgkmcnt(0)")
            e.lab(f"{pre}_nn")
            e("s_barrier")
            get_nonce(e, 2)
            e(f"s_cmp_lg_u32 s{S_WAVE}, 0")
            e(f"s_cbranch_scc1 {pre}_nf")
            e("s_lshl_b32 s37, s2, 2")
            e("v_mov_b32 v2, 0")
            e(f"v_mov_b32 v3, s{S_NONCE}")
            e("s_mov_b64 exec, 1")
            e(f"buffer_store_dword v3, v2, s[{S_DBG}:{S_DBG+3}], s37 offen sc1")
            e("s_mov_b64 exec, -1")
            e.lab(f"{pre}_nf")

        def mid(nind, pre=pre):
            e(f"v_mov_b32 v4, {LDS_GO + 4}")
            e(f"s_mov_b32 s{S_T2}, {SPIN_MAX * 20}")
            e.lab(f"lwl_{pre}")
            e("ds_read_b32 v3, v4")
            e("s_waitcnt lgkmcnt(0)")
            e("v_cmp_ne_u32 vcc, 1, v3")
            e(f"s_cbranch_vccz lwd_{pre}")
            e("s_sleep 1")
            e(f"s_sub_u32 s{S_T2}, s{S_T2}, 1")
            e(f"s_cmp_lg_u32 s{S_T2}, 0")
            e(f"s_cbranch_scc1 lwl_{pre}")
            e.lab(f"lwd_{pre}")
        if not OPT.get('alg'):
            mid1()
        asym = OPT.get('asym', 'R')
        if asym in ('R', 'C'):
            G.splitring = True
            G.SR, G.SC = (3, 2) if asym == 'R' else (2, 3)
            G.CB = G.SR * RT
            G.wc = 92
            G.loader_setup(1, 2, cset)
            gr, gc = split_dma(G)
            grp = {'R': gr, 'C': gc}
            dep = {'R': G.SR, 'C': G.SC}
            szs = {'R': RT, 'C': G.CS}
            wrs = {'R': S_WR, 'C': 92}
            kis = {'R': S_KI, 'C': 63}
            lefts = {'R': S_LEFT, 'C': 93}

            def book(part):
                out = book_part(G, part)[:-1]
                out = [x.replace(f"s{S_KI}", f"s{kis[part]}") for x in out]
                w = wrs[part]
                out += [f"s_add_u32 s{w}, s{w}, {szs[part]}",
                        f"s_cmp_ge_u32 s{w}, {szs[part]*dep[part]}",
                        f"s_cselect_b32 s{w}, 0, s{w}",
                        f"s_sub_u32 s{lefts[part]}, s{lefts[part]}, 1",
                        f"s_cmp_lt_i32 s{lefts[part]}, 1"]
                for sr in (G.srds[:1] if part == 'R' else G.srds[1:]):
                    out.append(f"s_cselect_b32 s{sr+2}, 0, s{sr+2}")
                return out
            G.loader_init()
            e("s_mov_b32 s92, 0")
            e(f"s_mov_b32 s93, s{S_NS}")
            if G.rot:
                e(f"s_mov_b32 s63, s{S_KI}")
            for st in range(G.SC):
                for g in gc:
                    e.ext(g)
                e.ext(book('C'))
            if not OPT.get('alg'):
                mid(len(gc) * G.SC)
            for st in range(G.SR):
                for g in gr:
                    e.ext(g)
                e.ext(book('R'))
            sh, dp = ('C', 'R') if asym == 'R' else ('R', 'C')
            e(f"s_waitcnt vmcnt({(G.SR-1)*len(gr)})")
            e("s_barrier")
            e(f"s_mov_b32 s{S_CNT}, s{S_NS}")
            e(f"s_waitcnt vmcnt({(G.SR-2)*len(gr)})")
            if OPT.get('alg'):
                e(f"s_cmp_eq_u32 s{S_WAVE}, 0")
                e("s_cselect_b32 s89, 14, 99")
                e("s_cselect_b32 s90, 13, 99")
                e("s_cselect_b32 s91, 3, 99")
                srd(e, 4, 28, 29, 1 * MB, WS_STAT)
                srd(e, 12, 100, 101, 256)
                e("v_mov_b32 v37, 0")
                e("v_mov_b32 v36, 0")
            e(f"s_branch {pre}_lmid")
            if OPT.get('alg'):
                e.lab(f"{pre}_sA")
                alg_publish(e, G)
                e("buffer_load_dword v36, v37, s[12:15], 0 offen sc1")
                e(f"s_branch {pre}_sAr")
                e.lab(f"{pre}_sB")
                e(f"s_mov_b32 s{S_T2}, {SPIN_MAX}")
                e.lab(f"{pre}_sBl")
                e("v_cmp_eq_u32 vcc, 0, v36")
                e(f"s_cbranch_vccz {pre}_sBd")
                e("s_sleep 2")
                e("buffer_load_dword v36, v37, s[12:15], 0 offen sc1")
                e("s_waitcnt vmcnt(0)")
                e(f"s_sub_u32 s{S_T2}, s{S_T2}, 1")
                e(f"s_cmp_lg_u32 s{S_T2}, 0")
                e(f"s_cbranch_scc1 {pre}_sBl")
                e.lab(f"{pre}_sBd")
                e(f"v_readfirstlane_b32 s{S_NONCE}, v36")
                e(f"v_mov_b32 v38, {LDS_NONCE}")
                e("ds_write_b32 v38, v36")
                e("s_lshl_b32 s34, s2, 2")
                e("s_mov_b64 exec, 1")
                e(f"buffer_store_dword v36, v37, s[{S_DBG}:{S_DBG+3}], s34 offen sc1")
                e("s_mov_b64 exec, -1")
                e("s_waitcnt lgkmcnt(0)")
                e(f"s_branch {pre}_lmid")
                e.lab(f"{pre}_sC")
                alg_fetch(e, G, pre)
                e(f"s_branch {pre}_lmid")
            e.lab(f"{pre}_lloop")
            e(f"s_waitcnt vmcnt({len(grp[dp])})")
            if OPT.get('alg'):
                e(f"s_cmp_eq_u32 s{S_CNT}, s90")
                e(f"s_cbranch_scc1 {pre}_sB")
                e(f"s_cmp_eq_u32 s{S_CNT}, s91")
                e(f"s_cbranch_scc1 {pre}_sC")
            e.lab(f"{pre}_lmid")
            e("s_barrier")
            if OPT.get('alg'):
                e(f"s_cmp_eq_u32 s{S_CNT}, s89")
                e(f"s_cbranch_scc1 {pre}_sA")
                e.lab(f"{pre}_sAr")
            for g in grp[sh]:
                e.ext(g)
            for g in grp[dp]:
                e.ext(g)
            e.ext(book('R'))
            e.ext(book('C'))
            e(f"s_sub_u32 s{S_CNT}, s{S_CNT}, 1")
            e(f"s_cmp_lg_u32 s{S_CNT}, 0")
            e(f"s_cbranch_scc1 {pre}_lloop")
            e("s_branch g2_loader")
        else:
            G.loader_setup(1, 2, cset)
            loader_phase(e, G, 'C', mid, True)
            e("s_branch g2_loader")
        e.lab(f"{pre}_comp")
        if OPT.get('alg'):
            alg_stats(e, G, pre)
        else:
            e("s_waitcnt vmcnt(0)")
            if OPT.get('dg'): stamp3(e, 8, True)
            e("s_barrier")
            if OPT.get('dg'): stamp3(e, 9, True)
            get_nonce(e, 4)
            e(f"s_cmp_lg_u32 s{S_WAVE}, 0")
            e(f"s_cbranch_scc1 {pre}_np0")
            e(f"s_lshr_b32 s{S_T0}, s{S_ROW0}, 1")
            e("v_and_b32 v4, 31, v1")
            e(f"v_lshl_add_u32 v4, v4, 2, s{S_T0}")
            poll(e, 4, 5, pre, OPT.get('sl1', 1))
            e(f"v_mov_b32 v4, {LDS_GO + 4}")
            e("v_mov_b32 v5, 1")
            e("ds_write_b32 v4, v5")
            e.lab(f"{pre}_np0")
        warm(e, pre)
        if OPT.get('pfl'):
            G.pfl = True
            e("s_load_dwordx2 s[64:65], s[0:1], 8")
            e("s_load_dwordx2 s[68:69], s[0:1], 16")
            e("s_load_dwordx2 s[70:71], s[0:1], 64")
            e(f"s_mov_b32 m0, {LDS_CNT + 256}")
            e("s_lshl_b32 s74, s2, 2")
            e(f"s_add_u32 s74, s74, s{S_WAVE}")
            e("s_lshl_b32 s74, s74, 13")
            e("s_mov_b32 s94, s74")
            e(f"s_mov_b32 s66, {8*MB}")
            e("s_mov_b32 s67, 0x20000")
            e(f"s_mov_b32 s72, {8*MB}")
            e(f"s_mov_b32 s73, {3584*2048}")
            e("v_cmp_gt_u32 vcc, 16, v1")
            e("v_lshlrev_b32 v30, 7, v1")
            e("v_mov_b32 v31, 0x7ff00000")
            e("v_cndmask_b32 v30, v31, v30, vcc")
            e("s_waitcnt lgkmcnt(0)")
        e(f"v_mov_b32 v{G.vfrag0+16}, v1")
        G.compute_setup(G.vfrag0 + 16, G.vfrag0)
        if getattr(G, 'pfl', False):
            e("v_mov_b32 v3, v30")
        G.compute_loop(X)
        if OPT.get('alg'):
            get_nonce(e, 4)
        g1_epi3(e, G, pre)
        stamp3(e, 11)
        offs = {'g1d': [34], 'g1m': [34, 35], 'g1f': [35]}[pre]
        if OPT.get('defer', 1) and pre == 'g1f':
            e("s_mov_b32 s94, 28")
            e("s_add_u32 s74, s35, 1024")
            e("s_mov_b32 s75, s35")
        else:
            e("s_mov_b32 s94, 99")
            signal(e, 2, pre, offs)
        stamp3(e, 4)
        e("s_branch g2_comp")

    def g2_common():
        e("s_load_dwordx4 s[20:23], s[0:1], 8")
        e("s_load_dwordx2 s[24:25], s[0:1], 64")
        e("v_mbcnt_lo_u32_b32 v1, -1, 0")
        e("v_mbcnt_hi_u32_b32 v1, -1, v1")
        e("s_lshr_b32 s30, s2, 1")
        e("s_and_b32 s30, s30, 2")
        e("s_and_b32 s31, s2, 1")
        e("s_add_u32 s30, s30, s31")
        e("s_and_b32 s31, s2, 2")
        e("s_lshl_b32 s31, s31, 1")
        e("s_lshr_b32 s32, s2, 3")
        e(f"s_and_b32 s{S_ROW0}, s32, 3")
        e(f"s_add_u32 s{S_ROW0}, s{S_ROW0}, s31")
        e(f"s_lshl_b32 s{S_ROW0}, s{S_ROW0}, 8")
        e(f"s_lshr_b32 s{S_COL0}, s32, 2")
        e(f"s_lshl_b32 s{S_COL0}, s{S_COL0}, 7")
        e(f"s_mov_b32 s{S_KC}, 0")
        e("s_waitcnt lgkmcnt(0)")

    Gs = {}
    for pre, regs, rstride, ns in (('g2y', [Region('T', 0, 8, 0, ATS)], 4096, 32), ('g2o', [Region('Nxor', 0, 8, 0, 2048)], 0, 28)):
        G = Gemm(e, pre, 'B', 3, 8, 4, 2, 2, regs, rstride, 'R', ['CA'] * 4, nsteps=ns)
        G.accv = ACC
        if pre == 'g2y':
            G.sc1C = True
            G.cblk = AG
        else:
            G.sc1R = True
            G.rblk = HG
        if OPT.get('rot2') and (pre == 'g2y' or OPT.get('rot2o')):
            G.rot = (OPT['rot2'], OPT.get('rotmul2', 1))
        Gs[pre] = G
    e.lab("g2_loader")
    g2_common()
    if OPT.get('alg'):
        get_nonce(e, 2)
    e("s_cmp_ge_u32 s30, 2")
    e("s_cbranch_scc1 g2o_lstart")
    for pre, G in Gs.items():
        e.lab(f"{pre}_lstart")
        if pre == 'g2y':
            e(f"s_mov_b32 s{S_NS}, 32")
            e(f"s_mov_b32 s{S_KR}, 0")
            e("s_cmp_eq_u32 s30, 0")
            e(f"s_cselect_b32 s{S_SRD_R}, s20, s22")
            e(f"s_cselect_b32 s{S_SRD_R+1}, s21, s23")
            e(f"s_mov_b32 s{S_SRD_R+2}, {8*MB}")
            e(f"s_mov_b32 s{S_SRD_R+3}, 0x20000")
        else:
            e("s_and_b32 s33, s30, 1")
            e(f"s_sub_u32 s{S_NS}, 31, s33")
            e(f"s_mul_i32 s{S_KR}, s33, {31*2048}")
            e(f"s_mul_i32 s{S_KN}, s33, {1824*2048}")
            e("s_mov_b32 s68, 0")
            e("s_mov_b32 s69, 0")
            e("s_mul_i32 s70, s33, 98")
            e("s_add_u32 s70, s70, 1")
            e("s_sub_u32 s71, 11, s33")
            e("s_add_u32 s72, s71, 10")
            e(f"s_mul_i32 s73, s33, {30*2048}")
            e("s_add_u32 s73, s73, 2048")
            e(f"s_mul_i32 s74, s33, {1760*2048}")
            e(f"s_add_u32 s74, s74, {64*2048}")

            def stepper(cnt, reg, base, inc, qinc):
                return [f"s_add_u32 s{cnt}, s{cnt}, 1",
                        f"s_add_u32 s{reg}, s{reg}, {inc}",
                        f"s_cmp_eq_u32 s{cnt}, s70",
                        f"s_cselect_b32 s{reg}, s{base}, s{reg}",
                        f"s_add_u32 s{S_T0}, s{base}, {qinc}",
                        f"s_cmp_eq_u32 s{cnt}, s71",
                        f"s_cselect_b32 s{reg}, s{S_T0}, s{reg}",
                        f"s_add_u32 s{S_T0}, s{base}, {2*qinc}",
                        f"s_cmp_eq_u32 s{cnt}, s72",
                        f"s_cselect_b32 s{reg}, s{S_T0}, s{reg}"]
            G.kn_step = stepper(68, S_KN, 74, 176 * 2048, 64 * 2048)
            G.kr_step = stepper(69, S_KR, 73, 6144, 2048)
            G.late = True
            srd(e, S_SRD_R, 28, 29, 128 * HG, WS_H)

        def cset(ri, j, so, G=G):
            r = G.regions[ri]
            if r.typ == 'T':
                srd(e, so, 28, 29, 128 * AG, WS_AT)
                e(f"s_lshl_b32 s{S_T0}, s30, 10")
                e(f"s_add_u32 s{S_T0}, s{S_T0}, s{S_COL0}")
                e(f"s_lshl_b32 s{S_T1}, s{S_WAVE}, 5")
                e(f"s_add_u32 s{S_T0}, s{S_T0}, s{S_T1}")
                e(f"s_add_u32 s{S_T0}, s{S_T0}, {16*(j>>1)}")
                e(f"s_mul_i32 s{S_T0}, s{S_T0}, {AG//16}")
                e(f"s_add_u32 s{S_T0}, s{S_T0}, {1024*(j&1)}")
            else:
                srd(e, so, 24, 25, 3584 * 2048)
                e(f"s_lshl_b32 s{S_T0}, s{S_COL0}, 1")
        G.loader_setup(1, 2, cset)

        def mid(nind, pre=pre):
            if pre == 'g2y':
                e(f"s_lshl_b32 s{S_T0}, s30, 10")
                e(f"s_add_u32 s{S_T0}, s{S_T0}, s{S_COL0}")
                e("v_and_b32 v2, 8, v1")
                e("v_lshlrev_b32 v2, 4, v2")
                e("v_min_u32 v2, 127, v2")
                e(f"v_add_u32 v2, s{S_T0}, v2")
                m1, sh1 = magic(176, 2048)
                e(f"v_mul_u32_u24 v2, {m1}, v2")
                e(f"v_lshrrev_b32 v2, {sh1}, v2")
                e("v_and_b32 v3, 7, v1")
                e("v_lshlrev_b32 v4, 7, v2")
                e("v_lshl_add_u32 v4, v3, 2, v4")
                e(f"v_add_u32 v4, {FLY}, v4")
            else:
                e("v_and_b32 v2, 15, v1")
                e("s_sub_u32 s34, 10, s33")
                e("v_min_u32 v2, s34, v2")
                e("s_mul_i32 s34, s33, 11")
                e("s_add_u32 s34, s34, 11")
                e("v_add_u32 v2, s34, v2")
                e(f"s_lshr_b32 s34, s{S_ROW0}, 1")
                e(f"s_add_u32 s34, s34, {FLO}")
                e("v_lshl_add_u32 v4, v2, 2, s34")
                e("v_and_b32 v2, 15, v1")
                e("v_min_u32 v2, 9, v2")
                e("s_mul_i32 s35, s33, 40")
                e("s_add_u32 s35, s35, s34")
                e(f"s_add_u32 s35, s35, {48 + 1024}")
                e("v_lshl_add_u32 v22, v2, 2, s35")
                e("v_and_b32 v2, 16, v1")
                e("v_lshl_add_u32 v22, v2, 6, v22")
            lpoll(e, 4, 5, 2, pre, OPT.get('sl2', 4))
        loader_phase(e, G, 'R' if pre == 'g2y' else 'C', mid, True)
        e("s_endpgm")
    e.lab("g2_comp")
    g2_common()
    e("s_cmp_ge_u32 s30, 2")
    e("s_cbranch_scc1 g2o_cstart")
    for pre, G in Gs.items():
        e.lab(f"{pre}_cstart")
        if pre == 'g2y':
            e(f"s_mov_b32 s{S_NS}, 32")
        else:
            e("s_and_b32 s33, s30, 1")
            e(f"s_sub_u32 s{S_NS}, 31, s33")
        e(f"v_mov_b32 v{G.vfrag0+16}, v1")
        G.compute_setup(G.vfrag0 + 16, G.vfrag0)
        OPT['sbase'] = 4
        if OPT.get('defer', 1):
            G.stub = ("s94", lambda pre=pre: signal(e, 2, f"d{pre}", [75, 74], 0, 72))
        G.compute_loop(X)
        OPT['sbase'] = 0
        e("s_and_b32 s33, s30, 1")
        e("s_cmp_eq_u32 s33, 1")
        e(f"s_cbranch_scc1 {pre}_e1")
        q0 = 0 if pre == 'g2y' else 2
        combine(e, G, pre[-1], q0)
        stamp3_out(e)
        e("s_endpgm")
        e.lab(f"{pre}_e1")
        combine(e, G, pre[-1], q0 + 1)
        stamp3_out(e)
        e("s_endpgm")
    e.lab("k_done")
    e("s_endpgm")
    kdesc(e, KNAME, 256, 256)


def main():
    out = sys.argv[1]
    for a in sys.argv[2:]:
        k, v = a.split("=")
        OPT[k] = int(v) if v.lstrip('-').isdigit() else v
    e = E()
    gen_fused(e)
    hdr = open("cdna_kernels/%s.s.ref" % KN).read().split("; Override launch")[0]
    hdr += f"; @launch grid=(256,1,1) block=(512,1,1) lds={LDS_TOTAL if OPT.get('alg') else LDS_CNT + 512}\n"
    hdr += '.amdgcn_target "amdgcn-amd-amdhsa--gfx950"\n.text\n'
    open(out, "w").write(hdr + "\n".join(e.L) + "\n")


if __name__ == "__main__":
    main()
```

```python
import sys, math
import gen
from gen import *

KNAME = KN + "_kernel"
LDS_CNT = 155648
LDS_TOTAL = 155648 + 512 + 3072 + 1024
S_DBG = 96
WS_PB = 32 * MB
SPIN_MAX = 200000


def stamp3(e, k, force=False):
    if OPT.get('dg') and not force and 5 <= k + OPT.get('sbase', 0) <= 9:
        return
    if OPT.get('tl'):
        k += OPT.get('sbase', 0)
        lab = f"tl_{len(e.L)}"
        e("s_and_b32 s100, s2, 7")
        if k:
            e(f"s_or_b32 s100, s100, s{S_WAVE}")
        e("s_cmp_lg_u32 s100, 0")
        e(f"s_cbranch_scc1 {lab}")
        e("s_load_dwordx2 s[76:77], s[0:1], 88")
        e("s_memrealtime s[100:101]")
        e("s_waitcnt lgkmcnt(0)")
        if k == 0:
            e("s_not_b32 s100, s100")
        e("v_accvgpr_write_b32 a175, v0") if False else None
        e("v_mov_b32 v62, s100")
        e(f"v_mov_b32 v63, {8+4*k}")
        e("s_mov_b64 exec, 1")
        e("global_atomic_umax v63, v62, s[76:77]")
        e("s_mov_b64 exec, -1")
        e.lab(lab)
        return
    if OPT.get('stamp'):
        k += OPT.get('sbase', 0)
        e("s_memtime s[100:101]")
        e("s_waitcnt lgkmcnt(0)")
        e(f"s_mov_b32 s{76+k}, s100")
        if k in (0, 10):
            e("s_memrealtime s[100:101]")
            e("s_waitcnt lgkmcnt(0)")
            e(f"s_mov_b32 s{89 + (k != 0)}, s100")


gen.stamp = stamp3


def stamp3_out(e):
    if OPT.get('tl'):
        OPT['sbase'] = 0
        e("s_waitcnt vmcnt(0)")
        stamp3(e, 10)
    if OPT.get('stamp'):
        OPT['sbase'] = 0
        e("s_waitcnt vmcnt(0)")
        stamp3(e, 10)
        srd(e, S_SRD_O, 28, 29, 4 * MB, WS_ST)
        e("s_lshl_b32 s38, s2, 2")
        e(f"s_add_u32 s38, s38, s{S_WAVE}")
        e("s_lshl_b32 s38, s38, 6")
        e("v_mov_b32 v0, s38")
        for k in range(11):
            e(f"v_mov_b32 v{4+k}, s{76+k}")
        e("v_mov_b32 v15, s89")
        e("v_mov_b32 v16, s90")
        e("v_mov_b32 v17, s87")
        for k in range(4):
            e(f"buffer_store_dwordx4 v[{4+4*k}:{7+4*k}], v0, s[{S_SRD_O}:{S_SRD_O+3}], 0 offen offset:{16*k}")


WS_FL = 31 * MB
FL1, FLY, FLO, FLC = 0, 1024, 4096, 8192
S_NONCE = 95
WS_STAT = 30 * MB
LDS_ST = LDS_CNT + 512
LDS_PB = LDS_ST + 3072
LDS_NONCE = LDS_CNT + 32
LDS_GO = LDS_CNT + 48


def signal(e, phase, uid, offs, vm=0, v=0):
    e(f"s_waitcnt vmcnt({vm})")
    e(f"v_mov_b32 v{v}, {LDS_CNT + 4 * phase}")
    e(f"v_mov_b32 v{v+1}, 1")
    e("s_mov_b64 exec, 1")
    e(f"ds_add_rtn_u32 v{v+1}, v{v}, v{v+1}")
    e("s_waitcnt lgkmcnt(0)")
    e(f"v_cmp_eq_u32 vcc, 3, v{v+1}")
    e(f"s_cbranch_vccz sig_{uid}")
    e(f"v_mov_b32 v{v}, 0")
    e(f"v_mov_b32 v{v+1}, s{S_NONCE}")
    for o in offs:
        e(f"buffer_store_dword v{v+1}, v{v}, s[{S_DBG}:{S_DBG+3}], s{o} offen sc1")
    e.lab(f"sig_{uid}")
    e("s_mov_b64 exec, -1")


def poll(e, vaddr, vtmp, uid, sleep=2):
    e(f"s_mov_b32 s{S_T2}, {SPIN_MAX}")
    e.lab(f"poll_{uid}")
    e(f"buffer_load_dword v{vtmp}, v{vaddr}, s[{S_DBG}:{S_DBG+3}], 0 offen sc1")
    e("s_waitcnt vmcnt(0)")
    e(f"v_cmp_ne_u32 vcc, s{S_NONCE}, v{vtmp}")
    e(f"s_cbranch_vccz polld_{uid}")
    e(f"s_sleep {sleep}")
    e(f"s_sub_u32 s{S_T2}, s{S_T2}, 1")
    e(f"s_cmp_lg_u32 s{S_T2}, 0")
    e(f"s_cbranch_scc1 poll_{uid}")
    e.lab(f"polld_{uid}")


def lpoll(e, vaddr, vtmp, phase, uid, sleep=2):
    e(f"v_mov_b32 v{vtmp+1}, {LDS_GO + 4 * phase}")
    e(f"s_cmp_lg_u32 s{S_WAVE}, 0")
    e(f"s_cbranch_scc1 lw_{uid}")
    poll(e, vaddr, vtmp, uid, sleep)
    e(f"v_mov_b32 v{vtmp}, 1")
    e(f"ds_write_b32 v{vtmp+1}, v{vtmp}")
    e(f"s_branch lwd_{uid}")
    e.lab(f"lw_{uid}")
    e(f"s_mov_b32 s{S_T2}, {SPIN_MAX * 20}")
    e.lab(f"lwl_{uid}")
    e(f"ds_read_b32 v{vtmp}, v{vtmp+1}")
    e("s_waitcnt lgkmcnt(0)")
    e(f"v_cmp_ne_u32 vcc, 1, v{vtmp}")
    e(f"s_cbranch_vccz lwd_{uid}")
    e("s_sleep 1")
    e(f"s_sub_u32 s{S_T2}, s{S_T2}, 1")
    e(f"s_cmp_lg_u32 s{S_T2}, 0")
    e(f"s_cbranch_scc1 lwl_{uid}")
    e.lab(f"lwd_{uid}")


def get_nonce(e, v):
    e(f"v_mov_b32 v{v}, {LDS_NONCE}")
    e(f"ds_read_b32 v{v}, v{v}")
    e("s_waitcnt lgkmcnt(0)")
    e(f"v_readfirstlane_b32 s{S_NONCE}, v{v}")
    e("s_nop 3")


def split_dma(G):
    g = G.dma_groups()
    return g[:G.nR], g[G.nR:]


def book_part(G, which):
    out = []
    if which == 'R':
        kr = 2048 if G.rblk else 128
        if G.kr_step:
            out += G.kr_step
        else:
            out.append(f"s_add_u32 s{S_KR}, s{S_KR}, {kr}")
        wrap = [(S_KR, kr * G.nsteps)]
    else:
        wrap = []
        if any(r.typ == 'T' for r in G.regions):
            kc = 2048 if G.cblk else 128
            out.append(f"s_add_u32 s{S_KC}, s{S_KC}, {kc}")
            wrap.append((S_KC, kc * G.nsteps))
        for r in G.regions:
            if r.typ != 'T':
                if G.kn_step:
                    out += G.kn_step
                else:
                    out.append(f"s_add_u32 s{S_KN}, s{S_KN}, {64*r.gstride}")
                wrap.append((S_KN, 64 * r.gstride * G.nsteps))
    if G.rot:
        out.append(f"s_add_u32 s{S_KI}, s{S_KI}, 1")
        out.append(f"s_cmp_ge_u32 s{S_KI}, s{S_NS}")
        out.append(f"s_cselect_b32 s{S_KI}, 0, s{S_KI}")
        for (sr, amt) in wrap:
            out.append(f"s_cmp_eq_u32 s{S_KI}, 0")
            out.append(f"s_cselect_b32 s{S_T0}, {amt}, 0")
            out.append(f"s_sub_u32 s{sr}, s{sr}, s{S_T0}")
    out.append(f"s_add_u32 s{S_WR}, s{S_WR}, {G.SS}")
    return out


def loader_phase(e, G, first, mid, sc1_dep):
    p = G.pre
    gr, gc = split_dma(G)
    ind, dep = (gr, gc) if first == 'R' else (gc, gr)
    second = 'C' if first == 'R' else 'R'
    G.loader_init()
    if G.rot:
        e(f"s_mov_b32 s63, s{S_KI}")
    pre = G.pre_R or []
    for st in range(G.S):
        for g in ind:
            e.ext(g)
        e.ext(book_part(G, first))
    e(f"s_mov_b32 s{S_WR}, 0")
    if G.rot:
        e(f"s_mov_b32 s{S_KI}, s63")
    e.ext(pre)
    mid(len(ind) * G.S)
    for st in range(G.S):
        for g in dep:
            e.ext(g)
        e.ext(book_part(G, second))
        e.ext(pre)
    e(f"s_mov_b32 s{S_WR}, 0")
    e(f"s_sub_u32 s{S_LEFT}, s{S_NS}, {G.S}")
    e(f"s_waitcnt vmcnt({(G.S-1)*len(dep)})")
    e("s_barrier")
    e(f"s_mov_b32 s{S_CNT}, s{S_NS}")
    e(f"s_waitcnt vmcnt({(G.S-2)*len(dep)})")
    e(f"s_branch {p}_lmid")
    late = getattr(G, 'late', False)
    if late:
        e.lab(f"{p}_chk")
        e(f"v_cmp_ne_u32 vcc, s{S_NONCE}, v23")
        e(f"s_cbranch_vccz {p}_lmid")
        poll(e, 22, 23, f"{p}_late", 2)
        e(f"s_branch {p}_lmid")
    e.lab(f"{p}_lloop")
    e(f"s_waitcnt vmcnt({(G.S-2)*G.D})")
    if late:
        e(f"s_cmp_eq_u32 s{S_CNT}, 23")
        e(f"s_cbranch_scc1 {p}_chk")
    e.lab(f"{p}_lmid")
    e("s_barrier")
    if late:
        e(f"s_cmp_lg_u32 s{S_CNT}, 24")
        e(f"s_cbranch_scc1 {p}_np")
        e(f"buffer_load_dword v23, v22, s[{S_DBG}:{S_DBG+3}], 0 offen sc1")
        e.lab(f"{p}_np")
    for g in G.dma_groups():
        e.ext(g)
    e.ext(G.dma_book())
    e.ext(pre)
    e(f"s_sub_u32 s{S_CNT}, s{S_CNT}, 1")
    e(f"s_cmp_lg_u32 s{S_CNT}, 0")
    e(f"s_cbranch_scc1 {p}_lloop")


def ln_body(e):
    for i in range(8):
        e(f"v_lshlrev_b32 v{16+2*i}, 16, v{4+i}")
        e(f"v_and_b32 v{17+2*i}, 0xffff0000, v{4+i}")

    def tree(dst, src):
        for i in range(8):
            e(f"v_add_f32 v{40+i}, v{src+2*i}, v{src+2*i+1}")
        for i in range(4):
            e(f"v_add_f32 v{40+i}, v{40+i}, v{44+i}")
        e("v_add_f32 v40, v40, v42")
        e("v_add_f32 v41, v41, v43")
        e(f"v_add_f32 v{dst}, v40, v41")

    def wred(v):
        for sh in (1, 2, 4, 8):
            e("s_nop 1")
            e(f"v_add_f32_dpp v{v}, v{v}, v{v} row_ror:{sh} row_mask:0xf bank_mask:0xf")
        e("v_mov_b32 v48, v%d" % v)
        e("s_nop 1")
        e(f"v_permlane32_swap_b32 v{v}, v48")
        e(f"v_add_f32 v{v}, v{v}, v48")
        e("v_mov_b32 v48, v%d" % v)
        e("s_nop 1")
        e(f"v_permlane16_swap_b32 v{v}, v48")
        e(f"v_add_f32 v{v}, v{v}, v48")

    tree(3, 16)
    wred(3)
    e("v_mul_f32 v3, 0x3a800000, v3")
    for i in range(16):
        e(f"v_sub_f32 v{52+i}, v{16+i}, v3")
    for i in range(16):
        e(f"v_mul_f32 v{52+i}, v{52+i}, v{52+i}")
    tree(12, 52)
    wred(12)
    e("v_mul_f32 v12, 0x3a800000, v12")
    e("v_cvt_pk_bf16_f32 v13, v3, v12")
    e("v_lshlrev_b32 v3, 16, v13")
    e("v_and_b32 v12, 0xffff0000, v13")
    e("v_add_f32 v12, 0x3727c5ac, v12")
    e("v_cvt_pk_bf16_f32 v13, v12, v12")
    e("v_lshlrev_b32 v12, 16, v13")
    e("v_sqrt_f32 v12, v12")
    e("s_nop 0")
    e("v_cvt_pk_bf16_f32 v13, v12, v12")
    e("v_lshlrev_b32 v12, 16, v13")
    e("v_rcp_f32 v14, v12")
    for i in range(8):
        e(f"v_sub_f32 v{16+2*i}, v{16+2*i}, v3")
        e(f"v_sub_f32 v{17+2*i}, v{17+2*i}, v3")
        e(f"v_cvt_pk_bf16_f32 v{4+i}, v{16+2*i}, v{17+2*i}")
        e(f"v_lshlrev_b32 v{16+2*i}, 16, v{4+i}")
        e(f"v_and_b32 v{17+2*i}, 0xffff0000, v{4+i}")
    for i in range(16):
        e(f"v_mul_f32 v{52+i}, v{16+i}, v14")
        e(f"v_fma_f32 v{16+i}, -v{52+i}, v12, v{16+i}")
        e(f"v_fma_f32 v{52+i}, v{16+i}, v14, v{52+i}")
    for i in range(8):
        e(f"v_cvt_pk_bf16_f32 v{4+i}, v{52+2*i}, v{53+2*i}")


HG = 122 * 1024
AG = 66 * 1024
ACC = 80


def g1_epi3(e, G, pre):
    e("v_mbcnt_lo_u32_b32 v1, -1, 0")
    e("v_mbcnt_hi_u32_b32 v1, -1, v1")
    e("v_and_b32 v2, 15, v1")
    e("v_lshrrev_b32 v3, 4, v1")
    e("v_and_b32 v4, 1, v3")
    e("v_lshlrev_b32 v4, 5, v4")
    e("v_lshrrev_b32 v5, 1, v3")
    e("v_lshl_add_u32 v4, v5, 4, v4")
    e("v_lshl_add_u32 v4, v2, 6, v4")
    e(f"s_lshl_b32 s{S_T0}, s{S_WAVE}, 6")
    e(f"s_add_u32 s{S_T0}, s{S_T0}, s{S_ROW0}")
    e(f"s_lshr_b32 s36, s{S_ROW0}, 6")
    e(f"s_lshl_b32 s34, s{S_COL0}, 7")
    e("s_add_u32 s34, s34, s36")
    e(f"s_add_u32 s34, s34, {FLY}")
    e(f"s_lshr_b32 s35, s{S_ROW0}, 1")
    e(f"s_lshl_b32 s37, s{S_COL0}, 2")
    e("s_add_u32 s35, s35, s37")
    e(f"s_add_u32 s35, s35, {FLO}")
    for r in G.regions:
        if r.typ == 'T':
            srd(e, S_SRD_O, 28, 29, 128 * AG, WS_AT)
            e(f"s_mul_i32 s{S_T1}, s{S_COL0}, {11*AG}")
            e(f"s_lshl_b32 s{S_T2}, s{S_T0}, 5")
            e(f"s_add_u32 s{S_T1}, s{S_T1}, s{S_T2}")
            e(f"v_add_u32 v6, s{S_T1}, v4")
            e(f"s_mul_i32 s{S_T1}, s{S_COL0}, 11")
            if OPT.get('alg'):
                e(f"s_lshl_b32 s{S_T2}, s{S_WAVE}, 8")
                e(f"s_add_u32 s{S_T2}, s{S_T2}, {LDS_ST}")
                e(f"v_lshl_add_u32 v7, v3, 4, s{S_T2}")
                for m in range(4):
                    e(f"ds_read_b128 v[{48+4*m}:{51+4*m}], v7 offset:{64*m}")
                    e(f"ds_read_b128 v[{64+4*m}:{67+4*m}], v7 offset:{1024+64*m}")
                e("v_lshlrev_b32 v7, 2, v2")
                e(f"v_add_u32 v7, {LDS_ST + 2048}, v7")
            for j in range(r.ng):
                n = r.g0 + j
                b = 16 + (j & 3) * 8
                if OPT.get('alg'):
                    if j == 0:
                        e(f"ds_read_b32 v8, v7 offset:{64*n}")
                    if j + 1 < r.ng:
                        e(f"ds_read_b32 v{8+((j+1)&1)*2}, v7 offset:{64*(n+1)}")
                        e("s_waitcnt lgkmcnt(1)")
                    else:
                        e("s_waitcnt lgkmcnt(0)")
                    c = 8 + (j & 1) * 2
                    for m in range(4):
                        a = G.acc(m, n)
                        for h in range(2):
                            e(f"v_pk_mul_f32 v[{a+2*h}:{a+2*h+1}], v[{a+2*h}:{a+2*h+1}], v[{48+4*m+2*h}:{49+4*m+2*h}]")
                    for m in range(4):
                        a = G.acc(m, n)
                        for h in range(2):
                            e(f"v_pk_fma_f32 v[{a+2*h}:{a+2*h+1}], v[{64+4*m+2*h}:{65+4*m+2*h}], v[{c}:{c+1}], v[{a+2*h}:{a+2*h+1}] op_sel_hi:[1,0,1] neg_lo:[1,0,0] neg_hi:[1,0,0]")
                e(f"s_add_u32 s{S_T2}, s{S_T1}, {n}")
                e(f"s_cmp_lt_u32 s{S_T2}, 64")
                e(f"s_cselect_b32 s{S_DL}, 0, 0x80008000")
                e(f"s_mov_b32 s{S_T2}, {n*AG}")
                for m in range(4):
                    a = G.acc(m, n)
                    e(f"v_cvt_pk_bf16_f32 v{b+2*m}, v{a}, v{a+1}")
                    e(f"v_cvt_pk_bf16_f32 v{b+2*m+1}, v{a+2}, v{a+3}")
                for k in range(8):
                    e(f"v_xor_b32 v{b+k}, s{S_DL}, v{b+k}")
                e("s_nop 1")
                for h in range(2):
                    e(f"v_permlane16_swap_b32 v{b+4*h}, v{b+2+4*h}")
                    e(f"v_permlane16_swap_b32 v{b+1+4*h}, v{b+3+4*h}")
                e(f"buffer_store_dwordx4 v[{b}:{b+3}], v6, s[{S_SRD_O}:{S_SRD_O+3}], s{S_T2} offen sc1")
                e(f"buffer_store_dwordx4 v[{b+4}:{b+7}], v6, s[{S_SRD_O}:{S_SRD_O+3}], s{S_T2} offen offset:1024 sc1")
        else:
            srd(e, S_SRD_O, 28, 29, 128 * HG, WS_H)
            srd(e, S_SRD_B, 26, 27, 7168)
            e(f"s_mul_i32 s{S_T1}, s{S_COL0}, 352")
            e(f"s_sub_u32 s{S_T1}, s{S_T1}, {(128 - r.g0) * 32}")
            e("v_lshlrev_b32 v7, 3, v3")
            e(f"v_add_u32 v7, s{S_T1}, v7")
            nq = -(-r.ng // 4)

            def ldb(Q):
                for j in range(4 * Q, min(4 * Q + 4, r.ng)):
                    d = 64 + 8 * (Q & 1) + 2 * (j - 4 * Q)
                    e(f"buffer_load_dwordx2 v[{d}:{d+1}], v7, s[{S_SRD_B}:{S_SRD_B+3}], 0 offen offset:{32*j}")
            ldb(0)
            if nq > 1:
                ldb(1)
            e(f"s_lshr_b32 s{S_T2}, s{S_T0}, 4")
            e(f"s_mul_i32 s{S_T2}, s{S_T2}, {HG}")
            if pre != 'g1m':
                e(f"s_mul_i32 s{S_RD}, s{S_COL0}, 6144")
                e(f"s_sub_u32 s{S_RD}, s{S_RD}, {12*6144-2048}")
                e(f"s_add_u32 s{S_T2}, s{S_T2}, s{S_RD}")
            e(f"v_add_u32 v6, s{S_T2}, v4")
            c1 = -2.0 * math.log2(math.e) * math.sqrt(2.0 / math.pi)
            c2 = c1 * 0.044715
            e(f"v_mov_b32 v10, {f2u(c1):#x}")
            e(f"v_mov_b32 v11, {f2u(c1):#x}")
            e(f"v_mov_b32 v12, {f2u(c2):#x}")
            e(f"v_mov_b32 v13, {f2u(c2):#x}")
            e("v_mov_b32 v14, 1.0")
            e("v_mov_b32 v15, 1.0")
            if OPT.get('alg'):
                e(f"s_lshl_b32 s{S_T2}, s{S_WAVE}, 8")
                e(f"s_add_u32 s{S_T2}, s{S_T2}, {LDS_ST}")
                e(f"v_lshl_add_u32 v8, v2, 2, s{S_T2}")
                e("v_lshlrev_b32 v9, 4, v3")
                e(f"v_add_u32 v9, {LDS_ST + 2048}, v9")
            for Q in range(nq):
                ng = min(4, r.ng - 4 * Q)
                if Q == 0:
                    e(f"s_waitcnt vmcnt({min(4, r.ng-4) if nq > 1 else 0})")
                elif Q == 1:
                    e("s_waitcnt vmcnt(11)")
                else:
                    e("s_waitcnt vmcnt(16)")
                for jj in range(ng):
                    bq = 64 + 8 * (Q & 1) + 2 * jj
                    e(f"v_lshlrev_b32 v{48+4*jj}, 16, v{bq}")
                    e(f"v_and_b32 v{49+4*jj}, 0xffff0000, v{bq}")
                    e(f"v_lshlrev_b32 v{50+4*jj}, 16, v{bq+1}")
                    e(f"v_and_b32 v{51+4*jj}, 0xffff0000, v{bq+1}")
                if Q + 2 < nq:
                    ldb(Q + 2)
                for m in range(4):
                    t = G.acc(m, r.g0 + 4 * Q)
                    u = 16 + 16 * (m & 1)
                    np_ = 2 * ng
                    P = lambda b_, h: f"v[{b_+2*h}:{b_+2*h+1}]"
                    if OPT.get('alg'):
                        e(f"ds_read_b32 v0, v8 offset:{64*m}")
                        e(f"ds_read_b32 v1, v8 offset:{1024+64*m}")
                        for jj in range(ng):
                            e(f"ds_read_b128 v[{u+4*jj}:{u+4*jj+3}], v9 offset:{64*(r.g0+4*Q+jj)}")
                        e("s_waitcnt lgkmcnt(0)")
                        for h in range(np_):
                            e(f"v_pk_fma_f32 {P(u,h)}, {P(u,h)}, v[0:1], {P(48,h)} op_sel:[0,1,0] op_sel_hi:[1,1,1] neg_lo:[1,0,0] neg_hi:[1,0,0]")
                        for h in range(np_):
                            e(f"v_pk_fma_f32 {P(t,h)}, {P(t,h)}, v[0:1], {P(u,h)} op_sel_hi:[1,0,1]")
                    for h in range(np_ if not OPT.get('alg') else 0):
                        e(f"v_pk_add_f32 {P(t,h)}, {P(t,h)}, {P(48,h)}")
                    for h in range(np_):
                        e(f"v_pk_mul_f32 {P(u,h)}, {P(t,h)}, {P(t,h)}")
                    for h in range(np_):
                        e(f"v_pk_fma_f32 {P(u,h)}, {P(u,h)}, v[12:13], v[10:11]")
                    for h in range(np_):
                        e(f"v_pk_mul_f32 {P(u,h)}, {P(u,h)}, {P(t,h)}")
                    for x in range(2 * np_):
                        e(f"v_exp_f32 v{u+x}, v{u+x}")
                    for h in range(np_):
                        e(f"v_pk_add_f32 {P(u,h)}, {P(u,h)}, v[14:15]")
                    for x in range(2 * np_):
                        e(f"v_rcp_f32 v{u+x}, v{u+x}")
                    for h in range(np_):
                        e(f"v_pk_mul_f32 {P(t,h)}, {P(t,h)}, {P(u,h)}")
                    for h in range(np_):
                        e(f"v_cvt_pk_bf16_f32 v{u+h}, v{t+2*h}, v{t+2*h+1}")
                    if ng == 3:
                        e(f"v_mov_b32 v{u+6}, 0")
                        e(f"v_mov_b32 v{u+7}, 0")
                    e(f"s_mov_b32 s{S_T2}, {m*HG + Q*2048}")
                    e("s_nop 0")
                    for h in range(2):
                        e(f"v_permlane16_swap_b32 v{u+4*h}, v{u+2+4*h}")
                        e(f"v_permlane16_swap_b32 v{u+1+4*h}, v{u+3+4*h}")
                    e(f"buffer_store_dwordx4 v[{u}:{u+3}], v6, s[{S_SRD_O}:{S_SRD_O+3}], s{S_T2} offen sc1")
                    e(f"buffer_store_dwordx4 v[{u+4}:{u+7}], v6, s[{S_SRD_O}:{S_SRD_O+3}], s{S_T2} offen offset:1024 sc1")
                if Q >= 1 and not (OPT.get('defer', 1) and Q == 2):
                    signal(e, 4 + Q - 1, f"{pre}q{Q}", [35], 8)
                    e("s_add_u32 s35, s35, 1024")


def warm(e, pre):
    if not OPT.get('warm'):
        return
    e(f"s_mov_b32 m0, {LDS_CNT + 256}")
    e("s_lshr_b32 s34, s2, 3")
    e("s_cmp_ge_u32 s34, 3")
    e(f"s_cbranch_scc1 {pre}_w1")
    e("s_lshl_b32 s34, s34, 2")
    e(f"s_add_u32 s34, s34, s{S_WAVE}")
    e("s_lshl_b32 s34, s34, 13")
    e("v_lshlrev_b32 v4, 7, v1")
    e("v_add_u32 v4, s34, v4")
    e(f"v_min_u32 v4, k_done-{KNAME}, v4")
    e("s_getpc_b64 s[34:35]")
    e.lab(f"{pre}_pc")
    e(f"s_sub_u32 s34, s34, {pre}_pc-{KNAME}")
    e("s_subb_u32 s35, s35, 0")
    e("global_load_lds_dword v4, s[34:35]")
    e.lab(f"{pre}_w1")
    if OPT['warm'] >= 2:
        e("s_load_dwordx4 s[64:67], s[0:1], 8")
        e("s_load_dwordx2 s[68:69], s[0:1], 64")
        e("s_load_dwordx2 s[70:71], s[0:1], 80")
        e("v_lshlrev_b32 v4, 21, v1")
        e("s_waitcnt lgkmcnt(0)")
        e(f"s_cmp_eq_u32 s{S_WAVE}, 0")
        e("s_cselect_b32 s72, s28, s64")
        e("s_cselect_b32 s73, s29, s65")
        e(f"s_cselect_b32 s74, {64*MB}, s{S_NREC}") if False else None
        e(f"s_mov_b32 s74, {8*MB}")
        e(f"s_cselect_b32 s74, {64*MB}, s74")
        e(f"s_cmp_eq_u32 s{S_WAVE}, 2")
        e("s_cselect_b32 s72, s66, s72")
        e("s_cselect_b32 s73, s67, s73")
        e(f"s_cmp_eq_u32 s{S_WAVE}, 3")
        e("s_cselect_b32 s72, s68, s72")
        e("s_cselect_b32 s73, s69, s73")
        e(f"s_cselect_b32 s74, {3584*2048}, s74")
        e("s_mov_b32 s75, 0x20000")
        e("buffer_load_dword v4, s[72:75], 0 offen lds")
        srd(e, 72, 70, 71, 4 * MB)
        e("buffer_load_dword v4, s[72:75], 0 offen lds")


def wred64(e, v, t):
    for sh in (1, 2, 4, 8):
        e("s_nop 1")
        e(f"v_add_f32_dpp v{v}, v{v}, v{v} row_ror:{sh} row_mask:0xf bank_mask:0xf")
    e(f"v_mov_b32 v{t}, v{v}")
    e("s_nop 1")
    e(f"v_permlane32_swap_b32 v{v}, v{t}")
    e(f"v_add_f32 v{v}, v{v}, v{t}")
    e(f"v_mov_b32 v{t}, v{v}")
    e("s_nop 1")
    e(f"v_permlane16_swap_b32 v{v}, v{t}")
    e(f"v_add_f32 v{v}, v{v}, v{t}")


def alg_stats(e, G, pre):
    e("s_lshl_b32 s37, s2, 3")
    e(f"s_lshl_b32 s38, s{S_WAVE}, 1")
    e("s_add_u32 s37, s37, s38")
    e("s_lshl_b32 s37, s37, 11")
    srd(e, 64, 32, 33, 4 * MB)
    for k in range(4):
        e(f"buffer_load_dwordx4 v[{80+4*k}:{83+4*k}], v2, s[64:67], s37 offen offset:{1024*k}")
    nl = 4
    e(f"s_lshr_b32 s36, s{S_ROW0}, 8")
    plan = []
    vb = 96
    for r in G.regions:
        if r.typ == 'T':
            per = r.ng * 2
            nr = -(-per // 4)
            for j in range(nr):
                e(f"s_mul_i32 s34, s36, {per}")
                e(f"s_add_u32 s35, s{S_WAVE}, {4*j}")
                e("s_add_u32 s34, s34, s35")
                e(f"s_mul_i32 s38, s{S_COL0}, 176")
                e("s_add_u32 s34, s34, s38")
                e("s_cmp_lt_u32 s34, 1024")
                e("s_cselect_b32 s68, s20, s22")
                e("s_cselect_b32 s69, s21, s23")
                e("s_and_b32 s34, s34, 1023")
                e("s_lshl_b32 s34, s34, 11")
                e(f"s_cmp_lt_u32 s35, {per}")
                e(f"s_cselect_b32 s70, {2*MB}, 0")
                e("s_mov_b32 s71, 0x20000")
                e(f"buffer_load_dwordx4 v[{vb}:{vb+3}], v2, s[68:71], s34 offen")
                e(f"buffer_load_dwordx4 v[{vb+4}:{vb+7}], v2, s[68:71], s34 offen offset:1024")
                plan.append(('T', r, j, vb))
                vb += 8
        else:
            nch = r.ng * 2
            rpi = 64 // nch
            nld = 32 // rpi
            m1, sh1 = magic(nch, 64)
            e(f"v_mul_u32_u24 v3, {m1}, v1")
            e(f"v_lshrrev_b32 v3, {sh1}, v3")
            e(f"v_mul_u32_u24 v4, {nch}, v3")
            e("v_sub_u32 v4, v1, v4")
            e(f"v_mul_u32_u24 v5, 7168, v3")
            e("v_lshl_add_u32 v5, v4, 4, v5")
            e(f"v_cmp_gt_u32 vcc, {rpi}, v3")
            e("v_mov_b32 v6, 0x7ff00000")
            e("v_lshlrev_b32 v7, 5, v4")
            e("v_cndmask_b32 v5, v6, v5, vcc")
            e("v_cndmask_b32 v7, 0, v7, vcc")
            e(f"v_add_u32 v7, {LDS_PB + 64 + 64 * r.g0}, v7")
            srd(e, 72, 24, 25, 1024 * 7168)
            e("s_lshl_b32 s34, s36, 7")
            e(f"s_lshl_b32 s35, s{S_WAVE}, 5")
            e("s_add_u32 s34, s34, s35")
            e("s_mul_i32 s34, s34, 7168")
            e(f"s_mul_i32 s35, s{S_COL0}, 352")
            e("s_add_u32 s34, s34, s35")
            e(f"s_sub_u32 s34, s34, {(128 - r.g0) * 32}")
            for j in range(nld):
                e(f"buffer_load_dwordx4 v[{vb}:{vb+3}], v5, s[72:75], s34 offen")
                e(f"s_add_u32 s34, s34, {rpi*7168}")
                plan.append(('N', r, j, vb))
                vb += 4
    assert vb <= 256
    tot = 4 + sum(2 if p[0] == 'T' else 1 for p in plan)
    e("v_mov_b32 v8, 0x3f803f80")
    e("v_mov_b32 v9, 0x00003f80")
    e("v_mov_b32 v10, 0x3f800000")
    e(f"s_waitcnt vmcnt({tot-4})")
    e(f"s_lshl_b32 s34, s{S_WAVE}, 3")
    e(f"v_mov_b32 v11, s34")
    e(f"v_add_u32 v11, {LDS_PB}, v11")
    for rr in range(2):
        src = 80 + 8 * rr
        for i in range(8):
            e(f"v_lshlrev_b32 v{16+2*i}, 16, v{src+i}")
            e(f"v_and_b32 v{17+2*i}, 0xffff0000, v{src+i}")
        e("v_mov_b32 v12, 0")
        e("v_mov_b32 v13, 0")
        for i in range(4):
            e(f"v_dot2_f32_bf16 v12, v{src+2*i}, v8, v12")
            e(f"v_dot2_f32_bf16 v13, v{src+2*i+1}, v8, v13")
        e("s_nop 2")
        e("v_add_f32 v12, v12, v13")
        wred64(e, 12, 14)
        e("v_mul_f32 v12, 0x3a800000, v12")
        for i in range(16):
            e(f"v_sub_f32 v{16+i}, v{16+i}, v12")
        e("v_mul_f32 v13, v16, v16")
        e("v_mul_f32 v15, v17, v17")
        for i in range(1, 8):
            e(f"v_fmac_f32 v13, v{16+2*i}, v{16+2*i}")
            e(f"v_fmac_f32 v15, v{17+2*i}, v{17+2*i}")
        e("v_add_f32 v13, v13, v15")
        wred64(e, 13, 14)
        e("v_mul_f32 v13, 0x3a800000, v13")
        e("v_cvt_pk_bf16_f32 v14, v12, v13")
        e("v_lshlrev_b32 v12, 16, v14")
        e("v_and_b32 v13, 0xffff0000, v14")
        e("v_add_f32 v13, 0x3727c5ac, v13")
        e("v_cvt_pk_bf16_f32 v14, v13, v13")
        e("v_lshlrev_b32 v13, 16, v14")
        e("v_sqrt_f32 v13, v13")
        e("s_nop 0")
        e("v_cvt_pk_bf16_f32 v14, v13, v13")
        e("v_lshlrev_b32 v13, 16, v14")
        e("v_rcp_f32 v14, v13")
        e("s_nop 0")
        e("v_fma_f32 v15, -v13, v14, 1.0")
        e("v_fma_f32 v14, v15, v14, v14")
        e("v_mul_f32 v12, v12, v14")
        e(f"ds_write_b32 v11, v14 offset:{4*rr}")
        e(f"ds_write_b32 v11, v12 offset:{32+4*rr}")
    e("s_waitcnt vmcnt(0)")
    nacc = None
    for (typ, r, j, b) in plan:
        if typ == 'T':
            e("v_mov_b32 v12, 0")
            e("v_mov_b32 v13, 0")
            for i in range(4):
                e(f"v_dot2_f32_bf16 v12, v{b+2*i}, v8, v12")
                e(f"v_dot2_f32_bf16 v13, v{b+2*i+1}, v8, v13")
            e("s_nop 2")
            e("v_add_f32 v12, v12, v13")
            wred64(e, 12, 14)
            e(f"s_add_u32 s34, s{S_WAVE}, {4*j}")
            e("s_lshl_b32 s34, s34, 2")
            e(f"v_mov_b32 v13, s34")
            e(f"v_add_u32 v13, {LDS_PB + 896}, v13")
            e("ds_write_b32 v13, v12")
        else:
            if j == 0:
                for i in range(8):
                    e(f"v_mov_b32 v{16+i}, 0")
            for i in range(4):
                e(f"v_dot2_f32_bf16 v{16+2*i}, v{b+i}, v9, v{16+2*i}")
                e(f"v_dot2_f32_bf16 v{17+2*i}, v{b+i}, v10, v{17+2*i}")
            nacc = True
    if nacc:
        e("s_nop 2")
        for i in range(8):
            e(f"ds_add_f32 v7, v{16+i} offset:{4*i}")
    e("s_waitcnt lgkmcnt(0)")


def alg_publish(e, G):
    n = 0
    e("v_lshlrev_b32 v24, 2, v1")
    e(f"v_add_u32 v25, {LDS_PB}, v24")
    e("ds_read_b32 v26, v25")
    e("ds_read_b32 v27, v25 offset:896")
    e("v_lshlrev_b32 v28, 4, v1")
    e(f"v_add_u32 v29, {LDS_PB + 64}, v28")
    e("v_min_u32 v29, %d, v29" % (LDS_PB + 64 + 16 * 47))
    e("ds_read_b128 v[32:35], v29")
    e("v_mov_b32 v31, 0x7ff00000")
    e("v_and_b32 v25, 7, v1")
    e("v_lshlrev_b32 v25, 2, v25")
    e("v_lshrrev_b32 v30, 3, v1")
    e("v_lshl_add_u32 v25, v30, 13, v25")
    e("v_cmp_gt_u32 vcc, 16, v1")
    e("s_lshl_b32 s34, s2, 5")
    e("v_cndmask_b32 v25, v31, v25, vcc")
    e(f"s_lshr_b32 s36, s{S_ROW0}, 8")
    e("s_waitcnt lgkmcnt(0)")
    e("buffer_store_dword v26, v25, s[4:7], s34 offen sc1")
    n += 1
    for r in G.regions:
        if r.typ == 'T':
            per = r.ng * 2
            e(f"v_cmp_gt_u32 vcc, {per}, v1")
            e(f"s_mul_i32 s34, s36, {per*4}")
            e(f"s_mul_i32 s35, s{S_COL0}, 704")
            e("s_add_u32 s34, s34, s35")
            e("s_add_u32 s34, s34, 16384")
            e("v_cndmask_b32 v24, v31, v24, vcc")
            e("buffer_store_dword v27, v24, s[4:7], s34 offen sc1")
        else:
            e(f"v_cmp_gt_u32 vcc, 44, v1")
            e(f"s_mul_i32 s34, s36, {3584*4}")
            e(f"s_mul_i32 s35, s{S_COL0}, 704")
            e("s_add_u32 s34, s34, s35")
            e(f"s_add_u32 s34, s34, {32768 - 8192 + 1024}")
            e("v_cndmask_b32 v28, v31, v28, vcc")
            e(f"v_cmp_le_u32 vcc, {4*r.g0}, v1")
            e("s_nop 1")
            e("v_cndmask_b32 v28, v31, v28, vcc")
            e("s_sub_u32 s34, s34, 1024")
            e("buffer_store_dwordx4 v[32:35], v28, s[4:7], s34 offen sc1")
        n += 1
    return n


def alg_fetch(e, G, pre):
    e(f"s_lshr_b32 s{S_T0}, s{S_ROW0}, 3")
    e("v_and_b32 v24, 31, v1")
    e(f"v_add_u32 v24, s{S_T0}, v24")
    e(f"s_and_b32 s34, s{S_COL0}, 7")
    e("s_lshl_b32 s34, s34, 5")
    e(f"s_lshr_b32 s35, s{S_COL0}, 3")
    e("s_lshl_b32 s35, s35, 1")
    e("s_add_u32 s34, s34, s35")
    e("v_and_b32 v25, 3, v1")
    e("v_lshl_add_u32 v25, v25, 3, s34")
    e("v_lshrrev_b32 v26, 2, v1")
    e("v_and_b32 v26, 1, v26")
    e("v_add_u32 v25, v25, v26")
    e("v_cmp_gt_u32 vcc, 32, v1")
    e("s_nop 1")
    e("v_cndmask_b32 v24, v25, v24, vcc")
    e("v_lshlrev_b32 v24, 2, v24")
    poll(e, 24, 25, f"st{pre}", 2)
    e("v_lshlrev_b32 v28, 4, v1")
    e(f"s_lshl_b32 s34, s{S_ROW0}, 2")
    e(f"s_mov_b32 m0, {LDS_ST}")
    e("s_add_u32 s35, s34, 8192")
    e("buffer_load_dwordx4 v28, s[4:7], s34 offen sc1 lds")
    e(f"s_mov_b32 m0, {LDS_ST + 1024}")
    e("s_nop 0")
    e("buffer_load_dwordx4 v28, s[4:7], s35 offen sc1 lds")
    e(f"s_mul_i32 s34, s{S_COL0}, 704")
    e(f"v_add_u32 v29, {LDS_ST + 2048}, v28")
    e("v_mov_b32 v31, 0x7ff00000")
    e("v_cmp_gt_u32 vcc, 44, v1")
    e("s_nop 1")
    e("v_cndmask_b32 v28, v31, v28, vcc")
    e(f"v_min_u32 v29, {LDS_ST + 2048 + 16*47}, v29")
    hasT = any(r.typ == 'T' for r in G.regions)
    hasN = any(r.typ != 'T' for r in G.regions)
    if hasT:
        e("s_add_u32 s35, s34, 16384")
        e("buffer_load_dwordx4 v[32:35], v28, s[4:7], s35 offen sc1")
    if hasN:
        e(f"s_add_u32 s35, s34, {32768 - 8192}")
        g0 = [r.g0 for r in G.regions if r.typ != 'T'][0]
        if g0:
            e(f"v_cmp_le_u32 vcc, {4*g0}, v1")
            e("s_nop 1")
            e("v_cndmask_b32 v28, v31, v28, vcc")
        for k in range(8):
            e(f"buffer_load_dwordx4 v[{36+4*k}:{39+4*k}], v28, s[4:7], s35 offen sc1")
            e(f"s_add_u32 s35, s35, {3584*4}")
    e("s_waitcnt vmcnt(0)")
    if hasN:
        for k in range(1, 8):
            for x in range(4):
                e(f"v_add_f32 v{36+x}, v{36+x}, v{36+4*k+x}")
        if hasT:
            for x in range(4):
                e(f"v_cndmask_b32 v{32+x}, v{32+x}, v{36+x}, vcc")
        else:
            for x in range(4):
                e(f"v_mov_b32 v{32+x}, v{36+x}")
    e("ds_write_b128 v29, v[32:35]")
    e("s_waitcnt lgkmcnt(0)")


def combine(e, G, typ, q):
    uid = f"{q}"
    keep = [2 * q, 2 * q + 1]
    e("v_mbcnt_lo_u32_b32 v1, -1, 0")
    e("v_mbcnt_hi_u32_b32 v1, -1, v1")
    e("v_and_b32 v2, 15, v1")
    e("v_lshrrev_b32 v3, 4, v1")
    e("v_lshlrev_b32 v5, 4, v1")
    srd(e, S_SRD_O, 28, 29, 32 * MB, WS_PB)
    e(f"s_lshr_b32 s34, s{S_ROW0}, 5")
    e(f"s_lshr_b32 s35, s{S_COL0}, 7")
    e("s_add_u32 s34, s34, s35")
    e("s_lshl_b32 s34, s34, 4")
    e(f"s_add_u32 s34, s34, s{S_WAVE}")
    e("s_lshl_b32 s34, s34, 15")
    e(f"s_add_u32 s35, s34, {q * 131072}")
    for m in range(8):
        if m in keep:
            continue
        e(f"s_add_u32 s{S_T2}, s35, {m*4096}")
        if typ == 'y' or OPT.get('ob'):
            for c in range(2):
                t = 16 + ((2 * m + c) & 7) * 4
                for qq in range(2):
                    a = G.acc(m, 2 * c + qq)
                    e(f"v_cvt_pk_bf16_f32 v{t+2*qq}, v{a}, v{a+1}")
                    e(f"v_cvt_pk_bf16_f32 v{t+2*qq+1}, v{a+2}, v{a+3}")
                e(f"buffer_store_dwordx4 v[{t}:{t+3}], v5, s[{S_SRD_O}:{S_SRD_O+3}], s{S_T2} offen offset:{c*1024} sc1")
        else:
            for n in range(4):
                a = G.acc(m, n)
                e(f"buffer_store_dwordx4 v[{a}:{a+3}], v5, s[{S_SRD_O}:{S_SRD_O+3}], s{S_T2} offen offset:{n*1024} sc1")
    e("s_lshr_b32 s36, s34, 12")
    e("s_and_b32 s36, s36, 0xff80")
    e(f"s_add_u32 s36, s36, {FLC}")
    e(f"s_add_u32 s37, s36, {4*q}")
    signal(e, 3, f"c{uid}", [37])
    OPT['sbase'] = 0
    stamp3(e, 8)
    e("s_load_dwordx2 s[20:21], s[0:1], 0")
    e("s_load_dwordx4 s[24:27], s[0:1], 72")
    e("v_mbcnt_lo_u32_b32 v1, -1, 0")
    e("v_mbcnt_hi_u32_b32 v1, -1, v1")
    e(f"s_lshr_b32 s{S_T0}, s{S_WAVE}, 1")
    e(f"s_lshl_b32 s{S_T0}, s{S_T0}, 7")
    e(f"s_add_u32 s{S_T0}, s{S_T0}, s{S_ROW0}")
    e(f"s_add_u32 s{S_T0}, s{S_T0}, {32*q}")
    e(f"s_and_b32 s{S_T1}, s{S_WAVE}, 1")
    e(f"s_lshl_b32 s{S_T1}, s{S_T1}, 6")
    e(f"s_add_u32 s{S_T1}, s{S_T1}, s{S_COL0}")
    e(f"v_add_u32 v6, s{S_T0}, v2")
    e("v_lshlrev_b32 v6, 11, v6")
    e(f"v_lshl_add_u32 v7, v3, 2, s{S_T1}")
    e("v_lshlrev_b32 v7, 1, v7")
    e("v_add_u32 v8, v6, v7")
    e("v_and_b32 v4, 1, v3")
    e("v_lshlrev_b32 v4, 4, v4")
    e("v_lshrrev_b32 v9, 1, v3")
    e("v_lshl_add_u32 v4, v9, 3, v4")
    e(f"v_add_u32 v4, s{S_T1}, v4")
    e("v_lshl_add_u32 v9, v4, 1, v6")
    e("v_and_b32 v10, 3, v1")
    e("v_lshl_add_u32 v10, v10, 2, s36")
    e("s_waitcnt lgkmcnt(0)")
    srd(e, 64, 20, 21, 4 * MB)
    srd(e, 68, 24, 25, 2048)
    srd(e, 72, 26, 27, 4 * MB)
    XA = 240
    for mi in range(2):
        for n in range(4):
            e(f"buffer_load_dwordx2 v[{XA+8*mi+2*n}:{XA+8*mi+2*n+1}], v8, s[64:67], 0 offen offset:{mi*0+n*32}" if mi == 0 else
              f"buffer_load_dwordx2 v[{XA+8*mi+2*n}:{XA+8*mi+2*n+1}], v12, s[64:67], 0 offen offset:{n*32}")
        if mi == 0:
            e("v_add_u32 v12, 0x8000, v8")
    for n in range(4):
        e(f"buffer_load_dwordx2 v[{72+2*n}:{73+2*n}], v7, s[68:71], 0 offen offset:{n*32}")
    poll(e, 10, 11, f"c{uid}", OPT.get('slc', 4))
    stamp3(e, 9)
    ysrc = [s for s in (0, 1) if s != q]
    osrc = [s for s in (2, 3) if s != q]
    loc = {}
    pool_v = []
    pool_a = [G.acc(m, n) for m in range(8) if m not in keep for n in range(4)]
    for mi, m in enumerate(keep):
        for s_ in ysrc + osrc:
            nch = 2 if (s_ < 2 or OPT.get('ob')) else 4
            e(f"s_add_u32 s{S_T2}, s34, {s_*131072 + m*4096}")
            for c in range(nch):
                if pool_a:
                    r = ('v', pool_a.pop(0))
                else:
                    r = ('v', pool_v.pop(0))
                loc[(mi, s_, c)] = r
                e(f"buffer_load_dwordx4 {r[0]}[{r[1]}:{r[1]+3}], v5, s[{S_SRD_O}:{S_SRD_O+3}], s{S_T2} offen offset:{c*1024} sc1")
    assert len(loc) <= 18 or True
    e("s_mov_b32 s37, 0xbfb8aa3b")
    nld = len(loc) // 2

    def get(dst, r, k):
        if r[0] == 'a':
            e(f"v_accvgpr_read_b32 v{dst}, a{r[1]+k}")
        else:
            e(f"v_mov_b32 v{dst}, v{r[1]+k}")

    def rnd(base, tmp):
        for i in range(4):
            e(f"v_cvt_pk_bf16_f32 v{tmp+i}, v{base+2*i}, v{base+2*i+1}")
        for i in range(4):
            e(f"v_lshlrev_b32 v{base+2*i}, 16, v{tmp+i}")
            e(f"v_and_b32 v{base+2*i+1}, 0xffff0000, v{tmp+i}")

    def unpack(dst, r):
        for i in range(4):
            if r[0] == 'a':
                e(f"v_accvgpr_read_b32 v{dst+2*i+1}, a{r[1]+i}")
                e(f"v_lshlrev_b32 v{dst+2*i}, 16, v{dst+2*i+1}")
                e(f"v_and_b32 v{dst+2*i+1}, 0xffff0000, v{dst+2*i+1}")
            else:
                e(f"v_lshlrev_b32 v{dst+2*i}, 16, v{r[1]+i}")
                e(f"v_and_b32 v{dst+2*i+1}, 0xffff0000, v{r[1]+i}")

    A, B, TM = 12, 20, 28
    PR = lambda r_, h: f"v[{r_+2*h}:{r_+2*h+1}]"
    for mi, m in enumerate(keep):
        e(f"s_waitcnt vmcnt({nld if mi == 0 else 2})")
        for c in range(2):
            own = G.acc(m, 2 * c)
            for k, s_ in enumerate((0, 1)):
                dst = A if k == 0 else B
                if s_ == q:
                    for i in range(4):
                        e(f"v_cvt_pk_bf16_f32 v{TM+i}, v{own+2*i}, v{own+2*i+1}")
                    unpack(dst, ('v', TM))
                else:
                    unpack(dst, loc[(mi, s_, c)])
            for h in range(4):
                e(f"v_pk_add_f32 {PR(A,h)}, {PR(A,h)}, {PR(B,h)}")
            rnd(A, TM)
            if OPT.get('ob'):
                for k, s_ in enumerate((2, 3)):
                    dst = B if k == 0 else 32
                    if s_ == q:
                        for i in range(4):
                            e(f"v_cvt_pk_bf16_f32 v{TM+i}, v{own+2*i}, v{own+2*i+1}")
                        unpack(dst, ('v', TM))
                    else:
                        unpack(dst, loc[(mi, s_, c)])
                for h in range(4):
                    e(f"v_pk_add_f32 {PR(B,h)}, {PR(B,h)}, {PR(32,h)}")
            for qq in range(2 if not OPT.get('ob') else 0):
                n = 2 * c + qq
                src = [G.acc(m, n) if s_ == q else loc[(mi, s_, n)][1] for s_ in (2, 3)]
                for h in range(2):
                    e(f"v_pk_add_f32 {PR(B+4*qq,h)}, {PR(src[0],h)}, {PR(src[1],h)}")
            rnd(B, TM)
            for qq in range(2):
                bb = 72 + 2 * (2 * c + qq)
                e(f"v_lshlrev_b32 v{TM}, 16, v{bb}")
                e(f"v_and_b32 v{TM+1}, 0xffff0000, v{bb}")
                e(f"v_lshlrev_b32 v{TM+2}, 16, v{bb+1}")
                e(f"v_and_b32 v{TM+3}, 0xffff0000, v{bb+1}")
                for h in range(2):
                    e(f"v_pk_add_f32 {PR(B+4*qq,h)}, {PR(B+4*qq,h)}, {PR(TM,h)}")
            rnd(B, TM)
            U = 32
            for x in range(8):
                e(f"v_mul_f32 v{U+x}, s37, v{B+x}")
            for x in range(8):
                e(f"v_exp_f32 v{U+x}, v{U+x}")
            for x in range(8):
                e(f"v_add_f32 v{U+x}, 1.0, v{U+x}")
            for x in range(8):
                e(f"v_rcp_f32 v{U+x}, v{U+x}")
            for h in range(4):
                e(f"v_pk_mul_f32 {PR(B,h)}, {PR(B,h)}, {PR(U,h)}")
            rnd(B, TM)
            for h in range(4):
                e(f"v_pk_mul_f32 {PR(A,h)}, {PR(A,h)}, {PR(B,h)}")
            rnd(A, TM)
            unpack(B, ('v', XA + 8 * mi + 4 * c))
            for h in range(4):
                e(f"v_pk_add_f32 {PR(A,h)}, {PR(A,h)}, {PR(B,h)}")
            O = 40 + 4 * (2 * mi + c)
            for i in range(4):
                e(f"v_cvt_pk_bf16_f32 v{O+i}, v{A+2*i}, v{A+2*i+1}")
            e(f"s_mov_b32 s{S_T2}, {mi*32768}")
            e("s_nop 0")
            e(f"v_permlane16_swap_b32 v{O}, v{O+2}")
            e(f"v_permlane16_swap_b32 v{O+1}, v{O+3}")
            e(f"buffer_store_dwordx4 v[{O}:{O+3}], v9, s[72:75], s{S_T2} offen offset:{c*64}")


def gen_ln_prologue(e):
    e("s_waitcnt lgkmcnt(0)")
    srd(e, 64, 32, 33, 4 * MB)
    e("buffer_load_dwordx4 v[4:7], v2, s[64:67], s37 offen")
    e("buffer_load_dwordx4 v[8:11], v2, s[64:67], s37 offen offset:1024")
    srd(e, 4, 28, 29, 256)
    e("s_mov_b64 s[28:29], s[30:31]")
    srd(e, S_DBG, 28, 29, 16384, WS_FL)
    e("v_mov_b32 v70, 0")
    e("v_mov_b32 v71, 0")
    e("s_cmp_lg_u32 s39, 4")
    e("s_cbranch_scc1 nonce_done")
    e("s_cmp_lg_u32 s2, 0")
    e("s_cbranch_scc1 nonce_poll")
    e("s_memrealtime s[100:101]")
    e("s_waitcnt lgkmcnt(0)")
    e("s_or_b32 s100, s100, 1")
    e("v_mov_b32 v71, s100")
    e("buffer_store_dword v71, v70, s[4:7], 0 offen sc1")
    e("s_branch nonce_done")
    e.lab("nonce_poll")
    e("buffer_load_dword v71, v70, s[4:7], 0 offen sc1")
    e.lab("nonce_done")
    srd(e, S_SRD_R, 28, 29, 2048 * XS, WS_XN)
    if OPT.get('tlb'):
        e(f"buffer_load_dword v72, v2, s[{S_SRD_R}:{S_SRD_R+3}], s38 offen")
        e(f"buffer_load_dword v73, v70, s[{S_DBG}:{S_DBG+3}], 0 offen")


def gen_fused(e):
    X = OPT['X']
    khead(e, KNAME)
    e("s_cmp_ge_u32 s2, 256")
    e("s_cbranch_scc1 k_done")
    e("s_load_dwordx2 s[32:33], s[0:1], 0")
    if OPT.get('pfc'):
        e("s_getpc_b64 s[36:37]")
        e.lab("entry_pc")
        e("v_lshlrev_b32 v60, 7, v0")
        e("v_min_u32 v60, k_done-entry_pc, v60")
        e("global_load_dword v61, v60, s[36:37]")
    e("s_load_dwordx4 s[20:23], s[0:1], 24")
    e("s_load_dwordx4 s[24:27], s[0:1], 48")
    e("s_load_dwordx4 s[28:31], s[0:1], 88")
    lane_wave(e, 'B')
    e(f"s_mov_b32 s39, s{S_T2}")
    e("s_lshl_b32 s30_, s2, 3".replace("s30_", "s38"))
    e("s_add_u32 s38, s38, s39")
    e("v_lshlrev_b32 v2, 4, v1")
    e("s_lshl_b32 s37, s38, 11")
    e(f"s_mul_i32 s38, s38, {XS}")
    e(f"v_mov_b32 v3, {LDS_CNT}")
    e("v_mov_b32 v4, 0")
    e("v_mov_b32 v5, 0")
    e("v_mov_b32 v6, 0")
    e("v_mov_b32 v7, 0")
    e("ds_write_b128 v3, v[4:7]")
    e("ds_write_b128 v3, v[4:7] offset:16")
    e("ds_write_b128 v3, v[4:7] offset:48")
    if OPT.get('alg'):
        e(f"v_add_u32 v8, {LDS_PB}, v2")
        e("ds_write_b128 v8, v[4:7]")
        e("s_waitcnt lgkmcnt(0)")
        e("s_barrier")
        srd(e, 68, 28, 29, 256)
        e("s_mov_b64 s[100:101], s[28:29]")
        e("s_mov_b64 s[28:29], s[30:31]")
        srd(e, S_DBG, 28, 29, 16384, WS_FL)
        e("s_cmp_lg_u32 s39, 4")
        e("s_cbranch_scc1 nonce_done")
        e("s_cmp_lg_u32 s2, 0")
        e("s_cbranch_scc1 nonce_done")
        e("s_memrealtime s[34:35]")
        e("v_mov_b32 v12, 0")
        e("s_waitcnt lgkmcnt(0)")
        e("s_or_b32 s34, s34, 1")
        e("v_mov_b32 v13, s34")
        e("buffer_store_dword v13, v12, s[68:71], 0 offen sc1")
        e.lab("nonce_done")
        srd(e, S_SRD_R, 32, 33, 4 * MB)
    else:
        gen_ln_prologue(e)
    e("s_and_b32 s30, s2, 1")
    e("s_lshl_b32 s30, s30, 2")
    e("s_lshr_b32 s31, s2, 3")
    e(f"s_and_b32 s{S_ROW0}, s31, 3")
    e(f"s_add_u32 s{S_ROW0}, s{S_ROW0}, s30")
    e(f"s_lshl_b32 s{S_ROW0}, s{S_ROW0}, 8")
    e("s_and_b32 s30, s2, 6")
    e("s_lshl_b32 s30, s30, 2")
    e(f"s_lshr_b32 s{S_COL0}, s31, 2")
    e(f"s_add_u32 s{S_COL0}, s{S_COL0}, s30")
    e(f"s_mov_b32 s{S_NS}, 16")
    e(f"s_mov_b32 s{S_KR}, 0")
    e(f"s_mov_b32 s{S_KC}, 0")
    e(f"s_mov_b32 s{S_KN}, 0")
    if not OPT.get('alg'):
        if OPT.get('early'):
            for q_ in range(64, 88, 4):
                srd(e, q_, 28, 29, 0)
            for v_ in range(200, 216):
                e(f"v_mov_b32 v{v_}, 0")
            e("s_cmp_lt_u32 s39, 4")
            e("s_cbranch_scc1 ln_w")
            e(f"s_cmp_lt_u32 s{S_COL0}, 11")
            e("s_cbranch_scc1 g1d_early")
            e(f"s_cmp_eq_u32 s{S_COL0}, 11")
            e("s_cbranch_scc1 g1m_early")
            e("s_branch g1f_early")
            e.lab("ln_w")
        if OPT.get('dg'): stamp3(e, 5, True)
        e("s_waitcnt vmcnt(0)")
        e.lab("ln_go")
        if OPT.get('dg'): stamp3(e, 6, True)
        ln_body(e)
        e(f"buffer_store_dwordx4 v[4:7], v2, s[{S_SRD_R}:{S_SRD_R+3}], s38 offen sc1")
        e(f"buffer_store_dwordx4 v[8:11], v2, s[{S_SRD_R}:{S_SRD_R+3}], s38 offen offset:1024 sc1")
        if OPT.get('dg'): stamp3(e, 7, True)
    e(f"s_cmp_lt_u32 s{S_COL0}, 11")
    e("s_cbranch_scc1 g1d_start")
    e(f"s_cmp_eq_u32 s{S_COL0}, 11")
    e("s_cbranch_scc1 g1m_start")
    e("s_branch g1f_start")

    variants = {
        'g1d': [Region('T', 0, 11, 0, 2048)],
        'g1m': [Region('T', 0, 7, 0, 2048), Region('Nadd', 7, 4, 16384, 7168)],
        'g1f': [Region('Nadd', 0, 11, 0, 7168)],
    }
    for pre, regs in variants.items():
        orient = []
        for r in regs:
            orient += ['RA' if r.typ == 'T' else 'CA'] * r.ng
        G = Gemm(e, pre, 'B', 2, 4, 11, 4, 1, regs, 2048 if OPT.get('alg') else XS, 'C', orient, nsteps=16)
        G.sc1R = not OPT.get('alg')
        G.accv = ACC
        if OPT.get('rot1'):
            G.rot = (OPT['rot1'], OPT.get('rotmul1', 1))
        e.lab(f"{pre}_start")

        def cset(ri, j, so, G=G, pre=pre):
            r = G.regions[ri]
            if r.typ == 'T':
                e(f"s_mul_i32 s{S_T0}, s{S_COL0}, 22")
                e(f"s_mul_i32 s{S_T1}, s{G.lw}, {r.DW*G.mult}")
                e(f"s_add_u32 s{S_T1}, s{S_T1}, {j}")
                e(f"s_add_u32 s{S_T0}, s{S_T0}, s{S_T1}")
                e(f"s_cmp_lt_u32 s{S_T0}, 128")
                e(f"s_cselect_b32 s{so}, s20, s22")
                e(f"s_cselect_b32 s{so+1}, s21, s23")
                e(f"s_and_b32 s{S_T0}, s{S_T0}, 127")
                e(f"s_lshl_b32 s{S_T0}, s{S_T0}, 14")
                e(f"s_cmp_lt_u32 s{S_T1}, {r.ninstr}")
                e(f"s_cselect_b32 s{so+2}, {2*MB}, 0")
                e(f"s_mov_b32 s{so+3}, 0x20000")
                e(f"s_cselect_b32 s{S_T0}, s{S_T0}, 4096")
            else:
                srd(e, so, 24, 25, 1024 * 7168)
                e(f"s_mul_i32 s{S_T0}, s{S_COL0}, 352")
                e(f"s_sub_u32 s{S_T0}, s{S_T0}, {(128 - r.g0) * 32}")

        e("s_cmp_ge_u32 s39, 4")
        e(f"s_cbranch_scc0 {pre}_comp")

        def mid1(pre=pre):
            e("s_waitcnt vmcnt(0)")
            e(f"s_cmp_lg_u32 s{S_WAVE}, 0")
            e(f"s_cbranch_scc1 {pre}_nn")
            e(f"s_mov_b32 s{S_T2}, {SPIN_MAX}")
            e.lab(f"{pre}_nl")
            e("v_cmp_eq_u32 vcc, 0, v71")
            e(f"s_cbranch_vccz {pre}_ng")
            e("s_sleep 1")
            e("buffer_load_dword v71, v70, s[4:7], 0 offen sc1")
            e("s_waitcnt vmcnt(0)")
            e(f"s_sub_u32 s{S_T2}, s{S_T2}, 1")
            e(f"s_cmp_lg_u32 s{S_T2}, 0")
            e(f"s_cbranch_scc1 {pre}_nl")
            e.lab(f"{pre}_ng")
            e(f"v_mov_b32 v2, {LDS_NONCE}")
            e("ds_write_b32 v2, v71")
            e("s_waitcnt lgkmcnt(0)")
            e.lab(f"{pre}_nn")
            e("s_barrier")
            get_nonce(e, 2)
            e(f"s_cmp_lg_u32 s{S_WAVE}, 0")
            e(f"s_cbranch_scc1 {pre}_nf")
            e("s_lshl_b32 s37, s2, 2")
            e("v_mov_b32 v2, 0")
            e(f"v_mov_b32 v3, s{S_NONCE}")
            e("s_mov_b64 exec, 1")
            e(f"buffer_store_dword v3, v2, s[{S_DBG}:{S_DBG+3}], s37 offen sc1")
            e("s_mov_b64 exec, -1")
            e.lab(f"{pre}_nf")

        def mid(nind, pre=pre):
            if not OPT.get('cpoll'):
                e(f"s_lshr_b32 s{S_T0}, s{S_ROW0}, 1")
                e("v_and_b32 v2, 31, v1")
                e(f"v_lshl_add_u32 v2, v2, 2, s{S_T0}")
                lpoll(e, 2, 3, 1, pre, 1)
                return
            e(f"v_mov_b32 v4, {LDS_GO + 4}")
            e(f"s_mov_b32 s{S_T2}, {SPIN_MAX * 20}")
            e.lab(f"lwl_{pre}")
            e("ds_read_b32 v3, v4")
            e("s_waitcnt lgkmcnt(0)")
            e("v_cmp_ne_u32 vcc, 1, v3")
            e(f"s_cbranch_vccz lwd_{pre}")
            e("s_sleep 1")
            e(f"s_sub_u32 s{S_T2}, s{S_T2}, 1")
            e(f"s_cmp_lg_u32 s{S_T2}, 0")
            e(f"s_cbranch_scc1 lwl_{pre}")
            e.lab(f"lwd_{pre}")
        if not OPT.get('alg') and OPT.get('order', 1):
            mid1()
        if OPT.get('early'):
            e(f"s_branch {pre}_post")
            e.lab(f"{pre}_early")
            G.vL = 200
        asym = OPT.get('asym', 'R')
        if asym in ('R', 'C'):
            G.splitring = True
            G.SR, G.SC = (3, 2) if asym == 'R' else (2, 3)
            G.CB = G.SR * RT
            G.wc = 92
            G.loader_setup(1, 232 if OPT.get('early') else 2, cset)
            gr, gc = split_dma(G)
            grp = {'R': gr, 'C': gc}
            dep = {'R': G.SR, 'C': G.SC}
            szs = {'R': RT, 'C': G.CS}
            wrs = {'R': S_WR, 'C': 92}
            kis = {'R': S_KI, 'C': 63}
            lefts = {'R': S_LEFT, 'C': 93}

            def book(part):
                out = book_part(G, part)[:-1]
                out = [x.replace(f"s{S_KI}", f"s{kis[part]}") for x in out]
                w = wrs[part]
                out += [f"s_add_u32 s{w}, s{w}, {szs[part]}",
                        f"s_cmp_ge_u32 s{w}, {szs[part]*dep[part]}",
                        f"s_cselect_b32 s{w}, 0, s{w}",
                        f"s_sub_u32 s{lefts[part]}, s{lefts[part]}, 1",
                        f"s_cmp_lt_i32 s{lefts[part]}, 1"]
                for sr in (G.srds[:1] if part == 'R' else G.srds[1:]):
                    out.append(f"s_cselect_b32 s{sr+2}, 0, s{sr+2}")
                return out
            G.loader_init()
            e("s_mov_b32 s92, 0")
            e(f"s_mov_b32 s93, s{S_NS}")
            if G.rot:
                e(f"s_mov_b32 s63, s{S_KI}")
            for st in range(G.SC):
                for g in gc:
                    e.ext(g)
                e.ext(book('C'))
            if OPT.get('early'):
                e(f"s_waitcnt vmcnt({len(gc) * G.SC})")
                e("s_branch ln_go")
                e.lab(f"{pre}_post")
            if not OPT.get('alg') and not OPT.get('order', 1):
                mid1()
            if not OPT.get('alg'):
                mid(len(gc) * G.SC)
            for st in range(G.SR):
                for g in gr:
                    e.ext(g)
                e.ext(book('R'))
            sh, dp = ('C', 'R') if asym == 'R' else ('R', 'C')
            e(f"s_waitcnt vmcnt({(G.SR-1)*len(gr)})")
            e("s_barrier")
            e(f"s_mov_b32 s{S_CNT}, s{S_NS}")
            e(f"s_waitcnt vmcnt({(G.SR-2)*len(gr)})")
            if OPT.get('alg'):
                e(f"s_cmp_eq_u32 s{S_WAVE}, 0")
                e("s_cselect_b32 s89, 14, 99")
                e("s_cselect_b32 s90, 13, 99")
                e("s_cselect_b32 s91, 3, 99")
                srd(e, 4, 28, 29, 1 * MB, WS_STAT)
                srd(e, 12, 100, 101, 256)
                e("v_mov_b32 v37, 0")
                e("v_mov_b32 v36, 0")
            e(f"s_branch {pre}_lmid")
            if OPT.get('alg'):
                e.lab(f"{pre}_sA")
                alg_publish(e, G)
                e("buffer_load_dword v36, v37, s[12:15], 0 offen sc1")
                e(f"s_branch {pre}_sAr")
                e.lab(f"{pre}_sB")
                e(f"s_mov_b32 s{S_T2}, {SPIN_MAX}")
                e.lab(f"{pre}_sBl")
                e("v_cmp_eq_u32 vcc, 0, v36")
                e(f"s_cbranch_vccz {pre}_sBd")
                e("s_sleep 2")
                e("buffer_load_dword v36, v37, s[12:15], 0 offen sc1")
                e("s_waitcnt vmcnt(0)")
                e(f"s_sub_u32 s{S_T2}, s{S_T2}, 1")
                e(f"s_cmp_lg_u32 s{S_T2}, 0")
                e(f"s_cbranch_scc1 {pre}_sBl")
                e.lab(f"{pre}_sBd")
                e(f"v_readfirstlane_b32 s{S_NONCE}, v36")
                e(f"v_mov_b32 v38, {LDS_NONCE}")
                e("ds_write_b32 v38, v36")
                e("s_lshl_b32 s34, s2, 2")
                e("s_mov_b64 exec, 1")
                e(f"buffer_store_dword v36, v37, s[{S_DBG}:{S_DBG+3}], s34 offen sc1")
                e("s_mov_b64 exec, -1")
                e("s_waitcnt lgkmcnt(0)")
                e(f"s_branch {pre}_lmid")
                e.lab(f"{pre}_sC")
                alg_fetch(e, G, pre)
                e(f"s_branch {pre}_lmid")
            e.lab(f"{pre}_lloop")
            e(f"s_waitcnt vmcnt({len(grp[dp])})")
            if OPT.get('alg'):
                e(f"s_cmp_eq_u32 s{S_CNT}, s90")
                e(f"s_cbranch_scc1 {pre}_sB")
                e(f"s_cmp_eq_u32 s{S_CNT}, s91")
                e(f"s_cbranch_scc1 {pre}_sC")
            e.lab(f"{pre}_lmid")
            e("s_barrier")
            if OPT.get('alg'):
                e(f"s_cmp_eq_u32 s{S_CNT}, s89")
                e(f"s_cbranch_scc1 {pre}_sA")
                e.lab(f"{pre}_sAr")
            for g in grp[sh]:
                e.ext(g)
            for g in grp[dp]:
                e.ext(g)
            e.ext(book('R'))
            e.ext(book('C'))
            e(f"s_sub_u32 s{S_CNT}, s{S_CNT}, 1")
            e(f"s_cmp_lg_u32 s{S_CNT}, 0")
            e(f"s_cbranch_scc1 {pre}_lloop")
            e("s_branch g2_loader")
        else:
            G.loader_setup(1, 2, cset)
            loader_phase(e, G, 'C', mid, True)
            e("s_branch g2_loader")
        e.lab(f"{pre}_comp")
        if OPT.get('alg'):
            alg_stats(e, G, pre)
        else:
            e("s_waitcnt vmcnt(0)")
            if OPT.get('dg'): stamp3(e, 8, True)
            e("s_barrier")
            if OPT.get('dg'): stamp3(e, 9, True)
            get_nonce(e, 4)
        if not OPT.get('alg') and OPT.get('cpoll'):
            e(f"s_cmp_lg_u32 s{S_WAVE}, 0")
            e(f"s_cbranch_scc1 {pre}_np0")
            e(f"s_lshr_b32 s{S_T0}, s{S_ROW0}, 1")
            e("v_and_b32 v4, 31, v1")
            e(f"v_lshl_add_u32 v4, v4, 2, s{S_T0}")
            poll(e, 4, 5, pre, OPT.get('sl1', 1))
            e(f"v_mov_b32 v4, {LDS_GO + 4}")
            e("v_mov_b32 v5, 1")
            e("ds_write_b32 v4, v5")
            e.lab(f"{pre}_np0")
        warm(e, pre)
        if OPT.get('pfl'):
            G.pfl = True
            e("s_load_dwordx2 s[64:65], s[0:1], 8")
            e("s_load_dwordx2 s[68:69], s[0:1], 16")
            e("s_load_dwordx2 s[70:71], s[0:1], 64")
            e(f"s_mov_b32 m0, {LDS_CNT + 256}")
            e("s_lshl_b32 s74, s2, 2")
            e(f"s_add_u32 s74, s74, s{S_WAVE}")
            e("s_lshl_b32 s74, s74, 13")
            e("s_mov_b32 s94, s74")
            e(f"s_mov_b32 s66, {8*MB}")
            e("s_mov_b32 s67, 0x20000")
            e(f"s_mov_b32 s72, {8*MB}")
            e(f"s_mov_b32 s73, {3584*2048}")
            e(f"v_cmp_gt_u32 vcc, {16*OPT['pfl']}, v1")
            e("v_lshlrev_b32 v30, 7, v1")
            e("v_mov_b32 v31, 0x7ff00000")
            e("v_cndmask_b32 v30, v31, v30, vcc")
            e("s_waitcnt lgkmcnt(0)")
        e(f"v_mov_b32 v{G.vfrag0+16}, v1")
        G.compute_setup(G.vfrag0 + 16, G.vfrag0)
        if getattr(G, 'pfl', False):
            e("v_mov_b32 v3, v30")
        G.compute_loop(X)
        if OPT.get('alg'):
            get_nonce(e, 4)
        g1_epi3(e, G, pre)
        stamp3(e, 11)
        offs = {'g1d': [34], 'g1m': [34, 35], 'g1f': [35]}[pre]
        if OPT.get('defer', 1) and pre == 'g1f':
            e("s_mov_b32 s94, 28")
            e("s_add_u32 s74, s35, 1024")
            e("s_mov_b32 s75, s35")
        else:
            e("s_mov_b32 s94, 99")
            signal(e, 2, pre, offs)
        stamp3(e, 4)
        e("s_branch g2_comp")

    def g2_common():
        e("s_load_dwordx4 s[20:23], s[0:1], 8")
        e("s_load_dwordx2 s[24:25], s[0:1], 64")
        e("v_mbcnt_lo_u32_b32 v1, -1, 0")
        e("v_mbcnt_hi_u32_b32 v1, -1, v1")
        e("s_lshr_b32 s30, s2, 1")
        e("s_and_b32 s30, s30, 2")
        e("s_and_b32 s31, s2, 1")
        e("s_add_u32 s30, s30, s31")
        e("s_and_b32 s31, s2, 2")
        e("s_lshl_b32 s31, s31, 1")
        e("s_lshr_b32 s32, s2, 3")
        e(f"s_and_b32 s{S_ROW0}, s32, 3")
        e(f"s_add_u32 s{S_ROW0}, s{S_ROW0}, s31")
        e(f"s_lshl_b32 s{S_ROW0}, s{S_ROW0}, 8")
        e(f"s_lshr_b32 s{S_COL0}, s32, 2")
        e(f"s_lshl_b32 s{S_COL0}, s{S_COL0}, 7")
        e(f"s_mov_b32 s{S_KC}, 0")
        e("s_waitcnt lgkmcnt(0)")

    Gs = {}
    for pre, regs, rstride, ns in (('g2y', [Region('T', 0, 8, 0, ATS)], 4096, 32), ('g2o', [Region('Nxor', 0, 8, 0, 2048)], 0, 28)):
        G = Gemm(e, pre, 'B', 3, 8, 4, 2, 2, regs, rstride, 'R', ['CA'] * 4, nsteps=ns)
        G.accv = ACC
        if pre == 'g2y':
            G.sc1C = True
            G.cblk = AG
        else:
            G.sc1R = True
            G.rblk = HG
        if OPT.get('rot2') and (pre == 'g2y' or OPT.get('rot2o')):
            G.rot = (OPT['rot2'], OPT.get('rotmul2', 1))
        Gs[pre] = G
    e.lab("g2_loader")
    g2_common()
    if OPT.get('alg'):
        get_nonce(e, 2)
    e("s_cmp_ge_u32 s30, 2")
    e("s_cbranch_scc1 g2o_lstart")
    for pre, G in Gs.items():
        e.lab(f"{pre}_lstart")
        if pre == 'g2y':
            e(f"s_mov_b32 s{S_NS}, 32")
            e(f"s_mov_b32 s{S_KR}, 0")
            e("s_cmp_eq_u32 s30, 0")
            e(f"s_cselect_b32 s{S_SRD_R}, s20, s22")
            e(f"s_cselect_b32 s{S_SRD_R+1}, s21, s23")
            e(f"s_mov_b32 s{S_SRD_R+2}, {8*MB}")
            e(f"s_mov_b32 s{S_SRD_R+3}, 0x20000")
        else:
            e("s_and_b32 s33, s30, 1")
            e(f"s_sub_u32 s{S_NS}, 31, s33")
            e(f"s_mul_i32 s{S_KR}, s33, {31*2048}")
            e(f"s_mul_i32 s{S_KN}, s33, {1824*2048}")
            e("s_mov_b32 s68, 0")
            e("s_mov_b32 s69, 0")
            e("s_mul_i32 s70, s33, 98")
            e("s_add_u32 s70, s70, 1")
            e("s_sub_u32 s71, 11, s33")
            e("s_add_u32 s72, s71, 10")
            e(f"s_mul_i32 s73, s33, {30*2048}")
            e("s_add_u32 s73, s73, 2048")
            e(f"s_mul_i32 s74, s33, {1760*2048}")
            e(f"s_add_u32 s74, s74, {64*2048}")

            def stepper(cnt, reg, base, inc, qinc):
                return [f"s_add_u32 s{cnt}, s{cnt}, 1",
                        f"s_add_u32 s{reg}, s{reg}, {inc}",
                        f"s_cmp_eq_u32 s{cnt}, s70",
                        f"s_cselect_b32 s{reg}, s{base}, s{reg}",
                        f"s_add_u32 s{S_T0}, s{base}, {qinc}",
                        f"s_cmp_eq_u32 s{cnt}, s71",
                        f"s_cselect_b32 s{reg}, s{S_T0}, s{reg}",
                        f"s_add_u32 s{S_T0}, s{base}, {2*qinc}",
                        f"s_cmp_eq_u32 s{cnt}, s72",
                        f"s_cselect_b32 s{reg}, s{S_T0}, s{reg}"]
            G.kn_step = stepper(68, S_KN, 74, 176 * 2048, 64 * 2048)
            G.kr_step = stepper(69, S_KR, 73, 6144, 2048)
            G.late = True
            srd(e, S_SRD_R, 28, 29, 128 * HG, WS_H)

        def cset(ri, j, so, G=G):
            r = G.regions[ri]
            if r.typ == 'T':
                srd(e, so, 28, 29, 128 * AG, WS_AT)
                e(f"s_lshl_b32 s{S_T0}, s30, 10")
                e(f"s_add_u32 s{S_T0}, s{S_T0}, s{S_COL0}")
                e(f"s_lshl_b32 s{S_T1}, s{S_WAVE}, 5")
                e(f"s_add_u32 s{S_T0}, s{S_T0}, s{S_T1}")
                e(f"s_add_u32 s{S_T0}, s{S_T0}, {16*(j>>1)}")
                e(f"s_mul_i32 s{S_T0}, s{S_T0}, {AG//16}")
                e(f"s_add_u32 s{S_T0}, s{S_T0}, {1024*(j&1)}")
            else:
                srd(e, so, 24, 25, 3584 * 2048)
                e(f"s_lshl_b32 s{S_T0}, s{S_COL0}, 1")
        G.loader_setup(1, 2, cset)

        def mid(nind, pre=pre):
            if pre == 'g2y':
                e(f"s_lshl_b32 s{S_T0}, s30, 10")
                e(f"s_add_u32 s{S_T0}, s{S_T0}, s{S_COL0}")
                e("v_and_b32 v2, 8, v1")
                e("v_lshlrev_b32 v2, 4, v2")
                e("v_min_u32 v2, 127, v2")
                e(f"v_add_u32 v2, s{S_T0}, v2")
                m1, sh1 = magic(176, 2048)
                e(f"v_mul_u32_u24 v2, {m1}, v2")
                e(f"v_lshrrev_b32 v2, {sh1}, v2")
                e("v_and_b32 v3, 7, v1")
                e("v_lshlrev_b32 v4, 7, v2")
                e("v_lshl_add_u32 v4, v3, 2, v4")
                e(f"v_add_u32 v4, {FLY}, v4")
            else:
                e("v_and_b32 v2, 15, v1")
                e("s_sub_u32 s34, 10, s33")
                e("v_min_u32 v2, s34, v2")
                e("s_mul_i32 s34, s33, 11")
                e("s_add_u32 s34, s34, 11")
                e("v_add_u32 v2, s34, v2")
                e(f"s_lshr_b32 s34, s{S_ROW0}, 1")
                e(f"s_add_u32 s34, s34, {FLO}")
                e("v_lshl_add_u32 v4, v2, 2, s34")
                e("v_and_b32 v2, 15, v1")
                e("v_min_u32 v2, 9, v2")
                e("s_mul_i32 s35, s33, 40")
                e("s_add_u32 s35, s35, s34")
                e(f"s_add_u32 s35, s35, {48 + 1024}")
                e("v_lshl_add_u32 v22, v2, 2, s35")
                e("v_and_b32 v2, 16, v1")
                e("v_lshl_add_u32 v22, v2, 6, v22")
            lpoll(e, 4, 5, 2, pre, OPT.get('sl2', 4))
        loader_phase(e, G, 'R' if pre == 'g2y' else 'C', mid, True)
        e("s_endpgm")
    e.lab("g2_comp")
    g2_common()
    e("s_cmp_ge_u32 s30, 2")
    e("s_cbranch_scc1 g2o_cstart")
    for pre, G in Gs.items():
        e.lab(f"{pre}_cstart")
        if pre == 'g2y':
            e(f"s_mov_b32 s{S_NS}, 32")
        else:
            e("s_and_b32 s33, s30, 1")
            e(f"s_sub_u32 s{S_NS}, 31, s33")
        e(f"v_mov_b32 v{G.vfrag0+16}, v1")
        G.compute_setup(G.vfrag0 + 16, G.vfrag0)
        OPT['sbase'] = 4
        if OPT.get('defer', 1):
            G.stub = ("s94", lambda pre=pre: signal(e, 2, f"d{pre}", [75, 74], 0, 72))
        G.compute_loop(X)
        OPT['sbase'] = 0
        e("s_and_b32 s33, s30, 1")
        e("s_cmp_eq_u32 s33, 1")
        e(f"s_cbranch_scc1 {pre}_e1")
        q0 = 0 if pre == 'g2y' else 2
        combine(e, G, pre[-1], q0)
        stamp3_out(e)
        e("s_endpgm")
        e.lab(f"{pre}_e1")
        combine(e, G, pre[-1], q0 + 1)
        stamp3_out(e)
        e("s_endpgm")
    e.lab("k_done")
    e("s_endpgm")
    kdesc(e, KNAME, 256, 256)


def main():
    out = sys.argv[1]
    for a in sys.argv[2:]:
        k, v = a.split("=")
        OPT[k] = int(v) if v.lstrip('-').isdigit() else v
    e = E()
    gen_fused(e)
    hdr = open("cdna_kernels/%s.s.ref" % KN).read().split("; Override launch")[0]
    hdr += f"; @launch grid=(256,1,1) block=(512,1,1) lds={LDS_TOTAL if OPT.get('alg') else LDS_CNT + 512}\n"
    hdr += '.amdgcn_target "amdgcn-amd-amdhsa--gfx950"\n.text\n'
    open(out, "w").write(hdr + "\n".join(e.L) + "\n")


if __name__ == "__main__":
    main()
```
